```python
import torch

def _softmax(x, axis=-1):
    return torch.softmax(x, dim=axis)

def _gelu(x):
    return torch.nn.functional.gelu(x, approximate='tanh')

def _silu(x):
    return torch.nn.functional.silu(x)

def _sigmoid(x):
    return torch.sigmoid(x)

def _layernorm(x, axis=-1, eps=1e-05):
    m = x.mean(dim=axis, keepdim=True)
    v = x.var(dim=axis, keepdim=True, unbiased=False)
    return (x - m) / torch.sqrt(v + eps)

def _scatter_add(tgt, idx, src, axis=0):
    return tgt.clone().index_add_(axis, idx, src)

def _segment_sum(src, seg, n):
    out = torch.zeros((n,) + src.shape[1:], dtype=src.dtype)
    return out.index_add_(0, seg, src)

def _pad(x, pw):
    flat = tuple((v for pair in reversed(pw) for v in pair))
    return torch.nn.functional.pad(x, flat)
kernel_name = 'parallel_sum__memory_aug_recurrent_mem_tr__dense_activation_squared_relu__prompt'

def setup_inputs():

    _w = lambda a: (lambda t: t.to(torch.bfloat16) if t.is_floating_point() else t)(torch.as_tensor(a))

    def _A_setup():
        B, S, Dm = (1, 2048, 512)
        H, Dh = (32, 128)
        M, seg = (8, 32)
        seg = min(seg, S)
        S = S // seg * seg
        return {'x': _w((lambda *s: torch.randn(*s, dtype=torch.bfloat16) * 0.05)(B, S, Dm)), 'mem0': _w((lambda *s: torch.randn(*s, dtype=torch.bfloat16) * 1.6)(B, M, Dm)), 'Wq': _w((lambda *s: torch.randn(*s, dtype=torch.bfloat16) * 0.8)(Dm, H, Dh) * Dm ** (-0.5)), 'Wk': _w((lambda *s: torch.randn(*s, dtype=torch.bfloat16) * 0.8)(Dm, H, Dh) * Dm ** (-0.5)), 'Wv': _w((lambda *s: torch.randn(*s, dtype=torch.bfloat16) * 1.6)(Dm, H, Dh) * Dm ** (-0.5)), 'Wo': _w((lambda *s: torch.randn(*s, dtype=torch.bfloat16) * 1.6)(H, Dh, Dm) * (H * Dh) ** (-0.5)), 'seg_len': seg}
    _A_in = _A_setup()

    def _B_setup():
        B, S, D, F = (1, 2048, 512, 1792)
        return {'x': _w((lambda *s: torch.randn(*s, dtype=torch.bfloat16) * 0.05)(B, S, D)), 'w1': _w((lambda *s: torch.randn(*s, dtype=torch.bfloat16) * 0.05)(D, F)), 'b1': _w((lambda *s: torch.randn(*s, dtype=torch.bfloat16) * 0.2)(F)), 'w2': _w((lambda *s: torch.randn(*s, dtype=torch.bfloat16) * 0.05)(F, D)), 'b2': _w((lambda *s: torch.randn(*s, dtype=torch.bfloat16) * 0.8)(D))}
    _B_in = _B_setup()
    return {'A_x': _A_in['x'], 'A_mem0': _A_in['mem0'], 'A_Wq': _A_in['Wq'], 'A_Wk': _A_in['Wk'], 'A_Wv': _A_in['Wv'], 'A_Wo': _A_in['Wo'], 'A_seg_len': _A_in['seg_len'], 'B_x': _B_in['x'], 'B_w1': _B_in['w1'], 'B_b1': _B_in['b1'], 'B_w2': _B_in['w2'], 'B_b2': _B_in['b2']}

def reference(A_x, A_mem0, A_Wq, A_Wk, A_Wv, A_Wo, A_seg_len, B_x, B_w1, B_b1, B_w2, B_b2):

    def _A_ref(x, mem0, Wq, Wk, Wv, Wo, seg_len):
        B, S, Dm = x.shape
        H, Dh = (Wq.shape[1], Wq.shape[2])
        M = mem0.shape[1]
        scale = Dh ** (-0.5)
        n_seg = S // seg_len
        L = M + seg_len
        idx = torch.arange(L)
        mask = (idx[:, None] < M) | (idx[:, None] >= idx[None, :])
        mem = mem0
        outs = []
        for s in range(n_seg):
            xs = x[:, s * seg_len:(s + 1) * seg_len, :].clone()
            h = torch.concatenate([mem, xs], axis=1)
            q = torch.einsum('btd,dhe->bhte', h, Wq)
            k = torch.einsum('btd,dhe->bhte', h, Wk)
            v = torch.einsum('btd,dhe->bhte', h, Wv)
            scores = torch.einsum('bhqe,bhke->bhqk', q, k) * scale
            scores = torch.where(mask[None, None], scores, -1000000000.0)
            p = _softmax(scores, axis=-1)
            o = torch.einsum('bhqk,bhke->bhqe', p, v)
            o = torch.einsum('bhte,hed->btd', o, Wo)
            mem = o[:, :M, :].clone()
            outs.append(o[:, M:, :])
        return torch.concatenate(outs, axis=1)

    def _B_ref(x, w1, b1, w2, b2):
        h = torch.einsum('bsd,df->bsf', x, w1) + b1
        zero = torch.zeros_like(h)
        r = torch.where(h > zero, h, zero)
        h = r * r
        out = torch.einsum('bsf,fd->bsd', h, w2) + b2
        return out
    x = A_x
    xn = _layernorm(x, axis=-1)
    return x + _A_ref(xn, A_mem0, A_Wq, A_Wk, A_Wv, A_Wo, A_seg_len) + _B_ref(xn, B_w1, B_b1, B_w2, B_b2)
```

```python
import re

REG_RE = re.compile(r'\b([vsa])(\d+)\b|\b([vsa])\[(\d+):(\d+)\]|\b(vcc|exec|m0|scc)\b')

def regs_of(tok):
    out = set()
    for m in REG_RE.finditer(tok):
        if m.group(1):
            out.add((m.group(1), int(m.group(2))))
        elif m.group(3):
            for i in range(int(m.group(4)), int(m.group(5)) + 1):
                out.add((m.group(3), i))
        else:
            out.add(('x', m.group(6)))
    return out

TRANS = ('v_exp_', 'v_log_', 'v_rcp_', 'v_rsq_', 'v_sqrt_', 'v_sin_', 'v_cos_')

class Ins:
    __slots__ = ('text', 'mn', 'ops', 'kind', 'defs', 'uses', 'cset', 'abset', 'nws', 'label', 'target', 'wide_store', 'dpp')
    def __init__(self, text):
        self.text = text
        t = text.split(';')[0].strip()
        self.label = None; self.target = None
        self.defs = set(); self.uses = set(); self.cset = set(); self.abset = set()
        self.nws = 1; self.wide_store = set(); self.dpp = False
        if t.endswith(':'):
            self.kind = 'label'; self.label = t[:-1]; self.mn = ''; self.ops = []; self.nws = 0
            return
        if t == '' or t.startswith('.'):
            self.kind = 'dir'; self.mn = ''; self.ops = []; self.nws = 0
            return
        parts = t.split(None, 1)
        mn = parts[0]; self.mn = mn
        rest = parts[1] if len(parts) > 1 else ''
        ops = [o.strip() for o in re.split(r',(?![^\[]*\])', rest)] if rest else []
        self.ops = ops
        R = [regs_of(o) for o in ops]
        allr = set().union(*R) if R else set()
        if mn.startswith('v_mfma') or mn.startswith('v_smfmac'):
            self.kind = 'mfma'
            self.defs = R[0]; self.abset = R[1] | R[2]
            if mn.startswith('v_smfmac'):
                self.cset = R[0]; self.abset |= R[3]
            else:
                self.cset = R[3]
            self.uses = self.abset | self.cset
        elif mn.startswith('v_'):
            self.kind = 'valu'
            self.dpp = 'row_' in t or 'quad_perm' in t
            if mn.startswith('v_cmp'):
                self.defs = R[0]; self.uses = set().union(*R[1:])
            elif mn.startswith('v_permlane') and 'swap' in mn:
                self.defs = R[0] | R[1]; self.uses = R[0] | R[1]
            elif mn.startswith(('v_add_co', 'v_sub_co', 'v_addc_co', 'v_subb_co')):
                self.defs = R[0] | R[1]; self.uses = set().union(*R[2:])
            else:
                self.defs = R[0]; self.uses = set().union(*R[1:]) if len(R) > 1 else set()
                if mn.startswith(('v_fmac', 'v_dot2c', 'v_pk_fmac', 'v_writelane')): self.uses |= R[0]
                if mn.startswith('v_cndmask') and len(R) == 3: self.uses.add(('x', 'vcc'))
        elif mn.startswith('ds_'):
            self.kind = 'ds'
            if mn.startswith('ds_read') or mn.startswith('ds_bperm') or mn.startswith('ds_swizzle'):
                self.defs = R[0]; self.uses = set().union(*R[1:])
            else:
                self.uses = allr
        elif mn.startswith(('buffer_', 'global_')):
            self.kind = 'vmem'
            islds = re.search(r'\blds\b', t) is not None or '_lds_' in mn
            if 'load' in mn and not islds:
                self.defs = R[0]; self.uses = set().union(*R[1:])
            elif 'atomic' in mn and re.search(r'\bsc0\b', t):
                if mn.startswith('global'):
                    self.defs = R[0]; self.uses = set().union(*R[1:])
                else:
                    self.defs = R[0]; self.uses = allr
            else:
                self.uses = allr
                if islds: self.uses.add(('x', 'm0'))
                if 'store' in mn and ('x4' in mn or 'x3' in mn):
                    self.wide_store = R[0] if mn.startswith('buffer') else R[1]
        elif mn.startswith('s_'):
            self.kind = 'salu'
            if mn == 's_nop':
                self.nws = int(ops[0], 0) + 1
            elif mn.startswith(('s_cbranch', 's_branch')):
                self.kind = 'branch'; self.target = ops[0]
            elif mn.startswith(('s_cmp', 's_waitcnt', 's_barrier', 's_sleep', 's_endpgm', 's_setprio', 's_bitcmp')):
                self.uses = allr
            else:
                self.defs = R[0] if R else set(); self.uses = set().union(*R[1:]) if len(R) > 1 else set()
        else:
            raise ValueError('unknown instr ' + text)

def need_ws(p, c):
    n = 0
    pv = p.kind == 'valu'
    vdefs = {r for r in p.defs if r[0] in 'va'}
    sdefs = {r for r in p.defs if r[0] == 's' or r == ('x', 'vcc')}
    if pv:
        if c.kind == 'mfma' and vdefs & c.uses: n = max(n, 2)
        if c.kind == 'valu':
            if p.mn.startswith(TRANS) and not c.mn.startswith(TRANS) and vdefs & c.uses: n = max(n, 1)
            if c.mn.startswith('v_permlane') and vdefs & c.uses: n = max(n, 2)
            if c.mn.startswith(('v_readfirstlane', 'v_readlane')) and vdefs & c.uses: n = max(n, 1)
            if c.dpp and vdefs & c.uses: n = max(n, 2)
            if sdefs & c.uses: n = max(n, 4 if c.mn.startswith(('v_readlane', 'v_writelane')) else 2)
            if p.mn.startswith('v_dot2') and (vdefs & (c.uses | c.defs)) and c.mn != p.mn: n = max(n, 3)
        if c.kind == 'vmem' and sdefs & c.uses: n = max(n, 5)
        if p.mn.startswith('v_dot2') and c.kind in ('mfma', 'vmem', 'ds') and vdefs & c.uses: n = max(n, 3)
    if p.kind == 'mfma':
        big = '32x32' in p.mn
        A, B = (12, 10) if big else (8, 6)
        if c.kind == 'valu' and p.defs & (c.uses | c.defs): n = max(n, A)
        if c.kind in ('vmem', 'ds') and p.defs & (c.uses | c.defs): n = max(n, A)
        if c.kind == 'mfma':
            if p.defs & c.abset: n = max(n, A)
            if p.defs & c.cset and (p.defs != c.cset or p.mn != c.mn): n = max(n, B)
            if p.defs & c.defs and p.defs != c.cset: n = max(n, B)
        if c.kind == 'valu' and p.cset & c.defs: n = max(n, 7 if big else 3)
    if p.wide_store and c.kind == 'valu' and p.wide_store & c.defs: n = max(n, 2)
    if p.wide_store and c.kind in ('ds', 'vmem', 'mfma') and p.wide_store & c.defs: n = max(n, 1)
    if p.kind == 'salu' and ('x', 'm0') in p.defs and c.kind == 'vmem' and ('x', 'm0') in c.uses: n = max(n, 1)
    return n

def times(seq):
    t = 0; last_mfma = -1000; last_len = 16; out = []
    for i in seq:
        if i.nws == 0:
            out.append(t); continue
        if i.kind == 'mfma': t = max(t, last_mfma + last_len)
        elif i.kind == 'valu': t = max(t, last_mfma + 8)
        out.append(t)
        if i.kind == 'mfma':
            last_mfma = t; last_len = 32 if '32x32' in i.mn else 16
        t += 4 * i.nws
    return out

WIN = 16
def fix_seq(seq, log=None):
    out = []
    for c in seq:
        if c.nws == 0:
            out.append(c); continue
        win = [x for x in out[-3*WIN:] if x.nws][-WIN:]
        tt = times(win + [c])
        short = 0
        for p, tp in zip(win, tt[:-1]):
            n = need_ws(p, c)
            if n:
                miss = 4 * (n + 1) - (tt[-1] - tp)
                if miss > short: short = miss; why = p
        while short > 0:
            for k in range(0, 16):
                nop = Ins('s_nop %d' % k)
                tt = times(win + [nop, c])
                miss = max([4 * (need_ws(p, c) + 1) - (tt[-1] - tp) for p, tp in zip(win, tt) if need_ws(p, c)] + [0])
                if miss <= 0: break
            out.append(nop); win.append(nop)
            if log is not None: log.append((nop.text, why.text, c.text))
            short = miss
        out.append(c)
    return out

def check_edges(seq):
    pos = {i.label: k for k, i in enumerate(seq) if i.label}
    bad = []
    for k, b in enumerate(seq):
        if b.kind != 'branch' or b.target not in pos: continue
        pre = [x for x in seq[max(0, k - 3*WIN):k + 1] if x.nws][-WIN:]
        post = []
        j = pos[b.target]
        while j < len(seq) and len(post) < WIN:
            x = seq[j]
            if x.nws: post.append(x)
            if x.mn in ('s_branch', 's_endpgm'): break
            j += 1
        al = pre + post
        tt = times(al)
        for a in range(len(pre)):
            for c in range(len(pre), len(al)):
                n = need_ws(al[a], al[c])
                if n and tt[c] - tt[a] < 4 * (n + 1):
                    bad.append((b.text, al[a].text, al[c].text))
    return bad

class Asm:
    def __init__(self):
        self.l = []
    def __call__(self, s):
        for line in s.split('\n'):
            line = line.strip()
            if line: self.l.append(line)
    def finish(self, verbose=True):
        seq = [Ins(x) for x in self.l]
        log = []
        seq = fix_seq(seq, log)
        bad = check_edges(seq)
        if verbose:
            import sys
            for x in log: print('  nop:', x, file=sys.stderr)
        if bad:
            for x in bad: print('EDGE HAZARD', x)
            raise SystemExit(1)
        return '\n'.join((x.text if x.kind == 'label' else '    ' + x.text) for x in seq)
```

```python
def emit(G, mode):
    globals().update(G)
    ST = "sc1" if mode else ""
    Ln = lambda s: f"L_c{mode}_{s}"
    W = "s[40:43]"
    WSTR = 36864
    L_M = 0; L_X = L_M + 8192; L_P = L_X + 4096 + 512; L_O = L_P + 1024; L_W = 16384
    assert L_O + 2048 <= L_W
    M = 0
    AQ0, AQ1, AK0, AK1, AV0, AV1 = 32, 36, 40, 44, 48, 52
    VW = 56; KT = 88; VT = 104; QF = 112
    vIDX, vW16, vMR1, vMR2, vMR3, vVW, vXW, vQR, vKR, vFLG, vPR, vOW, vL16, vRL, vMS, vSEL = range(128, 144)
    WOB = 144
    sStep, sMc, sMn, sMp, sPc, sPp, sSK, sSV, sPF, sKM, sVM, sFl, sKv = range(44, 57)
    sRd = list(range(57, 65))
    sSENT, sONE, sMLO = 66, 68, 70
    sC, sInf, sLlo, sLrg, sW1k, sLo, sHi, sPW = range(72, 80)
    sT = 80
    lds_slot = {}
    order = [('v', 0, 0), ('v', 1, 0), ('v', 0, 1), ('v', 1, 1),
             ('q', 1, 4), ('q', 1, 6), ('k', 0, 2), ('k', 0, 4), ('k', 0, 6), ('k', 1, 2), ('k', 1, 4), ('k', 1, 6),
             ('v', 0, 2), ('v', 1, 2), ('v', 0, 3), ('v', 1, 3), ('o', 7, 0), ('o', 7, 1)]
    for i, f in enumerate(order): lds_slot[f] = i
    areg = {}
    n = 0
    for mt in 'qkv':
        for tt in range(2):
            for sg in range(8):
                if (mt, tt, sg) not in lds_slot: areg[(mt, tt, sg)] = 8 * n; n += 1
    assert n == 32
    wo_reg = lambda t, k: WOB + (t * 2 + k) * 8

    e(f"L_chain{mode}:")
    if OPT['skip_chain']:
        e("s_branch L_end"); return
    h = S_IDX; w = S_WAVE
    e(f"v_lshrrev_b32 v1, 4, v0\nv_and_b32 v2, 15, v0")
    e(f"v_lshlrev_b32 v{vL16}, 4, v0")
    e(f"s_lshl_b32 s{sT}, s{w}, 11\nv_add_u32 v{vW16}, s{sT}, v{vL16}")
    for u, r in ((1, vMR1), (2, vMR2), (3, vMR3)):
        e(f"s_add_u32 s{sT}, s{w}, {u}\ns_and_b32 s{sT}, s{sT}, 3\ns_lshl_b32 s{sT}, s{sT}, 11\nv_add_u32 v{r}, s{sT}, v{vL16}")
    e(f"s_mul_i32 s{sT}, s{w}, {WSTR}\ns_add_u32 s{sT}, s{sT}, {L_W}\nv_add_u32 v{vVW}, s{sT}, v{vL16}")
    e(f"v_mov_b32 v{vIDX}, 0x4444\nv_mov_b32 v3, 0xeeee\nv_and_b32 v4, 2, v2\nv_cmp_eq_u32 vcc, 0, v4\nv_cndmask_b32 v{vIDX}, v3, v{vIDX}, vcc")
    e(f"s_lshl_b32 s{sW1k}, s{w}, 10\nv_lshrrev_b32 v3, 2, v2\nv_lshlrev_b32 v3, 7, v3\nv_lshl_add_u32 v3, v1, 5, v3\nv_and_b32 v4, 3, v2\nv_lshl_add_u32 v3, v4, 2, v3")
    e(f"v_add_u32 v3, s{sW1k}, v3\nv_add_u32 v{vXW}, {L_X}, v3")
    e(f"v_and_b32 v4, 7, v2\nv_lshlrev_b32 v4, 4, v4\nv_lshl_add_u32 v{vQR}, v1, 7, v4")
    e(f"v_lshrrev_b32 v3, 2, v2\nv_and_b32 v4, 1, v2\nv_lshl_add_u32 v3, v3, 1, v4\nv_lshlrev_b32 v3, 4, v3\nv_lshl_add_u32 v{vKR}, v1, 7, v3")
    e(f"s_lshr_b32 s{sPW}, s{w}, 1\ns_lshl_b32 s{sPW}, s{sPW}, 3")
    e(f"v_lshrrev_b32 v5, 3, v2\nv_lshl_add_u32 v{vPR}, v5, 9, v{vQR}")
    e(f"v_and_b32 v3, 6, v2\nv_lshlrev_b32 v3, 1, v3\nv_and_b32 v4, 1, v2\nv_add_u32 v3, v3, v4\nv_lshl_add_u32 v3, v1, 4, v3\nv_lshlrev_b32 v3, 4, v3\nv_lshl_add_u32 v3, v5, 3, v3")
    e(f"s_lshr_b32 s{sT}, s{w}, 1\ns_lshl_b32 s{sT}, s{sT}, 10\ns_and_b32 s{sT+1}, s{w}, 1\ns_lshl_b32 s{sT+1}, s{sT+1}, 5\ns_add_u32 s{sT}, s{sT}, s{sT+1}\nv_add_u32 v{vOW}, s{sT}, v3")
    sI, sWp, sQ = sT + 2, sT + 3, sT + 4
    e(f"s_lshr_b32 s{sI}, s{w}, 1\ns_and_b32 s{sT}, s{w}, 1\ns_lshl_b32 s{sT+1}, s{h}, 1\ns_add_u32 s{sT}, s{sT}, s{sT+1}\ns_lshr_b32 s{sWp}, s{sT}, 4\ns_and_b32 s{sQ}, s{sT}, 15")
    e(f"s_lshl_b32 s{sT}, s{sWp}, 1\ns_add_u32 s{sT}, s{sT}, s{sI}")
    e(f"s_lshl_b32 s{sT+5}, s{sT}, 10\ns_lshl_b32 s{sT+1}, s{sQ}, 6\ns_add_u32 s{sT+1}, s{sT+1}, s{sT+5}")
    e(f"v_mul_u32_u24 v3, {HS}, v1\nv_lshl_add_u32 v3, v2, 2, v3\nv_add_u32 v{vRL}, s{sT+1}, v3")
    e(f"s_and_b32 s{sT+6}, s{sQ}, 3\ns_lshr_b32 s{sT+7}, s{sQ}, 2\ns_lshl_b32 s{sT}, s{sT+6}, 8\ns_add_u32 s{sT}, s{sT}, s{sT+5}\ns_lshl_b32 s{sT+1}, s{sT+7}, 6\ns_add_u32 s{sT}, s{sT}, s{sT+1}")
    e(f"v_and_b32 v3, 3, v2\nv_lshrrev_b32 v4, 2, v2\nv_lshlrev_b32 v6, 4, v3\nv_lshl_add_u32 v6, v4, 2, v6\nv_add_u32 v6, s{sT}, v6")
    e(f"v_mov_b32 v7, {OOB:#x}\nv_cmp_eq_u32 vcc, 0, v1\nv_cndmask_b32 v{vMS}, v7, v6, vcc")
    e(f"v_and_b32 v6, 1, v3\nv_lshlrev_b32 v6, 10, v6\nv_lshrrev_b32 v8, 1, v3\nv_lshl_add_u32 v6, v8, 2, v6\nv_lshl_add_u32 v6, v4, 4, v6")
    e(f"s_lshl_b32 s{sT}, s{sT+7}, 11\ns_lshl_b32 s{sT+1}, s{sWp}, 8\ns_add_u32 s{sT}, s{sT}, s{sT+1}\ns_lshl_b32 s{sT+1}, s{sT+6}, 6\ns_add_u32 s{sT}, s{sT}, s{sT+1}\ns_lshl_b32 s{sT+1}, s{sI}, 3\ns_add_u32 s{sT}, s{sT}, s{sT+1}")
    srd(40, P_MEM0, 8192)
    e(f"buffer_load_dword v9, v6, {W}, s{sT} offen")
    e(f"v_mov_b32 v{vSEL}, 0\nv_mov_b32 v3, 0x3f80\nv_cmp_eq_u32 vcc, 0, v2\nv_cndmask_b32 v{vSEL}, v{vSEL}, v3, vcc\nv_mov_b32 v3, 0x3f800000\nv_cmp_eq_u32 vcc, 1, v2\nv_cndmask_b32 v{vSEL}, v{vSEL}, v3, vcc")
    e(f"s_mov_b32 s{sStep}, 0\ns_mov_b32 s{sMc}, {WS_M}\ns_mov_b32 s{sMn}, {WS_M+8192}\ns_mov_b32 s{sMp}, {WS_M+16384}")
    e(f"s_mul_i32 s{sPc}, s{h}, {HS}\ns_add_u32 s{sPc}, s{sPc}, {WS_P:#x}\ns_add_u32 s{sPp}, s{sPc}, {PRING:#x}")
    for i in range(8): e(f"s_mov_b32 s{sRd[i]}, {WS_P + i*4*HS:#x}")
    e(f"s_lshl_b32 s{sT}, s{h}, 13\ns_lshr_b32 s{sT+1}, s{w}, 1\ns_lshl_b32 s{sT+1}, s{sT+1}, 12\ns_add_u32 s{sSK}, s{sT}, s{sT+1}\ns_add_u32 s{sSK}, s{sSK}, {WS_K:#x}")
    e(f"s_lshl_b32 s{sT+1}, s{w}, 11\ns_add_u32 s{sSV}, s{sT}, s{sT+1}\ns_add_u32 s{sSV}, s{sSV}, {WS_V:#x}")
    e(f"s_and_b32 s{sT+1}, s{w}, 1\ns_lshl_b32 s{sT+1}, s{sT+1}, 12\ns_add_u32 s{sPF}, s{sT}, s{sT+1}\ns_lshr_b32 s{sT+1}, s{w}, 1\ns_lshl_b32 s{sT+1}, s{sT+1}, 24\ns_add_u32 s{sPF}, s{sPF}, s{sT+1}\ns_add_u32 s{sPF}, s{sPF}, {WS_K+262144:#x}")
    e(f"s_lshl_b32 s{sT}, s{h}, 12\ns_add_u32 s{sT}, s{sT}, s{sW1k}\ns_add_u32 s{sKM}, s{sT}, {WS_KM:#x}\ns_add_u32 s{sVM}, s{sT}, {WS_VM:#x}")
    e(f"s_lshl_b32 s{sT}, s{h}, 7\ns_add_u32 s{sT}, s{sT}, {WS_FLAG+F_PROG:#x}\ns_cmp_eq_u32 s{w}, 0\ns_cselect_b32 s{sFl}, s{sT}, {OOB:#x}")
    e(f"s_mov_b32 s{sSENT}, {SENT:#x}\ns_mov_b32 s{sSENT+1}, {SENT:#x}\ns_mov_b32 s{sONE}, 0x3f803f80\ns_mov_b32 s{sONE+1}, 0x3f803f80")
    e(f"s_mov_b32 s{sMLO}, 0x00ff00ff\ns_mov_b32 s{sMLO+1}, 0x00ff00ff\ns_mov_b32 s{sC}, {CSCALE:#x}\ns_mov_b32 s{sInf}, {INF:#x}")
    LLO, LHI = fbits(2.0 ** -60), fbits(2.0 ** 60)
    e(f"s_mov_b32 s{sLlo}, {LLO:#x}\ns_mov_b32 s{sLrg}, {(0 if OPT['force_fallback'] else LHI-LLO):#x}\ns_mov_b32 s{sLo}, 0x05040100\ns_mov_b32 s{sHi}, 0x07060302")
    e(f"v_mov_b64 v[12:13], s[{sSENT}:{sSENT+1}]\nv_mov_b64 v[14:15], s[{sSENT}:{sSENT+1}]")
    for s in (sPc, sPp):
        for o in (0, 1024): e(f"buffer_store_dwordx4 v[12:15], v{vW16}, {WS}, s{s} offen offset:{o} {ST}")
    e(f"buffer_store_dword v12, v{vMS}, {WS}, s{sMn} offen {ST}\nbuffer_store_dword v12, v{vMS}, {WS}, s{sMp} offen {ST}")
    e(f"s_waitcnt vmcnt(6)\nbuffer_store_dword v9, v{vMS}, {WS}, s{sMc} offen {ST}")
    e("s_waitcnt vmcnt(0)\ns_barrier")
    e(f"s_cmp_eq_u32 s{w}, 0\ns_cbranch_scc0 {Ln('na')}")
    e(f"s_mov_b64 exec, 1\nv_mov_b32 v3, 0\nv_mov_b32 v4, 1\nglobal_atomic_add v3, v4, s[{P_DBG}:{P_DBG+1}] offset:12\ns_mov_b64 exec, -1")
    e(f"{Ln('na')}:")
    vWA, vTS, vAD = 10, 11, 16
    e(f"v_and_b32 v3, 3, v2\nv_lshrrev_b32 v4, 2, v2\nv_lshl_add_u32 v3, v3, 2, v4\nv_lshlrev_b32 v3, 4, v3\nv_lshl_add_u32 v3, v1, 17, v3")
    e(f"s_lshl_b32 s{sT}, s{w}, 20\ns_lshl_b32 s{sT+1}, s{h}, 8\ns_add_u32 s{sT}, s{sT}, s{sT+1}\nv_add_u32 v{vWA}, s{sT}, v3")
    e(f"s_lshl_b32 s{sT}, s{w}, 12\ns_add_u32 s{sT}, s{sT}, {L_M}\nv_add_u32 v{vTS}, s{sT}, v{vL16}")
    e(f"s_lshl_b32 s{sT+8}, s{w}, 3")
    RAW = [20, 144]
    TQ = [84, 88, 92]
    rounds = [(mt, par) for mt in 'qkv' for par in range(2)]
    ptr = {'q': P_WQ, 'k': P_WK, 'v': P_WV}
    def qkv_loads(ri):
        mt, par = rounds[ri]
        srd(40, ptr[mt], 0x400000)
        for j2 in range(8):
            for hb in range(2):
                row = 64 * (j2 >> 2) + 8 * ((j2 & 3) >> 1) + 4 * par + 2 * (j2 & 1) + hb
                e(f"s_mov_b32 s{sT}, {row*8192:#x}\nbuffer_load_dwordx4 {vr(RAW[ri&1]+(j2*2+hb)*4,4)}, v{vWA}, {W}, s{sT} offen")
    placed = set(); plan = []
    for ri, (mt, par) in enumerate(rounds):
        fr = [(mt, tt, sg) for tt in range(2) for sg in range(par, 8, 2)]
        for f in fr:
            if f in lds_slot: placed.add(lds_slot[f])
        free = [s for s in range(19, -1, -1) if s not in placed]
        loc = {}
        for f in fr:
            loc[f] = lds_slot[f] if f in lds_slot else free.pop(0)
        plan.append(loc)
    absslot = lambda wd, s: (8 + wd * 18 + s) if s < 18 else (wd * 2 + s - 18)
    vWO = 17
    e(f"v_lshrrev_b32 v3, 1, v1\nv_lshlrev_b32 v3, 3, v3\nv_and_b32 v4, 1, v1\nv_add_u32 v3, v3, v4\nv_lshlrev_b32 v3, 10, v3\nv_lshl_add_u32 v3, v2, 4, v3")
    e(f"s_lshl_b32 s{sT}, s{h}, 17\ns_lshl_b32 s{sT+1}, s{w}, 8\ns_add_u32 s{sT}, s{sT}, s{sT+1}\nv_add_u32 v{vWO}, s{sT}, v3")
    WRAW = [20, 52, 96]
    def wo_loads(gi):
        kap, hf = gi >> 1, gi & 1
        for jl in range(4):
            for hb in range(2):
                row = 64 * (jl >> 1) + 32 * hb + 16 * hf + 4 * kap + 2 * (jl & 1)
                e(f"s_mov_b32 s{sT}, {row*1024:#x}\nbuffer_load_dwordx4 {vr(WRAW[gi%3]+(jl*2+hb)*4,4)}, v{vWO}, {W}, s{sT} offen")
    qkv_loads(0)
    tq = 0
    for ri, (mt, par) in enumerate(rounds):
        if ri + 1 < 6:
            qkv_loads(ri + 1); e("s_waitcnt vmcnt(16)")
        else:
            srd(40, P_WO, 0x400000); wo_loads(0); wo_loads(1); e("s_waitcnt vmcnt(16)")
        if ri: e("s_waitcnt lgkmcnt(0)\ns_barrier")
        raw = RAW[ri & 1]
        for t in range(8):
            wd, tt = t >> 1, t & 1
            const = 0
            for wl in range(4):
                sg = 2 * ((wl - wd) & 3) + par
                const |= absslot(wd, plan[ri][(mt, tt, sg)]) << (8 * wl)
            e(f"s_lshr_b32 s{sT}, {const:#x}, s{sT+8}\ns_and_b32 s{sT}, s{sT}, 0xff\ns_lshl_b32 s{sT}, s{sT}, 11\nv_add_u32 v{vAD}, s{sT}, v{vL16}")
            for hf in range(2):
                q = TQ[tq % 3]; tq += 1
                for jl in range(4):
                    j2 = hf * 4 + jl
                    e(f"v_perm_b32 v{q+jl}, v{raw+(j2*2+1)*4+(t>>1)}, v{raw+(j2*2)*4+(t>>1)}, s{sHi if t&1 else sLo}")
                e(f"ds_write_b128 v{vAD}, {vr(q,4)} offset:{hf*1024}")
        e("s_waitcnt lgkmcnt(0)\ns_barrier")
        nrd = 0
        for f, s in plan[ri].items():
            if f in lds_slot: continue
            for hf in range(2):
                if s < 18: e(f"ds_read_b128 {ar(areg[f]+4*hf,4)}, v{vVW} offset:{s*2048+hf*1024}")
                else: e(f"ds_read_b128 {ar(areg[f]+4*hf,4)}, v{vTS} offset:{(s-18)*2048+hf*1024}")
                nrd += 1
                if nrd == 12: e("s_waitcnt lgkmcnt(4)")
    e("s_waitcnt lgkmcnt(0)\ns_barrier")
    for gi in range(4):
        kap, hf = gi >> 1, gi & 1
        if gi + 2 < 4: wo_loads(gi + 2)
        e(f"s_waitcnt vmcnt({8*min(2, 3-gi)})")
        raw = WRAW[gi % 3]
        for t in range(8):
            q = wo_reg(t, kap) + 4 * hf if t < 7 else TQ[gi & 1]
            for jl in range(4):
                e(f"v_perm_b32 v{q+jl}, v{raw+(jl*2+1)*4+(t>>1)}, v{raw+(jl*2)*4+(t>>1)}, s{sHi if t&1 else sLo}")
            if t == 7: e(f"ds_write_b128 v{vVW}, {vr(q,4)} offset:{lds_slot[('o',7,kap)]*2048+hf*1024}")
    e(f"v_mov_b32 v3, 0\nv_lshlrev_b32 v4, 3, v0\nv_mov_b32 v6, 0\nv_mov_b32 v7, 0\nds_write_b64 v4, v[6:7] offset:{L_P-512}\nds_write_b64 v4, v[6:7] offset:{L_P+512}")
    e(f"{Ln('bar')}:\nglobal_load_dword v4, v3, s[{P_DBG}:{P_DBG+1}] offset:12 sc1\ns_waitcnt vmcnt(0)\nv_cmp_eq_u32 vcc, 32, v4\ns_cbranch_vccnz {Ln('bar_ok')}")
    fail_if_zero(10)
    e(f"s_branch {Ln('bar')}\n{Ln('bar_ok')}:")
    wait_flags_ready(11 + 20 * mode, 4)
    e(f"s_mov_b32 s{sKv}, {WS_FLAG+F_KV:#x}")
    poll_ge(12 + 20 * mode, f"s{sKv}", 16, 4, sleep=0)
    def kv_loads():
        r = []
        for j in range(4): r.append(f"buffer_load_dwordx4 {vr(KT+4*j,4)}, v{vL16}, {WS}, s{sSK} offen offset:{j*1024} sc1")
        for t in range(2): r.append(f"buffer_load_dwordx4 {vr(VT+4*t,4)}, v{vL16}, {WS}, s{sSV} offen offset:{t*1024} sc1")
        return r
    for x in kv_loads(): e(x)
    e(f"v_lshlrev_b32 v4, 2, v{vL16}\nbuffer_load_dword v{vFLG}, v4, {WS}, s{sPF} offen sc1")
    lds = []
    def L(txt, tag=None):
        lds.append(tag); return txt
    def WL(tag):
        k = max(i for i, t in enumerate(lds) if t == tag)
        n = len(lds) - 1 - k
        assert n <= 15
        return f"s_waitcnt lgkmcnt({n})"
    def wread(f, slot):
        s = lds_slot[f]
        return [L(f"ds_read_b128 {vr(VW+8*slot+4*hf,4)}, v{vVW} offset:{s*2048+hf*1024}", (f, hf)) for hf in range(2)]
    zero_acc = [f"v_mov_b64 v[{AQ0+2*i}:{AQ0+2*i+1}], 0" for i in range(12)]
    p0_reads = lambda: [x for i in range(4) for x in wread(order[i], i)]
    e("s_waitcnt lgkmcnt(0)")
    for x in p0_reads(): e(x)
    for x in zero_acc: e(x)
    e("s_barrier")
    accof = {'q': (AQ0, AQ1), 'k': (AK0, AK1), 'v': (AV0, AV1)}
    ringslot = {}
    for i, f in enumerate(order[:16]): ringslot[f] = i % 4
    def SM(f):
        mt, tt, sg = f
        b = vr(VW + 8 * ringslot[f], 8) if f in lds_slot else ar(areg[f], 8)
        return f"v_smfmac_f32_16x16x64_bf16 {vr(accof[mt][tt],4)}, {vr(M+4*sg,4)}, {b}, v{vIDX}"
    mm = "v_mfma_f32_16x16x32_bf16"; m16 = "v_mfma_f32_16x16x16_bf16"
    stamp_n = [0]
    def STAMP():
        if not OPT['stamps']: return
        k = stamp_n[0]; stamp_n[0] += 1
        e(f"s_memtime s[88:89]\ns_waitcnt lgkmcnt(0)\ns_sub_u32 s89, s88, s87\ns_add_u32 s{90+k}, s{90+k}, s89\ns_mov_b32 s87, s88")
    if OPT['stamps']:
        for k in range(10): e(f"s_mov_b32 s{90+k}, 0")
        e("s_memtime s[86:87]\ns_waitcnt lgkmcnt(0)\ns_mov_b32 s87, s86")
    e(".p2align 6")
    e(f"{Ln('step')}:")
    e(f"buffer_load_dwordx4 {vr(M,4)}, v{vW16}, {WS}, s{sMc} offen sc1\nbuffer_load_dwordx4 {vr(M+4,4)}, v{vW16}, {WS}, s{sMc} offen offset:1024 sc1")
    e("s_waitcnt vmcnt(0) lgkmcnt(0)")
    STAMP()
    lds.clear()
    e(L(f"ds_write_b128 v{vW16}, {vr(M,4)} offset:{L_M}", 'mw0')); e(L(f"ds_write_b128 v{vW16}, {vr(M+4,4)} offset:{L_M+1024}", 'mw'))
    T0, T1 = QF, QF + 1
    p0 = [(mt, tt, sg) for sg in range(2) for mt in 'qkv' for tt in range(2)]
    fill = {0: [f"v_max3_i32 v{T0}, v{M}, v{M+1}, v{M+2}"], 1: [f"v_max3_i32 v{T1}, v{M+3}, v{M+4}, v{M+5}"],
            2: [f"v_max3_i32 v{T0}, v{T0}, v{M+6}, v{M+7}"], 3: [f"v_max_i32 v{T0}, v{T0}, v{T1}"],
            4: [f"v_cmp_le_i32 vcc, s{sInf}, v{T0}"], 5: [f"s_cbranch_vccnz {Ln('p1slow')}", f"{Ln('p1ok')}:"],
            6: [f"v_mov_b64 v[{QF+4}:{QF+5}], s[{sSENT}:{sSENT+1}]"], 7: [WL('mw'), "s_barrier", f"v_mov_b64 v[{QF+6}:{QF+7}], s[{sSENT}:{sSENT+1}]"]}
    mr = [(vMR1, 2), (vMR1, 3), (vMR2, 4), (vMR2, 5), (vMR3, 6), (vMR3, 7)]
    mrd = lambda i: L(f"ds_read_b128 {vr(M+4*mr[i][1],4)}, v{mr[i][0]} offset:{L_M+(mr[i][1]&1)*1024}", ('m', mr[i][1]))
    for i, f in enumerate(p0):
        e(SM(f))
        for x in fill.get(i, []): e(x)
        if i in (8, 9, 10):
            e(mrd(2 * (i - 8))); e(mrd(2 * (i - 8) + 1))
        if i == 11: e(f"v_mov_b32 v{QF+8}, s{sStep}")
    STAMP()
    STK, SMM, LA, OA = AQ0, AK1, AQ1, AK0
    PT = AQ1
    WOS = [VW, VW + 8]; KP = VW
    PLO, PHI, PAL, ONE4 = VW + 16, VW + 20, VW + 24, VW + 28
    PM = AV0 + 2
    chainc = lambda a, j: '0' if j == 0 else vr(a, 4)
    bb = [SM((mt, tt, s)) for mt in 'qk' for tt in range(2) for s in range(2, 8)]
    bb += [f"{mm} {vr(STK,4)}, {vr(KT+4*j,4)}, {vr(QF+4*j,4)}, {chainc(STK,j)}" for j in range(4)]
    bb += [SM(('v',) + x) for x in [(0,2),(0,4),(1,2),(0,5),(0,3),(0,6),(1,3),(0,7),(1,4)]]
    bb += [f"{mm} {vr(SMM,4)}, {vr(KT+4*j,4)}, {vr(QF+4*j,4)}, {chainc(SMM,j)}" for j in range(4)]
    bb += [SM(('v', 1, s)) for s in (5, 6, 7)]
    pv_tok = [f"{mm} {vr(LA,4)}, {vr(ONE4,4)}, {vr(PAL,4)}, 0", f"{mm} {vr(OA,4)}, {vr(VT,4)}, {vr(PLO,4)}, 0",
              f"{mm} {vr(OA,4)}, {vr(VT+4,4)}, {vr(PHI,4)}, {vr(OA,4)}"]
    pv_mem = [f"{m16} {vr(LA,4)}, {vr(ONE4,2)}, {vr(PM,2)}, {vr(LA,4)}", f"{m16} {vr(OA,4)}, {vr(AV0,2)}, {vr(PM,2)}, {vr(OA,4)}"]
    bb += pv_tok + pv_mem
    pre = {}; mem = {}; val = {}
    def B(g, *xs): pre.setdefault(g, []).extend(xs)
    def N(g, *xs): mem.setdefault(g, []).extend(xs)
    def V(g, *xs): val.setdefault(g, []).extend(xs)
    def wr1(f, hf):
        return lambda: L(f"ds_read_b128 {vr(VW+8*ringslot[f]+4*hf,4)}, v{vVW} offset:{lds_slot[f]*2048+hf*1024}", (f, hf))
    rd = lambda dst, a, off, tag: (lambda: L(f"ds_read_b128 {vr(dst,4)}, v{a} offset:{off}", tag))
    wt = lambda tag: (lambda: WL(tag))
    add2 = lambda a: [f"v_add_f32 v{a}, v{a}, v{a+2}", f"v_add_f32 v{a+1}, v{a+1}, v{a+3}"]
    mul2 = lambda a: [f"v_mul_f32 v{a}, s{sC}, v{a}", f"v_mul_f32 v{a+1}, s{sC}, v{a+1}"]
    cvt = lambda d, a, b: f"v_cvt_pk_bf16_f32 v{d}, v{a}, v{b}"
    for i in range(6): B(i, wt(('m', i + 2)))
    N(0, f"buffer_store_dword v{QF+8}, off, {WS}, s{sFl} sc1", f"s_add_u32 s{sPF}, s{sPF}, 0x40000")
    V(0, f"v_lshlrev_b32 v{QF+9}, 2, v{vL16}")
    N(1, f"buffer_store_dwordx4 {vr(QF+4,4)}, v{vW16}, {WS}, s{sPp} offen {ST}", f"s_add_u32 s{sT}, s{sStep}, 3")
    N(2, f"buffer_store_dwordx4 {vr(QF+4,4)}, v{vW16}, {WS}, s{sPp} offen offset:1024 {ST}")
    N(3, f"buffer_store_dword v{QF+4}, v{vMS}, {WS}, s{sMp} offen {ST}")
    N(4, f"buffer_load_dword v{vFLG}, v{QF+9}, {WS}, s{sPF} offen sc1")
    N(5, f"s_lshr_b32 s{sT}, s{sT}, 2"); N(6, f"s_min_u32 s{sT}, s{sT}, 15"); N(7, f"s_lshl_b32 s{sT}, s{sT}, 7")
    N(8, f"s_add_u32 s{sKv}, s{sT}, {WS_FLAG+F_KV:#x}"); N(9, f"buffer_load_dword v{vFLG}, off, {WS}, s{sKv} sc1")
    for i, x in enumerate(add2(AQ0) + mul2(AQ0)): V(7 + i, x)
    for i, x in enumerate(add2(AQ1) + mul2(AQ1) + [cvt(AQ0, AQ0, AQ1), cvt(AQ0 + 1, AQ0 + 1, AQ1 + 1)]): V(13 + i // 2, x)
    N(16, lambda: L(f"ds_write2_b32 v{vXW}, v{AQ0}, v{AQ0+1} offset0:0 offset1:4", 'qw'))
    for k, f in enumerate(order[4:12]):
        N(2 + 2 * k, wr1(f, 0)); N(3 + 2 * k, wr1(f, 1)); B(8 + 2 * k, wt((f, 1)))
    N(20, wt('qw'), "s_barrier", rd(QF, vQR, L_X, ('qf', 0)))
    N(21, rd(QF + 4, vQR, L_X + 1024, ('qf', 1)), rd(QF + 8, vQR, L_X + 2048, ('qf', 2)))
    N(22, rd(QF + 12, vQR, L_X + 3072, ('qf', 3)))
    for j in range(4): B(24 + j, wt(('qf', j)))
    V(19, add2(AK0)[0]); V(22, add2(AK0)[1])
    V(25, *add2(AK1)); V(26, cvt(AK0, AK0, AK1), cvt(AK0 + 1, AK0 + 1, AK1 + 1))
    N(27, lambda: L(f"ds_write2_b32 v{vXW}, v{AK0}, v{AK0+1} offset0:128 offset1:132", 'kw'))
    for k, f in enumerate(order[12:16]):
        N(22 + 2 * k, wr1(f, 0)); N(23 + 2 * k, wr1(f, 1)); B(28 + 2 * k, wt((f, 1)))
    V(27, f"v_add_u32 v{AK1+1}, s{sW1k}, v{vKR}"); V(28, f"v_add_u32 v{AK1}, s{sPW}, v{vQR}")
    N(31, wt('kw'), "s_barrier", rd(KT, vKR, L_X + 512, ('kf', 0)))
    N(32, rd(KT + 4, vKR, L_X + 1536, ('kf', 1)), rd(KT + 8, vKR, L_X + 2560, ('kf', 2)))
    N(33, rd(KT + 12, vKR, L_X + 3584, ('kf', 3)))
    N(34, rd(KP, AK1 + 1, L_X + 512, 'kp'))
    for j in range(4): B(37 + j, wt(('kf', j)))
    for r in range(4): V(29 + r, f"v_exp_f32 v{PT+r}, v{STK+r}")
    V(33, cvt(PT, PT, PT + 1)); V(34, cvt(PT + 1, PT + 2, PT + 3))
    N(36, lambda: L(f"ds_write_b64 v{AK1}, {vr(PT,2)} offset:{L_P}", 'pw'))
    N(40, wt('pw'), "s_barrier", rd(PAL, vQR, L_P, 'pal'))
    N(41, rd(PLO, vPR, L_P, 'plo'), rd(PHI, vPR, L_P - 512, 'phi'))
    N(38, wt('kp'), f"buffer_store_dwordx4 {vr(KP,4)}, v{vL16}, {WS}, s{sKM} offen sc1")
    for k in range(4):
        f = ('o', 7, k >> 1)
        N(42 + k, (lambda f=f, k=k: L(f"ds_read_b128 {vr(WOS[k>>1]+4*(k&1),4)}, v{vVW} offset:{lds_slot[f]*2048+(k&1)*1024}", ('wo', k))))
    B(44, wt('pal')); B(45, wt('plo')); B(46, wt('phi'))
    V(37, *add2(AV0)); V(38, cvt(AV0, AV0, AV0 + 1), f"v_mov_b64 {vr(ONE4,2)}, s[{sONE}:{sONE+1}]"); V(39, f"v_mov_b64 {vr(ONE4+2,2)}, s[{sONE}:{sONE+1}]")
    V(42, f"v_exp_f32 v{SMM+2}, v{SMM}"); V(43, f"v_exp_f32 v{SMM+3}, v{SMM+1}")
    mlo = f"s[{sMLO}:{sMLO+1}]"
    V(44, cvt(SMM + 2, SMM + 2, SMM + 3), f"v_cndmask_b32 v{PM}, 0, v{SMM+2}, {mlo}")
    V(45, f"v_cndmask_b32 v{PM+1}, v{SMM+2}, 0, {mlo}", add2(AV1)[0]); V(46, add2(AV1)[1], cvt(AV0 + 1, AV1, AV1 + 1))
    zw = [f"v_mov_b64 v[{M+2*i}:{M+2*i+1}], 0" for i in range(16)]
    V(47, zw[0], zw[1])
    N(48, f"buffer_store_dwordx2 {vr(AV0,2)}, v{vL16}, {WS}, s{sVM} offen sc1", f"s_cmp_eq_u32 s{sStep}, 63")
    call = lambda x: x() if callable(x) else x
    for g, ins in enumerate(bb):
        for x in pre.get(g, []): e(call(x))
        e(ins)
        for x in mem.get(g, []): e(call(x))
        for x in val.get(g, []): e(call(x))
    e(f"s_cbranch_scc1 {Ln('last')}")
    RC = SMM + 2
    norm = [f"v_mul_f32 v{OA+r}, v{OA+r}, v{RC}" for r in range(4)] + [cvt(OA, OA, OA + 1), cvt(OA + 1, OA + 2, OA + 3)]
    e(zw[2]); e(f"v_rcp_f32 v{RC}, v{LA}"); e(zw[3])
    for x in norm: e(x)
    ow = f"ds_write_b64 v{vOW}, {vr(OA,2)} offset:{L_O}"
    e(L(ow, 'ow'))
    e(f"s_add_u32 s{sSK}, s{sSK}, 0x40000\ns_add_u32 s{sSV}, s{sSV}, 0x40000")
    e(f"v_subrev_u32 v{RC+1}, s{sLlo}, v{LA}\nv_cmp_lt_u32 vcc, s{sLrg}, v{RC+1}\ns_cbranch_vccnz {Ln('fb')}")
    e(f"{Ln('fbret')}:")
    for x in zw[4:10]: e(x)
    e("s_waitcnt lgkmcnt(0)\ns_barrier")
    e(L(f"ds_read_b128 {vr(QF,4)}, v{vL16} offset:{L_O}", 'o0')); e(L(f"ds_read_b128 {vr(QF+4,4)}, v{vL16} offset:{L_O+1024}", 'o1'))
    kvl = kv_loads()
    e(kvl[0]); e(kvl[1])
    for x in zw[10:16]: e(x)
    STAMP()
    wa = lambda t: add2(M + 4 * t)
    wc = lambda d: cvt(QF + 8 + d, M + 8 * (d >> 1) + (d & 1), M + 8 * (d >> 1) + 4 + (d & 1))
    wv = {3: [wa(0)[0]], 4: [wa(0)[1]], 5: [wa(1)[0]], 6: [wa(1)[1]], 7: [wc(0)], 8: [wc(1)], 9: wa(2), 10: wa(3), 11: [wc(2)], 12: [wc(3)],
          13: [wa(4)[0]], 14: [wa(4)[1]], 15: [wa(5)[0], wa(5)[1], wc(4), wc(5)] + wa(6) + wa(7) + [wc(6), wc(7)]}
    wn = {0: [kvl[2], kvl[3]], 1: [kvl[4], kvl[5]], 2: [f"s_add_u32 s{sKM}, s{sKM}, 0x20000", f"s_add_u32 s{sVM}, s{sVM}, 0x20000"],
          13: [f"buffer_store_dwordx4 {vr(QF+8,4)}, v{vW16}, {WS}, s{sPc} offen {ST}"]}
    for u in range(16):
        t, k = u >> 1, u & 1
        if u < 2: e(WL('o%d' % u))
        b = vr(wo_reg(t, k), 8) if t < 7 else vr(WOS[k], 8)
        e(f"v_smfmac_f32_16x16x64_bf16 {vr(M+4*t,4)}, {vr(QF+4*k,4)}, {b}, v{vIDX}")
        for x in wn.get(u, []): e(x)
        for x in wv.get(u, []): e(x)
    e(f"buffer_store_dwordx4 {vr(QF+12,4)}, v{vW16}, {WS}, s{sPc} offen offset:1024 {ST}")
    STAMP()
    for x in p0_reads(): e(x)
    e(f"s_xor_b32 s{sPc}, s{sPc}, {PRING:#x}\ns_xor_b32 s{sPp}, s{sPp}, {PRING:#x}")
    e(f"s_mov_b32 s{sT}, s{sMp}\ns_mov_b32 s{sMp}, s{sMc}\ns_mov_b32 s{sMc}, s{sMn}\ns_mov_b32 s{sMn}, s{sT}\ns_add_u32 s{sStep}, s{sStep}, 1")
    for x in zero_acc: e(x)
    for d in range(4): e(f"v_mov_b32 v{QF+8+d}, v{vSEL}")
    e("s_barrier")
    e(f"{Ln('p2')}:")
    for i in range(8): e(f"buffer_load_dword v{QF+i}, v{vRL}, {WS}, s{sRd[i]} offen sc1")
    e("s_waitcnt vmcnt(0)")
    STAMP()
    R = QF + 12
    e(f"{mm} {vr(R,4)}, {vr(QF+8,4)}, {vr(QF,4)}, 0\nv_max3_i32 v{M}, v{QF}, v{QF+1}, v{QF+2}\nv_max3_i32 v{M+1}, v{QF+3}, v{QF+4}, v{QF+5}")
    e(f"{mm} {vr(R,4)}, {vr(QF+8,4)}, {vr(QF+4,4)}, {vr(R,4)}\nv_max3_i32 v{M}, v{M}, v{QF+6}, v{QF+7}\nv_max_i32 v{M}, v{M}, v{M+1}")
    e(f"v_cmp_le_i32 vcc, s{sInf}, v{M}\ns_cbranch_vccnz {Ln('p2slow')}")
    e(f"{Ln('p2ok')}:")
    e(f"v_xor_b32 v{vRL}, {PRING:#x}, v{vRL}\nv_cmp_gt_u32 vcc, 16, v{vFLG}")
    e(cvt(R, R, R + 1))
    e(f"buffer_store_dword v{R}, v{vMS}, {WS}, s{sMc} offen {ST}")
    e(f"s_cbranch_vccnz {Ln('kvwait')}")
    e(f"{Ln('kvok')}:")
    e("s_barrier")
    STAMP()
    e(f"s_branch {Ln('step')}")
    e(f"{Ln('p1slow')}:")
    for i in range(8): e(f"v_cmp_eq_u32 vcc, s{sSENT}, v{M+i}\ns_cbranch_vccnz {Ln('p1retry')}")
    e(f"s_branch {Ln('p1ok')}")
    e(f"{Ln('p1retry')}:\ns_nop 7")
    for x in zero_acc: e(x)
    fail_if_zero(13)
    e(f"s_branch {Ln('step')}")
    e(f"{Ln('p2slow')}:")
    for i in range(8): e(f"v_cmp_eq_u32 vcc, s{sSENT}, v{QF+i}\ns_cbranch_vccnz {Ln('p2retry')}")
    e(f"s_branch {Ln('p2ok')}")
    e(f"{Ln('p2retry')}:")
    fail_if_zero(14)
    e(f"s_branch {Ln('p2')}")
    e(f"{Ln('kvwait')}:")
    poll_ge(15 + 20 * mode, f"s{sKv}", 16, vFLG, sleep=0)
    e(f"s_branch {Ln('kvok')}")
    e(f"{Ln('fb')}:")
    F = KT
    e(f"s_lshr_b32 s{sT}, s{w}, 1\ns_lshl_b32 s{sT}, s{sT}, 10\nv_add_u32 v{F+12}, s{sT}, v{vL16}\nds_write_b128 v{F+12}, {vr(STK,4)} offset:{L_X}")
    e("s_waitcnt lgkmcnt(0)\ns_barrier")
    e(f"ds_read_b128 {vr(F,4)}, v{vL16} offset:{L_X}\nds_read_b128 {vr(F+4,4)}, v{vL16} offset:{L_X+1024}\nv_mov_b32 v{F+8}, v{SMM}\nv_mov_b32 v{F+9}, v{SMM+1}\ns_waitcnt lgkmcnt(0)")
    e(f"v_max3_f32 v{F+10}, v{F}, v{F+1}, v{F+2}\nv_max3_f32 v{F+11}, v{F+3}, v{F+4}, v{F+5}\nv_max3_f32 v{F+10}, v{F+10}, v{F+6}, v{F+7}\nv_max3_f32 v{F+11}, v{F+11}, v{F+8}, v{F+9}\nv_max_f32 v{F+10}, v{F+10}, v{F+11}")
    e(f"v_mov_b32 v{F+11}, v{F+10}\nv_permlane32_swap_b32 v{F+10}, v{F+11}\nv_max_f32 v{F+10}, v{F+10}, v{F+11}")
    e(f"v_mov_b32 v{F+11}, v{F+10}\nv_permlane16_swap_b32 v{F+10}, v{F+11}\nv_max_f32 v{F+10}, v{F+10}, v{F+11}")
    for r in range(10): e(f"v_sub_f32 v{F+r}, v{F+r}, v{F+10}")
    for r in range(10): e(f"v_exp_f32 v{F+r}, v{F+r}")
    for d in range(4): e(cvt(PAL + d, F + 2 * d, F + 2 * d + 1))
    e(cvt(F + 8, F + 8, F + 9))
    for d in range(4): e(f"v_cndmask_b32 v{PLO+d}, 0, v{PAL+d}, {mlo}\nv_cndmask_b32 v{PHI+d}, v{PAL+d}, 0, {mlo}")
    e(f"v_cndmask_b32 v{PM}, 0, v{F+8}, {mlo}\nv_cndmask_b32 v{PM+1}, v{F+8}, 0, {mlo}")
    for x in pv_tok + pv_mem: e(x)
    e(f"v_rcp_f32 v{RC}, v{LA}")
    for x in norm: e(x)
    e(ow)
    e(f"s_branch {Ln('fbret')}")
    e(f"{Ln('last')}:")
    e(f"v_mov_b32 v{M}, 64\ns_waitcnt vmcnt(0)\ns_barrier\nbuffer_store_dword v{M}, off, {WS}, s{sFl} sc1")
    if OPT['stamps']:
        e(f"s_lshl_b32 s{sT}, s{h}, 2\ns_add_u32 s{sT}, s{sT}, s{w}\ns_lshl_b32 s{sT}, s{sT}, 6\ns_add_u32 s{sT}, s{sT}, {WS_STAMP:#x}")
        for k in range(10): e(f"v_mov_b32 v{M+1}, s{90+k}\nbuffer_store_dword v{M+1}, off, {WS}, s{sT} offset:{4*k}")
    e("s_waitcnt vmcnt(0)\ns_branch L_end")
```

```python
def emit(G):
    globals().update(G)
    X, W, AUX = "s[40:43]", "s[44:47]", "s[48:51]"
    sRound, sTile, sPass, sType, sRS, sNB, sCnt, sBlk, sBlkN = 52, 53, 54, 55, 56, 57, 58, 59, 60
    s2RS = {1: 61, 2: 62, 3: 63}; sRow = list(range(64, 72)); sB, sT0, sT1, s128, sLo, sHi = 72, 73, 74, 75, 76, 77
    vL16, vA0, vA1, vW, vXo, vG, vC = 1, 2, 3, 4, 5, 6, 7
    RING = [160, 192, 224, 128]
    XN, WF = 16, 48
    acc = lambda t, T: (t * 8 + T) * 4

    e("L_worker:")
    srd(40, P_X, 2048 * 1024)
    e(f"v_lshlrev_b32 v{vL16}, 4, v0\nv_lshrrev_b32 v{vG}, 4, v0\nv_and_b32 v{vC}, 15, v0")
    e(f"s_mov_b32 s{sLo}, 0x05040100\ns_mov_b32 s{sHi}, 0x07060302")
    e(f"s_cmp_eq_u32 s{S_IDX}, 0\ns_cbranch_scc0 L_w_nz")
    e(f"v_mov_b32 v8, 0\nv_mov_b32 v9, 0\nv_mov_b32 v10, 0\nv_mov_b32 v11, 0\ns_lshl_b32 s52, s{S_WAVE}, 12\ns_add_u32 s52, s52, {WS_FLAG}")
    for i in range(4): e(f"buffer_store_dwordx4 v[8:11], v{vL16}, {WS}, s52 offen offset:{i*1024} sc1")
    e("s_waitcnt vmcnt(0)\ns_barrier")
    e(f"v_mov_b32 v9, 1\nglobal_store_dword v8, v9, s[{P_DBG}:{P_DBG+1}] offset:8 sc1")
    e("L_w_nz:")
    e(f"s_mov_b32 s{sRound}, 0")
    e("L_task:")
    e(f"s_cmp_eq_u32 s{sRound}, 0\ns_cbranch_scc0 L_dec1")
    e(f"s_mul_i32 s78, s{S_IDX}, 1171\ns_lshr_b32 s78, s78, 16\ns_mul_i32 s79, s78, 56\ns_sub_u32 s79, s{S_IDX}, s79")
    e(f"s_lshr_b32 s{sTile}, s79, 2\ns_and_b32 s79, s79, 3\ns_lshl_b32 s78, s78, 2\ns_add_u32 s{sPass}, s78, s79\ns_branch L_dec2")
    e("L_dec1:")
    e(f"s_lshr_b32 s78, s{S_IDX}, 5\ns_and_b32 s79, s{S_IDX}, 15\ns_bfe_u32 s80, s{S_IDX}, 0x10004")
    e(f"s_mov_b32 s{sTile}, s79\ns_lshl_b32 s81, s78, 1\ns_add_u32 s81, s81, 14\ns_add_u32 s{sPass}, s81, s80")
    e(f"s_cmp_eq_u32 s78, 0\ns_cbranch_scc0 L_dec2\ns_add_u32 s{sTile}, s80, 14\ns_mov_b32 s{sPass}, s79")
    e("L_dec2:")
    e(f"s_and_b32 s78, s{sPass}, 7\ns_lshl_b32 s78, s78, 2\ns_add_u32 s78, s78, s{S_WAVE}\ns_lshl_b32 s79, s78, 8")
    e(f"s_mov_b32 s{sRS}, 8192\ns_mov_b32 s46, 0x400000\ns_mov_b32 s47, 0x20000\ns_mov_b32 s{sNB}, 4")
    e(f"s_mov_b32 s{sType}, 0\ns_mov_b32 s44, s{P_WK}\ns_mov_b32 s45, s{P_WK+1}\ns_cmp_lt_u32 s{sPass}, 8\ns_cbranch_scc1 L_dec3")
    e(f"s_mov_b32 s{sType}, 1\ns_mov_b32 s44, s{P_WV}\ns_mov_b32 s45, s{P_WV+1}\ns_cmp_lt_u32 s{sPass}, 16\ns_cbranch_scc1 L_dec3")
    e(f"s_mov_b32 s{sType}, 4\ns_mov_b32 s44, s{P_WQ}\ns_mov_b32 s45, s{P_WQ+1}\ns_cmp_lt_u32 s{sPass}, 24\ns_cbranch_scc1 L_dec3")
    e(f"s_mov_b32 s{sType}, 2\ns_mov_b32 s44, s{P_W1}\ns_mov_b32 s45, s{P_W1+1}\ns_mov_b32 s{sRS}, 3584\ns_mov_b32 s46, {512*3584}")
    e("L_dec3:")
    def wsetup():
        e(f"v_and_b32 v8, 3, v{vC}\nv_lshrrev_b32 v9, 2, v{vC}\nv_lshl_add_u32 v8, v8, 2, v9\nv_lshlrev_b32 v8, 4, v8")
        e(f"s_lshl_b32 s80, s{sRS}, 3\nv_mul_lo_u32 v9, s80, v{vG}\nv_add3_u32 v{vW}, v8, v9, s79")
        for i in range(8): e(f"s_mul_i32 s{sRow[i]}, s{sRS}, {32*(i>>1)+(i&1)}")
        for k in (1, 2, 3): e(f"s_mul_i32 s{s2RS[k]}, s{sRS}, {2*k}")
        e(f"s_lshl_b32 s{s128}, s{sRS}, 7")
        for n in range(3):
            for i in range(8):
                if n: e(f"s_add_u32 s{sT0}, s{s2RS[n]}, s{sRow[i]}")
                so = f"s{sT0}" if n else f"s{sRow[i]}"
                e(f"buffer_load_dwordx4 {vr(RING[n]+4*i,4)}, v{vW}, {W}, {so} offen")
    e(f"s_lshl_b32 s80, s{sTile}, 17\ns_lshl_b32 s81, s{S_WAVE}, 15\ns_add_u32 s80, s80, s81")
    e(f"v_lshlrev_b32 v{vXo}, 10, v{vC}\nv_lshl_add_u32 v{vXo}, v{vG}, 4, v{vXo}")
    e("s_add_u32 s81, s80, 16384")
    for u in range(2):
        for q in range(16):
            e(f"buffer_load_dwordx4 {vr(16+64*u+4*q,4)}, v{vXo}, {X}, s{80+u} offen offset:{(q>>2)*256+(q&3)*64}")
    wsetup()
    e("v_mov_b32 v8, 0x3f803f80")
    for i in range(4): e(f"v_accvgpr_write_b32 a{i}, v8")
    e(f"s_lshl_b32 s80, s{S_WAVE}, 15\nv_add_u32 v{vA0}, s80, v{vL16}")
    e("s_barrier")
    for u in range(2):
        RB = 16 + 64 * u
        e(f"s_waitcnt vmcnt({24 + (16 if u == 0 else 0)})")
        for q in range(16):
            e(f"v_mfma_f32_16x16x32_bf16 v[8:11], a[0:3], {vr(RB+4*q,4)}, {'0' if q == 0 else 'v[8:11]'}")
            for d in range(4):
                r = RB + 4 * q + d
                e(f"v_dot2_f32_bf16 v{12+d}, v{r}, v{r}, {'0' if q == 0 else 'v%d' % (12+d)}")
        e("v_add_f32 v12, v12, v13\nv_add_f32 v14, v14, v15\nv_add_f32 v12, v12, v14")
        e("v_mov_b32 v13, v12\nv_permlane32_swap_b32 v12, v13\nv_add_f32 v12, v12, v13")
        e("v_mov_b32 v13, v12\nv_permlane16_swap_b32 v12, v13\nv_add_f32 v12, v12, v13")
        e(f"v_mul_f32 v8, {fbits(1/512):#x}, v8\nv_mul_f32 v12, {fbits(1/512):#x}, v12")
        e(f"v_fma_f32 v12, -v8, v8, v12\nv_max_f32 v12, 0, v12\nv_add_f32 v12, {fbits(1e-5):#x}, v12\nv_rsq_f32 v144, v12")
        e("v_mul_f32 v146, -v8, v144".replace("v_mul_f32 v146, -v8, v144", "v_mul_f32_e64 v146, -v8, v144"))
        k = 0
        for wp in range(4):
            for tp in range(4):
                oq = 152 + 4 * ((wp * 4 + tp) & 1)
                for r in range(4):
                    src = RB + (wp * 4 + r) * 4 + tp
                    t = 148 + 2 * (k & 1); k += 1
                    e(f"v_lshlrev_b32 v{t}, 16, v{src}\nv_and_b32 v{t+1}, 0xffff0000, v{src}")
                    e(f"v_pk_fma_f32 v[{t}:{t+1}], v[{t}:{t+1}], v[144:145], v[146:147] op_sel_hi:[1,0,0]")
                    e(f"v_cvt_pk_bf16_f32 v{oq+r}, v{t}, v{t+1}")
                e(f"ds_write_b128 v{vA0}, {vr(oq,4)} offset:{u*16384+(wp*4+tp)*1024}")
    e("L_gemm:")
    for i in range(256): e(f"v_accvgpr_write_b32 a{i}, 0")
    e(f"v_mov_b32 v{vA0}, v{vL16}\nv_add_u32 v{vA1}, 0x10000, v{vL16}")
    e(f"s_mov_b32 s{sBlk}, 0\ns_mov_b32 s{sCnt}, 1")
    e("s_waitcnt lgkmcnt(0)\ns_barrier")
    e(f"s_cmp_eq_u32 s{sPass}, 27\ns_cselect_b32 s80, s{S_WAVE}, 0\ns_cmp_eq_u32 s{sType}, 2\ns_cselect_b32 s80, s80, 0\ns_cmp_ge_u32 s80, 2\ns_cbranch_scc1 L_epi")
    def xnread(T, jloc):
        return f"ds_read_b128 {vr(XN+4*T,4)}, v{vA0 if T < 4 else vA1} offset:{(T&3)*16384+jloc*1024}"
    def perm(ring, t, rp):
        return f"v_perm_b32 v{WF+4*(t&1)+rp}, v{ring+4*(2*rp+1)+(t>>1)}, v{ring+4*(2*rp)+(t>>1)}, s{sHi if t&1 else sLo}"
    for T in range(8): e(xnread(T, 0))
    e("s_waitcnt vmcnt(16)")
    for rp in range(4): e(perm(RING[0], 0, rp))
    e(f"s_cmp_eq_u32 s{sType}, 1\ns_cbranch_scc1 L_loopB")
    for ori in "AB":
        e(f"L_loop{ori}:")
        e(f"s_add_u32 s{sBlkN}, s{sBlk}, s{s128}\ns_cmp_lt_u32 s{sCnt}, s{sNB}\ns_cselect_b32 s{sBlkN}, s{sBlkN}, {OOB:#x}")
        for tp in range(4):
            ring = RING[tp]; nring = RING[(tp + 1) & 3]; lring = RING[(tp + 3) & 3]
            tpp = (tp + 3) & 3
            base = sBlk if tp == 0 else sBlkN
            if tpp: e(f"s_add_u32 s{sB}, s{base}, s{s2RS[tpp]}")
            else: e(f"s_mov_b32 s{sB}, s{base}")
            for t in range(8):
                for T in range(8):
                    if t == 0: e(f"s_waitcnt lgkmcnt({7-T})")
                    a = ar(acc(t, T), 4); w = vr(WF + 4 * (t & 1), 4); x = vr(XN + 4 * T, 4)
                    e(f"v_mfma_f32_16x16x32_bf16 {a}, {w if ori == 'A' else x}, {x if ori == 'A' else w}, {a}")
                    if 1 <= t <= 4 and T in (0, 6):
                        i = (t - 1) * 2 + (T == 6)
                        e(f"s_add_u32 s{sT0}, s{sB}, s{sRow[i]}")
                        e(f"buffer_load_dwordx4 {vr(lring+4*i,4)}, v{vW}, {W}, s{sT0} offen")
                    if t == 7: e(xnread(T, tp + 1))
                    if t == 7 and T == 1: e("s_waitcnt vmcnt(16)")
                    if 2 <= T <= 5:
                        e(perm(ring, t + 1, T - 2) if t < 7 else perm(nring, 0, T - 2))
        e(f"v_add_u32 v{vA0}, 0x1000, v{vA0}\nv_add_u32 v{vA1}, 0x1000, v{vA1}")
        e(f"s_mov_b32 s{sBlk}, s{sBlkN}\ns_add_u32 s{sCnt}, s{sCnt}, 1\ns_cmp_le_u32 s{sCnt}, s{sNB}\ns_cbranch_scc1 L_loop{ori}")
        if ori == 'A': e("s_branch L_epi")
    e("L_epi:")
    e("s_waitcnt vmcnt(0) lgkmcnt(0)\ns_nop 7")
    cnt = [0]
    def pack(pairs, scale=None):
        k = cnt[0]; cnt[0] += 1
        tb = 64 + 8 * (k & 1); q = 80 + 4 * (k & 3)
        for r, (a, b) in enumerate(pairs):
            e(f"v_accvgpr_read_b32 v{tb+2*r}, a{a}\nv_accvgpr_read_b32 v{tb+2*r+1}, a{b}")
        for r in range(4):
            if scale: e(f"v_pk_mul_f32 v[{tb+2*r}:{tb+2*r+1}], v[{tb+2*r}:{tb+2*r+1}], {scale}")
        for r in range(4): e(f"v_cvt_pk_bf16_f32 v{q+r}, v{tb+2*r}, v{tb+2*r+1}")
        return q
    e(f"s_lshl_b32 s82, s{sTile}, 7\ns_add_u32 s82, s82, s78\ns_lshl_b32 s82, s82, 13")
    e(f"s_cmp_eq_u32 s{sType}, 1\ns_cbranch_scc1 L_epiV\ns_cmp_eq_u32 s{sType}, 2\ns_cbranch_scc1 L_epiF1")
    e(f"s_cmp_eq_u32 s{sType}, 3\ns_cbranch_scc1 L_epiF2\ns_cmp_eq_u32 s{sType}, 4\ns_cbranch_scc1 L_epiQ")
    for nm, base, fl in (("K", WS_K, F_KV), ("Q", WS_Q, F_REST)):
        e(f"L_epi{nm}:")
        if nm == "Q": e(f"s_mov_b32 s84, {CSCALE:#x}\ns_mov_b32 s85, {CSCALE:#x}")
        for T in range(8):
            e(f"s_add_u32 s83, s82, {base + (T>>1)*262144 + (T&1)*4096:#x}")
            for j in range(4):
                q = pack([(acc(2*j, T)+r, acc(2*j+1, T)+r) for r in range(4)], "s[84:85]" if nm == "Q" else None)
                e(f"buffer_store_dwordx4 {vr(q,4)}, v{vL16}, {WS}, s83 offen offset:{j*1024} sc1")
        e(f"s_mov_b32 s83, {WS_FLAG+fl:#x}\ns_branch L_done")
    e("L_epiV:")
    for sg in range(4):
        for t in range(8):
            if (t & 3) == 0: e(f"s_add_u32 s83, s82, {WS_V + sg*262144 + (t>>2)*4096:#x}")
            a0, a1 = acc(t, 2*sg), acc(t, 2*sg+1)
            q = pack([(a0, a0+1), (a0+2, a0+3), (a1, a1+1), (a1+2, a1+3)])
            e(f"buffer_store_dwordx4 {vr(q,4)}, v{vL16}, {WS}, s83 offen offset:{(t&3)*1024} sc1")
    e(f"s_mov_b32 s83, {WS_FLAG+F_KV:#x}\ns_branch L_done")
    e("L_epiF2:")
    e(f"s_sub_u32 s83, s{sPass}, 24\ns_lshl_b32 s83, s83, 21\ns_lshl_b32 s84, s{sTile}, 17\ns_add_u32 s83, s83, s84\ns_lshl_b32 s84, s{S_WAVE}, 8\ns_add_u32 s82, s83, s84")
    for T in range(8):
        e(f"s_add_u32 s83, s82, {WS_FP + T*16384:#x}")
        for r in range(4):
            q = pack([(acc(2*tp, T)+r, acc(2*tp+1, T)+r) for tp in range(4)])
            e(f"buffer_store_dwordx4 {vr(q,4)}, v{vXo}, {WS}, s83 offen offset:{r*64} sc1")
    e(f"s_mov_b32 s83, {WS_FLAG+F_REST:#x}\ns_branch L_done")
    e("L_epiF1:")
    srd(48, P_B1, 3584)
    e(f"v_lshlrev_b32 v8, 4, v{vG}")
    for r in range(4): e(f"buffer_load_dwordx4 {vr(16+4*r,4)}, v8, {AUX}, s79 offen offset:{r*64}")
    e(f"s_sub_u32 s83, s{sPass}, 24\ns_lshl_b32 s83, s83, 19\ns_lshl_b32 s79, s{S_WAVE}, 8\ns_add_u32 s79, s79, s83")
    e(f"s_mov_b32 s{sType}, 3\ns_mov_b32 s44, s{P_W2}\ns_mov_b32 s45, s{P_W2+1}\ns_mov_b32 s46, {1792*1024}\ns_mov_b32 s47, 0x20000\ns_mov_b32 s{sRS}, 1024")
    e(f"s_cmp_eq_u32 s{sPass}, 27\ns_cselect_b32 s{sNB}, 2, 4")
    wsetup()
    e("s_waitcnt vmcnt(24)")
    for r in range(4):
        for d in range(4):
            e(f"v_lshlrev_b32 v{32+r*8+2*d}, 16, v{16+4*r+d}\nv_and_b32 v{33+r*8+2*d}, 0xffff0000, v{16+4*r+d}")
    e(f"s_lshl_b32 s80, s{S_WAVE}, 12\nv_add_u32 v{vA0}, s80, v{vL16}\nv_add_u32 v{vA1}, 0x10000, v{vA0}")
    e("s_barrier")
    k = 0
    for T in range(8):
        for tp in range(4):
            tb = 64 + 16 * (k & 1); q = 96 + 4 * (k & 1); k += 1
            for r in range(4):
                e(f"v_accvgpr_read_b32 v{tb+2*r}, a{acc(2*tp,T)+r}\nv_accvgpr_read_b32 v{tb+2*r+1}, a{acc(2*tp+1,T)+r}")
            for r in range(4):
                b = 32 + r * 8 + 2 * tp
                e(f"v_pk_add_f32 v[{tb+2*r}:{tb+2*r+1}], v[{tb+2*r}:{tb+2*r+1}], v[{b}:{b+1}]")
            for r in range(8): e(f"v_max_f32 v{tb+r}, 0, v{tb+r}")
            for r in range(4): e(f"v_pk_mul_f32 v[{tb+2*r}:{tb+2*r+1}], v[{tb+2*r}:{tb+2*r+1}], v[{tb+2*r}:{tb+2*r+1}]")
            for r in range(4): e(f"v_cvt_pk_bf16_f32 v{q+r}, v{tb+2*r}, v{tb+2*r+1}")
            e(f"ds_write_b128 v{vA0 if T < 4 else vA1}, {vr(q,4)} offset:{(T&3)*16384+tp*1024}")
    e("s_branch L_gemm")
    e("L_done:")
    e(f"s_lshl_b32 s84, s{sTile}, 7\ns_add_u32 s83, s83, s84")
    e("s_waitcnt vmcnt(0)\ns_barrier")
    e(f"s_cmp_eq_u32 s{S_WAVE}, 0\ns_cbranch_scc0 L_done2")
    wait_flags_ready(2, 8)
    e(f"s_mov_b64 exec, 1\nv_mov_b32 v8, 1\nbuffer_atomic_add v8, off, {WS}, s83\ns_mov_b64 exec, -1")
    e("L_done2:")
    e(f"s_add_u32 s{sRound}, s{sRound}, 1\ns_cmp_lt_u32 s{sRound}, 2\ns_cbranch_scc1 L_task")
    if OPT['skip_g3']:
        e("s_waitcnt vmcnt(0)\ns_branch L_end")
        return
    sH, sSeg, sSH, sTq, sEh = 52, 53, 54, 55, 56
    OUT, B2 = "s[44:47]", "s[48:51]"
    WO = 128
    e(f"s_and_b32 s{sH}, s{S_IDX}, 31\ns_lshr_b32 s{sSeg}, s{S_IDX}, 5\ns_and_b32 s{sTq}, s{S_WAVE}, 1\ns_lshr_b32 s{sEh}, s{S_WAVE}, 1")
    srd(44, P_WO, 0x400000)
    e(f"v_and_b32 v8, 3, v{vC}\nv_lshrrev_b32 v9, 2, v{vC}\nv_lshl_add_u32 v8, v8, 2, v9\nv_lshlrev_b32 v8, 4, v8\nv_lshl_add_u32 v8, v{vG}, 13, v8")
    e(f"s_lshl_b32 s78, s{sH}, 17\ns_lshl_b32 s79, s{S_WAVE}, 8\ns_add_u32 s78, s78, s79")
    for half in range(2):
        for jj in range(2):
            for i in range(8):
                row = 32 * (i >> 1) + (i & 1) + 2 * (2 * half + jj)
                e(f"s_add_u32 s79, s78, {row*1024}\nbuffer_load_dwordx4 {vr(24+32*jj+4*i,4)}, v8, s[44:47], s79 offen")
        for jj in range(2):
            e(f"s_waitcnt vmcnt({8*(1-jj)})")
            for t in range(8):
                for rp in range(4):
                    rb = 24 + 32 * jj
                    e(f"v_perm_b32 v{WO+((2*half+jj)*8+t)*4+rp}, v{rb+4*(2*rp+1)+(t>>1)}, v{rb+4*(2*rp)+(t>>1)}, s{sHi if t&1 else sLo}")
    srd(44, P_OUT, 2048 * 1024)
    srd(48, P_B2, 1024)
    e(f"v_lshlrev_b32 v8, 10, v{vC}\nv_lshl_add_u32 v8, v{vG}, 4, v8")
    e(f"v_lshlrev_b32 v11, 4, v{vC}\nv_lshl_add_u32 v9, v{vG}, 15, v11\nv_lshl_add_u32 v10, v{vG}, 21, v11\nv_lshl_add_u32 v12, v{vG}, 3, v11")
    e(f"v_mov_b32 v13, {OOB:#x}\nv_cmp_eq_u32 vcc, 0, v{vG}\nv_cndmask_b32 v11, v13, v11, vcc\nv_cmp_gt_u32 vcc, 2, v{vG}\nv_cndmask_b32 v12, v13, v12, vcc")
    e(f"s_lshl_b32 s78, s{sTq}, 4\nv_lshlrev_b32 v13, 2, v{vG}\nv_sub_u32 v13, v{vC}, v13\nv_add_u32 v13, s78, v13")
    for d in range(4):
        e(f"v_mov_b32 v{16+d}, 0\nv_mov_b32 v14, 0x3f80\nv_cmp_eq_u32 vcc, {2*d}, v{vC}\nv_cndmask_b32 v{16+d}, v{16+d}, v14, vcc")
        e(f"v_mov_b32 v14, 0x3f800000\nv_cmp_eq_u32 vcc, {2*d+1}, v{vC}\nv_cndmask_b32 v{16+d}, v{16+d}, v14, vcc\nv_mov_b32 v{20+d}, 0x3f803f80")
    wait_flags_ready(3, 14)
    SEL, ONES = "v[16:19]", "v[20:23]"
    mm = "v_mfma_f32_16x16x32_bf16"; m16 = "v_mfma_f32_16x16x16_bf16"
    e("L_g3:")
    e(f"s_lshl_b32 s{sSH}, s{sSeg}, 5\ns_add_u32 s{sSH}, s{sSH}, s{sH}")
    e(f"s_lshr_b32 s78, s{sSeg}, 2\ns_lshl_b32 s78, s78, 7\ns_add_u32 s79, s78, {WS_FLAG+F_REST:#x}\ns_add_u32 s78, s78, {WS_FLAG+F_KV:#x}")
    poll_ge(4, "s79", 12, 14)
    poll_ge(5, "s78", 16, 14)
    e(f"s_lshl_b32 s80, s{sSH}, 13\ns_lshl_b32 s81, s{sTq}, 12\ns_add_u32 s81, s81, s80\ns_add_u32 s81, s81, {WS_Q:#x}")
    for j in range(4): e(f"buffer_load_dwordx4 {vr(24+4*j,4)}, v{vL16}, {WS}, s81 offen offset:{j*1024} sc1")
    e(f"s_add_u32 s81, s80, {WS_K:#x}\ns_add_u32 s82, s80, {WS_K+4096:#x}")
    for kt in range(2):
        for j in range(4): e(f"buffer_load_dwordx4 {vr(40+16*kt+4*j,4)}, v{vL16}, {WS}, s{81+kt} offen offset:{j*1024} sc1")
    e(f"s_lshl_b32 s81, s{sEh}, 12\ns_add_u32 s81, s81, s80\ns_add_u32 s81, s81, {WS_V:#x}")
    for t in range(4): e(f"buffer_load_dwordx4 {vr(72+4*t,4)}, v{vL16}, {WS}, s81 offen offset:{t*1024} sc1")
    e(f"s_lshl_b32 s83, s{sSH}, 10\ns_lshl_b32 s84, s{S_WAVE}, 8\ns_add_u32 s83, s83, s84\ns_add_u32 s85, s83, {WS_FP:#x}")
    e(f"buffer_load_dwordx4 v[88:91], v11, {X}, s83 offen\nbuffer_load_dwordx4 v[92:95], v11, {B2}, s84 offen\nbuffer_load_dwordx4 v[96:99], v10, {WS}, s85 offen sc1")
    e("s_waitcnt vmcnt(7)")
    for kt in range(2):
        for j in range(4):
            s = vr(108 + 4 * kt, 4)
            e(f"{mm} {s}, {vr(40+16*kt+4*j,4)}, {vr(24+4*j,4)}, {'0' if j == 0 else s}")
    e("s_waitcnt vmcnt(0)")
    e(f"{mm} v[2:5], {SEL}, v[88:91], 0\n{mm} v[2:5], {SEL}, v[92:95], v[2:5]\n{mm} v[2:5], {SEL}, v[96:99], v[2:5]")
    e(f"v_mov_b32 v15, {fbits(-3.0e38):#x}")
    for kt in range(2):
        for r in range(4):
            e(f"v_cmp_le_i32 vcc, {16*kt+r}, v13\nv_cndmask_b32 v{108+4*kt+r}, v15, v{108+4*kt+r}, vcc")
    e("v_max3_f32 v124, v108, v109, v110\nv_max3_f32 v125, v111, v112, v113\nv_max3_f32 v124, v124, v114, v115\nv_max_f32 v124, v124, v125")
    e(f"s_lshl_b32 s78, s{sH}, 7\ns_add_u32 s78, s78, {WS_FLAG+F_PROG:#x}\ns_add_u32 s79, s{sSeg}, 1")
    poll_ge(6, "s78", "s79", 14, sleep=1)
    e(f"s_lshl_b32 s80, s{sSH}, 12\ns_add_u32 s81, s80, {WS_KM:#x}\ns_lshl_b32 s82, s{sEh}, 11\ns_add_u32 s82, s82, s80\ns_add_u32 s82, s82, {WS_VM:#x}")
    for j in range(4): e(f"buffer_load_dwordx4 {vr(88+4*j,4)}, v{vL16}, {WS}, s81 offen offset:{j*1024} sc1")
    for jj in range(2): e(f"buffer_load_dwordx2 {vr(104+2*jj,2)}, v{vL16}, {WS}, s82 offen offset:{jj*1024} sc1")
    for j in range(4):
        e(f"s_waitcnt vmcnt({5-j})\n{mm} v[116:119], {vr(88+4*j,4)}, {vr(24+4*j,4)}, {'0' if j == 0 else 'v[116:119]'}")
    e("v_mov_b32 v45, 0\nv_mov_b32 v46, 0")
    e("v_max3_f32 v124, v124, v116, v117")
    e("v_mov_b32 v125, v124\nv_permlane32_swap_b32 v124, v125\nv_max_f32 v124, v124, v125")
    e("v_mov_b32 v125, v124\nv_permlane16_swap_b32 v124, v125\nv_max_f32 v124, v124, v125")
    for r in range(10): e(f"v_sub_f32 v{108+r}, v{108+r}, v124")
    for r in range(10): e(f"v_exp_f32 v{108+r}, v{108+r}")
    for d in range(4): e(f"v_cvt_pk_bf16_f32 v{40+d}, v{108+2*d}, v{109+2*d}")
    e("v_cvt_pk_bf16_f32 v44, v116, v117\nv_cvt_pk_bf16_f32 v47, v116, v117")
    e("s_waitcnt vmcnt(0)")
    e(f"{mm} v[120:123], {ONES}, v[40:43], 0")
    for t in range(4): e(f"{mm} {vr(48+4*t,4)}, {vr(72+4*t,4)}, v[40:43], 0")
    e(f"{m16} v[120:123], v[20:21], v[44:45], v[120:123]")
    for t in range(4):
        o = vr(48 + 4 * t, 4)
        e(f"{m16} {o}, {vr(104+2*(t>>1),2)}, {'v[46:47]' if t&1 else 'v[44:45]'}, {o}")
    e("v_rcp_f32 v124, v120")
    for r in range(16): e(f"v_mul_f32 v{48+r}, v{48+r}, v124")
    e(f"s_lshl_b32 s78, s{sTq}, 12\ns_lshl_b32 s79, s{sEh}, 11\ns_add_u32 s78, s78, s79\nv_add_u32 v14, s78, v{vL16}")
    for jj in range(2):
        for r in range(4): e(f"v_cvt_pk_bf16_f32 v{64+4*jj+r}, v{48+8*jj+r}, v{52+8*jj+r}")
        e(f"ds_write_b128 v14, {vr(64+4*jj,4)} offset:{jj*1024}")
    e("s_waitcnt lgkmcnt(0)\ns_barrier")
    for q in range(8): e(f"ds_read_b128 {vr(24+4*q,4)}, v{vL16} offset:{q*1024}")
    e(f"s_lshl_b32 s80, s{sSH}, 15\ns_add_u32 s80, s80, s84\ns_add_u32 s80, s80, {WS_AP:#x}\ns_add_u32 s81, s80, 16384")
    for tq in range(2):
        for j in range(4):
            e(f"s_waitcnt lgkmcnt({7-(tq*4+j)})")
            for t in range(8):
                a = vr(56 + (tq * 8 + t) * 4, 4)
                e(f"{mm} {a}, {vr(WO+(j*8+t)*4,4)}, {vr(24+(tq*4+j)*4,4)}, {'0' if j == 0 else a}")
    for tq in range(2):
        for r in range(4):
            q = 120 + 4 * (r & 1)
            for tp in range(4):
                e(f"v_cvt_pk_bf16_f32 v{q+tp}, v{56+(tq*8+2*tp)*4+r}, v{56+(tq*8+2*tp+1)*4+r}")
            e(f"buffer_store_dwordx4 {vr(q,4)}, v8, {WS}, s{80+tq} offen offset:{r*64} sc1")
    e(f"s_lshl_b32 s78, s{sSeg}, 7\ns_add_u32 s78, s78, {WS_FLAG+F_G3:#x}")
    e("s_waitcnt vmcnt(0)\ns_barrier")
    e(f"s_cmp_eq_u32 s{S_WAVE}, 0\ns_cbranch_scc0 L_g3_na")
    e(f"s_mov_b64 exec, 1\nv_mov_b32 v14, 1\nbuffer_atomic_add v14, off, {WS}, s78\ns_mov_b64 exec, -1")
    e("L_g3_na:")
    poll_ge(7, "s78", 32, 14, sleep=1)
    e(f"s_lshl_b32 s80, s{sSeg}, 20\ns_lshl_b32 s81, s{sH}, 10\ns_add_u32 s80, s80, s81\ns_add_u32 s80, s80, s84\ns_add_u32 s80, s80, {WS_AP:#x}")
    for i in range(8):
        e(f"buffer_load_dwordx4 {vr(24+4*i,4)}, v9, {WS}, s80 offen sc1")
        if i < 7: e("s_add_u32 s80, s80, 0x20000")
    for i in range(8):
        e(f"s_waitcnt vmcnt({7-i})\n{mm} v[2:5], {SEL}, {vr(24+4*i,4)}, v[2:5]")
    e("v_cvt_pk_bf16_f32 v14, v2, v3\nv_cvt_pk_bf16_f32 v15, v4, v5")
    e(f"buffer_store_dwordx2 v[14:15], v12, {OUT}, s83 offen")
    e(f"s_add_u32 s{sSeg}, s{sSeg}, 7\ns_cmp_lt_u32 s{sSeg}, 64\ns_cbranch_scc1 L_g3")
    e("s_waitcnt vmcnt(0)\ns_branch L_end")
```

```python
import sys, math, struct
from asmlib import Asm

NAME = "parallel_sum__memory_aug_recurrent_mem_tr__dense_activation_squared_relu__prompt"
OPT = dict(stamps=False, skip_chain=False, skip_g3=False, force_fallback=False, force_mixed=False)
for a in sys.argv[2:]:
    k, v = a.split('='); OPT[k] = eval(v)

WS_M = 0x0
WS_P = 0x100000
PRING = 0x80000
HS = 8192 + 128
WS_FLAG = 0x40000
F_KV, F_REST, F_PROG, F_G3 = 0, 2048, 4096, 8192
WS_STAMP = 0x50000
WS_Q, WS_K, WS_V = 0x1000000, 0x2000000, 0x3000000
WS_KM, WS_VM = 0x4000000, 0x4800000
WS_FP = 0x5000000
WS_AP = 0x6000000
WS_SIZE = 0x10000000
OOB = 0x80000000
SENT = 0x7F817F81
INF = 0x7F800000
CSCALE = struct.unpack('<I', struct.pack('<f', (128 ** -0.5) * math.log2(math.e)))[0]
POLLMAX = 1 << 18
def fbits(x): return struct.unpack('<I', struct.pack('<f', x))[0]

e = Asm()
def srd(base, ptr, size):
    e(f"s_mov_b32 s{base}, s{ptr}\ns_mov_b32 s{base+1}, s{ptr+1}\ns_mov_b32 s{base+2}, {size:#x}\ns_mov_b32 s{base+3}, 0x20000")
def vr(a, n): return f"v[{a}:{a+n-1}]" if n > 1 else f"v{a}"
def ar(a, n): return f"a[{a}:{a+n-1}]" if n > 1 else f"a{a}"

P_X, P_MEM0, P_WQ, P_WK, P_WV, P_WO = 4, 6, 8, 10, 12, 14
P_W1, P_B1, P_W2, P_B2, P_OUT, P_DBG, P_WS = 20, 22, 24, 26, 28, 30, 32
S_WAVE, S_IDX = 34, 35
WS = "s[36:39]"
S_TMO = 100
S_ERR = 101

def fail_if_zero(code):
    e(f"s_sub_u32 s{S_TMO}, s{S_TMO}, 1\ns_mov_b32 s{S_ERR}, {code}\ns_cbranch_scc1 L_fail")

e("s_cmp_ge_u32 s2, 256\ns_cbranch_scc1 L_end")
e("s_load_dwordx16 s[4:19], s[0:1], 0\ns_load_dwordx8 s[20:27], s[0:1], 64\ns_load_dwordx4 s[28:31], s[0:1], 96\ns_load_dwordx2 s[32:33], s[0:1], 112")
e("s_getreg_b32 s3, hwreg(HW_REG_XCC_ID, 0, 3)")
e(f"v_lshrrev_b32 v1, 6, v0\nv_and_b32 v0, 63, v0\nv_readfirstlane_b32 s{S_WAVE}, v1")
e(f"s_mov_b32 s{S_TMO}, {POLLMAX}\ns_mov_b32 s{S_ERR}, 0")
e("s_waitcnt lgkmcnt(0)")
srd(36, P_WS, WS_SIZE)
e(f"s_cmp_eq_u32 s{S_WAVE}, 0\ns_cbranch_scc0 L_role_wait")
e("s_mov_b64 exec, 1")
e("s_lshl_b32 s40, s3, 3\ns_lshl_b64 s[40:41], 1, s40\nv_mov_b32 v2, s40\nv_mov_b32 v3, s41\nv_mov_b32 v1, 0")
e(f"global_atomic_add_x2 v[4:5], v1, v[2:3], s[{P_DBG}:{P_DBG+1}] sc0")
e("L_role_poll:")
e(f"global_load_dwordx2 v[6:7], v1, s[{P_DBG}:{P_DBG+1}] sc1")
e("s_waitcnt vmcnt(0)")
e("v_sad_u8 v8, v6, 0, 0\nv_sad_u8 v8, v7, 0, v8\nv_cmp_eq_u32 vcc, 0x100, v8\ns_cbranch_vccnz L_role_got")
fail_if_zero(1)
e("s_branch L_role_poll")
e("L_role_got:")
e("ds_write_b128 v1, v[4:7]\ns_waitcnt lgkmcnt(0)\ns_mov_b64 exec, -1")
e("L_role_wait:")
e("s_barrier\nv_mov_b32 v1, 0\nds_read_b128 v[4:7], v1\ns_waitcnt lgkmcnt(0)")
e("v_sad_u8 v8, v4, 0, 0\nv_sad_u8 v8, v5, 0, v8")
e("v_readfirstlane_b32 s40, v4\nv_readfirstlane_b32 s41, v5\nv_readfirstlane_b32 s42, v6\nv_readfirstlane_b32 s43, v7\nv_readfirstlane_b32 s44, v8")
e("s_barrier")
e("s_lshl_b32 s45, s3, 3\ns_lshr_b64 s[40:41], s[40:41], s45\ns_and_b32 s40, s40, 0xff")
e("s_xor_b32 s42, s42, 0x20202020\ns_xor_b32 s43, s43, 0x20202020\ns_or_b32 s42, s42, s43")
if OPT['force_mixed']: e("s_mov_b32 s42, 1")
e("s_cmp_eq_u32 s42, 0\ns_cbranch_scc0 L_role_mixed")
e(f"s_mov_b32 s{S_IDX}, s40\ns_cmp_eq_u32 s3, 0\ns_cbranch_scc1 L_chain0")
e(f"s_sub_u32 s41, s3, 1\ns_lshl_b32 s41, s41, 5\ns_add_u32 s{S_IDX}, s40, s41\ns_branch L_worker")
e("L_role_mixed:")
e(f"s_mov_b32 s{S_IDX}, s44\ns_cmp_lt_u32 s44, 32\ns_cbranch_scc1 L_chain1")
e(f"s_sub_u32 s{S_IDX}, s44, 32\ns_branch L_worker")

def wait_flags_ready(code, tmp):
    e(f"L_fr{code}:")
    e(f"v_mov_b32 v{tmp}, 0\nglobal_load_dword v{tmp}, v{tmp}, s[{P_DBG}:{P_DBG+1}] offset:8 sc1\ns_waitcnt vmcnt(0)")
    e(f"v_cmp_eq_u32 vcc, 1, v{tmp}\ns_cbranch_vccnz L_fr{code}_ok")
    fail_if_zero(code)
    e(f"s_sleep 2\ns_branch L_fr{code}\nL_fr{code}_ok:")

def poll_ge(code, soff, val, tmp, sleep=2):
    e(f"L_pg{code}:")
    e(f"buffer_load_dword v{tmp}, off, {WS}, {soff} sc1\ns_waitcnt vmcnt(0)")
    e(f"v_cmp_le_u32 vcc, {val}, v{tmp}\ns_cbranch_vccnz L_pg{code}_ok")
    fail_if_zero(code)
    if sleep: e(f"s_sleep {sleep}")
    e(f"s_branch L_pg{code}\nL_pg{code}_ok:")

import worker, chain
worker.emit(globals())
chain.emit(globals(), 0)
chain.emit(globals(), 1)

e("L_fail:")
e(f"s_mov_b64 exec, 1\nv_mov_b32 v0, s{S_ERR}\nv_mov_b32 v1, 0\nglobal_store_dword v1, v0, s[{P_DBG}:{P_DBG+1}] offset:16")
e(f"v_mov_b32 v0, s{S_IDX}\nglobal_store_dword v1, v0, s[{P_DBG}:{P_DBG+1}] offset:20\ns_waitcnt vmcnt(0)")
e("L_end:")

body = e.finish(verbose=OPT.get('v', False))
ref = open(f"cdna_kernels/{NAME}.s.ref").read().split('\n')
head = [l for l in ref if l.startswith(';') and '@launch' not in l]
out = '\n'.join(head) + "\n; @launch grid=(256,1,1) block=(256,1,1) lds=163840\n"
out += f""".amdgcn_target "amdgcn-amd-amdhsa--gfx950"
.text
.globl {NAME}_kernel
.p2align 8
.type {NAME}_kernel,@function
{NAME}_kernel:
{body}
    s_endpgm
.section .rodata,"a"
.p2align 6
.amdhsa_kernel {NAME}_kernel
  .amdhsa_next_free_vgpr 512
  .amdhsa_next_free_sgpr 102
  .amdhsa_accum_offset 256
  .amdhsa_group_segment_fixed_size 0
  .amdhsa_kernarg_size 120
  .amdhsa_user_sgpr_count 2
  .amdhsa_user_sgpr_kernarg_segment_ptr 1
  .amdhsa_system_sgpr_workgroup_id_x 1
.end_amdhsa_kernel
"""
open(sys.argv[1], 'w').write(out)
```

```python
import re

REG_RE = re.compile(r'\b([vsa])(\d+)\b|\b([vsa])\[(\d+):(\d+)\]|\b(vcc|exec|m0|scc)\b')

def regs_of(tok):
    out = set()
    for m in REG_RE.finditer(tok):
        if m.group(1):
            out.add((m.group(1), int(m.group(2))))
        elif m.group(3):
            for i in range(int(m.group(4)), int(m.group(5)) + 1):
                out.add((m.group(3), i))
        else:
            out.add(('x', m.group(6)))
    return out

TRANS = ('v_exp_', 'v_log_', 'v_rcp_', 'v_rsq_', 'v_sqrt_', 'v_sin_', 'v_cos_')

class Ins:
    __slots__ = ('text', 'mn', 'ops', 'kind', 'defs', 'uses', 'cset', 'abset', 'nws', 'label', 'target', 'wide_store', 'dpp')
    def __init__(self, text):
        self.text = text
        t = text.split(';')[0].strip()
        self.label = None; self.target = None
        self.defs = set(); self.uses = set(); self.cset = set(); self.abset = set()
        self.nws = 1; self.wide_store = set(); self.dpp = False
        if t.endswith(':'):
            self.kind = 'label'; self.label = t[:-1]; self.mn = ''; self.ops = []; self.nws = 0
            return
        if t == '' or t.startswith('.'):
            self.kind = 'dir'; self.mn = ''; self.ops = []; self.nws = 0
            return
        parts = t.split(None, 1)
        mn = parts[0]; self.mn = mn
        rest = parts[1] if len(parts) > 1 else ''
        ops = [o.strip() for o in re.split(r',(?![^\[]*\])', rest)] if rest else []
        self.ops = ops
        R = [regs_of(o) for o in ops]
        allr = set().union(*R) if R else set()
        if mn.startswith('v_mfma') or mn.startswith('v_smfmac'):
            self.kind = 'mfma'
            self.defs = R[0]; self.abset = R[1] | R[2]
            if mn.startswith('v_smfmac'):
                self.cset = R[0]; self.abset |= R[3]
            else:
                self.cset = R[3]
            self.uses = self.abset | self.cset
        elif mn.startswith('v_'):
            self.kind = 'valu'
            self.dpp = 'row_' in t or 'quad_perm' in t
            if mn.startswith('v_cmp'):
                self.defs = R[0]; self.uses = set().union(*R[1:])
            elif mn.startswith('v_permlane') and 'swap' in mn:
                self.defs = R[0] | R[1]; self.uses = R[0] | R[1]
            elif mn.startswith(('v_add_co', 'v_sub_co', 'v_addc_co', 'v_subb_co')):
                self.defs = R[0] | R[1]; self.uses = set().union(*R[2:])
            else:
                self.defs = R[0]; self.uses = set().union(*R[1:]) if len(R) > 1 else set()
                if mn.startswith(('v_fmac', 'v_dot2c', 'v_pk_fmac', 'v_writelane')): self.uses |= R[0]
                if mn.startswith('v_cndmask') and len(R) == 3: self.uses.add(('x', 'vcc'))
        elif mn.startswith('ds_'):
            self.kind = 'ds'
            if mn.startswith('ds_read') or mn.startswith('ds_bperm') or mn.startswith('ds_swizzle'):
                self.defs = R[0]; self.uses = set().union(*R[1:])
            else:
                self.uses = allr
        elif mn.startswith(('buffer_', 'global_')):
            self.kind = 'vmem'
            if mn.startswith('buffer_wbl2'): return
            islds = re.search(r'\blds\b', t) is not None or '_lds_' in mn
            if 'load' in mn and not islds:
                self.defs = R[0]; self.uses = set().union(*R[1:])
            elif 'atomic' in mn and re.search(r'\bsc0\b', t):
                if mn.startswith('global'):
                    self.defs = R[0]; self.uses = set().union(*R[1:])
                else:
                    self.defs = R[0]; self.uses = allr
            else:
                self.uses = allr
                if islds: self.uses.add(('x', 'm0'))
                if 'store' in mn and ('x4' in mn or 'x3' in mn):
                    self.wide_store = R[0] if mn.startswith('buffer') else R[1]
        elif mn.startswith('s_'):
            self.kind = 'salu'
            if mn == 's_nop':
                self.nws = int(ops[0], 0) + 1
            elif mn.startswith(('s_cbranch', 's_branch')):
                self.kind = 'branch'; self.target = ops[0]
            elif mn.startswith(('s_cmp', 's_waitcnt', 's_barrier', 's_sleep', 's_endpgm', 's_setprio', 's_bitcmp')):
                self.uses = allr
            else:
                self.defs = R[0] if R else set(); self.uses = set().union(*R[1:]) if len(R) > 1 else set()
        else:
            raise ValueError('unknown instr ' + text)

def need_ws(p, c):
    n = 0
    pv = p.kind == 'valu'
    vdefs = {r for r in p.defs if r[0] in 'va'}
    sdefs = {r for r in p.defs if r[0] == 's' or r == ('x', 'vcc')}
    if pv:
        if c.kind == 'mfma' and vdefs & c.uses: n = max(n, 2)
        if c.kind == 'valu':
            if p.mn.startswith(TRANS) and not c.mn.startswith(TRANS) and vdefs & c.uses: n = max(n, 1)
            if c.mn.startswith('v_permlane') and vdefs & c.uses: n = max(n, 2)
            if c.mn.startswith(('v_readfirstlane', 'v_readlane')) and vdefs & c.uses: n = max(n, 1)
            if c.dpp and vdefs & c.uses: n = max(n, 2)
            if sdefs & c.uses: n = max(n, 4 if c.mn.startswith(('v_readlane', 'v_writelane')) else 2)
            if p.mn.startswith('v_dot2') and (vdefs & (c.uses | c.defs)) and c.mn != p.mn: n = max(n, 3)
        if c.kind == 'vmem' and sdefs & c.uses: n = max(n, 5)
        if p.mn.startswith('v_dot2') and c.kind in ('mfma', 'vmem', 'ds') and vdefs & c.uses: n = max(n, 3)
    if p.kind == 'mfma':
        big = '32x32' in p.mn
        A, B = (12, 10) if big else (8, 6)
        if c.kind == 'valu' and p.defs & (c.uses | c.defs): n = max(n, A)
        if c.kind in ('vmem', 'ds') and p.defs & (c.uses | c.defs): n = max(n, A)
        if c.kind == 'mfma':
            if p.defs & c.abset: n = max(n, A)
            if p.defs & c.cset and (p.defs != c.cset or p.mn != c.mn): n = max(n, B)
            if p.defs & c.defs and p.defs != c.cset: n = max(n, B)
        if c.kind == 'valu' and p.cset & c.defs: n = max(n, 7 if big else 3)
    if p.wide_store and c.kind == 'valu' and p.wide_store & c.defs: n = max(n, 2)
    if p.wide_store and c.kind in ('ds', 'vmem', 'mfma') and p.wide_store & c.defs: n = max(n, 1)
    if p.kind == 'salu' and ('x', 'm0') in p.defs and c.kind == 'vmem' and ('x', 'm0') in c.uses: n = max(n, 1)
    return n

def times(seq):
    t = 0; last_mfma = -1000; last_len = 16; out = []
    for i in seq:
        if i.nws == 0:
            out.append(t); continue
        if i.kind == 'mfma': t = max(t, last_mfma + last_len)
        elif i.kind == 'valu': t = max(t, last_mfma + 8)
        out.append(t)
        if i.kind == 'mfma':
            last_mfma = t; last_len = 32 if '32x32' in i.mn else 16
        t += 4 * i.nws
    return out

WIN = 16
def fix_seq(seq, log=None):
    out = []
    for c in seq:
        if c.nws == 0:
            out.append(c); continue
        win = [x for x in out[-3*WIN:] if x.nws][-WIN:]
        tt = times(win + [c])
        short = 0
        for p, tp in zip(win, tt[:-1]):
            n = need_ws(p, c)
            if n:
                miss = 4 * (n + 1) - (tt[-1] - tp)
                if miss > short: short = miss; why = p
        while short > 0:
            for k in range(0, 16):
                nop = Ins('s_nop %d' % k)
                tt = times(win + [nop, c])
                miss = max([4 * (need_ws(p, c) + 1) - (tt[-1] - tp) for p, tp in zip(win, tt) if need_ws(p, c)] + [0])
                if miss <= 0: break
            out.append(nop); win.append(nop)
            if log is not None: log.append((nop.text, why.text, c.text))
            short = miss
        out.append(c)
    return out

def check_edges(seq):
    pos = {i.label: k for k, i in enumerate(seq) if i.label}
    bad = []
    for k, b in enumerate(seq):
        if b.kind != 'branch' or b.target not in pos: continue
        pre = [x for x in seq[max(0, k - 3*WIN):k + 1] if x.nws][-WIN:]
        post = []
        j = pos[b.target]
        while j < len(seq) and len(post) < WIN:
            x = seq[j]
            if x.nws: post.append(x)
            if x.mn in ('s_branch', 's_endpgm'): break
            j += 1
        al = pre + post
        tt = times(al)
        for a in range(len(pre)):
            for c in range(len(pre), len(al)):
                n = need_ws(al[a], al[c])
                if n and tt[c] - tt[a] < 4 * (n + 1):
                    bad.append((b.text, al[a].text, al[c].text))
    return bad

class Asm:
    def __init__(self):
        self.l = []
    def __call__(self, s):
        for line in s.split('\n'):
            line = line.strip()
            if line: self.l.append(line)
    def finish(self, verbose=True):
        seq = [Ins(x) for x in self.l]
        log = []
        seq = fix_seq(seq, log)
        bad = check_edges(seq)
        if verbose:
            import sys
            for x in log: print('  nop:', x, file=sys.stderr)
        if bad:
            for x in bad: print('EDGE HAZARD', x)
            raise SystemExit(1)
        return '\n'.join((x.text if x.kind == 'label' else '    ' + x.text) for x in seq)


def estimate(lines):
    seq = [Ins(x) for x in lines]
    t = 0; lm = -100; lsm = False; lv = -100; out = []
    for i in seq:
        if i.nws == 0:
            out.append(t); continue
        cost = 4 * i.nws
        if i.kind == 'mfma': t = max(t, lm + 16)
        elif i.kind == 'valu':
            t = max(t, lm + (12 if lsm else 8))
            if i.mn.startswith(TRANS): cost = 8
        elif i.kind in ('ds', 'vmem'):
            t = max(t, lm + 8, lv + 12)
            if i.mn in ('ds_write2_b32', 'ds_write_b64'): cost = 12
            if i.mn == 'ds_write_b32': cost = 8
            if i.mn == 'ds_write_b128': cost = 26
            if 'store_dwordx4' in i.mn: cost = 20
            if 'store_dwordx2' in i.mn: cost = 12
        out.append(t)
        if i.kind == 'mfma': lm = t; lsm = i.mn.startswith('v_smfmac')
        if i.kind == 'valu': lv = t
        t += cost
    return out
```

```python
def emit(G, mode):
    globals().update(G)
    ST = "sc1" if mode else ""
    Ln = lambda s: f"L_c{mode}_{s}"
    W = "s[40:43]"
    WSTR = 36864
    L_M = 0; L_X = L_M + 8192; L_P = L_X + 4096 + 512; L_O = L_P + 1024; L_W = 16384
    assert L_O + 2048 <= L_W
    M = 0
    AQ0, AQ1, AK0, AK1, AV0, AV1 = 32, 36, 40, 44, 48, 52
    VW = 56; KT = 88; VT = 104; QF = 112
    vIDX, vW16, vP8, vSP1, vSP2, vVW, vXW, vQR, vKR, vFLG, vPR, vOW, vL16, vRL, vMS, vSEL = range(128, 144)
    WOB = 144
    sStep, sMc, sMn, sMp, sPc, sPp, sSK, sSV, sPF, sKM, sVM, sFl, sKv = range(44, 57)
    sRd = list(range(57, 65))
    sSENT, sONE, sMLO = 66, 68, 70
    sC, sInf, sLlo, sLrg, sW1k, sLo, sHi, sPW = range(72, 80)
    sT = 80
    sKMp, sVMp, sDone, sPn, sDl = 65, 90, 91, sPW, 95
    lds_slot = {}
    order = [('q', 0, 0), ('k', 0, 0), ('q', 0, 1), ('k', 0, 1),
             ('k', 0, 2), ('k', 0, 3), ('q', 0, 6), ('q', 1, 6), ('k', 0, 6), ('k', 1, 6),
             ('v', 1, 1), ('v', 1, 3),
             ('o', 2, 1), ('o', 3, 1), ('o', 4, 1), ('o', 5, 1), ('o', 6, 1), ('o', 7, 1)]
    for i, f in enumerate(order): lds_slot[f] = i
    NQ = 12
    reg = {}
    n = 0
    for mt in 'qkv':
        for tt in range(2):
            for sg in range(8):
                if (mt, tt, sg) not in lds_slot:
                    reg[(mt, tt, sg)] = ('a', 8 * n) if n < 32 else ('v', 224 + 8 * (n - 32)); n += 1
    assert n == 36
    n = 0
    for t in range(8):
        for k in range(2):
            if ('o', t, k) not in lds_slot: reg[('o', t, k)] = ('v', WOB + 8 * n); n += 1
    assert n == 10
    rr = lambda f, o, n: (ar if reg[f][0] == 'a' else vr)(reg[f][1] + o, n)

    e(f"L_chain{mode}:")
    if OPT['skip_chain']:
        e("s_branch L_end"); return
    h = S_IDX; w = S_WAVE
    TLV[0] = 15
    TL(1, 0)
    if OPT.get('tl'): e(f"v_mov_b32 v15, s94\ns_sub_u32 s97, s97, 4\nbuffer_store_dword v15, off, {WS}, s97")
    e(f"v_lshrrev_b32 v1, 4, v0\nv_and_b32 v2, 15, v0")
    e(f"v_lshlrev_b32 v{vL16}, 4, v0")
    e(f"s_lshl_b32 s{sT}, s{w}, 11\nv_add_u32 v{vW16}, s{sT}, v{vL16}")
    e(f"s_lshl_b32 s{sT}, s{w}, 9\nv_lshlrev_b32 v{vP8}, 3, v0\nv_add_u32 v{vP8}, s{sT}, v{vP8}")
    e(f"s_mul_i32 s{sT}, s{w}, {WSTR}\ns_add_u32 s{sT}, s{sT}, {L_W}\nv_add_u32 v{vVW}, s{sT}, v{vL16}")
    e(f"v_mov_b32 v{vIDX}, 0x4444\nv_mov_b32 v3, 0xeeee\nv_and_b32 v4, 2, v2\nv_cmp_eq_u32 vcc, 0, v4\nv_cndmask_b32 v{vIDX}, v3, v{vIDX}, vcc")
    e(f"s_lshl_b32 s{sW1k}, s{w}, 10\nv_lshrrev_b32 v3, 2, v2\nv_lshlrev_b32 v3, 7, v3\nv_lshl_add_u32 v3, v1, 5, v3\nv_and_b32 v4, 3, v2\nv_lshl_add_u32 v3, v4, 2, v3")
    e(f"v_add_u32 v3, s{sW1k}, v3\nv_add_u32 v{vXW}, {L_X}, v3")
    e(f"v_and_b32 v4, 7, v2\nv_lshlrev_b32 v4, 4, v4\nv_lshl_add_u32 v{vQR}, v1, 7, v4")
    e(f"v_lshrrev_b32 v3, 2, v2\nv_and_b32 v4, 1, v2\nv_lshl_add_u32 v3, v3, 1, v4\nv_lshlrev_b32 v3, 4, v3\nv_lshl_add_u32 v{vKR}, v1, 7, v3")
    e(f"v_lshrrev_b32 v5, 3, v2\nv_lshl_add_u32 v{vPR}, v5, 9, v{vQR}")
    e(f"v_and_b32 v3, 6, v2\nv_lshlrev_b32 v3, 1, v3\nv_and_b32 v4, 1, v2\nv_add_u32 v3, v3, v4\nv_lshl_add_u32 v3, v1, 4, v3\nv_lshlrev_b32 v3, 4, v3\nv_lshl_add_u32 v3, v5, 3, v3")
    e(f"s_lshr_b32 s{sT}, s{w}, 1\ns_lshl_b32 s{sT}, s{sT}, 10\ns_and_b32 s{sT+1}, s{w}, 1\ns_lshl_b32 s{sT+1}, s{sT+1}, 5\ns_add_u32 s{sT}, s{sT}, s{sT+1}\nv_add_u32 v{vOW}, s{sT}, v3")
    e(f"s_lshl_b32 s{sT}, s{w}, 11\ns_lshl_b32 s{sT+1}, s{h}, 6\ns_add_u32 s{sT}, s{sT}, s{sT+1}")
    e(f"v_mul_u32_u24 v3, {HS}, v1\nv_lshl_add_u32 v3, v2, 2, v3\nv_add_u32 v{vRL}, s{sT}, v3")
    sWp, sGp, sHc = sT + 2, sT + 3, sT + 4
    e(f"s_lshr_b32 s{sWp}, s{h}, 3\ns_bfe_u32 s{sGp}, s{h}, 0x20001\ns_and_b32 s{sHc}, s{h}, 1")
    e(f"s_lshl_b32 s{sT}, s{w}, 11\ns_lshl_b32 s{sT+1}, s{sWp}, 9\ns_add_u32 s{sT}, s{sT}, s{sT+1}\ns_lshl_b32 s{sT+1}, s{sHc}, 8\ns_add_u32 s{sT}, s{sT}, s{sT+1}\ns_lshl_b32 s{sT+1}, s{sGp}, 6\ns_add_u32 s{sT}, s{sT}, s{sT+1}")
    e(f"v_and_b32 v3, 1, v2\nv_lshrrev_b32 v4, 1, v2\nv_lshrrev_b32 v6, 3, v2\nv_lshl_add_u32 v6, v6, 1, v3\nv_lshlrev_b32 v6, 4, v6\nv_and_b32 v8, 3, v4\nv_lshl_add_u32 v6, v8, 2, v6\nv_add_u32 v6, s{sT}, v6")
    e(f"v_mov_b32 v7, {OOB:#x}\nv_cmp_eq_u32 vcc, 0, v1\nv_cndmask_b32 v{vMS}, v7, v6, vcc")
    e(f"v_lshlrev_b32 v6, 10, v3\nv_lshl_add_u32 v6, v4, 4, v6")
    e(f"s_lshl_b32 s{sT}, s{sGp}, 11\ns_lshl_b32 s{sT+1}, s{sWp}, 8\ns_add_u32 s{sT}, s{sT}, s{sT+1}\ns_lshl_b32 s{sT+1}, s{sHc}, 7\ns_add_u32 s{sT}, s{sT}, s{sT+1}\ns_lshl_b32 s{sT+1}, s{w}, 2\ns_add_u32 s{sT}, s{sT}, s{sT+1}")
    srd(40, P_MEM0, 8192)
    e(f"buffer_load_dword v9, v6, {W}, s{sT} offen")
    e(f"v_mov_b32 v{vSEL}, 0\nv_mov_b32 v3, 0x3f80\nv_cmp_eq_u32 vcc, 0, v2\nv_cndmask_b32 v{vSEL}, v{vSEL}, v3, vcc\nv_mov_b32 v3, 0x3f800000\nv_cmp_eq_u32 vcc, 1, v2\nv_cndmask_b32 v{vSEL}, v{vSEL}, v3, vcc")
    e(f"s_mov_b32 s{sStep}, 0\ns_mov_b32 s{sMc}, {WS_M}\ns_mov_b32 s{sMn}, {WS_M+8192}\ns_mov_b32 s{sMp}, {WS_M+16384}")
    e(f"s_mul_i32 s{sPc}, s{h}, {HS}\ns_add_u32 s{sPc}, s{sPc}, {WS_P:#x}\ns_add_u32 s{sPn}, s{sPc}, {PRING:#x}\ns_add_u32 s{sPp}, s{sPn}, {PRING:#x}")
    for i in range(8): e(f"s_mov_b32 s{sRd[i]}, {WS_P + i*4*HS:#x}")
    e(f"s_lshl_b32 s{sT}, s{h}, {RH}\ns_lshr_b32 s{sT+1}, s{w}, 1\ns_lshl_b32 s{sT+1}, s{sT+1}, 12\ns_add_u32 s{sSK}, s{sT}, s{sT+1}\ns_add_u32 s{sSK}, s{sSK}, {WS_K:#x}")
    e(f"s_lshl_b32 s{sT+1}, s{w}, 11\ns_add_u32 s{sSV}, s{sT}, s{sT+1}\ns_add_u32 s{sSV}, s{sSV}, {WS_V:#x}")
    e(f"s_lshl_b32 s{sT+1}, s{w}, 12\ns_add_u32 s{sPF}, s{sT}, s{sT+1}\ns_add_u32 s{sPF}, s{sPF}, {WS_K:#x}")
    e(f"s_add_u32 s{sT}, s{sT}, s{sW1k}\ns_add_u32 s{sKM}, s{sT}, {WS_KM:#x}\ns_add_u32 s{sVM}, s{sT}, {WS_VM:#x}")
    e(f"s_lshl_b32 s{sT}, s{h}, 7\ns_add_u32 s{sT}, s{sT}, {WS_FLAG+F_PROG:#x}\ns_cmp_eq_u32 s{w}, 0\ns_cselect_b32 s{sFl}, s{sT}, {OOB:#x}")
    e(f"s_mov_b32 s{sKMp}, {OOB:#x}\ns_mov_b32 s{sVMp}, {OOB:#x}\ns_mov_b32 s{sDone}, 0")
    e(f"s_mov_b32 s{sSENT}, {SENT:#x}\ns_mov_b32 s{sSENT+1}, {SENT:#x}\ns_mov_b32 s{sONE}, 0x3f803f80\ns_mov_b32 s{sONE+1}, 0x3f803f80")
    e(f"s_mov_b32 s{sMLO}, 0x00ff00ff\ns_mov_b32 s{sMLO+1}, 0x00ff00ff\ns_mov_b32 s{sC}, {CSCALE:#x}\ns_mov_b32 s{sInf}, {INF:#x}")
    LLO, LHI = fbits(2.0 ** -60), fbits(2.0 ** 60)
    e(f"s_mov_b32 s{sLlo}, {LLO:#x}\ns_mov_b32 s{sLrg}, {(0 if OPT['force_fallback'] else LHI-LLO):#x}\ns_mov_b32 s{sLo}, 0x05040100\ns_mov_b32 s{sHi}, 0x07060302")
    e(f"v_mov_b64 v[12:13], s[{sSENT}:{sSENT+1}]\nv_mov_b64 v[14:15], s[{sSENT}:{sSENT+1}]")
    for s in (sPc, sPn, sPp):
        for o in (0, 1024): e(f"buffer_store_dwordx4 v[12:15], v{vW16}, {WS}, s{s} offen offset:{o} {ST}")
    e(f"buffer_store_dword v12, v{vMS}, {WS}, s{sMn} offen {ST}\nbuffer_store_dword v12, v{vMS}, {WS}, s{sMp} offen {ST}")
    e(f"s_waitcnt vmcnt(8)\nbuffer_store_dword v9, v{vMS}, {WS}, s{sMc} offen {ST}")
    e("s_waitcnt vmcnt(0)\ns_barrier")
    e(f"s_cmp_eq_u32 s{w}, 0\ns_cbranch_scc0 {Ln('na')}")
    e(f"s_mov_b64 exec, 1\nv_mov_b32 v3, 0\nv_mov_b32 v4, 1\nglobal_atomic_add v3, v4, s[{P_DBG}:{P_DBG+1}] offset:12\ns_mov_b64 exec, -1")
    e(f"{Ln('na')}:")
    vWA, vTS, vAD = 10, 11, 16
    e(f"v_and_b32 v3, 3, v2\nv_lshrrev_b32 v4, 2, v2\nv_lshl_add_u32 v3, v3, 2, v4\nv_lshlrev_b32 v3, 4, v3")
    e(f"v_lshrrev_b32 v4, 1, v1\nv_lshl_add_u32 v3, v4, 19, v3\nv_and_b32 v4, 1, v1\nv_lshl_add_u32 v3, v4, 17, v3")
    e(f"s_lshl_b32 s{sT}, s{w}, 14\ns_lshl_b32 s{sT+1}, s{h}, 8\ns_add_u32 s{sT}, s{sT}, s{sT+1}\nv_add_u32 v{vWA}, s{sT}, v3")
    e(f"s_lshl_b32 s{sT}, s{w}, 12\ns_add_u32 s{sT}, s{sT}, {L_M}\nv_add_u32 v{vTS}, s{sT}, v{vL16}")
    e(f"s_lshl_b32 s{sT+8}, s{w}, 3")
    RAW = [20, 144]
    TQ = [84, 88, 92]
    rounds = [('v', 0), ('v', 1), ('q', 1), ('k', 1), ('q', 0), ('k', 0)]
    ptr = {'q': P_WQ, 'k': P_WK, 'v': P_WV}
    def qkv_loads(ri):
        mt, par = rounds[ri]
        srd(40, ptr[mt], 0x400000)
        for j2 in range(8):
            for hb in range(2):
                row = 256 * par + 128 * (j2 >> 2) + 32 * (j2 & 1) + 8 * ((j2 & 3) >> 1) + hb
                e(f"s_mov_b32 s{sT}, {row*8192:#x}\nbuffer_load_dwordx4 {vr(RAW[ri&1]+(j2*2+hb)*4,4)}, v{vWA}, {W}, s{sT} offen")
    placed = set(); plan = []
    for ri, (mt, par) in enumerate(rounds):
        fr = [(mt, tt, sg) for tt in range(2) for sg in range(par, 8, 2)]
        for f in fr:
            if f in lds_slot: placed.add(lds_slot[f])
        free = [s for s in range(19, -1, -1) if s not in placed]
        loc = {}
        for f in fr:
            loc[f] = lds_slot[f] if f in lds_slot else free.pop(0)
        plan.append(loc)
    absslot = lambda wd, s: (8 + wd * 18 + s) if s < 18 else (wd * 2 + s - 18)
    vWO = 17
    e(f"v_lshrrev_b32 v3, 1, v1\nv_lshlrev_b32 v3, 3, v3\nv_and_b32 v4, 1, v1\nv_add_u32 v3, v3, v4\nv_lshlrev_b32 v3, 10, v3\nv_lshl_add_u32 v3, v2, 4, v3")
    e(f"s_lshl_b32 s{sT}, s{h}, 17\ns_lshl_b32 s{sT+1}, s{w}, 8\ns_add_u32 s{sT}, s{sT}, s{sT+1}\nv_add_u32 v{vWO}, s{sT}, v3")
    WRAW = [20, 52, 96]
    def wo_loads(gi):
        kap, hf = gi >> 1, gi & 1
        for jl in range(4):
            for hb in range(2):
                row = 64 * (jl >> 1) + 32 * hb + 16 * hf + 4 * kap + 2 * (jl & 1)
                e(f"s_mov_b32 s{sT}, {row*1024:#x}\nbuffer_load_dwordx4 {vr(WRAW[gi%3]+(jl*2+hb)*4,4)}, v{vWO}, {W}, s{sT} offen")
    qkv_loads(0)
    tq = 0
    for ri, (mt, par) in enumerate(rounds):
        if ri + 1 < 6:
            qkv_loads(ri + 1); e("s_waitcnt vmcnt(16)")
        else:
            srd(40, P_WO, 0x400000); wo_loads(0); wo_loads(1); e("s_waitcnt vmcnt(16)")
        if ri: e("s_waitcnt lgkmcnt(0)\ns_barrier")
        raw = RAW[ri & 1]
        for t in range(8):
            wd, tt = t >> 1, t & 1
            const = 0
            for wl in range(4):
                sg = 2 * wl + par
                const |= absslot(wd, plan[ri][(mt, tt, sg)]) << (8 * wl)
            e(f"s_lshr_b32 s{sT}, {const:#x}, s{sT+8}\ns_and_b32 s{sT}, s{sT}, 0xff\ns_lshl_b32 s{sT}, s{sT}, 11\nv_add_u32 v{vAD}, s{sT}, v{vL16}")
            for hf in range(2):
                q = TQ[tq % 3]; tq += 1
                for jl in range(4):
                    j2 = hf * 4 + jl
                    e(f"v_perm_b32 v{q+jl}, v{raw+(j2*2+1)*4+(t>>1)}, v{raw+(j2*2)*4+(t>>1)}, s{sHi if t&1 else sLo}")
                e(f"ds_write_b128 v{vAD}, {vr(q,4)} offset:{hf*1024}")
        e("s_waitcnt lgkmcnt(0)\ns_barrier")
        nrd = 0
        for f, s in plan[ri].items():
            if f in lds_slot: continue
            for hf in range(2):
                if s < 18: e(f"ds_read_b128 {rr(f,4*hf,4)}, v{vVW} offset:{s*2048+hf*1024}")
                else: e(f"ds_read_b128 {rr(f,4*hf,4)}, v{vTS} offset:{(s-18)*2048+hf*1024}")
                nrd += 1
                if nrd == 12: e("s_waitcnt lgkmcnt(4)")
    e("s_waitcnt lgkmcnt(0)\ns_barrier")
    for gi in range(4):
        kap, hf = gi >> 1, gi & 1
        if gi + 2 < 4: wo_loads(gi + 2)
        e(f"s_waitcnt vmcnt({8*min(2, 3-gi)})")
        raw = WRAW[gi % 3]
        for t in range(8):
            f = ('o', t, kap)
            q = reg[f][1] + 4 * hf if f in reg else TQ[t % 3]
            for jl in range(4):
                e(f"v_perm_b32 v{q+jl}, v{raw+(jl*2+1)*4+(t>>1)}, v{raw+(jl*2)*4+(t>>1)}, s{sHi if t&1 else sLo}")
            if f not in reg: e(f"ds_write_b128 v{vVW}, {vr(q,4)} offset:{lds_slot[f]*2048+hf*1024}")
    TL(2, 0)
    e(f"v_mov_b32 v3, 0\nv_lshlrev_b32 v4, 3, v0\nv_mov_b32 v6, 0\nv_mov_b32 v7, 0\nds_write_b64 v4, v[6:7] offset:{L_P-512}\nds_write_b64 v4, v[6:7] offset:{L_P+512}")
    e(f"{Ln('bar')}:\nglobal_load_dword v4, v3, s[{P_DBG}:{P_DBG+1}] offset:12 sc1\ns_waitcnt vmcnt(0)\nv_cmp_eq_u32 vcc, 32, v4\ns_cbranch_vccnz {Ln('bar_ok')}")
    fail_if_zero(10)
    e(f"s_branch {Ln('bar')}\n{Ln('bar_ok')}:")
    TL(3, 0)
    wait_flags_ready(11 + 20 * mode, 4)
    e(f"s_mov_b32 s{sKv}, {WS_FLAG+F_KV:#x}")
    if OPT.get('rounds') != 0: poll_ge(12 + 20 * mode, f"s{sKv}", 16, 4, sleep=0)
    TL(4, 0)
    if OPT.get('tl'): e("s_memtime s[92:93]\ns_waitcnt lgkmcnt(0)\ns_mov_b32 s94, 0")
    def kv_loads():
        r = []
        for j in range(4): r.append(f"buffer_load_dwordx4 {vr(KT+4*j,4)}, v{vL16}, {WS}, s{sSK} offen offset:{j*1024} sc1")
        for t in range(2): r.append(f"buffer_load_dwordx4 {vr(VT+4*t,4)}, v{vL16}, {WS}, s{sSV} offen offset:{t*1024} sc1")
        return r
    e(f"v_lshlrev_b32 v{vSP1}, 2, v{vL16}\nbuffer_load_dword v{vFLG}, v{vSP1}, {WS}, s{sPF} offen sc1\ns_add_u32 s{sPF}, s{sPF}, 0x8000\nbuffer_load_dword v{vFLG}, v{vSP1}, {WS}, s{sPF} offen sc1\ns_add_u32 s{sPF}, s{sPF}, 0x8000")
    e(f"s_lshl_b32 s{sT}, s{w}, 11\nv_add_u32 v{vSP2}, s{sT}, v{vSP1}\nv_mov_b32 v4, {OOB:#x}\nv_cmp_gt_u32 vcc, 32, v0\nv_cndmask_b32 v{vSP2}, v4, v{vSP2}, vcc")
    X = OPT.get('x', ''); nc = 'nocomm' in X
    from asmlib import estimate
    mm = "v_mfma_f32_16x16x32_bf16"; m16 = "v_mfma_f32_16x16x16_bf16"
    cvt = lambda d, a, b: f"v_cvt_pk_bf16_f32 v{d}, v{a}, v{b}"
    add2 = lambda a: [f"v_add_f32 v{a}, v{a}, v{a+2}", f"v_add_f32 v{a+1}, v{a+1}, v{a+3}"]
    mul2 = lambda a: [f"v_mul_f32 v{a}, s{sC}, v{a}", f"v_mul_f32 v{a+1}, s{sC}, v{a+1}"]
    accof = {'q': (AQ0, AQ1), 'k': (AK0, AK1), 'v': (AV0, AV1)}
    ringslot = {f: i % 4 for i, f in enumerate(order[:10])}
    ringslot.update({order[10]: 2, order[11]: 3})
    ringslot.update({f: (2, 3, 0, 1, 2, 3)[i] for i, f in enumerate(order[12:])})
    wtxt = lambda f, hf: f"ds_read_b128 {vr(VW+8*ringslot[f]+4*hf,4)}, v{vVW} offset:{lds_slot[f]*2048+hf*1024}"
    wreg = lambda f: vr(VW + 8 * ringslot[f], 8) if f in lds_slot else rr(f, 0, 8)
    stage = [wtxt(order[i], hf) for i in range(4) for hf in range(2)]
    zero_acc = [f"v_mov_b64 v[{AQ0+2*i}:{AQ0+2*i+1}], 0" for i in range(12)]
    SM = lambda f: f"v_smfmac_f32_16x16x64_bf16 {vr(accof[f[0]][f[1]],4)}, {vr(M+4*f[2],4)}, {wreg(f)}, v{vIDX}"
    STK, SMM, LA, OA = AQ0, AK1, AQ1, AK0
    PT = AQ1; KF = M; PM = AV0 + 2; RC = SMM + 2
    PLO, PHI, PAL, ONE4 = VW, VW + 4, VW + 8, VW + 12
    T1, PRB, SENTQ, KPB, VPB = QF + 1, QF + 2, QF + 4, QF + 10, QF + 14
    LAND, SELQ, R = AQ0, QF, QF + 4
    mlo = f"s[{sMLO}:{sMLO+1}]"
    chainc = lambda a, j: '0' if j == 0 else vr(a, 4)
    pv_tok = [f"{mm} {vr(LA,4)}, {vr(ONE4,4)}, {vr(PAL,4)}, 0", f"{mm} {vr(OA,4)}, {vr(VT,4)}, {vr(PLO,4)}, 0",
              f"{mm} {vr(OA,4)}, {vr(VT+4,4)}, {vr(PHI,4)}, {vr(OA,4)}"]
    pv_mem = [f"{m16} {vr(LA,4)}, {vr(ONE4,2)}, {vr(PM,2)}, {vr(LA,4)}", f"{m16} {vr(OA,4)}, {vr(AV0,2)}, {vr(PM,2)}, {vr(OA,4)}"]
    zw = [f"v_mov_b64 v[{M+2*i}:{M+2*i+1}], 0" for i in range(16)]
    norm = [f"v_mul_f32 v{OA+r}, v{OA+r}, v{RC}" for r in range(4)] + [cvt(OA, OA, OA + 1), cvt(OA + 1, OA + 2, OA + 3)]
    ow = f"ds_write_b64 v{vOW}, {vr(OA,2)} offset:{L_O}"
    pub_k = lambda s: f"buffer_store_dwordx4 {vr(KPB,4)}, v{vL16}, {WS}, s{s} offen sc1"
    pub_v = lambda r, s: f"buffer_store_dwordx2 {vr(r,2)}, v{vL16}, {WS}, s{s} offen sc1"
    p2l = [f"buffer_load_dword v{LAND+i}, v{vRL}, {WS}, s{sRd[i]} offen sc1" for i in range(8)]
    shot = lambda r: [f"buffer_load_dword v{r}, v{vSP2}, {WS}, s{sMc} offen sc1", f"buffer_load_dwordx4 v{vW16}, {WS}, s{sMc} offen sc1 lds",
                      f"buffer_load_dwordx4 v{vW16}, {WS}, s{sMc} offen offset:1024 sc1 lds"]
    def pad(n):
        r = []
        while n > 0:
            k = min(n, 8); r.append(f"s_nop {k-1}"); n -= k
        return r
    dregs = list(range(4, 28, 2)) + list(range(84, 90, 2))
    NS = OPT.get('ns', 3)
    e("s_waitcnt lgkmcnt(0)")
    for x in stage + zero_acc: e(x)
    e(f"s_lshl_b32 s{sT}, s{w}, 11\ns_add_u32 m0, s{sT}, {L_M}")
    e("s_waitcnt vmcnt(0)\ns_barrier")
    for k in range(1, 4): e(f"s_cmp_eq_u32 s{w}, {k}\ns_cbranch_scc1 {Ln('enter%d' % k)}")
    ta = {}
    for wv in range(4):
        Lw = lambda s: Ln(f"w{wv}_{s}")
        lds = []; vm = []; dn = []
        def WL(tag):
            k = max(i for i, t in enumerate(lds) if t == tag)
            return f"s_waitcnt lgkmcnt({min(len(lds) - 1 - k, 15)})"
        def WV(tag):
            k = max(i for i, t in enumerate(vm) if t == tag)
            return f"s_waitcnt vmcnt({len(vm) - 1 - k})"
        def DS(name):
            if not OPT.get('dst'): return
            e(f"{'s_memrealtime' if OPT.get('real') else 's_memtime'} s[{dregs[len(dn)]}:{dregs[len(dn)]+1}]"); dn.append(name)
        class Op:
            def __init__(s, txt, tag=None, wait=None, vwait=None): s.txt, s.tag, s.wait, s.vwait = txt, tag, wait, vwait
            def out(s):
                if s.wait is not None: return WL(s.wait)
                if s.vwait is not None: return WV(s.vwait)
                if s.txt.startswith('ds_'): lds.append(s.tag)
                if s.txt.startswith('buffer_'): vm.append(s.tag)
                return s.txt
        E = lambda x, tag=None: e(Op(x, tag).out())
        rd = lambda dst, a, off, tag: Op(f"ds_read_b128 {vr(dst,4)}, v{a} offset:{off}", tag)
        wt = lambda tag: Op("s_waitcnt lgkmcnt(0)", wait=tag)
        wtv = lambda tag: Op("s_waitcnt vmcnt(0)", vwait=tag)
        tacost = lambda t: (20 if 'store_dwordx4' in t else 16 if 'x4' in t or 'x2' in t else 6) if t.startswith('buffer_') else 0
        class Sched:
            def __init__(s, bb, book=False): s.bb = bb; s.g = [([], [], []) for _ in bb]; s.book = book
            def kind(s, x):
                t = x.txt
                return 2 if t.startswith('v_') and not t.startswith('v_cmp_eq') else (1 if t.startswith(('ds_', 'buffer_')) else 0)
            def over(s, g, extra=None):
                parts = [list(p) for p in s.g[g]]
                if extra: parts[s.kind(extra)].append(extra)
                ws = [x for x in parts[0] if x.wait is not None]
                parts[0] = ws[:1] + [x for x in parts[0] if x.wait is None]
                ls = [s.bb[g]] + [x.txt for p in parts for x in p] + [s.bb[g]]
                return estimate(ls)[-1] - 16
            def fix(s, g, *xs):
                for x in xs:
                    x = x if isinstance(x, Op) else Op(x)
                    s.g[g][s.kind(x)].append(x)
                    if s.book: ta[g] = ta.get(g, 0) + tacost(x.txt)
            def flex(s, lo, hi, x):
                x = x if isinstance(x, Op) else Op(x)
                c = tacost(x.txt)
                busy = lambda g: max(0, ta.get(g, 0) + c - 20) if c else 0
                crowd = lambda g: (4 if x.txt.startswith('ds_') and any(y.txt.startswith('ds_') for y in s.g[g][1]) else 0)
                best = min(range(lo, hi + 1), key=lambda g: (s.over(g, x) - s.over(g) + busy(g) + crowd(g), g))
                s.fix(best, x); return best
            def emit(s, names=None):
                for g, ins in enumerate(s.bb):
                    e(ins)
                    if names and g in OPT.get('dst', []): DS(names % g)
                    ws = [x.out() for x in s.g[g][0] if x.wait is not None]
                    if ws: e(min(ws, key=lambda t: int(t[t.index('(')+1:-1])))
                    for p in s.g[g]:
                        for x in p:
                            if x.wait is None: e(x.out())
        kvl = kv_loads()
        if 'kv' in X: kvl = ['s_nop 0'] * 6
        PR0 = [PRB, PRB + 1, QF + 8, QF + 9][:NS] if wv == 0 else [PRB]
        e(f"{Ln('enter%d' % wv)}:")
        for r in PR0:
            for x in shot(r): e(x)
        e(".p2align 6")
        e(f"{Lw('step')}:")
        loop0 = len(e.l)
        DS('top')
        probe_bad = lambda r, lab: [f"v_cmp_eq_u32 vcc, s{sSENT}, v{r}", f"s_cbranch_vccnz {Lw(lab)}" if not nc else "s_nop 0"]
        vm += ['probe', 'dma0', 'dma'] * len(PR0)
        if wv == 0:
            e(f"s_waitcnt vmcnt({3*NS-1}) lgkmcnt(0)")
            for x in probe_bad(PR0[0], 'spin1'): e(x)
            e(f"{Lw('hit')}:\ns_waitcnt vmcnt({3*NS-3})")
        else:
            e("s_waitcnt lgkmcnt(0)")
        e("s_barrier")
        DS('b1a')
        mrd = lambda sg: rd(M + 4 * sg, vL16, L_M + sg * 1024, ('m', sg))
        e(mrd(0).out()); e(mrd(1).out()); e(WL(('m', 0)))
        nb1, nb2 = OPT.get('nb1', 0), OPT.get('nb2', 0)
        vq = [('v', 0, 0), ('v', 1, 0), ('v', 0, 1), ('v', 1, 1), ('v', 0, 2), ('v', 1, 2), ('v', 0, 3), ('v', 1, 3),
              ('v', 0, 4), ('v', 0, 5), ('v', 0, 6), ('v', 0, 7), ('v', 1, 4), ('v', 1, 5), ('v', 1, 6), ('v', 1, 7)]
        qk = lambda sg: [('q', 0, sg), ('q', 1, sg), ('k', 0, sg), ('k', 1, sg)]
        assert nb1 + nb2 <= 3
        fr = qk(0) + qk(1) + vq[:nb1] + qk(2) + qk(3) + vq[nb1:nb1 + nb2]
        nb = nb1 + nb2
        fr += [(mt, tt, sg) for mt in 'qk' for tt in range(2) for sg in range(4, 8)]
        gK1 = len(fr) - 1; gK0, gQ1, gQ0 = gK1 - 4, gK1 - 8, gK1 - 12
        vrest = vq[nb:]
        n1 = 4; n2 = 8; n3 = len(vrest) - n1 - n2
        bb = [SM(f) for f in fr + vrest[:n1]]
        gSt = len(bb); bb += [f"{mm} {vr(STK,4)}, {vr(KT+4*j,4)}, {vr(QF+4*j,4)}, {chainc(STK,j)}" for j in range(4)]
        bb += [SM(f) for f in vrest[n1:n1 + n2]]
        gSm = len(bb); bb += [f"{mm} {vr(SMM,4)}, {vr(KF+4*j,4)}, {vr(QF+4*j,4)}, {chainc(SMM,j)}" for j in range(4)]
        bb += [SM(f) for f in vrest[n1 + n2:]] + ['s_nop 0'] * (4 - n3)
        gPv = len(bb); bb += pv_tok + pv_mem
        gof = {f: bb.index(SM(f)) for f in fr + vrest}
        sc = Sched(bb, True)
        g2, g4 = gof[('q', 0, 2)], gof[('q', 0, 4)]
        b1b, b1c = g2 - 5, g4 - 5
        sc.fix(0, wt(('m', 1)))
        gmine = {1: b1b, 2: b1c, 3: b1c}.get(wv)
        if wv:
            sc.fix(gmine - 1, wtv('probe'), *probe_bad(PRB, 'spin')); sc.g[gmine - 1][0].append(Op(f"{Lw('hit')}:"))
            sc.fix(gmine, wtv('dma'))
        sc.fix(b1b, "s_barrier", mrd(2)); sc.fix(b1b + 1, mrd(3))
        sc.fix(g2 - 1, wt(('m', 2))); sc.fix(g2 + 3, wt(('m', 3)))
        sc.fix(b1c, "s_barrier", mrd(4)); sc.fix(b1c + 1, mrd(5)); sc.fix(b1c + 2, mrd(6)); sc.fix(b1c + 3, mrd(7))
        for k in range(4): sc.fix(g4 - 1 + k, wt(('m', 4 + k)))
        gqw = gQ1 + 5
        for i, x in enumerate(add2(AQ0) + mul2(AQ0)): sc.fix(gQ0 + 2 + i, x)
        for i, x in enumerate(add2(AQ1) + mul2(AQ1) + [cvt(AQ0, AQ0, AQ1), cvt(AQ0 + 1, AQ0 + 1, AQ1 + 1)]): sc.fix(gQ1 + 2 + i // 2, x)
        sc.fix(gqw, Op(f"ds_write2_b32 v{vXW}, v{AQ0}, v{AQ0+1} offset0:0 offset1:4", 'qw'))
        qrd = lambda j: rd(QF + 4 * j, vQR, L_X + 1024 * j, ('qf', j))
        assert gSt == gqw + 8
        sc.fix(gqw + 4, wt('qw'), "s_barrier", qrd(0)); sc.fix(gqw + 5, qrd(1)); sc.fix(gqw + 6, qrd(2)); sc.fix(gqw + 7, qrd(3))
        for j in range(4): sc.fix(gSt - 1 + j, wt(('qf', j)))
        sc.fix(gK0 + 2, add2(AK0)[0]); sc.fix(gK0 + 3, add2(AK0)[1]); sc.fix(gK1 + 2, add2(AK1)[0]); sc.fix(gK1 + 3, add2(AK1)[1])
        sc.fix(gK1 + 4, cvt(AK0, AK0, AK1)); sc.fix(gK1 + 5, cvt(AK0 + 1, AK0 + 1, AK1 + 1))
        gkw = gK1 + 6
        sc.fix(gkw, Op(f"ds_write2_b32 v{vXW}, v{AK0}, v{AK0+1} offset0:128 offset1:132", 'kw'))
        sc.fix(gkw + 4, wt('kw'), "s_barrier")
        for j in range(4):
            gj = max(gkw + 4 + j, gof[('v', 1, j)])
            sc.fix(gj, rd(KF + 4 * j, vKR, L_X + 512 + 1024 * j, ('kf', j)))
            sc.fix(gSm - 1 + j, wt(('kf', j)))
        ge = gSt + 5
        for r in range(4): sc.fix(ge + r, f"v_exp_f32 v{PT+r}, v{STK+r}")
        sc.fix(ge + 4, cvt(PT, PT, PT + 1)); sc.fix(ge + 5, cvt(PT + 1, PT + 2, PT + 3))
        gpw = ge + 6
        sc.fix(gpw, Op(f"ds_write_b64 v{vQR}, {vr(PT,2)} offset:{L_P+(wv>>1)*8}", 'pw'))
        sc.fix(gpw + 4, wt('pw'), "s_barrier", rd(PAL, vQR, L_P, 'pal')); sc.fix(gpw + 5, rd(PLO, vPR, L_P, 'plo'), rd(PHI, vPR, L_P - 512, 'phi'))
        sc.fix(gPv - 1, wt('pal')); sc.fix(gPv, wt('plo')); sc.fix(gPv + 1, wt('phi'))
        gV0 = max(gof[('v', 0, s)] for s in range(8))
        sc.fix(max(gV0 + 2, gSm + 1), *add2(AV0)); sc.fix(max(gV0 + 3, gSm + 2), cvt(AV0, AV0, AV0 + 1))
        sc.fix(gSm + 5, f"v_exp_f32 v{SMM+2}, v{SMM}"); sc.fix(gSm + 6, f"v_exp_f32 v{SMM+3}, v{SMM+1}"); sc.fix(gSm + 7, cvt(SMM + 2, SMM + 2, SMM + 3))
        sc.fix(gPv, f"v_cndmask_b32 v{PM}, 0, v{SMM+2}, {mlo}", f"v_cndmask_b32 v{PM+1}, v{SMM+2}, 0, {mlo}")
        sc.fix(gPv + 1, *add2(AV1)); sc.fix(gPv + 2, cvt(AV0 + 1, AV1, AV1 + 1), zw[0])
        sc.fix(gPv + 3, f"s_cmp_eq_u32 s{sStep}, 63", zw[1], zw[2]); sc.fix(gPv + 4, zw[3], zw[4])
        last = {k: gof[order[k]] for k in range(4)}; prev = 0
        for f in order[4:14]:
            use = gof.get(f, gPv + 4); lo = max(last[ringslot[f]], prev)
            a = sc.flex(lo, use - 5, Op(wtxt(f, 0), (f, 0))); prev = sc.flex(a, use - 4, Op(wtxt(f, 1), (f, 1)))
            if f in gof: sc.fix(use - 1, wt((f, 1)))
            last[ringslot[f]] = use
        sc.flex(last[1], gPv - 2, f"v_mov_b64 {vr(ONE4,2)}, s[{sONE}:{sONE+1}]"); sc.flex(last[1], gPv - 2, f"v_mov_b64 {vr(ONE4+2,2)}, s[{sONE}:{sONE+1}]")
        lo = OPT.get('kv0', 1)
        for j in range(6): lo = sc.flex(lo, (gSt - 19 + j) if j < 4 else (gSt - 16 + j), Op(kvl[j], ('kv', j))) + 1
        if 'kv' not in X: sc.fix(gSt - 2, wtv(('kv', 3))); sc.fix(gPv - 2, wtv(('kv', 5)))
        q0 = max(lo, b1c + OPT.get('q0', 2))
        gkp = sc.flex(0, gqw - 6, rd(KPB, vKR, L_X + 512 + wv * 1024, 'kp'))
        a = sc.flex(0, q0, f"v_mov_b64 {vr(SENTQ,2)}, s[{sSENT}:{sSENT+1}]"); b = sc.flex(0, q0, f"v_mov_b64 {vr(SENTQ+2,2)}, s[{sSENT}:{sSENT+1}]")
        if wv == 0: sc.flex(0, q0 - 1, f"v_mov_b32 v{T1}, s{sDone}")
        rs = [f"buffer_store_dwordx4 {vr(SENTQ,4)}, v{vW16}, {WS}, s{sPn} offen offset:{o} {ST}" for o in (0, 1024)] + [f"buffer_store_dword v{SENTQ}, v{vMS}, {WS}, s{sMp} offen {ST}"]
        for x in rs: sc.flex(max(a, b, q0 - 1) + 1, gqw + 3, x)
        if 'pub' not in X:
            a = sc.flex(max(gkp + 5, q0), gqw + 3, pub_k(sKMp)); sc.fix(a - 1, wt('kp'))
            sc.flex(q0, gqw + 3, pub_v(VPB, sVMp))
        gpf = q0
        if 'pf' not in X: gpf = sc.flex(q0, gSm, f"buffer_load_dword v{vFLG}, v{vSP1}, {WS}, s{sPF} offen sc1")
        if 'flag' not in X:
            sc.flex(gpf + 1, gSm + 1, f"buffer_load_dword v{vFLG}, off, {WS}, s{sKv} sc1")
            if wv == 0: sc.flex(q0, gqw + 3, f"buffer_store_dword v{T1}, off, {WS}, s{sFl} sc1")
        sc.emit('g%d')
        e(f"v_rcp_f32 v{RC}, v{LA}"); e(zw[5]); e(zw[6])
        for x in norm: e(x)
        E(ow, 'ow')
        e(f"v_subrev_u32 v{RC+1}, s{sLlo}, v{LA}\nv_cmp_lt_u32 vcc, s{sLrg}, v{RC+1}")
        e(zw[7]); e(zw[8])
        if not nc: e(f"s_cbranch_vccnz {Lw('fb')}")
        e(f"{Lw('fbret')}:")
        e(f"s_cbranch_scc1 {Lw('last')}")
        for x in zw[9:12]: e(x)
        e("s_waitcnt lgkmcnt(0)\ns_barrier")
        E(f"ds_read_b128 {vr(QF,4)}, v{vL16} offset:{L_O}", 'o0'); E(f"ds_read_b128 {vr(QF+4,4)}, v{vL16} offset:{L_O+1024}", 'o1')
        for f in order[14:16]:
            for hf in range(2): E(wtxt(f, hf), (f, hf))
        for x in zw[12:16]: e(x)
        DS('wo_pre')
        wa = lambda t: add2(M + 4 * t)
        wc = lambda d: cvt(QF + 8 + d, M + 8 * (d >> 1) + (d & 1), M + 8 * (d >> 1) + 4 + (d & 1))
        pst = lambda tp: f"buffer_store_dwordx2 {vr(QF+8+2*tp,2)}, v{vP8}, {WS}, s{sPc if tp < 2 else sT+1} offen offset:{(tp&1)*2048} {ST}"
        wo = [f"v_smfmac_f32_16x16x64_bf16 {vr(M+4*(u>>1),4)}, {vr(QF+4*(u&1),4)}, {wreg(('o',u>>1,u&1))}, v{vIDX}" for u in range(16)]
        so = Sched(wo)
        e(WL('o0'))
        so.fix(0, wt('o1')); so.fix(1, f"s_add_u32 s{sT+1}, s{sPc}, 4096")
        for f, g in ((order[16], 5), (order[17], 7)):
            so.fix(g + (g == 5) * 2 + (g == 7), Op(wtxt(f, 0), (f, 0))); so.fix(g + (g == 5) * 3 + (g == 7) * 2, Op(wtxt(f, 1), (f, 1)))
        for f in order[14:18]: so.fix(2 * f[1], wt((f, 1)))
        so.fix(3, *wa(0)); so.fix(5, *(wa(1) + [wc(0), wc(1)])); so.fix(6, pst(0))
        so.fix(7, wa(2)[0]); so.fix(8, wa(2)[1]); so.fix(9, *wa(3)); so.fix(10, wc(2), wc(3)); so.fix(11, pst(1))
        so.fix(12, wa(4)[0]); so.fix(13, wa(4)[1]); so.fix(14, wa(5)[0])
        tail = [wa(5)[1], wc(4), wc(5), pst(2)] + wa(6) + wa(7) + [wc(6), wc(7), pst(3)]
        gp2 = OPT.get('gp2', 13)
        assert gp2 > 11
        if wv == 0:
            for k in range(8):
                if gp2 + k // 2 < 16: so.fix(gp2 + k // 2, p2l[k])
        so.emit()
        if wv == 0:
            for k in range(8):
                if gp2 + k // 2 >= 16: e(p2l[k])
        for x in tail: e(x)
        DS('wo_end')
        sel = [f"v_mov_b32 v{SELQ+d}, v{vSEL}" for d in range(4)]
        rot = [f"s_mov_b32 s{sT}, s{sMp}", f"s_mov_b32 s{sMp}, s{sMc}", f"s_mov_b32 s{sMc}, s{sMn}", f"s_mov_b32 s{sMn}, s{sT}"]
        free = [f"v_mov_b64 {vr(VPB,2)}, {vr(AV0,2)}"] + zero_acc[4:] + stage + [f"s_sub_u32 s{sDl}, s{sPn}, s{sPc}", f"s_mov_b32 s{sT+2}, s{sPp}",
                f"s_mov_b32 s{sPp}, s{sPc}", f"s_mov_b32 s{sPc}, s{sPn}", f"s_mov_b32 s{sPn}, s{sT+2}",
                f"s_mov_b32 s{sDone}, s{sStep}", f"s_add_u32 s{sStep}, s{sStep}, 1", f"s_mov_b32 s{sKMp}, s{sKM}", f"s_mov_b32 s{sVMp}, s{sVM}",
                f"s_add_u32 s{sKM}, s{sKM}, 0x8000", f"s_add_u32 s{sVM}, s{sVM}, 0x8000", f"s_add_u32 s{sPF}, s{sPF}, 0x8000",
                f"s_add_u32 s{sSK}, s{sSK}, 0x8000", f"s_add_u32 s{sSV}, s{sSV}, 0x8000"]
        kvn = [f"s_add_u32 s{sT}, s{sStep}, 3", f"s_lshr_b32 s{sT}, s{sT}, 2", f"s_min_u32 s{sT}, s{sT}, 15", f"s_lshl_b32 s{sT}, s{sT}, 7", f"s_add_u32 s{sKv}, s{sT}, {WS_FLAG+F_KV:#x}"]
        dA = OPT.get('dA', [0, 0, 12, 34])[wv]; dB = OPT.get('dB', [30, 36, 36, 36])[wv]; dC = OPT.get('dC', 16)
        gaps = [dB] + [dC] * (len(PR0) - 1)
        late = zero_acc[:4] + kvn + [f"v_add_u32 v{vRL}, s{sDl}, v{vRL}"]
        nA = min(dA, len(free)); partA = free[:nA]; rest = free[nA:]
        want = max(0, sum(gaps) - len(late)); keep = rest[max(0, len(rest) - want):] if want else []
        mid = rest[:len(rest) - len(keep)]
        after = late[:4] + keep + late[4:]
        for x in partA + pad(dA - nA): e(x)
        DS('p2top')
        if wv:
            for x in p2l: e(x)
        for x in sel + rot + mid: e(x)
        e("s_waitcnt vmcnt(2)" if wv == 0 else "s_waitcnt vmcnt(0)")
        e(f"{Lw('p2w')}:")
        e(f"{mm} {vr(R,4)}, {vr(SELQ,4)}, {vr(LAND,4)}, 0\nv_max3_i32 v{M}, v{LAND}, v{LAND+1}, v{LAND+2}\nv_max3_i32 v{M+1}, v{LAND+3}, v{LAND+4}, v{LAND+5}")
        e(f"{mm} {vr(R,4)}, {vr(SELQ,4)}, {vr(LAND+4,4)}, {vr(R,4)}\nv_max3_i32 v{M}, v{M}, v{LAND+6}, v{LAND+7}\nv_max_i32 v{M}, v{M}, v{M+1}")
        e(f"v_cmp_le_i32 vcc, s{sInf}, v{M}")
        if not nc: e(f"s_cbranch_vccnz {Lw('p2slow')}")
        e(f"{Lw('p2ok')}:")
        e(f"v_cmp_gt_u32 vcc, 16, v{vFLG}")
        e(cvt(R, R, R + 1))
        e(f"buffer_store_dword v{R}, v{vMS}, {WS}, s{sMc} offen {ST}")
        DS('mstore')
        if 'flag' not in X: e(f"s_cbranch_vccnz {Lw('kvwait')}")
        e(f"{Lw('kvok')}:")
        for k, r in enumerate(PR0):
            part = after[:gaps[k]] if k < len(PR0) - 1 else after
            after = after[len(part):]
            for x in part + pad(gaps[k] - len(part)) + shot(r): e(x)
        if OPT.get('est') == wv and mode == 0:
            ls = e.l[loop0:]
            for tt, x in zip(estimate(ls), ls): print(tt, x)
        if OPT.get('dst'):
            DS('end')
            e(f"s_cmp_eq_u32 s{sStep}, 40\ns_cbranch_scc0 {Lw('step')}\ns_waitcnt lgkmcnt(0)")
            e(f"s_lshl_b32 s{sT}, s{h}, 2\ns_add_u32 s{sT}, s{sT}, s{w}\ns_lshl_b32 s{sT}, s{sT}, 7\ns_add_u32 s{sT}, s{sT}, {WS_STAMP:#x}")
            e("s_waitcnt vmcnt(0)")
            for k in range(len(dn)): e(f"v_mov_b32 v{M}, s{dregs[k]}\nbuffer_store_dword v{M}, off, {WS}, s{sT} offset:{4*k}")
            e("s_waitcnt vmcnt(0)")
            if mode == 0: open('dst_names.txt', 'w').write(' '.join(dn))
        e(f"s_branch {Lw('step')}")
        cnt = lambda inc: e(f"s_add_u32 s94, s94, {inc:#x}") if OPT.get('tl') else None
        if wv == 0:
            e(f"{Lw('spin0')}:")
            e(f"s_waitcnt vmcnt({3*NS-1})\nv_cmp_eq_u32 vcc, s{sSENT}, v{PR0[0]}\ns_cbranch_vccz {Lw('hit')}")
            e(f"{Lw('spin1')}:")
            for k in range(NS):
                cnt(1)
                for x in shot(PR0[k]): e(x)
                if k < NS - 1: e(f"s_waitcnt vmcnt({3*NS-1})\nv_cmp_eq_u32 vcc, s{sSENT}, v{PR0[k+1]}\ns_cbranch_vccz {Lw('hit')}")
            fail_if_zero(12)
            e(f"s_branch {Lw('spin0')}")
        else:
            e(f"{Lw('spin')}:")
            cnt(1)
            fail_if_zero(12)
            for x in shot(PRB): e(x)
            e(f"s_waitcnt vmcnt(0)\nv_cmp_eq_u32 vcc, s{sSENT}, v{PRB}\ns_cbranch_vccnz {Lw('spin')}\ns_branch {Lw('hit')}")
        e(f"{Lw('redo')}:")
        cnt(0x400)
        e(f"s_mov_b32 s{sKMp}, {OOB:#x}\ns_mov_b32 s{sVMp}, {OOB:#x}")
        e("s_waitcnt vmcnt(0) lgkmcnt(0)\ns_barrier")
        for r in PR0:
            for x in shot(r): e(x)
        for x in stage + zero_acc: e(x)
        fail_if_zero(13)
        e(f"s_branch {Lw('step')}")
        e(f"{Lw('p2slow')}:")
        for i in range(8): e(f"v_cmp_eq_u32 vcc, s{sSENT}, v{LAND+i}\ns_cbranch_vccnz {Lw('p2retry')}")
        e(f"s_branch {Lw('p2ok')}")
        e(f"{Lw('p2retry')}:")
        cnt(0x100000)
        fail_if_zero(14)
        for x in p2l: e(x)
        e(f"s_waitcnt vmcnt(0)\ns_branch {Lw('p2w')}")
        e(f"{Lw('kvwait')}:")
        poll_ge(100 + 10 * mode + wv, f"s{sKv}", 16, vFLG, sleep=0)
        e(f"s_branch {Lw('kvok')}")
        e(f"{Lw('fb')}:")
        F = M
        e("s_waitcnt vmcnt(0)\ns_barrier")
        for k in range(8): e(f"ds_read_b128 {vr(M+4*k,4)}, v{vL16} offset:{L_M+k*1024}")
        e("s_waitcnt lgkmcnt(0)\ns_barrier")
        for i in range(32): e(f"v_cmp_eq_u32 vcc, s{sSENT}, v{M+i}\ns_cbranch_vccnz {Lw('redo')}")
        e(f"ds_write_b128 v{vL16}, {vr(STK,4)} offset:{L_M+(wv>>1)*1024}")
        e("s_waitcnt lgkmcnt(0)\ns_barrier")
        e(f"ds_read_b128 {vr(F,4)}, v{vL16} offset:{L_M}\nds_read_b128 {vr(F+4,4)}, v{vL16} offset:{L_M+1024}\nv_mov_b32 v{F+8}, v{SMM}\nv_mov_b32 v{F+9}, v{SMM+1}\ns_waitcnt lgkmcnt(0)")
        e(f"v_max3_f32 v{F+10}, v{F}, v{F+1}, v{F+2}\nv_max3_f32 v{F+11}, v{F+3}, v{F+4}, v{F+5}\nv_max3_f32 v{F+10}, v{F+10}, v{F+6}, v{F+7}\nv_max3_f32 v{F+11}, v{F+11}, v{F+8}, v{F+9}\nv_max_f32 v{F+10}, v{F+10}, v{F+11}")
        e(f"v_mov_b32 v{F+11}, v{F+10}\nv_permlane32_swap_b32 v{F+10}, v{F+11}\nv_max_f32 v{F+10}, v{F+10}, v{F+11}")
        e(f"v_mov_b32 v{F+11}, v{F+10}\nv_permlane16_swap_b32 v{F+10}, v{F+11}\nv_max_f32 v{F+10}, v{F+10}, v{F+11}")
        for r in range(10): e(f"v_sub_f32 v{F+r}, v{F+r}, v{F+10}")
        for r in range(10): e(f"v_exp_f32 v{F+r}, v{F+r}")
        for dd in range(4): e(cvt(PAL + dd, F + 2 * dd, F + 2 * dd + 1))
        e(cvt(F + 8, F + 8, F + 9))
        for dd in range(4): e(f"v_cndmask_b32 v{PLO+dd}, 0, v{PAL+dd}, {mlo}\nv_cndmask_b32 v{PHI+dd}, v{PAL+dd}, 0, {mlo}")
        e(f"v_cndmask_b32 v{PM}, 0, v{F+8}, {mlo}\nv_cndmask_b32 v{PM+1}, v{F+8}, 0, {mlo}")
        for x in pv_tok + pv_mem: e(x)
        for x in zw[:9]: e(x)
        e(f"v_rcp_f32 v{RC}, v{LA}")
        for x in norm: e(x)
        e(ow)
        e(f"s_cmp_eq_u32 s{sStep}, 63\ns_branch {Lw('fbret')}")
        e(f"{Lw('last')}:")
        e(f"ds_read_b128 {vr(KPB,4)}, v{vKR} offset:{L_X+512+wv*1024}"); e(pub_v(AV0, sVM)); e("s_waitcnt lgkmcnt(0)"); e(pub_k(sKM))
        e(f"s_branch {Ln('fin')}")
    e(f"{Ln('fin')}:")
    e(f"v_mov_b32 v{M}, 64\ns_waitcnt vmcnt(0)\ns_barrier\nbuffer_store_dword v{M}, off, {WS}, s{sFl} sc1")
    TL(5, 0)
    if OPT.get('tl'): e(f"s_memtime s[98:99]\ns_waitcnt lgkmcnt(0)\ns_sub_u32 s98, s98, s92\nv_mov_b32 v15, s98\nbuffer_store_dword v15, off, {WS}, s97 offset:4\ns_lshl_b32 s96, s{w}, 2\ns_add_u32 s97, s97, s96\nv_mov_b32 v15, s94\nbuffer_store_dword v15, off, {WS}, s97 offset:12")
    e("s_waitcnt vmcnt(0)\ns_branch L_end")
```

```python
def emit(G):
    globals().update(G)
    X, W, AUX = "s[40:43]", "s[44:47]", "s[48:51]"
    sRound, sTile, sPass, sType, sRS, sNB, sCnt, sBlk, sBlkN = 52, 53, 54, 55, 56, 57, 58, 59, 60
    s2RS = {1: 61, 2: 62, 3: 63}; sRow = list(range(64, 72)); sB, sT0, sT1, s128, sLo, sHi = 72, 73, 74, 75, 76, 77
    vL16, vA0, vA1, vW, vXo, vG, vC = 1, 2, 3, 4, 5, 6, 7
    RING = [160, 192, 224, 128]
    XN, WF = 16, 48
    acc = lambda t, T: (t * 8 + T) * 4

    e("L_worker:")
    TL(1, 32)
    if OPT.get('tl'): e(f"v_mov_b32 v15, s94\ns_sub_u32 s97, s97, 4\nbuffer_store_dword v15, off, {WS}, s97")
    srd(40, P_X, 2048 * 1024)
    e(f"v_lshlrev_b32 v{vL16}, 4, v0\nv_lshrrev_b32 v{vG}, 4, v0\nv_and_b32 v{vC}, 15, v0")
    e(f"s_mov_b32 s{sLo}, 0x05040100\ns_mov_b32 s{sHi}, 0x07060302")
    e(f"s_cmp_eq_u32 s{S_IDX}, 0\ns_cbranch_scc0 L_w_nz")
    e(f"v_mov_b32 v8, 0\nv_mov_b32 v9, 0\nv_mov_b32 v10, 0\nv_mov_b32 v11, 0\ns_lshl_b32 s52, s{S_WAVE}, 12\ns_add_u32 s52, s52, {WS_FLAG}")
    for i in range(4): e(f"buffer_store_dwordx4 v[8:11], v{vL16}, {WS}, s52 offen offset:{i*1024} sc1")
    e("s_waitcnt vmcnt(0)\ns_barrier")
    e(f"v_mov_b32 v9, 1\nglobal_store_dword v8, v9, s[{P_DBG}:{P_DBG+1}] offset:8 sc1")
    e("L_w_nz:")
    e(f"s_mov_b32 s{sRound}, 0")
    if OPT.get('rounds') == 0: e("s_waitcnt vmcnt(0)\ns_branch L_end")
    e("L_task:")
    e(f"s_cmp_eq_u32 s{sRound}, 0\ns_cbranch_scc0 L_dec1")
    e(f"s_mul_i32 s78, s{S_IDX}, 1171\ns_lshr_b32 s78, s78, 16\ns_mul_i32 s79, s78, 56\ns_sub_u32 s79, s{S_IDX}, s79")
    e(f"s_lshr_b32 s{sTile}, s79, 2\ns_and_b32 s79, s79, 3\ns_lshl_b32 s78, s78, 2\ns_add_u32 s{sPass}, s78, s79\ns_branch L_dec2")
    e("L_dec1:")
    e(f"s_lshr_b32 s78, s{S_IDX}, 5\ns_and_b32 s79, s{S_IDX}, 15\ns_bfe_u32 s80, s{S_IDX}, 0x10004")
    e(f"s_mov_b32 s{sTile}, s79\ns_lshl_b32 s81, s78, 1\ns_add_u32 s81, s81, 14\ns_add_u32 s{sPass}, s81, s80")
    e(f"s_cmp_eq_u32 s78, 0\ns_cbranch_scc0 L_dec2\ns_add_u32 s{sTile}, s80, 14\ns_mov_b32 s{sPass}, s79")
    e("L_dec2:")
    e(f"s_and_b32 s78, s{sPass}, 7\ns_lshl_b32 s78, s78, 2\ns_add_u32 s78, s78, s{S_WAVE}\ns_lshl_b32 s79, s78, 8")
    e(f"s_mov_b32 s{sRS}, 8192\ns_mov_b32 s46, 0x400000\ns_mov_b32 s47, 0x20000\ns_mov_b32 s{sNB}, 4")
    e(f"s_mov_b32 s{sType}, 0\ns_mov_b32 s44, s{P_WK}\ns_mov_b32 s45, s{P_WK+1}\ns_cmp_lt_u32 s{sPass}, 8\ns_cbranch_scc1 L_dec3")
    e(f"s_mov_b32 s{sType}, 1\ns_mov_b32 s44, s{P_WV}\ns_mov_b32 s45, s{P_WV+1}\ns_cmp_lt_u32 s{sPass}, 16\ns_cbranch_scc1 L_dec3")
    e(f"s_mov_b32 s{sType}, 4\ns_mov_b32 s44, s{P_WQ}\ns_mov_b32 s45, s{P_WQ+1}\ns_cmp_lt_u32 s{sPass}, 24\ns_cbranch_scc1 L_dec3")
    e(f"s_mov_b32 s{sType}, 2\ns_mov_b32 s44, s{P_W1}\ns_mov_b32 s45, s{P_W1+1}\ns_mov_b32 s{sRS}, 3584\ns_mov_b32 s46, {512*3584}")
    e("L_dec3:")
    def wsetup():
        e(f"v_and_b32 v8, 3, v{vC}\nv_lshrrev_b32 v9, 2, v{vC}\nv_lshl_add_u32 v8, v8, 2, v9\nv_lshlrev_b32 v8, 4, v8")
        e(f"s_lshl_b32 s80, s{sRS}, 3\nv_mul_lo_u32 v9, s80, v{vG}\nv_add3_u32 v{vW}, v8, v9, s79")
        for i in range(8): e(f"s_mul_i32 s{sRow[i]}, s{sRS}, {32*(i>>1)+(i&1)}")
        for k in (1, 2, 3): e(f"s_mul_i32 s{s2RS[k]}, s{sRS}, {2*k}")
        e(f"s_lshl_b32 s{s128}, s{sRS}, 7")
        for n in range(3):
            for i in range(8):
                if n: e(f"s_add_u32 s{sT0}, s{s2RS[n]}, s{sRow[i]}")
                so = f"s{sT0}" if n else f"s{sRow[i]}"
                e(f"buffer_load_dwordx4 {vr(RING[n]+4*i,4)}, v{vW}, {W}, {so} offen")
    e(f"s_lshl_b32 s80, s{sTile}, 17\ns_lshl_b32 s81, s{S_WAVE}, 15\ns_add_u32 s80, s80, s81")
    e(f"v_lshlrev_b32 v{vXo}, 10, v{vC}\nv_lshl_add_u32 v{vXo}, v{vG}, 4, v{vXo}")
    e("s_add_u32 s81, s80, 16384")
    for u in range(2):
        for q in range(16):
            e(f"buffer_load_dwordx4 {vr(16+64*u+4*q,4)}, v{vXo}, {X}, s{80+u} offen offset:{(q>>2)*256+(q&3)*64}")
    wsetup()
    e("v_mov_b32 v8, 0x3f803f80")
    for i in range(4): e(f"v_accvgpr_write_b32 a{i}, v8")
    e(f"s_lshl_b32 s80, s{S_WAVE}, 15\nv_add_u32 v{vA0}, s80, v{vL16}")
    e("s_barrier")
    for u in range(2):
        RB = 16 + 64 * u
        e(f"s_waitcnt vmcnt({24 + (16 if u == 0 else 0)})")
        for q in range(16):
            e(f"v_mfma_f32_16x16x32_bf16 v[8:11], a[0:3], {vr(RB+4*q,4)}, {'0' if q == 0 else 'v[8:11]'}")
            for d in range(4):
                r = RB + 4 * q + d
                e(f"v_dot2_f32_bf16 v{12+d}, v{r}, v{r}, {'0' if q == 0 else 'v%d' % (12+d)}")
        e("v_add_f32 v12, v12, v13\nv_add_f32 v14, v14, v15\nv_add_f32 v12, v12, v14")
        e("v_mov_b32 v13, v12\nv_permlane32_swap_b32 v12, v13\nv_add_f32 v12, v12, v13")
        e("v_mov_b32 v13, v12\nv_permlane16_swap_b32 v12, v13\nv_add_f32 v12, v12, v13")
        e(f"v_mul_f32 v8, {fbits(1/512):#x}, v8\nv_mul_f32 v12, {fbits(1/512):#x}, v12")
        e(f"v_fma_f32 v12, -v8, v8, v12\nv_max_f32 v12, 0, v12\nv_add_f32 v12, {fbits(1e-5):#x}, v12\nv_rsq_f32 v144, v12")
        e("v_mul_f32 v146, -v8, v144".replace("v_mul_f32 v146, -v8, v144", "v_mul_f32_e64 v146, -v8, v144"))
        k = 0
        for wp in range(4):
            for tp in range(4):
                oq = 152 + 4 * ((wp * 4 + tp) & 1)
                for r in range(4):
                    src = RB + (wp * 4 + r) * 4 + tp
                    t = 148 + 2 * (k & 1); k += 1
                    e(f"v_lshlrev_b32 v{t}, 16, v{src}\nv_and_b32 v{t+1}, 0xffff0000, v{src}")
                    e(f"v_pk_fma_f32 v[{t}:{t+1}], v[{t}:{t+1}], v[144:145], v[146:147] op_sel_hi:[1,0,0]")
                    e(f"v_cvt_pk_bf16_f32 v{oq+r}, v{t}, v{t+1}")
                e(f"ds_write_b128 v{vA0}, {vr(oq,4)} offset:{u*16384+(wp*4+tp)*1024}")
    e("L_gemm:")
    if OPT.get('tl'):
        e(f"s_cmp_eq_u32 s{sRound}, 0\ns_cbranch_scc0 L_tl1"); TL(2, 32); e("L_tl1:")
    for i in range(256): e(f"v_accvgpr_write_b32 a{i}, 0")
    e(f"v_mov_b32 v{vA0}, v{vL16}\nv_add_u32 v{vA1}, 0x10000, v{vL16}")
    e(f"s_mov_b32 s{sBlk}, 0\ns_mov_b32 s{sCnt}, 1")
    e("s_waitcnt lgkmcnt(0)\ns_barrier")
    e(f"s_cmp_eq_u32 s{sPass}, 27\ns_cselect_b32 s80, s{S_WAVE}, 0\ns_cmp_eq_u32 s{sType}, 2\ns_cselect_b32 s80, s80, 0\ns_cmp_ge_u32 s80, 2\ns_cbranch_scc1 L_epi")
    def xnread(T, jloc):
        return f"ds_read_b128 {vr(XN+4*T,4)}, v{vA0 if T < 4 else vA1} offset:{(T&3)*16384+jloc*1024}"
    def perm(ring, t, rp):
        return f"v_perm_b32 v{WF+4*(t&1)+rp}, v{ring+4*(2*rp+1)+(t>>1)}, v{ring+4*(2*rp)+(t>>1)}, s{sHi if t&1 else sLo}"
    for T in range(8): e(xnread(T, 0))
    e("s_waitcnt vmcnt(16)")
    for rp in range(4): e(perm(RING[0], 0, rp))
    e(f"s_cmp_eq_u32 s{sType}, 1\ns_cbranch_scc1 L_loopB")
    for ori in "AB":
        e(f"L_loop{ori}:")
        e(f"s_add_u32 s{sBlkN}, s{sBlk}, s{s128}\ns_cmp_lt_u32 s{sCnt}, s{sNB}\ns_cselect_b32 s{sBlkN}, s{sBlkN}, {OOB:#x}")
        for tp in range(4):
            ring = RING[tp]; nring = RING[(tp + 1) & 3]; lring = RING[(tp + 3) & 3]
            tpp = (tp + 3) & 3
            base = sBlk if tp == 0 else sBlkN
            if tpp: e(f"s_add_u32 s{sB}, s{base}, s{s2RS[tpp]}")
            else: e(f"s_mov_b32 s{sB}, s{base}")
            for t in range(8):
                for T in range(8):
                    if t == 0: e(f"s_waitcnt lgkmcnt({7-T})")
                    a = ar(acc(t, T), 4); w = vr(WF + 4 * (t & 1), 4); x = vr(XN + 4 * T, 4)
                    e(f"v_mfma_f32_16x16x32_bf16 {a}, {w if ori == 'A' else x}, {x if ori == 'A' else w}, {a}")
                    if 1 <= t <= 4 and T in (0, 6):
                        i = (t - 1) * 2 + (T == 6)
                        e(f"s_add_u32 s{sT0}, s{sB}, s{sRow[i]}")
                        e(f"buffer_load_dwordx4 {vr(lring+4*i,4)}, v{vW}, {W}, s{sT0} offen")
                    if t == 7: e(xnread(T, tp + 1))
                    if t == 7 and T == 1: e("s_waitcnt vmcnt(16)")
                    if 2 <= T <= 5:
                        e(perm(ring, t + 1, T - 2) if t < 7 else perm(nring, 0, T - 2))
        e(f"v_add_u32 v{vA0}, 0x1000, v{vA0}\nv_add_u32 v{vA1}, 0x1000, v{vA1}")
        e(f"s_mov_b32 s{sBlk}, s{sBlkN}\ns_add_u32 s{sCnt}, s{sCnt}, 1\ns_cmp_le_u32 s{sCnt}, s{sNB}\ns_cbranch_scc1 L_loop{ori}")
        if ori == 'A': e("s_branch L_epi")
    e("L_epi:")
    if OPT.get('tl'):
        e(f"s_cmp_eq_u32 s{sRound}, 0\ns_cbranch_scc0 L_tl2"); TL(3, 32); e("L_tl2:")
    e("s_waitcnt vmcnt(0) lgkmcnt(0)\ns_nop 7")
    cnt = [0]
    def pack(pairs, scale=None):
        k = cnt[0]; cnt[0] += 1
        tb = 64 + 8 * (k & 1); q = 80 + 4 * (k & 3)
        for r, (a, b) in enumerate(pairs):
            e(f"v_accvgpr_read_b32 v{tb+2*r}, a{a}\nv_accvgpr_read_b32 v{tb+2*r+1}, a{b}")
        for r in range(4):
            if scale: e(f"v_pk_mul_f32 v[{tb+2*r}:{tb+2*r+1}], v[{tb+2*r}:{tb+2*r+1}], {scale}")
        for r in range(4): e(f"v_cvt_pk_bf16_f32 v{q+r}, v{tb+2*r}, v{tb+2*r+1}")
        return q
    e(f"s_lshl_b32 s82, s{sTile}, {RS_+2}\ns_lshl_b32 s83, s78, {RH}\ns_add_u32 s82, s82, s83")
    e(f"s_cmp_eq_u32 s{sType}, 1\ns_cbranch_scc1 L_epiV\ns_cmp_eq_u32 s{sType}, 2\ns_cbranch_scc1 L_epiF1")
    e(f"s_cmp_eq_u32 s{sType}, 3\ns_cbranch_scc1 L_epiF2\ns_cmp_eq_u32 s{sType}, 4\ns_cbranch_scc1 L_epiQ")
    for nm, base, fl in (("K", WS_K, F_KV), ("Q", WS_Q, F_REST)):
        e(f"L_epi{nm}:")
        if nm == "Q": e(f"s_mov_b32 s84, {CSCALE:#x}\ns_mov_b32 s85, {CSCALE:#x}")
        for T in range(8):
            e(f"s_add_u32 s83, s82, {base + (T>>1)*32768 + (T&1)*4096:#x}")
            for j in range(4):
                q = pack([(acc(2*j, T)+r, acc(2*j+1, T)+r) for r in range(4)], "s[84:85]" if nm == "Q" else None)
                e(f"buffer_store_dwordx4 {vr(q,4)}, v{vL16}, {WS}, s83 offen offset:{j*1024} sc1")
        e(f"s_mov_b32 s83, {WS_FLAG+fl:#x}\ns_branch L_done")
    e("L_epiV:")
    for sg in range(4):
        for t in range(8):
            if (t & 3) == 0: e(f"s_add_u32 s83, s82, {WS_V + sg*32768 + (t>>2)*4096:#x}")
            a0, a1 = acc(t, 2*sg), acc(t, 2*sg+1)
            q = pack([(a0, a0+1), (a0+2, a0+3), (a1, a1+1), (a1+2, a1+3)])
            e(f"buffer_store_dwordx4 {vr(q,4)}, v{vL16}, {WS}, s83 offen offset:{(t&3)*1024} sc1")
    e(f"s_mov_b32 s83, {WS_FLAG+F_KV:#x}\ns_branch L_done")
    e("L_epiF2:")
    e(f"s_sub_u32 s83, s{sPass}, 24\ns_lshl_b32 s83, s83, 21\ns_lshl_b32 s84, s{sTile}, 17\ns_add_u32 s83, s83, s84\ns_lshl_b32 s84, s{S_WAVE}, 8\ns_add_u32 s82, s83, s84")
    for T in range(8):
        e(f"s_add_u32 s83, s82, {WS_FP + T*16384:#x}")
        for r in range(4):
            q = pack([(acc(2*tp, T)+r, acc(2*tp+1, T)+r) for tp in range(4)])
            e(f"buffer_store_dwordx4 {vr(q,4)}, v{vXo}, {WS}, s83 offen offset:{r*64} sc1")
    e(f"s_mov_b32 s83, {WS_FLAG+F_REST:#x}\ns_branch L_done")
    e("L_epiF1:")
    srd(48, P_B1, 3584)
    e(f"v_lshlrev_b32 v8, 4, v{vG}")
    for r in range(4): e(f"buffer_load_dwordx4 {vr(16+4*r,4)}, v8, {AUX}, s79 offen offset:{r*64}")
    e(f"s_sub_u32 s83, s{sPass}, 24\ns_lshl_b32 s83, s83, 19\ns_lshl_b32 s79, s{S_WAVE}, 8\ns_add_u32 s79, s79, s83")
    e(f"s_mov_b32 s{sType}, 3\ns_mov_b32 s44, s{P_W2}\ns_mov_b32 s45, s{P_W2+1}\ns_mov_b32 s46, {1792*1024}\ns_mov_b32 s47, 0x20000\ns_mov_b32 s{sRS}, 1024")
    e(f"s_cmp_eq_u32 s{sPass}, 27\ns_cselect_b32 s{sNB}, 2, 4")
    wsetup()
    e("s_waitcnt vmcnt(24)")
    for r in range(4):
        for d in range(4):
            e(f"v_lshlrev_b32 v{32+r*8+2*d}, 16, v{16+4*r+d}\nv_and_b32 v{33+r*8+2*d}, 0xffff0000, v{16+4*r+d}")
    e(f"s_lshl_b32 s80, s{S_WAVE}, 12\nv_add_u32 v{vA0}, s80, v{vL16}\nv_add_u32 v{vA1}, 0x10000, v{vA0}")
    e("s_barrier")
    k = 0
    for T in range(8):
        for tp in range(4):
            tb = 64 + 16 * (k & 1); q = 96 + 4 * (k & 1); k += 1
            for r in range(4):
                e(f"v_accvgpr_read_b32 v{tb+2*r}, a{acc(2*tp,T)+r}\nv_accvgpr_read_b32 v{tb+2*r+1}, a{acc(2*tp+1,T)+r}")
            for r in range(4):
                b = 32 + r * 8 + 2 * tp
                e(f"v_pk_add_f32 v[{tb+2*r}:{tb+2*r+1}], v[{tb+2*r}:{tb+2*r+1}], v[{b}:{b+1}]")
            for r in range(8): e(f"v_max_f32 v{tb+r}, 0, v{tb+r}")
            for r in range(4): e(f"v_pk_mul_f32 v[{tb+2*r}:{tb+2*r+1}], v[{tb+2*r}:{tb+2*r+1}], v[{tb+2*r}:{tb+2*r+1}]")
            for r in range(4): e(f"v_cvt_pk_bf16_f32 v{q+r}, v{tb+2*r}, v{tb+2*r+1}")
            e(f"ds_write_b128 v{vA0 if T < 4 else vA1}, {vr(q,4)} offset:{(T&3)*16384+tp*1024}")
    e("s_branch L_gemm")
    e("L_done:")
    e(f"s_lshl_b32 s84, s{sTile}, 7\ns_add_u32 s83, s83, s84")
    e("s_waitcnt vmcnt(0)\ns_barrier")
    e(f"s_cmp_eq_u32 s{S_WAVE}, 0\ns_cbranch_scc0 L_done2")
    wait_flags_ready(2, 8)
    e(f"s_mov_b64 exec, 1\nv_mov_b32 v8, 1\nbuffer_atomic_add v8, off, {WS}, s83\ns_mov_b64 exec, -1")
    e("L_done2:")
    if OPT.get('tl'):
        e(f"s_cmp_eq_u32 s{sRound}, 0\ns_cbranch_scc0 L_tl3"); TL(4, 32); e("L_tl3:")
    e(f"s_add_u32 s{sRound}, s{sRound}, 1\ns_cmp_lt_u32 s{sRound}, {OPT.get('rounds', 2)}\ns_cbranch_scc1 L_task")
    if OPT['skip_g3']:
        e("s_waitcnt vmcnt(0)\ns_branch L_end")
        return
    sH, sSeg, sSH, sTq, sEh = 52, 53, 54, 55, 56
    TL(5, 32)
    OUT, B2 = "s[44:47]", "s[48:51]"
    WO = 128
    e(f"s_and_b32 s{sH}, s{S_IDX}, 31\ns_lshr_b32 s{sSeg}, s{S_IDX}, 5\ns_and_b32 s{sTq}, s{S_WAVE}, 1\ns_lshr_b32 s{sEh}, s{S_WAVE}, 1")
    srd(44, P_WO, 0x400000)
    e(f"v_and_b32 v8, 3, v{vC}\nv_lshrrev_b32 v9, 2, v{vC}\nv_lshl_add_u32 v8, v8, 2, v9\nv_lshlrev_b32 v8, 4, v8\nv_lshl_add_u32 v8, v{vG}, 13, v8")
    e(f"s_lshl_b32 s78, s{sH}, 17\ns_lshl_b32 s79, s{S_WAVE}, 8\ns_add_u32 s78, s78, s79")
    for half in range(2):
        for jj in range(2):
            for i in range(8):
                row = 32 * (i >> 1) + (i & 1) + 2 * (2 * half + jj)
                e(f"s_add_u32 s79, s78, {row*1024}\nbuffer_load_dwordx4 {vr(24+32*jj+4*i,4)}, v8, s[44:47], s79 offen")
        for jj in range(2):
            e(f"s_waitcnt vmcnt({8*(1-jj)})")
            for t in range(8):
                for rp in range(4):
                    rb = 24 + 32 * jj
                    e(f"v_perm_b32 v{WO+((2*half+jj)*8+t)*4+rp}, v{rb+4*(2*rp+1)+(t>>1)}, v{rb+4*(2*rp)+(t>>1)}, s{sHi if t&1 else sLo}")
    srd(44, P_OUT, 2048 * 1024)
    srd(48, P_B2, 1024)
    e(f"v_lshlrev_b32 v8, 10, v{vC}\nv_lshl_add_u32 v8, v{vG}, 4, v8")
    e(f"v_lshlrev_b32 v11, 4, v{vC}\nv_lshl_add_u32 v9, v{vG}, 15, v11\nv_lshl_add_u32 v10, v{vG}, 21, v11\nv_lshl_add_u32 v12, v{vG}, 3, v11")
    e(f"v_mov_b32 v13, {OOB:#x}\nv_cmp_eq_u32 vcc, 0, v{vG}\nv_cndmask_b32 v11, v13, v11, vcc\nv_cmp_gt_u32 vcc, 2, v{vG}\nv_cndmask_b32 v12, v13, v12, vcc")
    e(f"s_lshl_b32 s78, s{sTq}, 4\nv_lshlrev_b32 v13, 2, v{vG}\nv_sub_u32 v13, v{vC}, v13\nv_add_u32 v13, s78, v13")
    for d in range(4):
        e(f"v_mov_b32 v{16+d}, 0\nv_mov_b32 v14, 0x3f80\nv_cmp_eq_u32 vcc, {2*d}, v{vC}\nv_cndmask_b32 v{16+d}, v{16+d}, v14, vcc")
        e(f"v_mov_b32 v14, 0x3f800000\nv_cmp_eq_u32 vcc, {2*d+1}, v{vC}\nv_cndmask_b32 v{16+d}, v{16+d}, v14, vcc\nv_mov_b32 v{20+d}, 0x3f803f80")
    wait_flags_ready(3, 14)
    SEL, ONES = "v[16:19]", "v[20:23]"
    mm = "v_mfma_f32_16x16x32_bf16"; m16 = "v_mfma_f32_16x16x16_bf16"
    e("L_g3:")
    e(f"s_lshl_b32 s{sSH}, s{sSeg}, 5\ns_add_u32 s{sSH}, s{sSH}, s{sH}")
    e(f"s_lshr_b32 s78, s{sSeg}, 2\ns_lshl_b32 s78, s78, 7\ns_add_u32 s79, s78, {WS_FLAG+F_REST:#x}\ns_add_u32 s78, s78, {WS_FLAG+F_KV:#x}")
    poll_ge(4, "s79", 12, 14)
    poll_ge(5, "s78", 16, 14)
    e(f"s_lshl_b32 s86, s{sH}, {RH}\ns_lshl_b32 s80, s{sSeg}, {RS_}\ns_add_u32 s86, s86, s80")
    e(f"s_mov_b32 s80, s86\ns_lshl_b32 s81, s{sTq}, 12\ns_add_u32 s81, s81, s80\ns_add_u32 s81, s81, {WS_Q:#x}")
    for j in range(4): e(f"buffer_load_dwordx4 {vr(24+4*j,4)}, v{vL16}, {WS}, s81 offen offset:{j*1024} sc1")
    e(f"s_add_u32 s81, s80, {WS_K:#x}\ns_add_u32 s82, s80, {WS_K+4096:#x}")
    for kt in range(2):
        for j in range(4): e(f"buffer_load_dwordx4 {vr(40+16*kt+4*j,4)}, v{vL16}, {WS}, s{81+kt} offen offset:{j*1024} sc1")
    e(f"s_lshl_b32 s81, s{sEh}, 12\ns_add_u32 s81, s81, s80\ns_add_u32 s81, s81, {WS_V:#x}")
    for t in range(4): e(f"buffer_load_dwordx4 {vr(72+4*t,4)}, v{vL16}, {WS}, s81 offen offset:{t*1024} sc1")
    e(f"s_lshl_b32 s83, s{sSH}, 10\ns_lshl_b32 s84, s{S_WAVE}, 8\ns_add_u32 s83, s83, s84\ns_add_u32 s85, s83, {WS_FP:#x}")
    e(f"buffer_load_dwordx4 v[88:91], v11, {X}, s83 offen\nbuffer_load_dwordx4 v[92:95], v11, {B2}, s84 offen\nbuffer_load_dwordx4 v[96:99], v10, {WS}, s85 offen sc1")
    e("s_waitcnt vmcnt(7)")
    for kt in range(2):
        for j in range(4):
            s = vr(108 + 4 * kt, 4)
            e(f"{mm} {s}, {vr(40+16*kt+4*j,4)}, {vr(24+4*j,4)}, {'0' if j == 0 else s}")
    e("s_waitcnt vmcnt(0)")
    e(f"{mm} v[2:5], {SEL}, v[88:91], 0\n{mm} v[2:5], {SEL}, v[92:95], v[2:5]\n{mm} v[2:5], {SEL}, v[96:99], v[2:5]")
    e(f"v_mov_b32 v15, {fbits(-3.0e38):#x}")
    for kt in range(2):
        for r in range(4):
            e(f"v_cmp_le_i32 vcc, {16*kt+r}, v13\nv_cndmask_b32 v{108+4*kt+r}, v15, v{108+4*kt+r}, vcc")
    e("v_max3_f32 v124, v108, v109, v110\nv_max3_f32 v125, v111, v112, v113\nv_max3_f32 v124, v124, v114, v115\nv_max_f32 v124, v124, v125")
    e(f"s_lshl_b32 s78, s{sH}, 7\ns_add_u32 s78, s78, {WS_FLAG+F_PROG:#x}\ns_add_u32 s79, s{sSeg}, 1")
    poll_ge(6, "s78", "s79", 14, sleep=1)
    e(f"s_mov_b32 s80, s86\ns_add_u32 s81, s80, {WS_KM:#x}\ns_lshl_b32 s82, s{sEh}, 11\ns_add_u32 s82, s82, s80\ns_add_u32 s82, s82, {WS_VM:#x}")
    for j in range(4): e(f"buffer_load_dwordx4 {vr(88+4*j,4)}, v{vL16}, {WS}, s81 offen offset:{j*1024} sc1")
    for jj in range(2): e(f"buffer_load_dwordx2 {vr(104+2*jj,2)}, v{vL16}, {WS}, s82 offen offset:{jj*1024} sc1")
    for j in range(4):
        e(f"s_waitcnt vmcnt({5-j})\n{mm} v[116:119], {vr(88+4*j,4)}, {vr(24+4*j,4)}, {'0' if j == 0 else 'v[116:119]'}")
    e("v_mov_b32 v45, 0\nv_mov_b32 v46, 0")
    e("v_max3_f32 v124, v124, v116, v117")
    e("v_mov_b32 v125, v124\nv_permlane32_swap_b32 v124, v125\nv_max_f32 v124, v124, v125")
    e("v_mov_b32 v125, v124\nv_permlane16_swap_b32 v124, v125\nv_max_f32 v124, v124, v125")
    for r in range(10): e(f"v_sub_f32 v{108+r}, v{108+r}, v124")
    for r in range(10): e(f"v_exp_f32 v{108+r}, v{108+r}")
    for d in range(4): e(f"v_cvt_pk_bf16_f32 v{40+d}, v{108+2*d}, v{109+2*d}")
    e("v_cvt_pk_bf16_f32 v44, v116, v117\nv_cvt_pk_bf16_f32 v47, v116, v117")
    e("s_waitcnt vmcnt(0)")
    e(f"{mm} v[120:123], {ONES}, v[40:43], 0")
    for t in range(4): e(f"{mm} {vr(48+4*t,4)}, {vr(72+4*t,4)}, v[40:43], 0")
    e(f"{m16} v[120:123], v[20:21], v[44:45], v[120:123]")
    for t in range(4):
        o = vr(48 + 4 * t, 4)
        e(f"{m16} {o}, {vr(104+2*(t>>1),2)}, {'v[46:47]' if t&1 else 'v[44:45]'}, {o}")
    e("v_rcp_f32 v124, v120")
    for r in range(16): e(f"v_mul_f32 v{48+r}, v{48+r}, v124")
    e(f"s_lshl_b32 s78, s{sTq}, 12\ns_lshl_b32 s79, s{sEh}, 11\ns_add_u32 s78, s78, s79\nv_add_u32 v14, s78, v{vL16}")
    for jj in range(2):
        for r in range(4): e(f"v_cvt_pk_bf16_f32 v{64+4*jj+r}, v{48+8*jj+r}, v{52+8*jj+r}")
        e(f"ds_write_b128 v14, {vr(64+4*jj,4)} offset:{jj*1024}")
    e("s_waitcnt lgkmcnt(0)\ns_barrier")
    for q in range(8): e(f"ds_read_b128 {vr(24+4*q,4)}, v{vL16} offset:{q*1024}")
    e(f"s_lshl_b32 s80, s{sSH}, 15\ns_add_u32 s80, s80, s84\ns_add_u32 s80, s80, {WS_AP:#x}\ns_add_u32 s81, s80, 16384")
    for tq in range(2):
        for j in range(4):
            e(f"s_waitcnt lgkmcnt({7-(tq*4+j)})")
            for t in range(8):
                a = vr(56 + (tq * 8 + t) * 4, 4)
                e(f"{mm} {a}, {vr(WO+(j*8+t)*4,4)}, {vr(24+(tq*4+j)*4,4)}, {'0' if j == 0 else a}")
    for tq in range(2):
        for r in range(4):
            q = 120 + 4 * (r & 1)
            for tp in range(4):
                e(f"v_cvt_pk_bf16_f32 v{q+tp}, v{56+(tq*8+2*tp)*4+r}, v{56+(tq*8+2*tp+1)*4+r}")
            e(f"buffer_store_dwordx4 {vr(q,4)}, v8, {WS}, s{80+tq} offen offset:{r*64} sc1")
    e(f"s_lshl_b32 s78, s{sSeg}, 7\ns_add_u32 s78, s78, {WS_FLAG+F_G3:#x}")
    e("s_waitcnt vmcnt(0)\ns_barrier")
    e(f"s_cmp_eq_u32 s{S_WAVE}, 0\ns_cbranch_scc0 L_g3_na")
    e(f"s_mov_b64 exec, 1\nv_mov_b32 v14, 1\nbuffer_atomic_add v14, off, {WS}, s78\ns_mov_b64 exec, -1")
    e("L_g3_na:")
    poll_ge(7, "s78", 32, 14, sleep=1)
    e(f"s_lshl_b32 s80, s{sSeg}, 20\ns_lshl_b32 s81, s{sH}, 10\ns_add_u32 s80, s80, s81\ns_add_u32 s80, s80, s84\ns_add_u32 s80, s80, {WS_AP:#x}")
    for i in range(8):
        e(f"buffer_load_dwordx4 {vr(24+4*i,4)}, v9, {WS}, s80 offen sc1")
        if i < 7: e("s_add_u32 s80, s80, 0x20000")
    for i in range(8):
        e(f"s_waitcnt vmcnt({7-i})\n{mm} v[2:5], {SEL}, {vr(24+4*i,4)}, v[2:5]")
    e("v_cvt_pk_bf16_f32 v14, v2, v3\nv_cvt_pk_bf16_f32 v15, v4, v5")
    e(f"buffer_store_dwordx2 v[14:15], v12, {OUT}, s83 offen")
    if OPT.get('tl'):
        e(f"s_cmp_lt_u32 s{sSeg}, 7\ns_cbranch_scc0 L_tl4"); TLV[0] = 124; TL(6, 32); e("L_tl4:")
    e(f"s_add_u32 s{sSeg}, s{sSeg}, 7\ns_cmp_lt_u32 s{sSeg}, 64\ns_cbranch_scc1 L_g3")
    TL(7, 32)
    e("s_waitcnt vmcnt(0)\ns_branch L_end")
```

```python
import sys, math, struct
from asmlib import Asm

NAME = "parallel_sum__memory_aug_recurrent_mem_tr__dense_activation_squared_relu__prompt"
OPT = dict(stamps=False, skip_chain=False, skip_g3=False, force_fallback=False, force_mixed=False)
for a in sys.argv[2:]:
    k, v = a.split('='); OPT[k] = eval(v)

WS_M = 0x0
WS_P = 0x100000
PRING = 0x42000
HS = 8192 + 128
WS_FLAG = 0x40000
F_KV, F_REST, F_PROG, F_G3 = 0, 2048, 4096, 8192
WS_STAMP = 0x50000
WS_R = 0x1000000
WS_K, WS_V, WS_Q, WS_KM, WS_VM = WS_R, WS_R + 0x2000, WS_R + 0x4000, WS_R + 0x6000, WS_R + 0x7000
RH, RS_ = 21, 15
WS_FP = 0x5000000
WS_AP = 0x6000000
WS_SIZE = 0x10000000
OOB = 0x80000000
SENT = 0x7F817F81
INF = 0x7F800000
CSCALE = struct.unpack('<I', struct.pack('<f', (128 ** -0.5) * math.log2(math.e)))[0]
POLLMAX = 1 << 18
def fbits(x): return struct.unpack('<I', struct.pack('<f', x))[0]

e = Asm()
def srd(base, ptr, size):
    e(f"s_mov_b32 s{base}, s{ptr}\ns_mov_b32 s{base+1}, s{ptr+1}\ns_mov_b32 s{base+2}, {size:#x}\ns_mov_b32 s{base+3}, 0x20000")
def vr(a, n): return f"v[{a}:{a+n-1}]" if n > 1 else f"v{a}"
def ar(a, n): return f"a[{a}:{a+n-1}]" if n > 1 else f"a{a}"

P_X, P_MEM0, P_WQ, P_WK, P_WV, P_WO = 4, 6, 8, 10, 12, 14
P_W1, P_B1, P_W2, P_B2, P_OUT, P_DBG, P_WS = 20, 22, 24, 26, 28, 30, 32
S_WAVE, S_IDX = 34, 35
WS = "s[36:39]"
S_TMO = 100
S_ERR = 101

def fail_if_zero(code):
    e(f"s_sub_u32 s{S_TMO}, s{S_TMO}, 1\ns_mov_b32 s{S_ERR}, {code}\ns_cbranch_scc1 L_fail")

e("s_cmp_ge_u32 s2, 256\ns_cbranch_scc1 L_end")
e("s_load_dwordx16 s[4:19], s[0:1], 0\ns_load_dwordx8 s[20:27], s[0:1], 64\ns_load_dwordx4 s[28:31], s[0:1], 96\ns_load_dwordx2 s[32:33], s[0:1], 112")
e("s_getreg_b32 s3, hwreg(HW_REG_XCC_ID, 0, 3)")
if OPT.get("tl"): e("s_memrealtime s[94:95]")
e(f"v_lshrrev_b32 v1, 6, v0\nv_and_b32 v0, 63, v0\nv_readfirstlane_b32 s{S_WAVE}, v1")
e(f"s_mov_b32 s{S_TMO}, {POLLMAX}\ns_mov_b32 s{S_ERR}, 0")
e("s_waitcnt lgkmcnt(0)")
srd(36, P_WS, WS_SIZE)
e(f"s_cmp_eq_u32 s{S_WAVE}, 0\ns_cbranch_scc0 L_role_wait")
e("s_mov_b64 exec, 1")
e("s_lshl_b32 s40, s3, 3\ns_lshl_b64 s[40:41], 1, s40\nv_mov_b32 v2, s40\nv_mov_b32 v3, s41\nv_mov_b32 v1, 0")
e(f"global_atomic_add_x2 v[4:5], v1, v[2:3], s[{P_DBG}:{P_DBG+1}] sc0")
e("L_role_poll:")
e(f"global_load_dwordx2 v[6:7], v1, s[{P_DBG}:{P_DBG+1}] sc1")
e("s_waitcnt vmcnt(0)")
e("v_sad_u8 v8, v6, 0, 0\nv_sad_u8 v8, v7, 0, v8\nv_cmp_eq_u32 vcc, 0x100, v8\ns_cbranch_vccnz L_role_got")
fail_if_zero(1)
e("s_branch L_role_poll")
e("L_role_got:")
e("ds_write_b128 v1, v[4:7]\ns_waitcnt lgkmcnt(0)\ns_mov_b64 exec, -1")
e("L_role_wait:")
e("s_barrier\nv_mov_b32 v1, 0\nds_read_b128 v[4:7], v1\ns_waitcnt lgkmcnt(0)")
e("v_sad_u8 v8, v4, 0, 0\nv_sad_u8 v8, v5, 0, v8")
e("v_readfirstlane_b32 s40, v4\nv_readfirstlane_b32 s41, v5\nv_readfirstlane_b32 s42, v6\nv_readfirstlane_b32 s43, v7\nv_readfirstlane_b32 s44, v8")
e("s_barrier")
e("s_lshl_b32 s45, s3, 3\ns_lshr_b64 s[40:41], s[40:41], s45\ns_and_b32 s40, s40, 0xff")
e("s_xor_b32 s42, s42, 0x20202020\ns_xor_b32 s43, s43, 0x20202020\ns_or_b32 s42, s42, s43")
if OPT['force_mixed']: e("s_mov_b32 s42, 1")
e("s_cmp_eq_u32 s42, 0\ns_cbranch_scc0 L_role_mixed")
e(f"s_mov_b32 s{S_IDX}, s40\ns_cmp_eq_u32 s3, 0\ns_cbranch_scc1 L_chain0")
e(f"s_sub_u32 s41, s3, 1\ns_lshl_b32 s41, s41, 5\ns_add_u32 s{S_IDX}, s40, s41\ns_branch L_worker")
e("L_role_mixed:")
e(f"s_mov_b32 s{S_IDX}, s44\ns_cmp_lt_u32 s44, 32\ns_cbranch_scc1 L_chain1")
e(f"s_sub_u32 s{S_IDX}, s44, 32\ns_branch L_worker")

def wait_flags_ready(code, tmp):
    e(f"L_fr{code}:")
    e(f"v_mov_b32 v{tmp}, 0\nglobal_load_dword v{tmp}, v{tmp}, s[{P_DBG}:{P_DBG+1}] offset:8 sc1\ns_waitcnt vmcnt(0)")
    e(f"v_cmp_eq_u32 vcc, 1, v{tmp}\ns_cbranch_vccnz L_fr{code}_ok")
    fail_if_zero(code)
    e(f"s_sleep 2\ns_branch L_fr{code}\nL_fr{code}_ok:")

def poll_ge(code, soff, val, tmp, sleep=2):
    e(f"L_pg{code}:")
    e(f"buffer_load_dword v{tmp}, off, {WS}, {soff} sc1\ns_waitcnt vmcnt(0)")
    e(f"v_cmp_le_u32 vcc, {val}, v{tmp}\ns_cbranch_vccnz L_pg{code}_ok")
    fail_if_zero(code)
    if sleep: e(f"s_sleep {sleep}")
    e(f"s_branch L_pg{code}\nL_pg{code}_ok:")

def TL(k, base):
    if not OPT.get('tl'): return
    e(f"s_memrealtime s[98:99]\ns_lshl_b32 s97, s{S_IDX}, 6\ns_add_u32 s97, s97, {WS_STAMP + 0x8000 + base*64 + 4*k:#x}\ns_waitcnt lgkmcnt(0)")
    e(f"v_mov_b32 v255, s98\nbuffer_store_dword v255, off, {WS}, s97".replace('v255', 'v%d' % TLV[0]))
TLV = [15]
import worker, chain
worker.emit(globals())
chain.emit(globals(), 0)
chain.emit(globals(), 1)

e("L_fail:")
e(f"s_mov_b64 exec, 1\nv_mov_b32 v0, s{S_ERR}\nv_mov_b32 v1, 0\nglobal_store_dword v1, v0, s[{P_DBG}:{P_DBG+1}] offset:16")
e(f"v_mov_b32 v0, s{S_IDX}\nglobal_store_dword v1, v0, s[{P_DBG}:{P_DBG+1}] offset:20\ns_waitcnt vmcnt(0)")
e("L_end:")

body = e.finish(verbose=OPT.get('v', False))
ref = open(f"cdna_kernels/{NAME}.s.ref").read().split('\n')
head = [l for l in ref if l.startswith(';') and '@launch' not in l]
out = '\n'.join(head) + "\n; @launch grid=(256,1,1) block=(256,1,1) lds=163840\n"
out += f""".amdgcn_target "amdgcn-amd-amdhsa--gfx950"
.text
.globl {NAME}_kernel
.p2align 8
.type {NAME}_kernel,@function
{NAME}_kernel:
{body}
    s_endpgm
.section .rodata,"a"
.p2align 6
.amdhsa_kernel {NAME}_kernel
  .amdhsa_next_free_vgpr 512
  .amdhsa_next_free_sgpr 102
  .amdhsa_accum_offset 256
  .amdhsa_group_segment_fixed_size 0
  .amdhsa_kernarg_size 120
  .amdhsa_user_sgpr_count 2
  .amdhsa_user_sgpr_kernarg_segment_ptr 1
  .amdhsa_system_sgpr_workgroup_id_x 1
.end_amdhsa_kernel
"""
open(sys.argv[1], 'w').write(out)
```

```python
def emit(G, mode):
    globals().update(G)
    ST = "sc1" if mode else ""
    Ln = lambda s: f"L_c{mode}_{s}"
    W = "s[40:43]"
    WSTR = 36864
    L_M = 0; L_X = L_M + 8192; L_P = L_X + 4096 + 512; L_O = L_P + 1024; L_W = 16384
    assert L_O + 2048 <= L_W
    M = 0
    AQ0, AQ1, AK0, AK1, AV0, AV1 = 32, 36, 40, 44, 48, 52
    VW = 56; KT = 88; VT = 104; QF = 112
    JUNK = 128
    vIDX, vP8, vSP2, vVW, vXW, vQR, vKR, vPR, vOW, vL16, vRL, vMS, vSEL = range(131, 144)
    vW16 = 18
    WOB = 144
    sStep, sMc, sMn, sMp, sPc, sPp, sSK, sSV, sPF, sMH, sMHp, sFl, sKv = range(44, 57)
    sRd = list(range(57, 65))
    sSENT, sONE, sMLO = 66, 68, 70
    sC, sInf, sLlo, sLrg, sW1k, sLo, sHi, sPW = range(72, 80)
    sT = 80
    sPn, sDl = sPW, 95
    lds_slot = {}
    nb1, nb2 = OPT.get('nb1', 0), OPT.get('nb2', 0)
    vq = [('v', tt, sg) for sg in range(4) for tt in range(2)] + [('v', tt, sg) for tt in range(2) for sg in range(4, 8)]
    qk = lambda sg: [('q', 0, sg), ('q', 1, sg), ('k', 0, sg), ('k', 1, sg)]
    fr = qk(0) + qk(1) + vq[:nb1] + qk(2) + qk(3) + vq[nb1:nb1 + nb2] + [(mt, tt, sg) for mt in 'qk' for tt in range(2) for sg in range(4, 8)]
    vrest = vq[nb1 + nb2:]
    step_ = (len(fr) - 1 - 9) / 7.0
    order = [fr[g] for g in (0, 2, 4, 6)] + [fr[9 + int(round(k * step_))] for k in range(8)]
    order += [('o', 2, 1), ('o', 3, 1), ('o', 4, 1), ('o', 5, 1), ('o', 6, 1), ('o', 7, 1)]
    for i, f in enumerate(order): lds_slot[f] = i
    NQ = 12
    reg = {}
    n = 0
    for mt in 'qkv':
        for tt in range(2):
            for sg in range(8):
                if (mt, tt, sg) not in lds_slot:
                    reg[(mt, tt, sg)] = ('a', 8 * n) if n < 32 else ('v', 224 + 8 * (n - 32)); n += 1
    assert n == 36
    n = 0
    for t in range(8):
        for k in range(2):
            if ('o', t, k) not in lds_slot: reg[('o', t, k)] = ('v', WOB + 8 * n); n += 1
    assert n == 10
    rr = lambda f, o, n: (ar if reg[f][0] == 'a' else vr)(reg[f][1] + o, n)

    e(f"L_chain{mode}:")
    if OPT['skip_chain']:
        e("s_branch L_end"); return
    h = S_IDX; w = S_WAVE
    TLV[0] = 15
    TL(1, 0)
    if OPT.get('tl'): e(f"v_mov_b32 v15, s94\ns_sub_u32 s97, s97, 4\nbuffer_store_dword v15, off, {WS}, s97")
    e(f"v_lshrrev_b32 v1, 4, v0\nv_and_b32 v2, 15, v0")
    e(f"v_lshlrev_b32 v{vL16}, 4, v0")
    e(f"s_lshl_b32 s{sT}, s{w}, 11\nv_add_u32 v{vW16}, s{sT}, v{vL16}")
    e(f"s_lshl_b32 s{sT}, s{w}, 9\nv_lshlrev_b32 v{vP8}, 3, v0\nv_add_u32 v{vP8}, s{sT}, v{vP8}")
    e(f"s_mul_i32 s{sT}, s{w}, {WSTR}\ns_add_u32 s{sT}, s{sT}, {L_W}\nv_add_u32 v{vVW}, s{sT}, v{vL16}")
    e(f"v_mov_b32 v{vIDX}, 0x4444\nv_mov_b32 v3, 0xeeee\nv_and_b32 v4, 2, v2\nv_cmp_eq_u32 vcc, 0, v4\nv_cndmask_b32 v{vIDX}, v3, v{vIDX}, vcc")
    e(f"s_lshl_b32 s{sW1k}, s{w}, 10\nv_lshrrev_b32 v3, 2, v2\nv_lshlrev_b32 v3, 7, v3\nv_lshl_add_u32 v3, v1, 5, v3\nv_and_b32 v4, 3, v2\nv_lshl_add_u32 v3, v4, 2, v3")
    e(f"v_add_u32 v3, s{sW1k}, v3\nv_add_u32 v{vXW}, {L_X}, v3")
    e(f"v_and_b32 v4, 7, v2\nv_lshlrev_b32 v4, 4, v4\nv_lshl_add_u32 v{vQR}, v1, 7, v4")
    e(f"v_lshrrev_b32 v3, 2, v2\nv_and_b32 v4, 1, v2\nv_lshl_add_u32 v3, v3, 1, v4\nv_lshlrev_b32 v3, 4, v3\nv_lshl_add_u32 v{vKR}, v1, 7, v3")
    e(f"v_lshrrev_b32 v5, 3, v2\nv_lshl_add_u32 v{vPR}, v5, 9, v{vQR}")
    e(f"v_and_b32 v3, 6, v2\nv_lshlrev_b32 v3, 1, v3\nv_and_b32 v4, 1, v2\nv_add_u32 v3, v3, v4\nv_lshl_add_u32 v3, v1, 4, v3\nv_lshlrev_b32 v3, 4, v3\nv_lshl_add_u32 v3, v5, 3, v3")
    e(f"s_lshr_b32 s{sT}, s{w}, 1\ns_lshl_b32 s{sT}, s{sT}, 10\ns_and_b32 s{sT+1}, s{w}, 1\ns_lshl_b32 s{sT+1}, s{sT+1}, 5\ns_add_u32 s{sT}, s{sT}, s{sT+1}\nv_add_u32 v{vOW}, s{sT}, v3")
    e(f"s_lshl_b32 s{sT}, s{w}, 11\ns_lshl_b32 s{sT+1}, s{h}, 6\ns_add_u32 s{sT}, s{sT}, s{sT+1}")
    e(f"v_mul_u32_u24 v3, {HS}, v1\nv_lshl_add_u32 v3, v2, 2, v3\nv_add_u32 v{vRL}, s{sT}, v3")
    sWp, sGp, sHc = sT + 2, sT + 3, sT + 4
    e(f"s_lshr_b32 s{sWp}, s{h}, 3\ns_bfe_u32 s{sGp}, s{h}, 0x20001\ns_and_b32 s{sHc}, s{h}, 1")
    e(f"s_lshl_b32 s{sT}, s{sWp}, 9\ns_lshl_b32 s{sT+1}, s{sHc}, 8\ns_add_u32 s{sT}, s{sT}, s{sT+1}\ns_lshl_b32 s{sT+1}, s{sGp}, 6\ns_add_u32 s{sT}, s{sT}, s{sT+1}")
    e(f"v_and_b32 v3, 1, v2\nv_lshrrev_b32 v4, 1, v2\nv_lshrrev_b32 v6, 3, v2\nv_lshl_add_u32 v6, v6, 1, v3\nv_lshlrev_b32 v6, 4, v6\nv_and_b32 v8, 3, v4\nv_lshl_add_u32 v6, v8, 2, v6\nv_add_u32 v6, s{sT}, v6")
    e(f"v_mov_b32 v7, {OOB:#x}\nv_cmp_eq_u32 vcc, 0, v1\nv_cndmask_b32 v{vMS}, v7, v6, vcc")
    e(f"v_lshlrev_b32 v6, 10, v3\nv_lshl_add_u32 v6, v4, 4, v6")
    e(f"s_lshl_b32 s{sT}, s{sGp}, 11\ns_lshl_b32 s{sT+1}, s{sWp}, 8\ns_add_u32 s{sT}, s{sT}, s{sT+1}\ns_lshl_b32 s{sT+1}, s{sHc}, 7\ns_add_u32 s{sT}, s{sT}, s{sT+1}\ns_lshl_b32 s{sT+1}, s{w}, 2\ns_add_u32 s{sT}, s{sT}, s{sT+1}")
    srd(40, P_MEM0, 8192)
    e(f"buffer_load_dword v9, v6, {W}, s{sT} offen")
    e(f"v_mov_b32 v{vSEL}, 0\nv_mov_b32 v3, 0x3f80\nv_cmp_eq_u32 vcc, 0, v2\nv_cndmask_b32 v{vSEL}, v{vSEL}, v3, vcc\nv_mov_b32 v3, 0x3f800000\nv_cmp_eq_u32 vcc, 1, v2\nv_cndmask_b32 v{vSEL}, v{vSEL}, v3, vcc")
    e(f"s_mov_b32 s{sStep}, 0\ns_lshl_b32 s{sMc}, s{w}, 11\ns_add_u32 s{sMc}, s{sMc}, {WS_M}\ns_add_u32 s{sMn}, s{sMc}, 8192\ns_add_u32 s{sMp}, s{sMc}, 16384")
    e(f"s_mul_i32 s{sPc}, s{h}, {HS}\ns_add_u32 s{sPc}, s{sPc}, {WS_P:#x}\ns_add_u32 s{sPn}, s{sPc}, {PRING:#x}\ns_add_u32 s{sPp}, s{sPn}, {PRING:#x}")
    for i in range(8): e(f"s_mov_b32 s{sRd[i]}, {WS_P + i*4*HS:#x}")
    e(f"s_mul_i32 s{sT}, s{h}, {RHS:#x}\ns_lshr_b32 s{sT+1}, s{w}, 1\ns_lshl_b32 s{sT+1}, s{sT+1}, 12\ns_add_u32 s{sSK}, s{sT}, s{sT+1}\ns_and_b32 s{sT+1}, s{w}, 1\ns_lshl_b32 s{sT+1}, s{sT+1}, 9\ns_add_u32 s{sSK}, s{sSK}, s{sT+1}\ns_add_u32 s{sSK}, s{sSK}, {WS_K:#x}")
    e(f"s_lshl_b32 s{sT+1}, s{w}, 11\ns_add_u32 s{sSV}, s{sT}, s{sT+1}\ns_add_u32 s{sSV}, s{sSV}, {WS_V:#x}")
    e(f"s_lshl_b32 s{sT+1}, s{w}, 12\ns_add_u32 s{sPF}, s{sT}, s{sT+1}\ns_add_u32 s{sPF}, s{sPF}, {WS_K:#x}")
    e(f"s_add_u32 s{sMH}, s{sMc}, {WS_MH - WS_M:#x}")
    e(f"s_mov_b32 s{sSENT}, {SENT:#x}\ns_mov_b32 s{sSENT+1}, {SENT:#x}\ns_mov_b32 s{sONE}, 0x3f803f80\ns_mov_b32 s{sONE+1}, 0x3f803f80")
    e(f"s_mov_b32 s{sMLO}, 0x00ff00ff\ns_mov_b32 s{sMLO+1}, 0x00ff00ff\ns_mov_b32 s{sC}, {CSCALE:#x}\ns_mov_b32 s{sInf}, {INF:#x}")
    LLO, LHI = fbits(2.0 ** -60), fbits(2.0 ** 60)
    e(f"s_mov_b32 s{sLlo}, {LLO:#x}\ns_mov_b32 s{sLrg}, {(0 if OPT['force_fallback'] else LHI-LLO):#x}\ns_mov_b32 s{sLo}, 0x05040100\ns_mov_b32 s{sHi}, 0x07060302")
    vWA, vTS, vAD = 10, 11, 16
    e(f"v_lshlrev_b32 v3, 4, v2")
    e(f"v_lshrrev_b32 v4, 1, v1\nv_lshl_add_u32 v3, v4, 19, v3\nv_and_b32 v4, 1, v1\nv_lshl_add_u32 v3, v4, 17, v3")
    e(f"s_lshl_b32 s{sT}, s{w}, 14\ns_lshl_b32 s{sT+1}, s{h}, 8\ns_add_u32 s{sT}, s{sT}, s{sT+1}\nv_add_u32 v{vWA}, s{sT}, v3")
    e(f"s_lshl_b32 s{sT}, s{w}, 12\ns_add_u32 s{sT}, s{sT}, {L_M}\nv_add_u32 v{vTS}, s{sT}, v{vL16}")
    e(f"s_lshl_b32 s{sT+8}, s{w}, 3")
    RAW = [20, 144]
    TQ = [84, 88, 92]
    rounds = [('v', 0), ('v', 1), ('q', 1), ('k', 1), ('q', 0), ('k', 0)]
    ptr = {'q': P_WQ, 'k': P_WK, 'v': P_WV}
    def qkv_loads(ri):
        mt, par = rounds[ri]
        srd(40, ptr[mt], 0x400000)
        for j2 in range(8):
            for hb in range(2):
                row = 256 * par + 128 * (j2 >> 2) + 32 * (j2 & 1) + 8 * ((j2 & 3) >> 1) + hb
                e(f"s_mov_b32 s{sT}, {row*8192:#x}\nbuffer_load_dwordx4 {vr(RAW[ri&1]+(j2*2+hb)*4,4)}, v{vWA}, {W}, s{sT} offen")
    placed = set(); plan = []
    for ri, (mt, par) in enumerate(rounds):
        fs = [(mt, tt, sg) for tt in range(2) for sg in range(par, 8, 2)]
        for f in fs:
            if f in lds_slot: placed.add(lds_slot[f])
        free = [s for s in range(19, -1, -1) if s not in placed]
        loc = {}
        for f in fs:
            loc[f] = lds_slot[f] if f in lds_slot else free.pop(0)
        plan.append(loc)
    absslot = lambda wd, s: (8 + wd * 18 + s) if s < 18 else (wd * 2 + s - 18)
    vWO = 17
    e(f"v_lshrrev_b32 v3, 1, v1\nv_lshlrev_b32 v3, 5, v3\nv_and_b32 v4, 1, v1\nv_add_u32 v3, v3, v4\nv_lshlrev_b32 v3, 10, v3\nv_lshl_add_u32 v3, v2, 4, v3")
    e(f"s_lshl_b32 s{sT}, s{h}, 17\ns_lshl_b32 s{sT+1}, s{w}, 8\ns_add_u32 s{sT}, s{sT}, s{sT+1}\nv_add_u32 v{vWO}, s{sT}, v3")
    WRAW = [20, 52, 96]
    def wo_loads(gi):
        kap, hf = gi >> 1, gi & 1
        for jl in range(4):
            for hb in range(2):
                row = 64 * hf + 16 * (jl >> 1) + 8 * hb + 4 * kap + 2 * (jl & 1)
                e(f"s_mov_b32 s{sT}, {row*1024:#x}\nbuffer_load_dwordx4 {vr(WRAW[gi%3]+(jl*2+hb)*4,4)}, v{vWO}, {W}, s{sT} offen")
    def init_handoff():
        e(f"v_mov_b64 v[12:13], s[{sSENT}:{sSENT+1}]\nv_mov_b64 v[14:15], s[{sSENT}:{sSENT+1}]")
        for s in (sPc, sPn, sPp):
            for o in (0, 1024): e(f"buffer_store_dwordx4 v[12:15], v{vW16}, {WS}, s{s} offen offset:{o} {ST}")
        e(f"buffer_store_dword v12, v{vMS}, {WS}, s{sMn} offen {ST}\nbuffer_store_dword v12, v{vMS}, {WS}, s{sMp} offen {ST}")
        e(f"buffer_store_dword v9, v{vMS}, {WS}, s{sMc} offen {ST}\ns_mov_b32 s{sMHp}, {OOB:#x}")
    def arrive():
        e(f"s_cmp_eq_u32 s{w}, 0\ns_cbranch_scc0 {Ln('na')}")
        e(f"s_mov_b64 exec, 1\nv_mov_b32 v3, 0\nv_mov_b32 v4, 1\nglobal_atomic_add v3, v4, s[{P_DBG}:{P_DBG+1}] offset:12\ns_mov_b64 exec, -1")
        e(f"{Ln('na')}:")
    qkv_loads(0)
    confirm_issue('v6', 8)
    tq = 0
    for ri, (mt, par) in enumerate(rounds):
        if ri + 1 < 6:
            qkv_loads(ri + 1); e("s_waitcnt vmcnt(16)")
        else:
            srd(40, P_WO, 0x400000); wo_loads(0); wo_loads(1); e("s_waitcnt vmcnt(16)")
        if ri == 0:
            confirm_check(40 + mode, 6, 8); init_handoff()
        if ri: e("s_waitcnt lgkmcnt(0)\ns_barrier")
        if ri == 2: arrive()
        raw = RAW[ri & 1]
        for t in range(8):
            wd, tt = t >> 1, t & 1
            const = 0
            for wl in range(4):
                sg = 2 * wl + par
                const |= absslot(wd, plan[ri][(mt, tt, sg)]) << (8 * wl)
            e(f"s_lshr_b32 s{sT}, {const:#x}, s{sT+8}\ns_and_b32 s{sT}, s{sT}, 0xff\ns_lshl_b32 s{sT}, s{sT}, 11\nv_add_u32 v{vAD}, s{sT}, v{vL16}")
            for hf in range(2):
                q = TQ[tq % 3]; tq += 1
                for jl in range(4):
                    j2 = hf * 4 + jl
                    r0, r1 = raw + (j2 * 2) * 4 + (t >> 1), raw + (j2 * 2 + 1) * 4 + (t >> 1)
                    if mt == 'q':
                        tp_ = 96 + 2 * (jl & 1)
                        for k_, r_ in ((0, r0), (1, r1)):
                            e(f"v_and_b32 v{tp_+k_}, 0xffff0000, v{r_}" if t & 1 else f"v_lshlrev_b32 v{tp_+k_}, 16, v{r_}")
                        e(f"v_pk_mul_f32 v[{tp_}:{tp_+1}], v[{tp_}:{tp_+1}], s[{sC}:{sC+1}] op_sel_hi:[1,0]\nv_cvt_pk_bf16_f32 v{q+jl}, v{tp_}, v{tp_+1}")
                    else:
                        e(f"v_perm_b32 v{q+jl}, v{r1}, v{r0}, s{sHi if t&1 else sLo}")
                e(f"ds_write_b128 v{vAD}, {vr(q,4)} offset:{hf*1024}")
        e("s_waitcnt lgkmcnt(0)\ns_barrier")
        nrd = 0
        for f, s in plan[ri].items():
            if f in lds_slot: continue
            for hf in range(2):
                if s < 18: e(f"ds_read_b128 {rr(f,4*hf,4)}, v{vVW} offset:{s*2048+hf*1024}")
                else: e(f"ds_read_b128 {rr(f,4*hf,4)}, v{vTS} offset:{(s-18)*2048+hf*1024}")
                nrd += 1
                if nrd == 12: e("s_waitcnt lgkmcnt(4)")
    e("s_waitcnt lgkmcnt(0)\ns_barrier")
    for gi in range(4):
        kap, hf = gi >> 1, gi & 1
        if gi + 2 < 4: wo_loads(gi + 2)
        e(f"s_waitcnt vmcnt({8*min(2, 3-gi)})")
        raw = WRAW[gi % 3]
        for t in range(8):
            f = ('o', t, kap)
            q = reg[f][1] + 4 * hf if f in reg else TQ[t % 3]
            for jl in range(4):
                e(f"v_perm_b32 v{q+jl}, v{raw+(jl*2+1)*4+(t>>1)}, v{raw+(jl*2)*4+(t>>1)}, s{sHi if t&1 else sLo}")
            if f not in reg: e(f"ds_write_b128 v{vVW}, {vr(q,4)} offset:{lds_slot[f]*2048+hf*1024}")
    TL(2, 0)
    e(f"v_mov_b32 v3, 0\nv_lshlrev_b32 v4, 3, v0\nv_mov_b32 v6, 0\nv_mov_b32 v7, 0\nds_write_b64 v4, v[6:7] offset:{L_P-512}\nds_write_b64 v4, v[6:7] offset:{L_P+512}")
    e(f"{Ln('bar')}:\nglobal_load_dword v4, v3, s[{P_DBG}:{P_DBG+1}] offset:12 sc1\ns_waitcnt vmcnt(0)\nv_cmp_eq_u32 vcc, 32, v4\ns_cbranch_vccnz {Ln('bar_ok')}")
    fail_if_zero(10)
    e(f"s_branch {Ln('bar')}\n{Ln('bar_ok')}:")
    TL(3, 0)
    wait_flags_ready(11 + 20 * mode, 4)
    e(f"buffer_store_dword v9, v{vMS}, {WS}, s{sMH} offen sc1")
    def kv_refresh(lab, code):
        e(f"{lab}:\ns_mov_b32 s{sT+2}, {WS_FLAG+F_KV:#x}\nv_lshlrev_b32 v{JUNK}, 2, v{vL16}\ns_waitcnt vmcnt(0)\nbuffer_load_dword v{JUNK}, v{JUNK}, {WS}, s{sT+2} offen sc1\ns_waitcnt vmcnt(0)")
        e(f"v_cmp_le_u32 vcc, 32, v{JUNK}\ns_and_b32 s{sT+2}, vcc_lo, 0xffff\ns_ff0_i32_b32 s{sKv}, s{sT+2}\ns_cmp_lt_u32 s{sT}, s{sKv}\ns_cbranch_scc1 {lab}_ok")
        fail_if_zero(code)
        e(f"s_branch {lab}\n{lab}_ok:")
    e(f"s_mov_b32 s{sT}, 0\ns_mov_b32 s{sKv}, 16\ns_mov_b32 s{sFl}, {WS_FLAG+F_KV:#x}")
    if OPT.get('rounds') != 0: kv_refresh(Ln('kv0'), 12)
    TL(4, 0)
    if OPT.get('tl'): e("s_memtime s[92:93]\ns_waitcnt lgkmcnt(0)\ns_mov_b32 s94, 0")
    def kv_loads():
        r = []
        for j in range(4): r.append(f"buffer_load_dwordx4 {vr(KT+4*j,4)}, v{vKR}, {WS}, s{sSK} offen offset:{j*1024} sc1")
        for t in range(2): r.append(f"buffer_load_dwordx4 {vr(VT+4*t,4)}, v{vL16}, {WS}, s{sSV} offen offset:{t*1024} sc1")
        return r
    for x in kv_loads()[:4]: e(x)
    e(f"s_add_u32 s{sSK}, s{sSK}, {SEGS:#x}")
    if not OPT.get('vearly', 0):
        for x in kv_loads()[4:]: e(x)
        e(f"s_add_u32 s{sSV}, s{sSV}, {SEGS:#x}")
    warm = [f"buffer_load_dwordx3 {vr(JUNK,3)}, v{vL16}, {WS}, s{sPF} offen offset:{k*1024} sc1" for k in range(4)]
    e(f"s_add_u32 s{sPF}, s{sPF}, {SEGS:#x}")
    for x in warm: e(x)
    e(f"s_add_u32 s{sPF}, s{sPF}, {SEGS:#x}")
    e(f"v_lshlrev_b32 v{vSP2}, 6, v0\nv_mov_b32 v4, {OOB:#x}\nv_cmp_gt_u32 vcc, 32, v0\nv_cndmask_b32 v{vSP2}, v4, v{vSP2}, vcc")
    X = OPT.get('x', ''); nc = 'nocomm' in X
    from asmlib import estimate
    mm = "v_mfma_f32_16x16x32_bf16"; m16 = "v_mfma_f32_16x16x16_bf16"
    cvt = lambda d, a, b: f"v_cvt_pk_bf16_f32 v{d}, v{a}, v{b}"
    add2 = lambda a: [f"v_add_f32 v{a}, v{a}, v{a+2}", f"v_add_f32 v{a+1}, v{a+1}, v{a+3}"]
    mul2 = lambda a: [f"v_mul_f32 v{a}, s{sC}, v{a}", f"v_mul_f32 v{a+1}, s{sC}, v{a+1}"]
    accof = {'q': (AQ0, AQ1), 'k': (AK0, AK1), 'v': (AV0, AV1)}
    ringslot = {f: i % 4 for i, f in enumerate(order[:12])}
    ringslot.update({f: (2, 3, 0, 1, 2, 3)[i] for i, f in enumerate(order[12:])})
    wtxt = lambda f, hf: f"ds_read_b128 {vr(VW+8*ringslot[f]+4*hf,4)}, v{vVW} offset:{lds_slot[f]*2048+hf*1024}"
    wreg = lambda f: vr(VW + 8 * ringslot[f], 8) if f in lds_slot else rr(f, 0, 8)
    stage = [wtxt(order[i], hf) for i in range(4) for hf in range(2)]
    zero_acc = [f"v_mov_b64 v[{AQ0+2*i}:{AQ0+2*i+1}], 0" for i in range(12)]
    SM = lambda f: f"v_smfmac_f32_16x16x64_bf16 {vr(accof[f[0]][f[1]],4)}, {vr(M+4*f[2],4)}, {wreg(f)}, v{vIDX}"
    STK, SMM, LA, OA = AQ0, AK1, AQ1, AK0
    PT = AQ1; KF = M; PM = AV0 + 2; RC = SMM + 2
    PLO, PHI, PAL, ONE4 = VW, VW + 4, VW + 8, VW + 12
    PRB, SENTQ = QF + 2, QF + 12
    LAND, SELQ, R = AQ0, QF, QF + 4
    mlo = f"s[{sMLO}:{sMLO+1}]"
    chainc = lambda a, j: '0' if j == 0 else vr(a, 4)
    pv_tok = [f"{mm} {vr(LA,4)}, {vr(ONE4,4)}, {vr(PAL,4)}, 0", f"{mm} {vr(OA,4)}, {vr(VT,4)}, {vr(PLO,4)}, 0",
              f"{mm} {vr(OA,4)}, {vr(VT+4,4)}, {vr(PHI,4)}, {vr(OA,4)}"]
    pv_mem = [f"{m16} {vr(LA,4)}, {vr(ONE4,2)}, {vr(PM,2)}, {vr(LA,4)}", f"{m16} {vr(OA,4)}, {vr(AV0,2)}, {vr(PM,2)}, {vr(OA,4)}"]
    zw = [f"v_mov_b64 v[{M+2*i}:{M+2*i+1}], 0" for i in range(16)]
    norm = [f"v_mul_f32 v{OA+r}, v{OA+r}, v{RC}" for r in range(4)] + [cvt(OA, OA, OA + 1), cvt(OA + 1, OA + 2, OA + 3)]
    ow = f"ds_write_b64 v{vOW}, {vr(OA,2)} offset:{L_O}"
    p2l = [f"buffer_load_dword v{LAND+i}, v{vRL}, {WS}, s{sRd[i]} offen sc1" for i in range(8)]
    shot = lambda r: [f"buffer_load_dword v{r}, v{vSP2}, {WS}, s{sMc} offen sc1", f"buffer_load_dwordx4 v{vL16}, {WS}, s{sMc} offen sc1 lds",
                      f"buffer_load_dwordx4 v{vL16}, {WS}, s{sMc} offen offset:1024 sc1 lds"]
    def pad(n):
        r = []
        while n > 0:
            k = min(n, 8); r.append(f"s_nop {k-1}"); n -= k
        return r
    dregs = list(range(4, 28, 2)) + list(range(84, 90, 2))
    NSW = OPT.get('nsw', [3, 3, 1, 1]); POST = OPT.get('post', [0, 0, 1, 1]); TOP1 = OPT.get('top1', 0); EX = OPT.get('ex', 5)
    e("s_waitcnt lgkmcnt(0)")
    for x in stage + zero_acc: e(x)
    e(f"s_lshl_b32 s{sT}, s{w}, 11\ns_add_u32 m0, s{sT}, {L_M}")
    e("s_waitcnt vmcnt(0)\ns_barrier")
    for k in range(1, 4): e(f"s_cmp_eq_u32 s{w}, {k}\ns_cbranch_scc1 {Ln('enter%d' % k)}")
    ta = {}
    for wv in range(4):
        Lw = lambda s: Ln(f"w{wv}_{s}")
        lds = []; vm = []; dn = []
        def WL(tag):
            k = max(i for i, t in enumerate(lds) if t == tag)
            return f"s_waitcnt lgkmcnt({min(len(lds) - 1 - k, 15)})"
        def WV(tag):
            k = max(i for i, t in enumerate(vm) if t == tag)
            return f"s_waitcnt vmcnt({len(vm) - 1 - k})"
        def DS(name):
            if OPT.get('one'):
                if name == 'wo_end':
                    if OPT['one'] == name: e("s_memtime s[6:7]")
                    e("s_waitcnt lgkmcnt(0)\ns_sub_u32 s6, s6, s4\ns_cmp_gt_u32 s{0}, 4\ns_cselect_b32 s6, s6, 0\ns_add_u32 s94, s94, s6\ns_memtime s[4:5]".format(sStep))
                elif OPT['one'] == name: e("s_memtime s[6:7]")
                return
            if not OPT.get('dst'): return
            e(f"{'s_memrealtime' if OPT.get('real') else 's_memtime'} s[{dregs[len(dn)]}:{dregs[len(dn)]+1}]"); dn.append(name)
        class Op:
            def __init__(s, txt, tag=None, wait=None, vwait=None): s.txt, s.tag, s.wait, s.vwait = txt, tag, wait, vwait
            def out(s):
                if s.wait is not None: return WL(s.wait)
                if s.vwait is not None: return WV(s.vwait)
                if s.txt.startswith('ds_'): lds.append(s.tag)
                if s.txt.startswith('buffer_'): vm.append(s.tag)
                return s.txt
        E = lambda x, tag=None: e(Op(x, tag).out())
        rd = lambda dst, a, off, tag: Op(f"ds_read_b128 {vr(dst,4)}, v{a} offset:{off}", tag)
        wt = lambda tag: Op("s_waitcnt lgkmcnt(0)", wait=tag)
        wtv = lambda tag: Op("s_waitcnt vmcnt(0)", vwait=tag)
        tacost = lambda t: (20 if 'store_dwordx4' in t else 16 if 'x4' in t or 'x2' in t or 'x3' in t else 6) if t.startswith('buffer_') else 0
        class Sched:
            def __init__(s, bb, book=False): s.bb = bb; s.g = [([], [], []) for _ in bb]; s.book = book
            def kind(s, x):
                t = x.txt
                return 2 if t.startswith('v_') and not t.startswith('v_cmp_eq') else (1 if t.startswith(('ds_', 'buffer_')) else 0)
            def over(s, g, extra=None):
                parts = [list(p) for p in s.g[g]]
                if extra: parts[s.kind(extra)].append(extra)
                ws = [x for x in parts[0] if x.wait is not None]
                parts[0] = ws[:1] + [x for x in parts[0] if x.wait is None]
                ls = [s.bb[g]] + [x.txt for p in parts for x in p] + [s.bb[g]]
                return estimate(ls)[-1] - 16
            def fix(s, g, *xs):
                for x in xs:
                    x = x if isinstance(x, Op) else Op(x)
                    s.g[g][s.kind(x)].append(x)
                    if s.book: ta[g] = ta.get(g, 0) + tacost(x.txt)
            def flex(s, lo, hi, x):
                x = x if isinstance(x, Op) else Op(x)
                c = tacost(x.txt)
                busy = lambda g: max(0, ta.get(g, 0) + c - 20) if c else 0
                crowd = lambda g: (4 if x.txt.startswith('ds_') and any(y.txt.startswith('ds_') for y in s.g[g][1]) else 0)
                best = min(range(lo, hi + 1), key=lambda g: (s.over(g, x) - s.over(g) + busy(g) + crowd(g), g))
                s.fix(best, x); return best
            def emit(s, names=None):
                for g, ins in enumerate(s.bb):
                    e(ins)
                    if names and (g in OPT.get('dst', []) or OPT.get('one')): DS(names % g)
                    ws = [x.out() for x in s.g[g][0] if x.wait is not None]
                    if ws: e(min(ws, key=lambda t: int(t[t.index('(')+1:-1])))
                    for p in s.g[g]:
                        for x in p:
                            if x.wait is None: e(x.out())
        kvl = kv_loads()
        if 'kv' in X: kvl = ['s_nop 0'] * 6
        if 'noK' in X: kvl[:4] = ['s_nop 0'] * 4
        if 'noV' in X: kvl[4:] = ['s_nop 0'] * 2
        if 'KVplain' in X: kvl = [x.replace(' sc1', '') for x in kvl]
        NS = NSW[wv]; PR0 = [PRB, PRB + 1, QF + 8, QF + 9][:NS]
        attop = wv == 0 or (wv == 1 and TOP1)
        e(f"{Ln('enter%d' % wv)}:")
        if not POST[wv]:
            for r in PR0:
                for x in shot(r): e(x)
        e(".p2align 6")
        e(f"{Lw('step')}:")
        loop0 = len(e.l)
        DS('top')
        probe_bad = lambda r, lab: [f"v_cmp_eq_u32 vcc, s{sSENT}, v{r}", f"s_cbranch_vccnz {Lw(lab)}" if not nc else "s_nop 0"]
        if not POST[wv]: vm += ['probe', 'dma0', 'dma'] + ['x'] * (3 * NS - 3)
        if attop:
            e(f"s_waitcnt vmcnt({3*NS-1}) lgkmcnt(0)")
            for x in probe_bad(PR0[0], 'spin1'): e(x)
            e(f"{Lw('hit')}:\ns_waitcnt vmcnt({3*NS-3})")
        else:
            e("s_waitcnt lgkmcnt(0)")
        e("s_barrier")
        DS('b1a')
        mrd = lambda sg: rd(M + 4 * sg, vL16, L_M + sg * 1024, ('m', sg))
        e(mrd(0).out()); e(mrd(1).out())
        if POST[wv]:
            assert NS == 1
            for x, tg in zip(shot(PRB), ('probe', 'dma0', 'dma')): E(x, tg)
        e(WL(('m', 0)))
        gK1 = len(fr) - 1; gK0, gQ1, gQ0 = gK1 - 4, gK1 - 8, gK1 - 12
        gqw = gQ1 + 4; gSt = max(gqw + 2 * EX, gK1 + 1)
        gkw = gK1 + 5; gSm = max(gkw + 2 * EX, gSt + 4)
        gpw = gSt + 8; gPv = max(gpw + 2 * EX - 1, gSm + 8)
        bb = [SM(f) for f in fr]; vs = list(vrest)
        def upto(g):
            while len(bb) < g: bb.append(SM(vs.pop(0)) if vs else 's_nop 0')
        upto(gSt); bb += [f"{mm} {vr(STK,4)}, {vr(KT+4*j,4)}, {vr(QF+4*j,4)}, {chainc(STK,j)}" for j in range(4)]
        upto(max(gSm, gPv - 4 - max(0, len(vs) - (gSm - len(bb))) if False else gSm))
        bb += [f"{mm} {vr(SMM,4)}, {vr(KF+4*j,4)}, {vr(QF+4*j,4)}, {chainc(SMM,j)}" for j in range(4)]
        gPv = max(gPv, len(bb) + len(vs))
        upto(gPv); bb += pv_tok + pv_mem
        gof = {f: bb.index(SM(f)) for f in fr + vrest}
        sc = Sched(bb, True)
        g2, g4 = gof[('q', 0, 2)], gof[('q', 0, 4)]
        b1b, b1c = g2 - 5, g4 - 5
        sc.fix(1, wt(('m', 1)))
        gmine = b1b if wv == 1 else b1c
        if not attop:
            sc.fix(gmine - 1, wtv('probe'), *probe_bad(PRB, 'spin1')); sc.g[gmine - 1][0].append(Op(f"{Lw('hit')}:"))
            sc.fix(gmine, wtv('dma'))
        if TOP1: sc.fix(0, mrd(2)); sc.fix(1, mrd(3))
        else: sc.fix(b1b, "s_barrier", mrd(2)); sc.fix(b1b + 1, mrd(3))
        sc.fix(g2 - 1, wt(('m', 2))); sc.fix(g2 + 3, wt(('m', 3)))
        sc.fix(b1c, "s_barrier", mrd(4)); sc.fix(b1c + 1, mrd(5)); sc.fix(b1c + 2, mrd(6)); sc.fix(b1c + 3, mrd(7))
        for k in range(4): sc.fix(g4 - 1 + k, wt(('m', 4 + k)))
        sc.fix(gQ0 + 2, add2(AQ0)[0]); sc.fix(gQ0 + 3, add2(AQ0)[1])
        sc.fix(gQ1 + 2, *add2(AQ1)); sc.fix(gQ1 + 3, cvt(AQ0, AQ0, AQ1), cvt(AQ0 + 1, AQ0 + 1, AQ1 + 1))
        sc.fix(gqw, Op(f"ds_write2_b32 v{vXW}, v{AQ0}, v{AQ0+1} offset0:0 offset1:4", 'qw'))
        gqb = gqw + EX
        sc.fix(gqb, wt('qw'), "s_barrier")
        for j in range(4): sc.fix(gqb + j, rd(QF + 4 * j, vQR, L_X + 1024 * j, ('qf', j))); sc.fix(gSt - 1 + j, wt(('qf', j)))
        sc.flex(gK0 + 2, gK1 + 1, add2(AK0)[0]); sc.flex(gK0 + 2, gK1 + 1, add2(AK0)[1])
        sc.fix(gK1 + 2, add2(AK1)[0]); sc.fix(gK1 + 3, add2(AK1)[1], cvt(AK0, AK0, AK1)); sc.fix(gK1 + 4, cvt(AK0 + 1, AK0 + 1, AK1 + 1))
        sc.fix(gkw, Op(f"ds_write2_b32 v{vXW}, v{AK0}, v{AK0+1} offset0:128 offset1:132", 'kw'))
        sc.fix(gkw + EX, wt('kw'), "s_barrier")
        for j in range(4):
            gj = max(gkw + EX + j, gof[('v', 1, j)])
            sc.fix(gj, rd(KF + 4 * j, vKR, L_X + 512 + 1024 * j, ('kf', j)))
            sc.fix(gSm - 1 + j, wt(('kf', j)))
        sc.fix(gSt + 5, f"v_exp_f32 v{PT}, v{STK}"); sc.fix(gSt + 6, f"v_exp_f32 v{PT+1}, v{STK+1}"); sc.fix(gSt + 7, cvt(PT, PT, PT + 1))
        sc.fix(gpw, Op(f"ds_write_b32 v{vQR}, v{PT} offset:{L_P+wv*4}", 'pw'))
        gpb = gpw + EX - 1
        sc.fix(gpb, wt('pw'), "s_barrier", rd(PAL, vQR, L_P, 'pal')); sc.fix(gpb + 1, rd(PLO, vPR, L_P, 'plo')); sc.fix(gpb + 2, rd(PHI, vPR, L_P - 512, 'phi'))
        sc.fix(gPv - 1, wt('pal')); sc.fix(gPv, wt('plo')); sc.fix(gPv + 1, wt('phi'))
        gV0 = max(gof[('v', 0, s)] for s in range(8))
        a = sc.flex(gV0 + 2, gPv - 2, add2(AV0)[0]); b = sc.flex(gV0 + 2, gPv - 2, add2(AV0)[1]); sc.flex(max(a, b) + 1, gPv - 1, cvt(AV0, AV0, AV0 + 1))
        sc.fix(gSm + 5, f"v_exp_f32 v{SMM+2}, v{SMM}"); sc.fix(gSm + 6, f"v_exp_f32 v{SMM+3}, v{SMM+1}"); sc.fix(gSm + 7, cvt(SMM + 2, SMM + 2, SMM + 3))
        sc.fix(gPv, f"v_cndmask_b32 v{PM}, 0, v{SMM+2}, {mlo}", f"v_cndmask_b32 v{PM+1}, v{SMM+2}, 0, {mlo}")
        sc.fix(gPv + 1, *add2(AV1)); sc.fix(gPv + 2, cvt(AV0 + 1, AV1, AV1 + 1), zw[0])
        sc.fix(gPv + 3, zw[1], zw[2]); sc.fix(gPv + 4, zw[3], zw[4])
        last = {k: gof[order[k]] for k in range(4)}; prev = 0
        for f in order[4:14]:
            use = gof.get(f, gPv + 4); lo = max(last[ringslot[f]], prev)
            a = sc.flex(lo, use - 5, Op(wtxt(f, 0), (f, 0))); prev = sc.flex(a, use - 4, Op(wtxt(f, 1), (f, 1)))
            if f in gof: sc.fix(use - 1, wt((f, 1)))
            last[ringslot[f]] = use
        sc.flex(last[1], gPv - 2, f"v_mov_b64 {vr(ONE4,2)}, s[{sONE}:{sONE+1}]"); sc.flex(last[1], gPv - 2, f"v_mov_b64 {vr(ONE4+2,2)}, s[{sONE}:{sONE+1}]")
        lo = (gmine + 1 if not attop and NS > 1 else OPT.get('kv0', 1))
        VE = OPT.get('vearly', 0)
        if VE:
            for j in (4, 5): lo = sc.flex(lo, max(lo, 4 + j), Op(kvl[j], ('kv', j))) + 1
            if 'kv' not in X and 'noV' not in X: sc.fix(gPv - 2, wtv(('kv', 5)))
        q0 = max(lo, OPT.get('q0', 1))
        lo = gSt + 1
        for j in range(4): lo = sc.flex(max(lo, gSt + j), gPv - 4 + j, kvl[j]) + 1
        RP = OPT.get('rpost', 1)
        if RP == 2:
            SENTQ = QF + 8
            sc.fix(gSm + 3, f"v_mov_b64 {vr(SENTQ,2)}, s[{sSENT}:{sSENT+1}]", f"v_mov_b64 {vr(SENTQ+2,2)}, s[{sSENT}:{sSENT+1}]")
        elif RP:
            SENTQ = QF + 8
            sc.flex(gSm + 3, gPv - 1, f"v_mov_b64 {vr(SENTQ,2)}, s[{sSENT}:{sSENT+1}]"); sc.flex(gSm + 3, gPv - 1, f"v_mov_b64 {vr(SENTQ+2,2)}, s[{sSENT}:{sSENT+1}]")
        else:
            a = sc.flex(0, q0, f"v_mov_b64 {vr(SENTQ,2)}, s[{sSENT}:{sSENT+1}]"); b = sc.flex(0, q0, f"v_mov_b64 {vr(SENTQ+2,2)}, s[{sSENT}:{sSENT+1}]")
        sc.flex(0, 4, f"s_add_u32 s{sT+3}, s{sPn}, {wv*2048}")
        rs = [f"buffer_store_dwordx4 {vr(SENTQ,4)}, v{vL16}, {WS}, s{sT+3} offen offset:{o} {ST}" for o in (0, 1024)] + [f"buffer_store_dword v{SENTQ}, v{vMS}, {WS}, s{sMp} offen {ST}"]
        if not RP:
            for x in rs: sc.flex(max(a, b, q0 - 1) + 1, gqb - 1, x)
        if RP == 2:
            sc.fix(gSm + 4, rs[0]); sc.fix(gPv - 1, rs[1]); sc.fix(gSm + 5, rs[2]); RP = 0
        if 'pub' not in X: sc.flex(q0, q0 + 6, f"buffer_store_dword v{R}, v{vMS}, {WS}, s{sMHp} offen sc1")
        if 'pf' not in X:
            lo = OPT.get('qp', 0)
            for k in range(4): lo = sc.flex(lo, lo + 5, warm[k]) + OPT.get('pfs', 1)
            sc.flex(lo, lo + 5, f"buffer_load_dword v{JUNK}, v{vSP2}, {WS}, s{sFl} offen sc1")
        if OPT.get('lat'):
            key = {'pf': f"s{sPF} offen offset:3072", 'K': f"s{sSK} offen offset:3072", 'V': f"s{sSV} offen offset:1024"}[OPT['lat']]
            for g in range(len(bb)):
                for k, x in enumerate(sc.g[g][1]):
                    if key in x.txt:
                        sc.g[g][1].insert(k, Op("s_waitcnt vmcnt(0) lgkmcnt(0)\ns_memtime s[4:5]\ns_waitcnt lgkmcnt(0)"))
                        sc.g[g][1].insert(k + 2, Op("s_waitcnt vmcnt(0)\ns_memtime s[6:7]\ns_waitcnt lgkmcnt(0)\ns_sub_u32 s6, s6, s4\n" + ("s_max_u32 s94, s94, s6" if OPT.get('latmax') else "s_add_u32 s94, s94, s6")))
                        break
        sc.emit('g%d')
        DS('pv_end'); e(f"v_rcp_f32 v{RC}, v{LA}"); DS('rcp'); e(zw[5]); e(zw[6])
        for x in norm: e(x)
        DS('ow'); E(ow, 'ow')
        e(f"v_subrev_u32 v{RC+1}, s{sLlo}, v{LA}\nv_cmp_lt_u32 vcc, s{sLrg}, v{RC+1}")
        e(zw[7]); e(zw[8])
        if not nc: e(f"s_cbranch_vccnz {Lw('fb')}")
        e(f"{Lw('fbret')}:")
        if not VE: e(kvl[4]); e(kvl[5])
        if RP: e(rs[0]); e(rs[2]); e(zw[9])
        else:
            for x in zw[9:12]: e(x)
        e("s_waitcnt lgkmcnt(0)"); DS('owdone'); e("s_barrier"); DS('b4')
        E(f"ds_read_b128 {vr(QF,4)}, v{vL16} offset:{L_O}", 'o0'); E(f"ds_read_b128 {vr(QF+4,4)}, v{vL16} offset:{L_O+1024}", 'o1')
        DS('o_rd')
        if RP: e(rs[1]); e(zw[10]); e(zw[11])
        else:
            for x in zw[12:16]: e(x)
        DS('wo_pre')
        wa = lambda t: add2(M + 4 * t)
        wc = lambda d: cvt(QF + 8 + d, M + 8 * (d >> 1) + (d & 1), M + 8 * (d >> 1) + 4 + (d & 1))
        pst = lambda tp: f"buffer_store_dwordx2 {vr(QF+8+2*tp,2)}, v{vP8}, {WS}, s{sPc if tp < 2 else sT+1} offen offset:{(tp&1)*2048} {ST}"
        wo = [f"v_smfmac_f32_16x16x64_bf16 {vr(M+4*(u>>1),4)}, {vr(QF+4*(u&1),4)}, {wreg(('o',u>>1,u&1))}, v{vIDX}" for u in range(16)]
        so = Sched(wo)
        e(WL('o0')); DS('o_w')
        so.fix(0, wt('o1')); so.fix(1, f"s_add_u32 s{sT+1}, s{sPc}, 4096")
        for f, g in ((order[16], 5), (order[17], 7)):
            so.fix(g + (g == 5) * 2 + (g == 7), Op(wtxt(f, 0), (f, 0))); so.fix(g + (g == 5) * 3 + (g == 7) * 2, Op(wtxt(f, 1), (f, 1)))
        for k in range(4): so.fix(k, Op(wtxt(order[14 + k // 2], k & 1), (order[14 + k // 2], k & 1)))
        for f in order[14:18]: so.fix(2 * f[1], wt((f, 1)))
        if RP:
            so.fix(0, zw[12]); so.fix(1, zw[13]); so.fix(2, zw[14]); so.fix(10 if OPT.get('wo1') else 4, zw[15])
        if OPT.get('wo1', 0) == 0:
            so.fix(3, *wa(0)); so.fix(5, *(wa(1) + [wc(0), wc(1)])); so.fix(6, pst(0))
            so.fix(7, wa(2)[0]); so.fix(8, wa(2)[1]); so.fix(9, *wa(3)); so.fix(10, wc(2), wc(3)); so.fix(11, pst(1))
            so.fix(12, wa(4)[0]); so.fix(13, wa(4)[1]); so.fix(14, wa(5)[0])
            tail = [wa(5)[1], wc(4), wc(5), pst(2)] + wa(6) + wa(7) + [wc(6), wc(7), pst(3)]
        else:
            so.fix(3, wa(0)[0]); so.fix(4, wa(0)[1]); so.fix(5, wa(1)[0]); so.fix(6, wa(1)[1]); so.fix(7, wc(0), wc(1), *wa(2))
            so.fix(8, pst(0), *(wa(3) + [wc(2), wc(3)])); so.fix(9, pst(1))
            so.fix(11, wa(4)[0]); so.fix(12, wa(4)[1]); so.fix(13, wa(5)[0]); so.fix(14, wa(5)[1])
            tail = [wc(4), wc(5), pst(2)] + wa(6) + wa(7) + [wc(6), wc(7), pst(3)]
        gp2 = OPT.get('gp2', 13)
        assert gp2 > 11
        early = wv == 0 and gp2 < 50
        if early:
            for k in range(8):
                if gp2 + k // 2 < 16: so.fix(gp2 + k // 2, p2l[k])
        so.emit('u%d' if OPT.get('one') else None)
        if early:
            for k in range(8):
                if gp2 + k // 2 >= 16: e(p2l[k])
        for x in tail: e(x)
        DS('wo_end')
        sel = [f"v_mov_b32 v{SELQ+d}, v{vSEL}" for d in range(4)]
        rot = [f"s_mov_b32 s{sT}, s{sMp}", f"s_mov_b32 s{sMp}, s{sMc}", f"s_mov_b32 s{sMc}, s{sMn}", f"s_mov_b32 s{sMn}, s{sT}",
               f"s_add_u32 s{sMH}, s{sMH}, 8192", f"s_mov_b32 s{sMHp}, s{sMH}", f"s_add_u32 s{sStep}, s{sStep}, 1"]
        free = zero_acc[4:] + stage + [f"s_sub_u32 s{sDl}, s{sPn}, s{sPc}", f"s_mov_b32 s{sT+2}, s{sPp}",
                f"s_mov_b32 s{sPp}, s{sPc}", f"s_mov_b32 s{sPc}, s{sPn}", f"s_mov_b32 s{sPn}, s{sT+2}",
                f"s_add_u32 s{sPF}, s{sPF}, {SEGS:#x}",
                f"s_add_u32 s{sSK}, s{sSK}, {0 if 'KVfix' in X else SEGS}", f"s_add_u32 s{sSV}, s{sSV}, {0 if 'KVfix' in X else SEGS}"]
        kvn = [f"v_cmp_le_u32 vcc, 32, v{JUNK}", f"s_and_b32 s{sT}, vcc_lo, 0xffff", f"s_ff0_i32_b32 s{sT}, s{sT}", f"s_max_u32 s{sKv}, s{sKv}, s{sT}",
               f"s_cmp_lt_u32 s{sKv}, 16", f"s_cselect_b32 s{sFl}, s{sFl}, {OOB:#x}", f"s_add_u32 s{sT}, s{sStep}, 2", f"s_lshr_b32 s{sT}, s{sT}, 2", f"s_min_u32 s{sT}, s{sT}, 15", f"s_cmp_lt_u32 s{sT}, s{sKv}", f"s_cbranch_scc0 {Lw('kvwait')}\n{Lw('kvok')}:"]
        dA = OPT.get('dA', [0, 0, 12, 34])[wv]; dB = OPT.get('dB', [30, 36, 36, 36])[wv]; dC = OPT.get('dC', 16)
        gaps = [0 if POST[wv] else dB] + [dC] * (len(PR0) - 1)
        late = zero_acc[:4] + kvn + [f"v_add_u32 v{vRL}, s{sDl}, v{vRL}"]
        nA = min(dA, len(free)); partA = free[:nA]; rest = free[nA:]
        want = max(0, sum(gaps) - len(late)); keep = rest[max(0, len(rest) - want):] if want else []
        mid = rest[:len(rest) - len(keep)]
        after = late[:4] + keep + late[4:]
        for x in partA + pad(dA - nA): e(x)
        DS('p2top')
        if not early:
            for x in p2l: e(x)
        for x in sel + rot + mid: e(x)
        yo = 2 if early else 0
        e(f"s_waitcnt vmcnt({4+yo})")
        e(f"{Lw('p2w')}:"); DS('p2w')
        e(f"{mm} {vr(R,4)}, {vr(SELQ,4)}, {vr(LAND,4)}, 0\nv_max3_i32 v{M}, v{LAND}, v{LAND+1}, v{LAND+2}\ns_waitcnt vmcnt({yo})")
        e(f"{mm} {vr(R,4)}, {vr(SELQ,4)}, {vr(LAND+4,4)}, {vr(R,4)}\nv_max3_i32 v{M+1}, v{LAND+3}, v{LAND+4}, v{LAND+5}\nv_max3_i32 v{M}, v{M}, v{LAND+6}, v{LAND+7}\nv_max_i32 v{M}, v{M}, v{M+1}")
        e(f"v_cmp_le_i32 vcc, s{sInf}, v{M}")
        if not nc: e(f"s_cbranch_vccnz {Lw('p2slow')}")
        e(f"{Lw('p2ok')}:")
        e(cvt(R, R, R + 1))
        e(f"buffer_store_dword v{R}, v{vMS}, {WS}, s{sMc} offen {ST}")
        DS('mstore')
        e(f"s_cmp_eq_u32 s{sStep}, 63\ns_cbranch_scc1 {Ln('fin')}")
        for k, r in enumerate(PR0):
            part = after[:gaps[k]] if k < len(PR0) - 1 else after
            after = after[len(part):]
            for x in part + ([] if POST[wv] else pad(gaps[k] - len(part)) + shot(r)): e(x)
        if OPT.get('est') == wv and mode == 0:
            ls = e.l[loop0:]
            for tt, x in zip(estimate(ls), ls): print(tt, x)
        DS('end') if OPT.get('one') else None
        if OPT.get('prof') and wv == 3:
            e(f"s_memrealtime s[98:99]\ns_lshl_b32 s97, s{h}, 8\ns_lshl_b32 s96, s{sStep}, 2\ns_add_u32 s97, s97, s96\ns_add_u32 s97, s97, {WS_STAMP + 0x10000:#x}\ns_waitcnt lgkmcnt(0)\nv_mov_b32 v{M}, s98\nbuffer_store_dword v{M}, off, {WS}, s97")
        if OPT.get('dst'):
            DS('end')
            e(f"s_cmp_eq_u32 s{sStep}, 40\ns_cbranch_scc0 {Lw('step')}\ns_waitcnt lgkmcnt(0)")
            e(f"s_lshl_b32 s{sT}, s{h}, 2\ns_add_u32 s{sT}, s{sT}, s{w}\ns_lshl_b32 s{sT}, s{sT}, 7\ns_add_u32 s{sT}, s{sT}, {WS_STAMP:#x}")
            e("s_waitcnt vmcnt(0)")
            for k in range(len(dn)): e(f"v_mov_b32 v{M}, s{dregs[k]}\nbuffer_store_dword v{M}, off, {WS}, s{sT} offset:{4*k}")
            e("s_waitcnt vmcnt(0)")
            if mode == 0: open('dst_names.txt', 'w').write(' '.join(dn))
        e(f"s_branch {Lw('step')}")
        cnt = lambda inc: e(f"s_add_u32 s94, s94, {inc:#x}") if OPT.get('tl') and not OPT.get('one') and not OPT.get('lat') else None
        e(f"{Lw('spin0')}:")
        e(f"s_waitcnt vmcnt({3*NS-1})\nv_cmp_eq_u32 vcc, s{sSENT}, v{PR0[0]}\ns_cbranch_vccz {Lw('spun')}")
        e(f"{Lw('spin1')}:")
        for k in range(NS):
            cnt(1)
            for x in shot(PR0[k]): e(x)
            if k < NS - 1: e(f"s_waitcnt vmcnt({3*NS-1})\nv_cmp_eq_u32 vcc, s{sSENT}, v{PR0[k+1]}\ns_cbranch_vccz {Lw('spun')}")
        fail_if_zero(12)
        e(f"s_branch {Lw('spin0')}")
        e(f"{Lw('spun')}:\ns_waitcnt vmcnt({3*NS-3})\ns_branch {Lw('hit')}")
        e(f"{Lw('redo')}:")
        cnt(0x400)
        e(f"s_mov_b32 s{sMHp}, {OOB:#x}")
        e(f"s_sub_u32 s{sSK}, s{sSK}, {SEGS:#x}")
        for x in kv_loads()[:4]: e(x)
        e(f"s_add_u32 s{sSK}, s{sSK}, {SEGS:#x}\ns_waitcnt vmcnt(0) lgkmcnt(0)\ns_barrier")
        if not POST[wv]:
            for r in PR0:
                for x in shot(r): e(x)
        for x in stage + zero_acc: e(x)
        fail_if_zero(13)
        e(f"s_branch {Lw('step')}")
        e(f"{Lw('p2slow')}:")
        for i in range(8): e(f"v_cmp_eq_u32 vcc, s{sSENT}, v{LAND+i}\ns_cbranch_vccnz {Lw('p2retry')}")
        e(f"s_branch {Lw('p2ok')}")
        e(f"{Lw('p2retry')}:")
        cnt(0x100000)
        fail_if_zero(14)
        for x in p2l: e(x)
        e(f"s_waitcnt vmcnt(0)\ns_branch {Lw('p2w')}")
        kv_refresh(Lw('kvwait'), 15)
        e(f"s_branch {Lw('kvok')}")
        e(f"{Lw('fb')}:")
        F = M
        e("s_waitcnt vmcnt(0)\ns_barrier")
        for k in range(8): e(f"ds_read_b128 {vr(M+4*k,4)}, v{vL16} offset:{L_M+k*1024}")
        e("s_waitcnt lgkmcnt(0)\ns_barrier")
        for i in range(32): e(f"v_cmp_eq_u32 vcc, s{sSENT}, v{M+i}\ns_cbranch_vccnz {Lw('redo')}")
        e(f"ds_write_b64 v{vL16}, {vr(STK,2)} offset:{L_M+(wv>>1)*1024+(wv&1)*8}")
        e("s_waitcnt lgkmcnt(0)\ns_barrier")
        e(f"ds_read_b128 {vr(F,4)}, v{vL16} offset:{L_M}\nds_read_b128 {vr(F+4,4)}, v{vL16} offset:{L_M+1024}\nv_mov_b32 v{F+8}, v{SMM}\nv_mov_b32 v{F+9}, v{SMM+1}\ns_waitcnt lgkmcnt(0)")
        e(f"v_max3_f32 v{F+10}, v{F}, v{F+1}, v{F+2}\nv_max3_f32 v{F+11}, v{F+3}, v{F+4}, v{F+5}\nv_max3_f32 v{F+10}, v{F+10}, v{F+6}, v{F+7}\nv_max3_f32 v{F+11}, v{F+11}, v{F+8}, v{F+9}\nv_max_f32 v{F+10}, v{F+10}, v{F+11}")
        e(f"v_mov_b32 v{F+11}, v{F+10}\nv_permlane32_swap_b32 v{F+10}, v{F+11}\nv_max_f32 v{F+10}, v{F+10}, v{F+11}")
        e(f"v_mov_b32 v{F+11}, v{F+10}\nv_permlane16_swap_b32 v{F+10}, v{F+11}\nv_max_f32 v{F+10}, v{F+10}, v{F+11}")
        for r in range(10): e(f"v_sub_f32 v{F+r}, v{F+r}, v{F+10}")
        for r in range(10): e(f"v_exp_f32 v{F+r}, v{F+r}")
        for dd in range(4): e(cvt(PAL + dd, F + 2 * dd, F + 2 * dd + 1))
        e(cvt(F + 8, F + 8, F + 9))
        for dd in range(4): e(f"v_cndmask_b32 v{PLO+dd}, 0, v{PAL+dd}, {mlo}\nv_cndmask_b32 v{PHI+dd}, v{PAL+dd}, 0, {mlo}")
        e(f"v_cndmask_b32 v{PM}, 0, v{F+8}, {mlo}\nv_cndmask_b32 v{PM+1}, v{F+8}, 0, {mlo}")
        for x in pv_tok + pv_mem: e(x)
        for x in zw[:9]: e(x)
        e(f"v_rcp_f32 v{RC}, v{LA}")
        for x in norm: e(x)
        e(ow)
        e(f"s_branch {Lw('fbret')}")
    e(f"{Ln('fin')}:")
    e(f"buffer_store_dword v{R}, v{vMS}, {WS}, s{sMH} offen sc1")
    TL(5, 0)
    if OPT.get('tl'): e(f"s_memtime s[98:99]\ns_waitcnt lgkmcnt(0)\ns_sub_u32 s98, s98, s92\nv_mov_b32 v15, s98\nbuffer_store_dword v15, off, {WS}, s97 offset:4\ns_lshl_b32 s96, s{w}, 2\ns_add_u32 s97, s97, s96\nv_mov_b32 v15, s94\nbuffer_store_dword v15, off, {WS}, s97 offset:12")
    e("s_waitcnt vmcnt(0)\ns_branch L_end")
```

```python
def emit(G):
    globals().update(G)
    X, W, AUX = "s[40:43]", "s[44:47]", "s[48:51]"
    sRound, sTile, sPass, sType, sRS, sNB, sCnt, sBlk, sBlkN = 52, 53, 54, 55, 56, 57, 58, 59, 60
    s2RS = {1: 61, 2: 62, 3: 63}; sRow = list(range(64, 72)); sB, sT0, sT1, s128, sLo, sHi = 72, 73, 74, 75, 76, 77
    vL16, vA0, vA1, vW, vXo, vG, vC = 1, 2, 3, 4, 5, 6, 7
    RING = [160, 192, 224, 128]
    XN, WF = 16, 80
    acc = lambda t, T: (t * 8 + T) * 4

    e("L_worker:")
    TL(1, 32)
    if OPT.get('tl'): e(f"v_mov_b32 v15, s94\ns_sub_u32 s97, s97, 4\nbuffer_store_dword v15, off, {WS}, s97")
    srd(40, P_X, 2048 * 1024)
    e(f"v_lshlrev_b32 v{vL16}, 4, v0\nv_lshrrev_b32 v{vG}, 4, v0\nv_and_b32 v{vC}, 15, v0")
    e(f"v_lshlrev_b32 v{vXo}, 10, v{vC}\nv_lshl_add_u32 v{vXo}, v{vG}, 6, v{vXo}")
    e(f"v_lshrrev_b32 v8, 2, v{vC}\nv_and_b32 v9, 1, v{vC}\nv_lshl_add_u32 v8, v8, 1, v9\nv_lshlrev_b32 v8, 4, v8\nv_lshl_add_u32 v8, v{vG}, 7, v8\nv_bfe_u32 v9, v{vC}, 1, 1\nv_lshl_add_u32 v0, v9, 9, v8")
    e(f"s_mov_b32 s{sLo}, 0x05040100\ns_mov_b32 s{sHi}, 0x07060302")
    e(f"s_mov_b32 s{sRound}, 0")
    if OPT.get('rounds') == 0: e("s_waitcnt vmcnt(0)\ns_branch L_end")
    sPg, sU, sPi, sHalf, sSkip = 87, 88, 89, 90, 91
    e(f"s_mul_i32 s{sPg}, s{S_IDX}, 1171\ns_lshr_b32 s{sPg}, s{sPg}, 16\ns_mul_i32 s79, s{sPg}, 56\ns_sub_u32 s79, s{S_IDX}, s79\ns_lshr_b32 s{sU}, s79, 2\ns_and_b32 s{sPi}, s79, 3")
    e(f"s_lshl_b32 s{sPass}, s{sPg}, 2\ns_add_u32 s{sPass}, s{sPass}, s{sPi}\ns_mov_b32 s{sSkip}, 0")
    e(f"s_sub_u32 s{sTile}, s{sU}, 2\ns_mov_b32 s{sHalf}, 0\ns_cmp_lt_u32 s{sU}, 4\ns_cbranch_scc0 L_dec2")
    e(f"s_lshr_b32 s{sTile}, s{sU}, 1\ns_and_b32 s{sHalf}, s{sU}, 1\ns_add_u32 s{sHalf}, s{sHalf}, 1\ns_branch L_dec2")
    e("L_task:")
    if OPT.get('rb'): e("s_waitcnt vmcnt(0)")
    e(f"s_mov_b32 s{sHalf}, 0\ns_cmp_eq_u32 s{sRound}, 1\ns_cbranch_scc0 L_dec1")
    e(f"s_cmp_lt_u32 s{sU}, 4\ns_cbranch_scc0 L_dec1\ns_add_u32 s{sTile}, s{sU}, 12\ns_branch L_dec2")
    e("L_dec1:")
    e(f"s_mov_b32 s{sRound}, 2\ns_mov_b32 s{sSkip}, 1\ns_mov_b32 s79, s{sPi}\ns_cmp_lt_u32 s{sPi}, 3\ns_cbranch_scc1 L_dec1b")
    e(f"s_sub_u32 s79, s{sU}, 4\ns_cmp_lt_u32 s79, 6\ns_cbranch_scc0 L_g1_end")
    e(f"s_mov_b32 s{sSkip}, 0\ns_cmp_ge_u32 s79, 3\ns_cselect_b32 s{sTile}, 1, 0\ns_cselect_b32 s80, 3, 0\ns_sub_u32 s79, s79, s80")
    e("L_dec1b:")
    e(f"s_lshl_b32 s80, s{sPg}, 1\ns_add_u32 s80, s80, s79\ns_add_u32 s{sPass}, s80, 15\ns_add_u32 s80, s{sPg}, 24\ns_cmp_eq_u32 s79, 0\ns_cselect_b32 s{sPass}, s80, s{sPass}")
    e("L_dec2:")
    e(f"s_and_b32 s78, s{sPass}, 7\ns_lshl_b32 s78, s78, 2\ns_add_u32 s78, s78, s{S_WAVE}\ns_lshl_b32 s79, s78, 8")
    e(f"s_mov_b32 s{sRS}, 8192\ns_mov_b32 s46, 0x400000\ns_mov_b32 s47, 0x20000\ns_mov_b32 s{sNB}, 4")
    e(f"s_mov_b32 s{sType}, 0\ns_mov_b32 s44, s{P_WK}\ns_mov_b32 s45, s{P_WK+1}\ns_cmp_lt_u32 s{sPass}, 8\ns_cbranch_scc1 L_dec3")
    e(f"s_mov_b32 s{sType}, 1\ns_mov_b32 s44, s{P_WV}\ns_mov_b32 s45, s{P_WV+1}\ns_cmp_lt_u32 s{sPass}, 16\ns_cbranch_scc1 L_dec3")
    e(f"s_mov_b32 s{sType}, 4\ns_mov_b32 s44, s{P_WQ}\ns_mov_b32 s45, s{P_WQ+1}\ns_cmp_lt_u32 s{sPass}, 24\ns_cbranch_scc1 L_dec3")
    e(f"s_mov_b32 s{sType}, 2\ns_mov_b32 s44, s{P_W1}\ns_mov_b32 s45, s{P_W1+1}\ns_mov_b32 s{sRS}, 3584\ns_mov_b32 s46, {512*3584}")
    e("L_dec3:")
    def wcalc(pi=False):
        if pi: e(f"v_and_b32 v8, 3, v{vC}\nv_lshrrev_b32 v9, 2, v{vC}\nv_lshl_add_u32 v8, v8, 2, v9\nv_lshlrev_b32 v8, 4, v8")
        else: e(f"v_lshlrev_b32 v8, 4, v{vC}")
        e(f"s_lshl_b32 s80, s{sRS}, 5\nv_mul_lo_u32 v9, s80, v{vG}\nv_add3_u32 v{vW}, v8, v9, s79")
        for i in range(8): e(f"s_mul_i32 s{sRow[i]}, s{sRS}, {8*(i>>1)+(i&1)}")
        for k in (1, 2, 3): e(f"s_mul_i32 s{s2RS[k]}, s{sRS}, {2*k}")
        e(f"s_lshl_b32 s{s128}, s{sRS}, 7")
    def wissue():
        for n in range(3):
            for i in range(8):
                if n: e(f"s_add_u32 s{sT0}, s{s2RS[n]}, s{sRow[i]}")
                so = f"s{sT0}" if n else f"s{sRow[i]}"
                e(f"buffer_load_dwordx4 {vr(RING[n]+4*i,4)}, v{vW}, {W}, {so} offen")
    def wsetup(pi=False): wcalc(pi); wissue()
    e(f"s_cmp_eq_u32 s{sSkip}, 1\ns_cbranch_scc0 L_ln")
    wsetup()
    e("s_branch L_gemm")
    e("L_ln:")
    e(f"s_cmp_eq_u32 s{sHalf}, 0\ns_cselect_b32 s82, 15, 14\ns_lshl_b32 s82, s{S_WAVE}, s82\ns_lshr_b32 s81, s{sHalf}, 1\ns_lshl_b32 s81, s81, 16")
    e(f"s_lshl_b32 s80, s{sTile}, 17\ns_add_u32 s80, s80, s81\ns_add_u32 s80, s80, s82")
    e(f"v_add_u32 v{vA0}, s82, v{vL16}")
    e(f"s_add_u32 s81, s80, 16384\ns_cmp_eq_u32 s{sHalf}, 0\ns_cselect_b32 s81, s81, {OOB:#x}")
    for u in range(2):
        for q in range(16):
            e(f"buffer_load_dwordx4 {vr(16+64*u+4*q,4)}, v{vXo}, {X}, s{80+u} offen offset:{(q>>2)*256+(q&3)*16}")
    confirm_issue('a4', vA1)
    wcalc()
    e("v_mov_b32 v8, 0x3f803f80")
    for i in range(4): e(f"v_accvgpr_write_b32 a{i}, v8")
    e("s_barrier")
    for u in range(2):
        RB = 16 + 64 * u
        if u: e(f"s_cmp_eq_u32 s{sHalf}, 0\ns_cbranch_scc0 L_ln_end")
        e(f"s_waitcnt vmcnt({17 if u == 0 else 25})")
        if OPT.get('tl2') and u == 0:
            e(f"s_cmp_eq_u32 s{sRound}, 0\ns_cbranch_scc0 L_tla"); TLV[0] = 15; TL(8, 32); e("s_waitcnt vmcnt(0)\nL_tla:")
        for q in range(16):
            e(f"v_mfma_f32_16x16x32_bf16 v[8:11], a[0:3], {vr(RB+4*q,4)}, {'0' if q == 0 else 'v[8:11]'}")
            for d in range(4):
                r = RB + 4 * q + d
                e(f"v_dot2_f32_bf16 v{12+d}, v{r}, v{r}, {'0' if q == 0 else 'v%d' % (12+d)}")
        if u == 0: wissue()
        e("v_add_f32 v12, v12, v13\nv_add_f32 v14, v14, v15\nv_add_f32 v12, v12, v14")
        e("v_mov_b32 v13, v12\nv_permlane32_swap_b32 v12, v13\nv_add_f32 v12, v12, v13")
        e("v_mov_b32 v13, v12\nv_permlane16_swap_b32 v12, v13\nv_add_f32 v12, v12, v13")
        e(f"v_mul_f32 v8, {fbits(1/512):#x}, v8\nv_mul_f32 v12, {fbits(1/512):#x}, v12")
        e(f"v_fma_f32 v12, -v8, v8, v12\nv_max_f32 v12, 0, v12\nv_add_f32 v12, {fbits(1e-5):#x}, v12\nv_rsq_f32 v144, v12")
        e("v_mul_f32 v146, -v8, v144".replace("v_mul_f32 v146, -v8, v144", "v_mul_f32_e64 v146, -v8, v144"))
        if OPT.get('tl2') and u == 0:
            e(f"s_cmp_eq_u32 s{sRound}, 0\ns_cbranch_scc0 L_tlb"); TL(9, 32); e("L_tlb:")
        k = 0
        for wp in range(4):
            for tp in range(4):
                oq = 152 + 4 * ((wp * 4 + tp) & 1)
                for r in range(4):
                    src = RB + (wp * 4 + r) * 4 + tp
                    t = 148 + 2 * (k & 1); k += 1
                    e(f"v_lshlrev_b32 v{t}, 16, v{src}\nv_and_b32 v{t+1}, 0xffff0000, v{src}")
                    e(f"v_pk_fma_f32 v[{t}:{t+1}], v[{t}:{t+1}], v[144:145], v[146:147] op_sel_hi:[1,0,0]")
                    e(f"v_cvt_pk_bf16_f32 v{oq+r}, v{t}, v{t+1}")
                e(f"ds_write_b128 v{vA0}, {vr(oq,4)} offset:{u*16384+(wp*4+tp)*1024}")
    e("L_ln_end:\ns_waitcnt vmcnt(24)\nv_accvgpr_read_b32 v8, a4")
    confirm_check(42, 8, 10)
    e(f"s_lshr_b32 s80, s{S_IDX}, 5\ns_or_b32 s80, s80, s{sRound}\ns_cmp_eq_u32 s80, 0\ns_cbranch_scc0 L_w_nz")
    e(f"v_mov_b32 v8, 0\nv_mov_b32 v9, 0\nv_mov_b32 v10, 0\nv_mov_b32 v11, 0\ns_lshl_b32 s80, s{S_WAVE}, 12\ns_add_u32 s81, s80, {WS_FLAG}\ns_cmp_eq_u32 s{S_IDX}, 0\ns_cselect_b32 s81, s81, {OOB:#x}")
    for i in range(4): e(f"buffer_store_dwordx4 v[8:11], v{vL16}, {WS}, s81 offen offset:{i*1024} sc1")
    e(f"v_mov_b32 v12, {SENT:#x}\nv_mov_b32 v13, v12\nv_mov_b32 v14, v12\nv_mov_b32 v15, v12\ns_lshl_b32 s81, s{S_IDX}, 14\ns_add_u32 s81, s81, s80\ns_add_u32 s81, s81, {WS_MH:#x}")
    for i in range(4): e(f"buffer_store_dwordx4 v[12:15], v{vL16}, {WS}, s81 offen offset:{i*1024} sc1")
    e(f"s_waitcnt vmcnt(0)\ns_barrier\ns_cmp_eq_u32 s{S_WAVE}, 0\ns_cbranch_scc0 L_w_nz")
    e(f"s_mov_b64 exec, 1\nv_mov_b32 v9, 1\nglobal_atomic_add v8, v9, s[{P_DBG}:{P_DBG+1}] offset:8\ns_mov_b64 exec, -1")
    e("L_w_nz:")
    e("L_gemm:")
    if OPT.get('tl'):
        e(f"s_cmp_eq_u32 s{sRound}, 0\ns_cbranch_scc0 L_tl1"); TL(2, 32); e("L_tl1:")
    for i in range(256): e(f"v_accvgpr_write_b32 a{i}, 0")
    e(f"v_mov_b32 v{vA0}, v{vL16}\nv_add_u32 v{vA1}, 0x10000, v{vL16}")
    e(f"s_mov_b32 s{sBlk}, 0\ns_mov_b32 s{sCnt}, 1")
    e("s_waitcnt lgkmcnt(0)\ns_barrier")
    e(f"s_cmp_eq_u32 s{sPass}, 27\ns_cselect_b32 s80, s{S_WAVE}, 0\ns_cmp_eq_u32 s{sType}, 2\ns_cselect_b32 s80, s80, 0\ns_cmp_ge_u32 s80, 2\ns_cbranch_scc1 L_epi")
    def xnread(T, jloc, base=16):
        return f"ds_read_b128 {vr(base+4*T,4)}, v{vA0 if T < 4 else vA1} offset:{(T&3)*16384+jloc*1024}"
    def perm(ring, t, rp, msk=1):
        return f"v_perm_b32 v{WF+4*(t&msk)+rp}, v{ring+4*(2*rp+1)+(t>>1)}, v{ring+4*(2*rp)+(t>>1)}, s{sHi if t&1 else sLo}"
    if OPT.get('tl2'):
        e(f"s_cmp_eq_u32 s{sRound}, 0\ns_cbranch_scc0 L_tlc"); TL(10, 32); e("s_waitcnt vmcnt(0)\nL_tlc:")
    if OPT.get('clk'): e("s_memtime s[92:93]\ns_memrealtime s[94:95]\ns_waitcnt lgkmcnt(0)")
    for T in range(8): e(xnread(T, 0))
    e("s_waitcnt vmcnt(16)")
    for rp in range(4): e(perm(RING[0], 0, rp)); e(perm(RING[0], 1, rp))
    e("s_waitcnt lgkmcnt(0)")
    e(f"s_cmp_eq_u32 s{sHalf}, 0\ns_cbranch_scc0 L_halfsel\ns_cmp_eq_u32 s{sType}, 1\ns_cbranch_scc1 L_loopB8\ns_branch L_loopA8")
    e(f"L_halfsel:\ns_cmp_eq_u32 s{sType}, 1\ns_cbranch_scc1 L_loopB4")
    for ori, NT in (("A", 4), ("B", 4), ("A", 8), ("B", 8)):
        e(f"L_loop{ori}{NT}:")
        if OPT.get('tl3') is not None:
            e(f"s_cmp_eq_u32 s{sRound}, {OPT['tl3']}\ns_cbranch_scc0 L_tle{ori}{NT}\ns_memrealtime s[98:99]\ns_lshl_b32 s97, s{S_IDX}, 6\ns_lshl_b32 s96, s{sCnt}, 2\ns_add_u32 s97, s97, s96\ns_add_u32 s97, s97, {WS_STAMP + 0x8000 + 32*64 + 28:#x}\ns_waitcnt lgkmcnt(0)\nv_mov_b32 v15, s98\nbuffer_store_dword v15, off, {WS}, s97\nL_tle{ori}{NT}:")
        e(f"s_add_u32 s{sBlkN}, s{sBlk}, s{s128}\ns_cmp_lt_u32 s{sCnt}, s{sNB}\ns_cselect_b32 s{sBlkN}, s{sBlkN}, {OOB:#x}")
        for tp in range(4):
            ring = RING[tp]; nring = RING[(tp + 1) & 3]; lring = RING[(tp + 3) & 3]
            tpp = (tp + 3) & 3
            base = sBlk if tp == 0 else sBlkN
            xc, xn_ = XN + (32 if tp & 1 else 0), XN + (0 if tp & 1 else 32)
            if tpp: e(f"s_add_u32 s{sB}, s{base}, s{s2RS[tpp]}")
            else: e(f"s_mov_b32 s{sB}, s{base}")
            for t in range(8):
                for T in range(NT):
                    a = ar(acc(t, T), 4); w = vr(WF + 4 * (t & (1 if NT == 8 else 3)), 4); x = vr(xc + 4 * T, 4)
                    e(f"v_mfma_f32_16x16x32_bf16 {a}, {w if ori == 'A' else x}, {x if ori == 'A' else w}, {a}")
                    li = None
                    if NT == 8 and 1 <= t <= 4 and T in (0, 6): li = (t - 1) * 2 + (T == 6)
                    if NT == 4 and t < 4 and T in (0, 2): li = 2 * t + (T == 2)
                    if li is not None:
                        e(f"s_add_u32 s{sT0}, s{sB}, s{sRow[li]}")
                        e(f"buffer_load_dwordx4 {vr(lring+4*li,4)}, v{vW}, {W}, s{sT0} offen")
                    if t == (7 if NT == 8 else 6) and T == 0: e("s_waitcnt vmcnt(16)")
                    if NT == 8 and T == 7 and t < 7: e(xnread(t, tp + 1, xn_))
                    if NT == 8 and T == 1 and t == 6: e(xnread(7, tp + 1, xn_))
                    if NT == 4 and T == 1 and t < 4: e(xnread(t, tp + 1, xn_))
                    if t == 7 and T == NT - 1: e("s_waitcnt lgkmcnt(0)")
                    if NT == 8 and 2 <= T < 6: e(perm(ring, t + 1, T - 2) if t < 7 else perm(nring, 0, T - 2))
                    if NT == 4: e(perm(ring, t + 2, T, 3) if t < 6 else perm(nring, t - 6, T, 3))
        e(f"v_add_u32 v{vA0}, 0x1000, v{vA0}\nv_add_u32 v{vA1}, 0x1000, v{vA1}")
        e(f"s_mov_b32 s{sBlk}, s{sBlkN}\ns_add_u32 s{sCnt}, s{sCnt}, 1\ns_cmp_le_u32 s{sCnt}, s{sNB}\ns_cbranch_scc1 L_loop{ori}{NT}")
        if (ori, NT) != ("B", 8): e("s_branch L_epi")
    e("L_epi:")
    if OPT.get('tl'):
        e(f"s_cmp_eq_u32 s{sRound}, 0\ns_cbranch_scc0 L_tl2"); TL(3, 32); e("L_tl2:")
    e("s_waitcnt vmcnt(0) lgkmcnt(0)\ns_nop 7")
    if OPT.get('clk'):
        e(f"s_cmp_eq_u32 s{sRound}, 0\ns_cbranch_scc0 L_clk\ns_memtime s[96:97]\ns_memrealtime s[98:99]\ns_waitcnt lgkmcnt(0)\ns_sub_u32 s96, s96, s92\ns_sub_u32 s98, s98, s94")
        e(f"s_lshl_b32 s97, s{S_IDX}, 6\ns_add_u32 s97, s97, {WS_STAMP + 0x8000 + 32*64 + 32:#x}\nv_mov_b32 v15, s96\nbuffer_store_dword v15, off, {WS}, s97\nv_mov_b32 v15, s98\nbuffer_store_dword v15, off, {WS}, s97 offset:4\nv_mov_b32 v15, s{sHalf}\nbuffer_store_dword v15, off, {WS}, s97 offset:8\nL_clk:")
    cnt = [0]
    def pack(pairs, scale=None):
        k = cnt[0]; cnt[0] += 1
        tb = 64 + 8 * (k & 1); q = 80 + 4 * (k & 3)
        for r, (a, b) in enumerate(pairs):
            e(f"v_accvgpr_read_b32 v{tb+2*r}, a{a}\nv_accvgpr_read_b32 v{tb+2*r+1}, a{b}")
        for r in range(4):
            if scale: e(f"v_pk_mul_f32 v[{tb+2*r}:{tb+2*r+1}], v[{tb+2*r}:{tb+2*r+1}], {scale}")
        for r in range(4): e(f"v_cvt_pk_bf16_f32 v{q+r}, v{tb+2*r}, v{tb+2*r+1}")
        return q
    e(f"s_lshl_b32 s82, s{sTile}, {RS_+2}\ns_mul_i32 s83, s78, {RHS:#x}\ns_add_u32 s82, s82, s83\ns_lshr_b32 s83, s{sHalf}, 1\ns_lshl_b32 s83, s83, {RS_+1}\ns_add_u32 s82, s82, s83")
    e(f"s_cmp_eq_u32 s{sType}, 1\ns_cbranch_scc1 L_epiV\ns_cmp_eq_u32 s{sType}, 2\ns_cbranch_scc1 L_epiF1")
    e(f"s_cmp_eq_u32 s{sType}, 3\ns_cbranch_scc1 L_epiF2\ns_cmp_eq_u32 s{sType}, 4\ns_cbranch_scc1 L_epiQ")
    for nm, base, fl in (("K", WS_K, F_KV), ("Q", WS_Q, F_REST)):
        e(f"L_epi{nm}:")
        if nm == "Q": e(f"s_mov_b32 s84, {CSCALE:#x}\ns_mov_b32 s85, {CSCALE:#x}\ns_lshr_b32 s82, s82, 1")
        for T in range(8):
            if T == 4 and nm == "K": e(f"s_cmp_eq_u32 s{sHalf}, 0\ns_cbranch_scc0 L_kvdone")
            e(f"s_add_u32 s83, s82, {base + (T>>1)*(SEGS if nm == 'K' else SEGS//2) + (T&1)*4096:#x}")
            for j in range(4):
                q = pack([(acc(2*j, T)+r, acc(2*j+1, T)+r) for r in range(4)], "s[84:85]" if nm == "Q" else None)
                e(f"buffer_store_dwordx4 {vr(q,4)}, v{vL16 if nm == 'Q' else 0}, {WS}, s83 offen offset:{j*1024} sc1")
        e(f"s_mov_b32 s83, {WS_FLAG+fl:#x}\ns_branch L_done")
    e("L_epiV:")
    for sg in range(4):
        if sg == 2: e(f"s_cmp_eq_u32 s{sHalf}, 0\ns_cbranch_scc0 L_kvdone")
        for t in range(8):
            if (t & 3) == 0: e(f"s_add_u32 s83, s82, {WS_V + sg*SEGS + (t>>2)*4096:#x}")
            a0, a1 = acc(t, 2*sg), acc(t, 2*sg+1)
            q = pack([(a0, a0+1), (a0+2, a0+3), (a1, a1+1), (a1+2, a1+3)])
            e(f"buffer_store_dwordx4 {vr(q,4)}, v{vL16}, {WS}, s83 offen offset:{(t&3)*1024} sc1")
    e(f"L_kvdone:\ns_mov_b32 s83, {WS_FLAG+F_KV:#x}\ns_branch L_done")
    e("L_epiF2:")
    e(f"s_sub_u32 s83, s{sPass}, 24\ns_lshl_b32 s83, s83, 21\ns_lshl_b32 s84, s{sTile}, 17\ns_add_u32 s83, s83, s84\ns_lshl_b32 s84, s{S_WAVE}, 12\ns_add_u32 s82, s83, s84")
    for T in range(8):
        e(f"s_add_u32 s83, s82, {WS_FP + T*16384:#x}")
        for r in range(4):
            q = pack([(acc(2*tp, T)+r, acc(2*tp+1, T)+r) for tp in range(4)])
            e(f"buffer_store_dwordx4 {vr(q,4)}, v{vL16}, {WS}, s83 offen offset:{r*1024} sc1")
    e(f"s_mov_b32 s83, {WS_FLAG+F_REST:#x}\ns_branch L_done")
    e("L_epiF1:")
    srd(48, P_B1, 3584)
    e(f"v_lshlrev_b32 v8, 6, v{vG}")
    for r in range(4): e(f"buffer_load_dwordx4 {vr(16+4*r,4)}, v8, {AUX}, s79 offen offset:{r*16}")
    e(f"s_sub_u32 s83, s{sPass}, 24\ns_lshl_b32 s83, s83, 19\ns_lshl_b32 s79, s{S_WAVE}, 8\ns_add_u32 s79, s79, s83")
    e(f"s_mov_b32 s{sType}, 3\ns_mov_b32 s44, s{P_W2}\ns_mov_b32 s45, s{P_W2+1}\ns_mov_b32 s46, {1792*1024}\ns_mov_b32 s47, 0x20000\ns_mov_b32 s{sRS}, 1024")
    e(f"s_cmp_eq_u32 s{sPass}, 27\ns_cselect_b32 s{sNB}, 2, 4")
    wsetup()
    e("s_waitcnt vmcnt(24)")
    for r in range(4):
        for d in range(4):
            e(f"v_lshlrev_b32 v{32+r*8+2*d}, 16, v{16+4*r+d}\nv_and_b32 v{33+r*8+2*d}, 0xffff0000, v{16+4*r+d}")
    e(f"s_lshl_b32 s80, s{S_WAVE}, 12\nv_add_u32 v{vA0}, s80, v{vL16}\nv_add_u32 v{vA1}, 0x10000, v{vA0}")
    e("s_barrier")
    k = 0
    for T in range(8):
        for tp in range(4):
            tb = 64 + 16 * (k & 1); q = 96 + 4 * (k & 1); k += 1
            for r in range(4):
                e(f"v_accvgpr_read_b32 v{tb+2*r}, a{acc(2*tp,T)+r}\nv_accvgpr_read_b32 v{tb+2*r+1}, a{acc(2*tp+1,T)+r}")
            for r in range(4):
                b = 32 + r * 8 + 2 * tp
                e(f"v_pk_add_f32 v[{tb+2*r}:{tb+2*r+1}], v[{tb+2*r}:{tb+2*r+1}], v[{b}:{b+1}]")
            for r in range(8): e(f"v_max_f32 v{tb+r}, 0, v{tb+r}")
            for r in range(4): e(f"v_pk_mul_f32 v[{tb+2*r}:{tb+2*r+1}], v[{tb+2*r}:{tb+2*r+1}], v[{tb+2*r}:{tb+2*r+1}]")
            for r in range(4): e(f"v_cvt_pk_bf16_f32 v{q+r}, v{tb+2*r}, v{tb+2*r+1}")
            e(f"ds_write_b128 v{vA0 if T < 4 else vA1}, {vr(q,4)} offset:{(T&3)*16384+tp*1024}")
    e("s_branch L_gemm")
    e("L_done:")
    e(f"s_lshl_b32 s84, s{sTile}, 6\ns_add_u32 s83, s83, s84")
    if OPT.get('tl2'):
        e(f"s_cmp_eq_u32 s{sRound}, 0\ns_cbranch_scc0 L_tld"); TL(11, 32); e("L_tld:")
    e("s_waitcnt vmcnt(0)\ns_barrier")
    if OPT.get('rb'):
        e(f"s_cmp_gt_u32 s{sType}, 1\ns_cbranch_scc1 L_rb_end\ns_lshl_b32 s85, s{sType}, 13\ns_add_u32 s85, s85, s82\ns_add_u32 s85, s85, {WS_K:#x}")
        for sg in range(4):
            for k in range(8):
                if k == 4: e("s_add_u32 s85, s85, 4096")
                e(f"buffer_load_dwordx4 {vr(64+4*k,4)}, v{vL16}, {WS}, s85 offen offset:{(k&3)*1024} sc1")
            e(f"s_add_u32 s85, s85, {SEGS-4096}")
        e("L_rb_end:")
    e(f"s_cmp_eq_u32 s{S_WAVE}, 0\ns_cbranch_scc0 L_done2")
    wait_flags_ready(2, 8)
    e(f"s_cmp_eq_u32 s{sHalf}, 0\ns_cselect_b32 s84, 2, 1\ns_mov_b64 exec, 1\nv_mov_b32 v8, s84\nbuffer_atomic_add v8, off, {WS}, s83\ns_mov_b64 exec, -1")
    e("L_done2:")
    if OPT.get('tl'):
        e(f"s_cmp_eq_u32 s{sRound}, 0\ns_cbranch_scc0 L_tl3"); TL(4, 32); e("L_tl3:")
    e(f"s_add_u32 s{sRound}, s{sRound}, 1\ns_cmp_lt_u32 s{sRound}, {OPT.get('rounds', 3)}\ns_cbranch_scc1 L_task\nL_g1_end:")
    if OPT['skip_g3']:
        e("s_waitcnt vmcnt(0)\ns_branch L_end")
        return
    sH, sSeg, sSH, sTq, sEh = 52, 53, 54, 55, 56
    TL(5, 32)
    OUT, B2 = "s[44:47]", "s[48:51]"
    WO = 128
    e(f"s_and_b32 s{sH}, s{S_IDX}, 31\ns_lshr_b32 s{sSeg}, s{S_IDX}, 5\ns_and_b32 s{sTq}, s{S_WAVE}, 1\ns_lshr_b32 s{sEh}, s{S_WAVE}, 1")
    e(f"v_lshlrev_b32 v8, 4, v{vC}\nv_lshrrev_b32 v9, 1, v{vG}\nv_lshl_add_u32 v8, v9, 19, v8\nv_and_b32 v9, 1, v{vG}\nv_lshl_add_u32 v8, v9, 17, v8")
    e(f"s_lshl_b32 s78, s{S_WAVE}, 14\ns_lshl_b32 s79, s{sH}, 8\ns_add_u32 s78, s78, s79\nv_add_u32 v8, s78, v8")
    e(f"s_lshl_b32 s78, s{S_WAVE}, 12\nv_add_u32 v9, s78, v{vL16}\nv_add_u32 v10, 0x10000, v9\ns_lshl_b32 s78, s{S_WAVE}, 15\nv_add_u32 v11, s78, v{vL16}")
    for mi, ptr in enumerate((P_WK, P_WV)):
        srd(44, ptr, 0x400000)
        for par in range(2):
            for j2 in range(8):
                for hb in range(2):
                    row = 256 * par + 128 * (j2 >> 2) + 32 * (j2 & 1) + 8 * ((j2 & 3) >> 1) + hb
                    e(f"s_mov_b32 s78, {row*8192:#x}\nbuffer_load_dwordx4 {vr(24+64*par+(j2*2+hb)*4,4)}, v8, s[44:47], s78 offen")
        e("s_waitcnt lgkmcnt(0)\ns_barrier")
        k = 0
        for par in range(2):
            e(f"s_waitcnt vmcnt({16*(1-par)})")
            raw = 24 + 64 * par
            for t in range(8):
                for hf in range(2):
                    q = 160 + 4 * (k % 3); k += 1
                    for jl in range(4):
                        j2 = hf * 4 + jl
                        e(f"v_perm_b32 v{q+jl}, v{raw+(j2*2+1)*4+(t>>1)}, v{raw+(j2*2)*4+(t>>1)}, s{sHi if t&1 else sLo}")
                    e(f"ds_write_b128 v{9 if t < 4 else 10}, {vr(q,4)} offset:{(t&3)*16384+par*2048+hf*1024}")
        e("s_waitcnt lgkmcnt(0)\ns_barrier")
        for f in range(32): e(f"ds_read_b128 {ar(128*mi+4*f,4)}, v11 offset:{f*1024}")
    srd(44, P_WO, 0x400000)
    e(f"v_lshlrev_b32 v8, 4, v{vC}\nv_lshl_add_u32 v8, v{vG}, 15, v8")
    e(f"s_lshl_b32 s78, s{sH}, 17\ns_lshl_b32 s79, s{S_WAVE}, 8\ns_add_u32 s78, s78, s79")
    for half in range(2):
        for jj in range(2):
            for i in range(8):
                row = 8 * (i >> 1) + (i & 1) + 2 * (2 * half + jj)
                e(f"s_add_u32 s79, s78, {row*1024}\nbuffer_load_dwordx4 {vr(24+32*jj+4*i,4)}, v8, s[44:47], s79 offen")
        for jj in range(2):
            e(f"s_waitcnt vmcnt({8*(1-jj)})")
            for t in range(8):
                for rp in range(4):
                    rb = 24 + 32 * jj
                    e(f"v_perm_b32 v{WO+((2*half+jj)*8+t)*4+rp}, v{rb+4*(2*rp+1)+(t>>1)}, v{rb+4*(2*rp)+(t>>1)}, s{sHi if t&1 else sLo}")
    srd(44, P_OUT, 2048 * 1024)
    srd(48, P_B2, 1024)
    sRo, sCo = 57, 58
    e(f"s_lshr_b32 s78, s{sH}, 2\ns_lshl_b32 s78, s78, 2\ns_add_u32 s78, s78, s{S_WAVE}\ns_lshl_b32 s78, s78, 10\ns_and_b32 s79, s{sH}, 3\ns_lshl_b32 s{sRo}, s79, 8\ns_add_u32 s{sRo}, s{sRo}, s78")
    e(f"s_lshr_b32 s78, s{sH}, 3\ns_lshl_b32 s{sCo}, s78, 8\ns_lshl_b32 s79, s79, 6\ns_add_u32 s{sCo}, s{sCo}, s79\ns_lshl_b32 s79, s{S_WAVE}, 4\ns_add_u32 s{sCo}, s{sCo}, s79")
    e(f"v_lshlrev_b32 v11, 4, v{vC}\nv_lshl_add_u32 v9, v{vG}, 15, v11\nv_lshl_add_u32 v10, v{vG}, 21, v11\nv_lshlrev_b32 v11, 10, v{vC}\nv_lshl_add_u32 v12, v{vG}, 3, v11")
    e(f"v_mov_b32 v13, {OOB:#x}\nv_cmp_eq_u32 vcc, 0, v{vG}\nv_cndmask_b32 v11, v13, v11, vcc\nv_cndmask_b32 v8, v13, 0, vcc\nv_cmp_gt_u32 vcc, 2, v{vG}\nv_cndmask_b32 v12, v13, v12, vcc")
    e(f"s_lshl_b32 s78, s{sTq}, 4\nv_lshlrev_b32 v13, 2, v{vG}\nv_sub_u32 v13, v{vC}, v13\nv_add_u32 v13, s78, v13")
    for d in range(4):
        e(f"v_mov_b32 v{16+d}, 0\nv_mov_b32 v14, 0x3f80\nv_cmp_eq_u32 vcc, {2*d}, v{vC}\nv_cndmask_b32 v{16+d}, v{16+d}, v14, vcc")
        e(f"v_mov_b32 v14, 0x3f800000\nv_cmp_eq_u32 vcc, {2*d+1}, v{vC}\nv_cndmask_b32 v{16+d}, v{16+d}, v14, vcc\nv_mov_b32 v{20+d}, 0x3f803f80")
    e(f"v_lshrrev_b32 v14, 2, v{vC}\nv_lshlrev_b32 v14, 7, v14\nv_lshl_add_u32 v14, v{vG}, 5, v14\nv_and_b32 v15, 3, v{vC}\nv_lshl_add_u32 v14, v15, 2, v14")
    e(f"v_and_b32 v15, 2, v{vC}\nv_mov_b32 v{vG}, 0x4444\nv_mov_b32 v{vC}, 0xeeee\nv_cmp_eq_u32 vcc, 0, v15\nv_cndmask_b32 v{vG}, v{vC}, v{vG}, vcc")
    e(f"s_lshl_b32 s78, s{S_WAVE}, 9\ns_add_u32 s78, s78, 16384\nv_add_u32 v{vC}, s78, v14\ns_lshl_b32 s78, s{S_WAVE}, 11\ns_add_u32 m0, s78, 8192")
    vIDX, vXW = vG, vC
    wait_flags_ready(3, 14)
    e(f"s_mov_b32 s59, {SENT:#x}\ns_mov_b32 s60, {INF:#x}\ns_mov_b32 s61, 0\ns_mov_b32 s62, {OOB:#x}\ns_lshl_b32 s65, s{sSeg}, 21\ns_add_u32 s65, s65, {WS_AP:#x}\ns_waitcnt lgkmcnt(0)\ns_barrier")
    SEL, ONES = "v[16:19]", "v[20:23]"
    mm = "v_mfma_f32_16x16x32_bf16"; m16 = "v_mfma_f32_16x16x16_bf16"
    e("L_g3:")
    e(f"s_lshl_b32 s{sSH}, s{sSeg}, 5\ns_add_u32 s{sSH}, s{sSH}, s{sH}")
    e(f"s_lshr_b32 s78, s{sSeg}, 2\nL_g3_rdy:\ns_bitcmp1_b32 s61, s78\ns_cbranch_scc1 L_g3_rdyok")
    e(f"s_mov_b32 s79, {WS_FLAG+F_KV:#x}\nv_lshlrev_b32 v14, 2, v{vL16}\nbuffer_load_dword v14, v14, {WS}, s79 offen sc1\ns_waitcnt vmcnt(0)")
    e("v_cmp_le_u32 vcc, 24, v14\ns_lshr_b32 s61, vcc_lo, 16\nv_cmp_le_u32 vcc, 32, v14\ns_and_b32 s61, s61, vcc_lo")
    fail_if_zero(4)
    e("s_sleep 2\ns_branch L_g3_rdy\nL_g3_rdyok:")
    e(f"s_mul_i32 s86, s{sH}, {RHS:#x}\ns_lshl_b32 s80, s{sSeg}, {RS_}\ns_add_u32 s86, s86, s80")
    e(f"s_mov_b32 s80, s86\ns_lshl_b32 s81, s{sTq}, 12\ns_lshr_b32 s82, s80, 1\ns_add_u32 s81, s81, s82\ns_add_u32 s81, s81, {WS_Q:#x}")
    for j in range(4): e(f"buffer_load_dwordx4 {vr(24+4*j,4)}, v{vL16}, {WS}, s81 offen offset:{j*1024} sc1")
    e(f"s_add_u32 s81, s80, {WS_K:#x}\ns_add_u32 s82, s80, {WS_K+4096:#x}")
    for kt in range(2):
        for j in range(4): e(f"buffer_load_dwordx4 {vr(40+16*kt+4*j,4)}, v0, {WS}, s{81+kt} offen offset:{j*1024} sc1")
    e(f"s_lshl_b32 s81, s{sEh}, 12\ns_add_u32 s81, s81, s80\ns_add_u32 s81, s81, {WS_V:#x}")
    for t in range(4): e(f"buffer_load_dwordx4 {vr(72+4*t,4)}, v{vL16}, {WS}, s81 offen offset:{t*1024} sc1")
    e(f"s_bfe_u32 s84, s{sH}, 0x10002\ns_lshl_b32 s83, s{sSeg}, 1\ns_add_u32 s83, s83, s84\ns_lshl_b32 s83, s83, 14")
    e(f"s_lshr_b32 s84, s{sH}, 3\ns_lshl_b32 s84, s84, 2\ns_add_u32 s84, s84, s{S_WAVE}\ns_lshl_b32 s84, s84, 10\ns_and_b32 s85, s{sH}, 3\ns_lshl_b32 s85, s85, 8\ns_add_u32 s85, s85, s84")
    e(f"s_add_u32 s85, s85, s83\ns_add_u32 s85, s85, {WS_FP:#x}\ns_add_u32 s83, s83, s{sCo}")
    e(f"buffer_load_dwordx4 v[88:91], v11, {X}, s83 offen\nbuffer_load_dwordx4 v[92:95], v8, {B2}, s{sCo} offen\nbuffer_load_dwordx4 v[96:99], v10, {WS}, s85 offen sc1")
    def reduce(code):
        e(f"L_rp{code}:\nv_lshrrev_b32 v14, 2, v{vL16}\nbuffer_load_dword v14, v14, {WS}, s62 offen sc1\ns_waitcnt vmcnt(0)\nv_cmp_eq_u32 vcc, 1, v14\ns_cmp_eq_u32 vcc_lo, -1\ns_cbranch_scc1 L_rp{code}_ok")
        fail_if_zero(code)
        e(f"s_branch L_rp{code}\nL_rp{code}_ok:")
        if OPT.get('tlg') and code == 17: TLV[0] = 15; TL(11, 32)
        for hf in range(2):
            for i in range(4): e(f"buffer_load_dwordx4 {vr(100+4*i,4)}, v9, {WS}, s64 offen sc1\ns_add_u32 s64, s64, 0x20000")
            for i in range(4): e(f"s_waitcnt vmcnt({3-i})\n{mm} v[2:5], {SEL}, {vr(100+4*i,4)}, v[2:5]")
        e("v_cvt_pk_bf16_f32 v14, v2, v3\nv_cvt_pk_bf16_f32 v15, v4, v5")
        e(f"buffer_store_dwordx2 v[14:15], v12, {OUT}, s63 offen")
    e(f"s_cmp_eq_u32 s62, {OOB:#x}\ns_cbranch_scc1 L_g3_first")
    reduce(7)
    e("L_g3_first:")
    e("s_waitcnt vmcnt(7)")
    for kt in range(2):
        for j in range(4):
            s = vr(108 + 4 * kt, 4)
            e(f"{mm} {s}, {vr(40+16*kt+4*j,4)}, {vr(24+4*j,4)}, {'0' if j == 0 else s}")
    e("s_waitcnt vmcnt(0)")
    e(f"{mm} v[2:5], {SEL}, v[88:91], 0\n{mm} v[2:5], {SEL}, v[92:95], v[2:5]\n{mm} v[2:5], {SEL}, v[96:99], v[2:5]")
    e(f"v_mov_b32 v15, {fbits(-3.0e38):#x}")
    for kt in range(2):
        for r in range(4):
            e(f"v_cmp_le_i32 vcc, {16*kt+r}, v13\nv_cndmask_b32 v{108+4*kt+r}, v15, v{108+4*kt+r}, vcc")
    e("v_max3_f32 v124, v108, v109, v110\nv_max3_f32 v125, v111, v112, v113\nv_max3_f32 v124, v124, v114, v115\nv_max_f32 v124, v124, v125")
    for i in range(8): e(f"v_mov_b64 v[{88+2*i}:{89+2*i}], 0")
    e(f"s_lshl_b32 s80, s{sSeg}, 13\ns_add_u32 s80, s80, {WS_MH:#x}\ns_sub_u32 s79, s80, 8192\ns_cmp_eq_u32 s{sSeg}, 0\ns_cbranch_scc1 L_g3_m")
    e(f"L_g3_pre:\nbuffer_load_dword v14, off, {WS}, s79 sc1\ns_waitcnt vmcnt(0)\nv_cmp_eq_u32 vcc, s59, v14\ns_cbranch_vccz L_g3_m")
    fail_if_zero(6)
    e("s_sleep 4\ns_branch L_g3_pre")
    e(f"L_g3_m:\ns_lshl_b32 s79, s{S_WAVE}, 11\ns_add_u32 s79, s79, s80")
    e(f"L_g3_mp:\nbuffer_load_dwordx4 v{vL16}, {WS}, s79 offen sc1 lds\nbuffer_load_dwordx4 v{vL16}, {WS}, s79 offen offset:1024 sc1 lds\ns_waitcnt vmcnt(0)\ns_barrier")
    for k in range(8): e(f"ds_read_b128 {vr(40+4*k,4)}, v{vL16} offset:{8192+k*1024}")
    e("s_waitcnt lgkmcnt(0)\nv_max3_i32 v14, v40, v41, v42")
    for k in range(43, 71, 2): e(f"v_max3_i32 v14, v14, v{k}, v{k+1}")
    e("v_max_i32 v14, v14, v71\nv_cmp_le_i32 vcc, s60, v14\ns_cbranch_vccnz L_g3_mslow\nL_g3_mok:")
    if OPT.get('tlg'): TLV[0] = 15; TL(8, 32)
    for mi in range(2):
        for tt in range(2):
            for sg in range(8):
                e(f"v_smfmac_f32_16x16x64_bf16 {vr(88+8*mi+4*tt,4)}, {vr(40+4*sg,4)}, {ar(128*mi+(tt*8+sg)*8,8)}, v{vIDX}")
                if (mi, tt, sg) == (1, 0, 3):
                    e("v_add_f32 v88, v88, v90\nv_add_f32 v89, v89, v91\nv_add_f32 v92, v92, v94\nv_add_f32 v93, v93, v95\nv_cvt_pk_bf16_f32 v88, v88, v92\nv_cvt_pk_bf16_f32 v89, v89, v93")
                    e(f"ds_write2_b32 v{vXW}, v88, v89 offset0:0 offset1:4")
    e(f"s_lshl_b32 s78, s{S_WAVE}, 9\nv_lshrrev_b32 v15, 1, v{vL16}\nv_add_u32 v14, s78, v15")
    e("v_add_f32 v96, v96, v98\nv_add_f32 v97, v97, v99\nv_add_f32 v100, v100, v102\nv_add_f32 v101, v101, v103\nv_cvt_pk_bf16_f32 v96, v96, v97\nv_cvt_pk_bf16_f32 v97, v100, v101")
    e(f"ds_write_b64 v14, v[96:97] offset:18432\ns_lshl_b32 s78, s{sEh}, 10\nv_add_u32 v15, s78, v15\nv_and_b32 v14, 0x1ff, v0\ns_waitcnt lgkmcnt(0)\ns_barrier")
    for j in range(4): e(f"ds_read_b128 {vr(88+4*j,4)}, v14 offset:{16384+j*512}")
    for jj in range(2): e(f"ds_read_b64 {vr(104+2*jj,2)}, v15 offset:{18432+jj*512}")
    for j in range(4):
        e(f"s_waitcnt lgkmcnt({5-j})\n{mm} v[116:119], {vr(88+4*j,4)}, {vr(24+4*j,4)}, {'0' if j == 0 else 'v[116:119]'}")
    e("v_mov_b32 v45, 0\nv_mov_b32 v46, 0")
    e("v_max3_f32 v124, v124, v116, v117")
    e("v_mov_b32 v125, v124\nv_permlane32_swap_b32 v124, v125\nv_max_f32 v124, v124, v125")
    e("v_mov_b32 v125, v124\nv_permlane16_swap_b32 v124, v125\nv_max_f32 v124, v124, v125")
    for r in range(10): e(f"v_sub_f32 v{108+r}, v{108+r}, v124")
    for r in range(10): e(f"v_exp_f32 v{108+r}, v{108+r}")
    for d in range(4): e(f"v_cvt_pk_bf16_f32 v{40+d}, v{108+2*d}, v{109+2*d}")
    e("v_cvt_pk_bf16_f32 v44, v116, v117\nv_cvt_pk_bf16_f32 v47, v116, v117")
    e("s_waitcnt lgkmcnt(0)")
    e(f"{mm} v[120:123], {ONES}, v[40:43], 0")
    for t in range(4): e(f"{mm} {vr(48+4*t,4)}, {vr(72+4*t,4)}, v[40:43], 0")
    e(f"{m16} v[120:123], v[20:21], v[44:45], v[120:123]")
    for t in range(4):
        o = vr(48 + 4 * t, 4)
        e(f"{m16} {o}, {vr(104+2*(t>>1),2)}, {'v[46:47]' if t&1 else 'v[44:45]'}, {o}")
    e("v_rcp_f32 v124, v120")
    for r in range(16): e(f"v_mul_f32 v{48+r}, v{48+r}, v124")
    e(f"s_lshl_b32 s78, s{sTq}, 12\ns_lshl_b32 s79, s{sEh}, 11\ns_add_u32 s78, s78, s79\nv_add_u32 v14, s78, v{vL16}")
    for jj in range(2):
        for r in range(4): e(f"v_cvt_pk_bf16_f32 v{64+4*jj+r}, v{48+8*jj+r}, v{52+8*jj+r}")
        e(f"ds_write_b128 v14, {vr(64+4*jj,4)} offset:{jj*1024}")
    e("s_waitcnt lgkmcnt(0)\ns_barrier")
    if OPT.get('tlg'): TLV[0] = 15; TL(9, 32)
    for q in range(8): e(f"ds_read_b128 {vr(24+4*q,4)}, v{vL16} offset:{q*1024}")
    e(f"s_lshl_b32 s80, s{sH}, 15\ns_lshl_b32 s81, s{S_WAVE}, 13\ns_add_u32 s80, s80, s81\ns_add_u32 s80, s80, s65\ns_add_u32 s81, s80, 4096")
    for tq in range(2):
        for j in range(4):
            e(f"s_waitcnt lgkmcnt({7-(tq*4+j)})")
            for t in range(8):
                a = vr(56 + (tq * 8 + t) * 4, 4)
                e(f"{mm} {a}, {vr(WO+(j*8+t)*4,4)}, {vr(24+(tq*4+j)*4,4)}, {'0' if j == 0 else a}")
    e(f"s_lshl_b32 s62, s{sSeg}, 7\ns_add_u32 s62, s62, {WS_FLAG+F_G3:#x}\ns_lshl_b32 s78, s{sH}, 2\ns_add_u32 s78, s78, s62\ns_cmp_eq_u32 s{S_WAVE}, 0\ns_cselect_b32 s78, s78, {OOB:#x}")
    e(f"s_mov_b32 s63, s83\ns_add_u32 s64, s65, s{sRo}\ns_xor_b32 s65, s65, 0x100000\ns_cmp_eq_u32 s{S_MIX}, 0\ns_cbranch_scc0 L_g3_stx")
    for fl in ("", "sc1"):
        if fl: e("L_g3_stx:")
        for tq in range(2):
            for r in range(4):
                q = 120 + 4 * (r & 1)
                for tp in range(4):
                    e(f"v_cvt_pk_bf16_f32 v{q+tp}, v{56+(tq*8+2*tp)*4+r}, v{56+(tq*8+2*tp+1)*4+r}")
                e(f"buffer_store_dwordx4 {vr(q,4)}, v{vL16}, {WS}, s{80+tq} offen offset:{r*1024} {fl}")
        e("v_mov_b32 v14, 1\ns_waitcnt vmcnt(0)\ns_barrier")
        if OPT.get('tlg'): TLV[0] = 15; TL(10, 32)
        e(f"buffer_store_dword v14, off, {WS}, s78 {fl}")
        if not fl: e("s_branch L_g3_ste")
    e("L_g3_ste:")
    if OPT.get('tl'):
        e(f"s_cmp_lt_u32 s{sSeg}, 7\ns_cbranch_scc0 L_tl4"); TLV[0] = 124; TL(6, 32); e("L_tl4:")
    e(f"s_add_u32 s{sSeg}, s{sSeg}, 7\ns_cmp_lt_u32 s{sSeg}, 64\ns_cbranch_scc1 L_g3")
    reduce(17)
    TL(7, 32)
    e("s_waitcnt vmcnt(0)\ns_branch L_end")
    e("L_g3_mslow:")
    for k in range(40, 72): e(f"v_cmp_eq_u32 vcc, s59, v{k}\ns_cbranch_vccnz L_g3_mre")
    e("s_branch L_g3_mok\nL_g3_mre:")
    fail_if_zero(9)
    e("s_barrier\ns_branch L_g3_mp")
```

```python
import sys, math, struct
from asmlib import Asm

NAME = "parallel_sum__memory_aug_recurrent_mem_tr__dense_activation_squared_relu__prompt"
OPT = dict(stamps=False, skip_chain=False, skip_g3=False, force_fallback=False, force_mixed=False,
           top1=1, gp2=99, nb2=4, dA=[10, 40, 64, 80], dB=[50, 36, 0, 0], nsw=[2, 2, 1, 1], dC=24, q0=34, qr=4, kp=0, ex=4, pfs=4, fd=3, wb=0, thr=2, thrh=1, rk=0, fo=0, wo1=1)
for a in sys.argv[2:]:
    k, v = a.split('='); OPT[k] = eval(v)

WS_M = 0x0
WS_P = 0x100000
PRING = 0x42000
HS = 8192 + 128
WS_FLAG = 0x40000
F_KV, F_REST, F_G3 = 0, 1024, 8192
WS_STAMP = 0x50000
WS_MH = 0x400000
WS_K, WS_V, WS_Q = 0x1000000, 0x1002000, 0x3000000
RHS, RS_ = 0x4000, 19
SEGS = 1 << RS_
WS_FP = 0x5800000
WS_AP = 0x6000000
WS_SIZE = 0x10000000
OOB = 0x80000000
SENT = 0x7F817F81
INF = 0x7F800000
CSCALE = struct.unpack('<I', struct.pack('<f', (128 ** -0.5) * math.log2(math.e)))[0]
POLLMAX = 1 << 18
def fbits(x): return struct.unpack('<I', struct.pack('<f', x))[0]

e = Asm()
def srd(base, ptr, size):
    e(f"s_mov_b32 s{base}, s{ptr}\ns_mov_b32 s{base+1}, s{ptr+1}\ns_mov_b32 s{base+2}, {size:#x}\ns_mov_b32 s{base+3}, 0x20000")
def vr(a, n): return f"v[{a}:{a+n-1}]" if n > 1 else f"v{a}"
def ar(a, n): return f"a[{a}:{a+n-1}]" if n > 1 else f"a{a}"

P_X, P_MEM0, P_WQ, P_WK, P_WV, P_WO = 4, 6, 8, 10, 12, 14
P_W1, P_B1, P_W2, P_B2, P_OUT, P_DBG, P_WS = 20, 22, 24, 26, 28, 30, 32
S_WAVE, S_IDX = 34, 35
WS = "s[36:39]"
S_TMO = 100
S_ERR = 101
S_MIX = 18
S_GT, S_OK = 16, 17

def fail_if_zero(code):
    e(f"s_sub_u32 s{S_TMO}, s{S_TMO}, 1\ns_mov_b32 s{S_ERR}, {code}\ns_cbranch_scc1 L_fail")

e("s_cmp_ge_u32 s2, 256\ns_cbranch_scc1 L_end")
e("s_load_dwordx16 s[4:19], s[0:1], 0\ns_load_dwordx8 s[20:27], s[0:1], 64\ns_load_dwordx4 s[28:31], s[0:1], 96\ns_load_dwordx2 s[32:33], s[0:1], 112")
e("s_getreg_b32 s3, hwreg(HW_REG_XCC_ID, 0, 3)")
if OPT.get("tl"): e("s_memrealtime s[94:95]")
e(f"v_lshrrev_b32 v1, 6, v0\nv_and_b32 v0, 63, v0\nv_readfirstlane_b32 s{S_WAVE}, v1")
e(f"s_mov_b32 s{S_TMO}, {POLLMAX}\ns_mov_b32 s{S_ERR}, 0")
e("s_waitcnt lgkmcnt(0)")
srd(36, P_WS, WS_SIZE)
e(f"s_cmp_eq_u32 s{S_WAVE}, 0\ns_cbranch_scc0 L_role_wait")
e("s_mov_b64 exec, 1")
DIE_OFF = [4 * (16 * (1 + (x - 1) % 3 if x else 0) + 8 + ((x - 1) // 3 if x else 0)) for x in range(8)]
pk = sum((o // 4) << (8 * x) for x, o in enumerate(DIE_OFF))
e(f"s_mov_b32 s40, {pk & 0xffffffff:#x}\ns_mov_b32 s41, {pk >> 32:#x}\ns_lshl_b32 s42, s3, 3\ns_lshr_b64 s[40:41], s[40:41], s42\ns_and_b32 s40, s40, 0xff\ns_lshl_b32 s40, s40, 2")
e(f"v_mov_b32 v1, s40\nv_mov_b32 v2, 1\nglobal_atomic_add v4, v1, v2, s[{P_DBG}:{P_DBG+1}] sc0\nv_mov_b32 v1, 0")
e("s_waitcnt vmcnt(0)\nds_write_b32 v1, v4\ns_waitcnt lgkmcnt(0)\ns_mov_b64 exec, -1")
e("L_role_wait:")
e("s_barrier\nv_mov_b32 v1, 0\nds_read_b32 v4, v1\ns_waitcnt lgkmcnt(0)\nv_readfirstlane_b32 s40, v4\ns_barrier")
e(f"s_mov_b32 s{S_GT}, s40\ns_and_b32 s40, s40, 31\ns_mov_b32 s{S_OK}, 0\ns_mov_b32 s{S_MIX}, 0")
e(f"s_mov_b32 s{S_IDX}, s40\ns_cmp_eq_u32 s3, 0\ns_cbranch_scc1 L_chain0")
e(f"s_sub_u32 s41, s3, 1\ns_lshl_b32 s41, s41, 5\ns_add_u32 s{S_IDX}, s40, s41\ns_branch L_worker")
e("L_role_mixed:")
e(f"s_waitcnt vmcnt(0) lgkmcnt(0)\ns_barrier\nv_mbcnt_lo_u32_b32 v0, -1, 0\nv_mbcnt_hi_u32_b32 v0, -1, v0\ns_mov_b32 s{S_OK}, 1\ns_mov_b32 s{S_MIX}, 1")
for x in range(7):
    e(f"v_readlane_b32 s40, v1, {DIE_OFF[x]//4}\ns_cmp_gt_u32 s3, {x}\ns_cselect_b32 s40, s40, 0\ns_add_u32 s{S_GT}, s{S_GT}, s40")
if OPT['force_mixed']: e(f"s_mul_i32 s{S_GT}, s{S_GT}, 37\ns_and_b32 s{S_GT}, s{S_GT}, 255")
e(f"s_mov_b32 s{S_IDX}, s{S_GT}\ns_cmp_lt_u32 s{S_GT}, 32\ns_cbranch_scc1 L_chain1")
e(f"s_sub_u32 s{S_IDX}, s{S_GT}, 32\ns_branch L_worker")

def confirm_issue(dst, t):
    e(f"v_mbcnt_lo_u32_b32 v{t}, -1, 0\nv_mbcnt_hi_u32_b32 v{t}, -1, v{t}\nv_lshlrev_b32 v{t}, 2, v{t}\nglobal_load_dword {dst}, v{t}, s[{P_DBG}:{P_DBG+1}] sc1")
def confirm_check(code, r, t):
    msk = sum(1 << (o // 4) for o in DIE_OFF)
    e(f"s_cmp_eq_u32 s{S_OK}, 1\ns_cbranch_scc1 L_cf{code}_ok")
    e(f"L_cf{code}:\ns_mov_b32 s96, 0")
    for x in range(8): e(f"v_readlane_b32 s97, v{r}, {DIE_OFF[x]//4}\ns_add_u32 s96, s96, s97")
    e(f"s_cmp_eq_u32 s96, 0x100\ns_cbranch_scc1 L_cf{code}_all")
    fail_if_zero(code)
    confirm_issue(f"v{r}", t)
    e(f"s_waitcnt vmcnt(0)\ns_branch L_cf{code}")
    e(f"L_cf{code}_all:\nv_cmp_eq_u32 vcc, {33 if OPT['force_mixed'] else 32}, v{r}\ns_and_b32 s96, vcc_lo, {msk & 0xffffffff:#x}\ns_and_b32 s97, vcc_hi, {msk >> 32:#x}")
    e(f"s_xor_b32 s96, s96, {msk & 0xffffffff:#x}\ns_xor_b32 s97, s97, {msk >> 32:#x}\ns_or_b32 s96, s96, s97\ns_cmp_eq_u32 s96, 0\ns_cbranch_scc1 L_cf{code}_std")
    e(f"v_mov_b32 v1, v{r}\ns_branch L_role_mixed\nL_cf{code}_std:")
    e(f"s_mov_b32 s{S_OK}, 1\nL_cf{code}_ok:")

def wait_flags_ready(code, tmp):
    e(f"L_fr{code}:")
    e(f"v_mov_b32 v{tmp}, 0\nglobal_load_dword v{tmp}, v{tmp}, s[{P_DBG}:{P_DBG+1}] offset:8 sc1\ns_waitcnt vmcnt(0)")
    e(f"v_cmp_eq_u32 vcc, 32, v{tmp}\ns_cbranch_vccnz L_fr{code}_ok")
    fail_if_zero(code)
    e(f"s_sleep 2\ns_branch L_fr{code}\nL_fr{code}_ok:")

def poll_ge(code, soff, val, tmp, sleep=2):
    e(f"L_pg{code}:")
    e(f"buffer_load_dword v{tmp}, off, {WS}, {soff} sc1\ns_waitcnt vmcnt(0)")
    e(f"v_cmp_le_u32 vcc, {val}, v{tmp}\ns_cbranch_vccnz L_pg{code}_ok")
    fail_if_zero(code)
    if sleep: e(f"s_sleep {sleep}")
    e(f"s_branch L_pg{code}\nL_pg{code}_ok:")

def TL(k, base):
    if not OPT.get('tl'): return
    e(f"s_memrealtime s[98:99]\ns_lshl_b32 s97, s{S_IDX}, 6\ns_add_u32 s97, s97, {WS_STAMP + 0x8000 + base*64 + 4*k:#x}\ns_waitcnt lgkmcnt(0)")
    e(f"v_mov_b32 v255, s98\nbuffer_store_dword v255, off, {WS}, s97".replace('v255', 'v%d' % TLV[0]))
TLV = [15]
import worker, chain
worker.emit(globals())
chain.emit(globals(), 0)
chain.emit(globals(), 1)

e("L_fail:")
e(f"s_mov_b64 exec, 1\nv_mov_b32 v0, s{S_ERR}\nv_mov_b32 v1, 0\nglobal_store_dword v1, v0, s[{P_DBG}:{P_DBG+1}] offset:16")
e(f"v_mov_b32 v0, s{S_IDX}\nglobal_store_dword v1, v0, s[{P_DBG}:{P_DBG+1}] offset:20\ns_waitcnt vmcnt(0)")
e("L_end:")

body = e.finish(verbose=OPT.get('v', False))
ref = open(f"cdna_kernels/{NAME}.s.ref").read().split('\n')
head = [l for l in ref if l.startswith(';') and '@launch' not in l]
out = '\n'.join(head) + "\n; @launch grid=(256,1,1) block=(256,1,1) lds=163840\n"
out += f""".amdgcn_target "amdgcn-amd-amdhsa--gfx950"
.text
.globl {NAME}_kernel
.p2align 8
.type {NAME}_kernel,@function
{NAME}_kernel:
{body}
    s_endpgm
.section .rodata,"a"
.p2align 6
.amdhsa_kernel {NAME}_kernel
  .amdhsa_next_free_vgpr 512
  .amdhsa_next_free_sgpr 102
  .amdhsa_accum_offset 256
  .amdhsa_group_segment_fixed_size 0
  .amdhsa_kernarg_size 120
  .amdhsa_user_sgpr_count 2
  .amdhsa_user_sgpr_kernarg_segment_ptr 1
  .amdhsa_system_sgpr_workgroup_id_x 1
.end_amdhsa_kernel
"""
open(sys.argv[1], 'w').write(out)
```

```python
def emit(G, mode):
    globals().update(G)
    ST = "sc1" if mode else ""
    Ln = lambda s: f"L_c{mode}_{s}"
    W = "s[40:43]"
    WSTR = 36864
    L_M = 0; L_X = L_M + 8192; L_P = L_X + 4096 + 512; L_O = L_P + 1024; L_W = 16384
    assert L_O + 2048 <= L_W
    M = 0
    AQ0, AQ1, AK0, AK1, AV0, AV1 = 32, 36, 40, 44, 48, 52
    VW = 56; KT = 88; VT = 104; QF = 112
    JUNK = 128
    vIDX, vP8, vSP2, vVW, vXW, vQR, vKR, vPR, vOW, vL16, vRL, vMS, vSEL = range(131, 144)
    vW16 = 18
    WOB = 144
    sStep, sMc, sMn, sMp, sPc, sPp, sSK, sSV, sPF, sMH, sMHp, sFl, sKv = range(44, 57)
    sRd = list(range(57, 65))
    sSENT, sONE, sMLO = 66, 68, 70
    sC, sInf, sLlo, sLrg, sW1k, sLo, sHi, sPW = range(72, 80)
    sT = 80
    sPn, sDl, sRdR, sRdW, sRedo, sOOB, sFlC, sTag = sPW, 95, 65, 90, 91, 88, 89, 87
    WS_RDY = WS_M + 0x8000
    lds_slot = {}
    nb1, nb2 = OPT.get('nb1', 0), OPT.get('nb2', 0)
    vq = [('v', tt, sg) for sg in range(4) for tt in range(2)] + [('v', tt, sg) for tt in range(2) for sg in range(4, 8)]
    qk = lambda sg: [('q', 0, sg), ('q', 1, sg), ('k', 0, sg), ('k', 1, sg)]
    fr = qk(0) + qk(1) + vq[:nb1] + qk(2) + qk(3) + vq[nb1:nb1 + nb2] + [(mt, tt, sg) for mt in 'qk' for tt in range(2) for sg in range(4, 8)]
    vrest = vq[nb1 + nb2:]
    step_ = (len(fr) - 1 - 9) / 7.0
    order = [fr[g] for g in (0, 2, 4, 6)] + [fr[9 + int(round(k * step_))] for k in range(8)]
    order += [('o', 2, 1), ('o', 3, 1), ('o', 4, 1), ('o', 5, 1), ('o', 6, 1), ('o', 7, 1)]
    for i, f in enumerate(order): lds_slot[f] = i
    NQ = 12
    reg = {}
    n = 0
    for mt in 'qkv':
        for tt in range(2):
            for sg in range(8):
                if (mt, tt, sg) not in lds_slot:
                    reg[(mt, tt, sg)] = ('a', 8 * n) if n < 32 else ('v', 224 + 8 * (n - 32)); n += 1
    assert n == 36
    n = 0
    for t in range(8):
        for k in range(2):
            if ('o', t, k) not in lds_slot: reg[('o', t, k)] = ('v', WOB + 8 * n); n += 1
    assert n == 10
    rr = lambda f, o, n: (ar if reg[f][0] == 'a' else vr)(reg[f][1] + o, n)

    e(f"L_chain{mode}:")
    if OPT['skip_chain']:
        e("s_branch L_end"); return
    h = S_IDX; w = S_WAVE
    TLV[0] = 15
    TL(1, 0)
    if OPT.get('tl'): e(f"v_mov_b32 v15, s94\ns_sub_u32 s97, s97, 4\nbuffer_store_dword v15, off, {WS}, s97")
    e(f"v_lshrrev_b32 v1, 4, v0\nv_and_b32 v2, 15, v0")
    e(f"v_lshlrev_b32 v{vL16}, 4, v0")
    e(f"s_lshl_b32 s{sT}, s{w}, 11\nv_add_u32 v{vW16}, s{sT}, v{vL16}")
    e(f"s_lshl_b32 s{sT}, s{w}, 9\nv_lshlrev_b32 v{vP8}, 3, v0\nv_add_u32 v{vP8}, s{sT}, v{vP8}")
    e(f"s_mul_i32 s{sT}, s{w}, {WSTR}\ns_add_u32 s{sT}, s{sT}, {L_W}\nv_add_u32 v{vVW}, s{sT}, v{vL16}")
    e(f"v_mov_b32 v{vIDX}, 0x4444\nv_mov_b32 v3, 0xeeee\nv_and_b32 v4, 2, v2\nv_cmp_eq_u32 vcc, 0, v4\nv_cndmask_b32 v{vIDX}, v3, v{vIDX}, vcc")
    e(f"s_lshl_b32 s{sW1k}, s{w}, 10\nv_lshrrev_b32 v3, 2, v2\nv_lshlrev_b32 v3, 7, v3\nv_lshl_add_u32 v3, v1, 5, v3\nv_and_b32 v4, 3, v2\nv_lshl_add_u32 v3, v4, 2, v3")
    e(f"v_bfe_u32 v4, v2, 2, 1\nv_lshlrev_b32 v4, 6, v4\nv_xor_b32 v3, v3, v4\nv_add_u32 v3, s{sW1k}, v3\nv_add_u32 v{vXW}, {L_X}, v3")
    e(f"v_and_b32 v4, 7, v2\nv_lshlrev_b32 v4, 4, v4\nv_lshl_add_u32 v{vQR}, v1, 7, v4")
    e(f"v_lshrrev_b32 v3, 2, v2\nv_and_b32 v4, 1, v2\nv_lshl_add_u32 v3, v3, 1, v4\nv_lshlrev_b32 v3, 4, v3\nv_lshl_add_u32 v{vKR}, v1, 7, v3")
    e(f"v_and_b32 v4, 1, v1\nv_lshlrev_b32 v4, 6, v4\nv_xor_b32 v{vQR}, v{vQR}, v4\nv_xor_b32 v{vKR}, v{vKR}, v4")
    e(f"v_lshrrev_b32 v5, 3, v2\nv_lshl_add_u32 v{vPR}, v5, 9, v{vQR}")
    e(f"v_and_b32 v3, 6, v2\nv_lshlrev_b32 v3, 1, v3\nv_and_b32 v4, 1, v2\nv_add_u32 v3, v3, v4\nv_lshl_add_u32 v3, v1, 4, v3\nv_lshlrev_b32 v3, 4, v3\nv_lshl_add_u32 v3, v5, 3, v3")
    e(f"s_lshr_b32 s{sT}, s{w}, 1\ns_lshl_b32 s{sT}, s{sT}, 10\ns_and_b32 s{sT+1}, s{w}, 1\ns_lshl_b32 s{sT+1}, s{sT+1}, 5\ns_add_u32 s{sT}, s{sT}, s{sT+1}\nv_add_u32 v{vOW}, s{sT}, v3")
    e(f"s_lshl_b32 s{sT}, s{w}, 11\ns_lshl_b32 s{sT+1}, s{h}, 6\ns_add_u32 s{sT}, s{sT}, s{sT+1}")
    e(f"v_mul_u32_u24 v3, {HS}, v1\nv_lshl_add_u32 v3, v2, 2, v3\nv_add_u32 v{vRL}, s{sT}, v3")
    sWp, sGp, sHc = sT + 2, sT + 3, sT + 4
    e(f"s_lshr_b32 s{sWp}, s{h}, 3\ns_bfe_u32 s{sGp}, s{h}, 0x20001\ns_and_b32 s{sHc}, s{h}, 1")
    e(f"s_lshl_b32 s{sT}, s{sWp}, 9\ns_lshl_b32 s{sT+1}, s{sHc}, 8\ns_add_u32 s{sT}, s{sT}, s{sT+1}\ns_lshl_b32 s{sT+1}, s{sGp}, 6\ns_add_u32 s{sT}, s{sT}, s{sT+1}")
    e(f"v_and_b32 v3, 1, v2\nv_lshrrev_b32 v4, 1, v2\nv_lshrrev_b32 v6, 3, v2\nv_lshl_add_u32 v6, v6, 1, v3\nv_lshlrev_b32 v6, 4, v6\nv_and_b32 v8, 3, v4\nv_lshl_add_u32 v6, v8, 2, v6\nv_add_u32 v6, s{sT}, v6")
    e(f"v_mov_b32 v7, {OOB:#x}\nv_cmp_eq_u32 vcc, 0, v1\nv_cndmask_b32 v{vMS}, v7, v6, vcc")
    e(f"v_lshlrev_b32 v6, 10, v3\nv_lshl_add_u32 v6, v4, 4, v6")
    e(f"s_lshl_b32 s{sT}, s{sGp}, 11\ns_lshl_b32 s{sT+1}, s{sWp}, 8\ns_add_u32 s{sT}, s{sT}, s{sT+1}\ns_lshl_b32 s{sT+1}, s{sHc}, 7\ns_add_u32 s{sT}, s{sT}, s{sT+1}\ns_lshl_b32 s{sT+1}, s{w}, 2\ns_add_u32 s{sT}, s{sT}, s{sT+1}")
    srd(40, P_MEM0, 8192)
    e(f"buffer_load_dword v9, v6, {W}, s{sT} offen")
    e(f"v_mov_b32 v{vSEL}, 0\nv_mov_b32 v3, 0x3f80\nv_cmp_eq_u32 vcc, 0, v2\nv_cndmask_b32 v{vSEL}, v{vSEL}, v3, vcc\nv_mov_b32 v3, 0x3f800000\nv_cmp_eq_u32 vcc, 1, v2\nv_cndmask_b32 v{vSEL}, v{vSEL}, v3, vcc")
    e(f"s_mov_b32 s{sStep}, 0\ns_lshl_b32 s{sMc}, s{w}, 11\ns_add_u32 s{sMc}, s{sMc}, {WS_M}\ns_add_u32 s{sMn}, s{sMc}, 8192\ns_add_u32 s{sMp}, s{sMc}, 16384")
    e(f"s_mul_i32 s{sPc}, s{h}, {HS}\ns_add_u32 s{sPc}, s{sPc}, {WS_P:#x}\ns_add_u32 s{sPn}, s{sPc}, {PRING:#x}\ns_add_u32 s{sPp}, s{sPn}, {PRING:#x}")
    for i in range(8): e(f"s_mov_b32 s{sRd[i]}, {WS_P + i*4*HS:#x}")
    e(f"s_mul_i32 s{sT}, s{h}, {RHS:#x}\ns_lshr_b32 s{sT+1}, s{w}, 1\ns_lshl_b32 s{sT+1}, s{sT+1}, 12\ns_add_u32 s{sSK}, s{sT}, s{sT+1}\ns_and_b32 s{sT+1}, s{w}, 1\ns_lshl_b32 s{sT+1}, s{sT+1}, 9\ns_add_u32 s{sSK}, s{sSK}, s{sT+1}\ns_add_u32 s{sSK}, s{sSK}, {WS_K:#x}")
    e(f"s_lshl_b32 s{sT+1}, s{w}, 11\ns_add_u32 s{sSV}, s{sT}, s{sT+1}\ns_add_u32 s{sSV}, s{sSV}, {WS_V:#x}")
    e(f"s_lshl_b32 s{sT+1}, s{w}, 12\ns_add_u32 s{sPF}, s{sT}, s{sT+1}\ns_add_u32 s{sPF}, s{sPF}, {WS_K:#x}")
    e(f"s_add_u32 s{sMH}, s{sMc}, {WS_MH - WS_M:#x}\ns_lshl_b32 s{sRdR}, s{w}, 7\ns_add_u32 s{sRdR}, s{sRdR}, {WS_RDY:#x}\ns_lshl_b32 s{sRdW}, s{h}, 2\ns_add_u32 s{sRdW}, s{sRdW}, s{sRdR}")
    e(f"s_mov_b32 s{sSENT}, {SENT:#x}\ns_mov_b32 s{sSENT+1}, {SENT:#x}\ns_mov_b32 s{sONE}, 0x3f803f80\ns_mov_b32 s{sONE+1}, 0x3f803f80")
    e(f"s_mov_b32 s{sMLO}, 0x00ff00ff\ns_mov_b32 s{sMLO+1}, 0x00ff00ff\ns_mov_b32 s{sC}, {CSCALE:#x}\ns_mov_b32 s{sInf}, {INF:#x}")
    LLO, LHI = fbits(2.0 ** -60), fbits(2.0 ** 60)
    e(f"s_mov_b32 s{sLlo}, {LLO:#x}\ns_mov_b32 s{sLrg}, {(0 if OPT['force_fallback'] else LHI-LLO):#x}\ns_mov_b32 s{sLo}, 0x05040100\ns_mov_b32 s{sHi}, 0x07060302")
    vWA, vTS, vAD = 10, 11, 16
    e(f"v_lshlrev_b32 v3, 4, v2")
    e(f"v_lshrrev_b32 v4, 1, v1\nv_lshl_add_u32 v3, v4, 19, v3\nv_and_b32 v4, 1, v1\nv_lshl_add_u32 v3, v4, 17, v3")
    e(f"s_lshl_b32 s{sT}, s{w}, 14\ns_lshl_b32 s{sT+1}, s{h}, 8\ns_add_u32 s{sT}, s{sT}, s{sT+1}\nv_add_u32 v{vWA}, s{sT}, v3")
    e(f"s_lshl_b32 s{sT}, s{w}, 12\ns_add_u32 s{sT}, s{sT}, {L_M}\nv_add_u32 v{vTS}, s{sT}, v{vL16}")
    e(f"s_lshl_b32 s{sT+8}, s{w}, 3")
    RAW = [20, 144]
    TQ = [84, 88, 92]
    rounds = [('v', 0), ('v', 1), ('q', 1), ('k', 1), ('q', 0), ('k', 0)]
    ptr = {'q': P_WQ, 'k': P_WK, 'v': P_WV}
    def qkv_loads(ri):
        mt, par = rounds[ri]
        srd(40, ptr[mt], 0x400000)
        for j2 in range(8):
            for hb in range(2):
                row = 256 * par + 128 * (j2 >> 2) + 32 * (j2 & 1) + 8 * ((j2 & 3) >> 1) + hb
                e(f"s_mov_b32 s{sT}, {row*8192:#x}\nbuffer_load_dwordx4 {vr(RAW[ri&1]+(j2*2+hb)*4,4)}, v{vWA}, {W}, s{sT} offen")
    placed = set(); plan = []
    for ri, (mt, par) in enumerate(rounds):
        fs = [(mt, tt, sg) for tt in range(2) for sg in range(par, 8, 2)]
        for f in fs:
            if f in lds_slot: placed.add(lds_slot[f])
        free = [s for s in range(19, -1, -1) if s not in placed]
        loc = {}
        for f in fs:
            loc[f] = lds_slot[f] if f in lds_slot else free.pop(0)
        plan.append(loc)
    absslot = lambda wd, s: (8 + wd * 18 + s) if s < 18 else (wd * 2 + s - 18)
    vWO = 17
    e(f"v_lshrrev_b32 v3, 1, v1\nv_lshlrev_b32 v3, 5, v3\nv_and_b32 v4, 1, v1\nv_add_u32 v3, v3, v4\nv_lshlrev_b32 v3, 10, v3\nv_lshl_add_u32 v3, v2, 4, v3")
    e(f"s_lshl_b32 s{sT}, s{h}, 17\ns_lshl_b32 s{sT+1}, s{w}, 8\ns_add_u32 s{sT}, s{sT}, s{sT+1}\nv_add_u32 v{vWO}, s{sT}, v3")
    WRAW = [20, 52, 96]
    def wo_loads(gi):
        kap, hf = gi >> 1, gi & 1
        for jl in range(4):
            for hb in range(2):
                row = 64 * hf + 16 * (jl >> 1) + 8 * hb + 4 * kap + 2 * (jl & 1)
                e(f"s_mov_b32 s{sT}, {row*1024:#x}\nbuffer_load_dwordx4 {vr(WRAW[gi%3]+(jl*2+hb)*4,4)}, v{vWO}, {W}, s{sT} offen")
    def init_handoff():
        e(f"v_mov_b64 v[12:13], s[{sSENT}:{sSENT+1}]\nv_mov_b64 v[14:15], s[{sSENT}:{sSENT+1}]")
        for s in (sPc, sPn, sPp):
            for o in (0, 1024): e(f"buffer_store_dwordx4 v[12:15], v{vW16}, {WS}, s{s} offen offset:{o} {ST}")
        e(f"buffer_store_dword v12, v{vMS}, {WS}, s{sMn} offen {ST}\nbuffer_store_dword v12, v{vMS}, {WS}, s{sMp} offen {ST}")
        e(f"buffer_store_dword v9, v{vMS}, {WS}, s{sMc} offen {ST}\ns_mov_b32 s{sMHp}, {OOB:#x}\nv_mov_b32 v8, 0\nbuffer_store_dword v8, off, {WS}, s{sRdW} {ST}")
    def arrive():
        e(f"s_cmp_eq_u32 s{w}, 0\ns_cbranch_scc0 {Ln('na')}")
        e(f"s_mov_b64 exec, 1\nv_mov_b32 v3, 0\nv_mov_b32 v4, 1\nglobal_atomic_add v3, v4, s[{P_DBG}:{P_DBG+1}] offset:12\ns_mov_b64 exec, -1")
        e(f"{Ln('na')}:")
    qkv_loads(0)
    confirm_issue('v6', 8)
    tq = 0
    for ri, (mt, par) in enumerate(rounds):
        if ri + 1 < 6:
            qkv_loads(ri + 1); e("s_waitcnt vmcnt(16)")
        else:
            srd(40, P_WO, 0x400000); wo_loads(0); wo_loads(1); e("s_waitcnt vmcnt(16)")
        if ri == 0:
            confirm_check(40 + mode, 6, 8); init_handoff()
        if ri: e("s_waitcnt lgkmcnt(0)\ns_barrier")
        if ri == 2: arrive()
        raw = RAW[ri & 1]
        for t in range(8):
            wd, tt = t >> 1, t & 1
            const = 0
            for wl in range(4):
                sg = 2 * wl + par
                const |= absslot(wd, plan[ri][(mt, tt, sg)]) << (8 * wl)
            e(f"s_lshr_b32 s{sT}, {const:#x}, s{sT+8}\ns_and_b32 s{sT}, s{sT}, 0xff\ns_lshl_b32 s{sT}, s{sT}, 11\nv_add_u32 v{vAD}, s{sT}, v{vL16}")
            for hf in range(2):
                q = TQ[tq % 3]; tq += 1
                for jl in range(4):
                    j2 = hf * 4 + jl
                    r0, r1 = raw + (j2 * 2) * 4 + (t >> 1), raw + (j2 * 2 + 1) * 4 + (t >> 1)
                    if mt == 'q':
                        tp_ = 96 + 2 * (jl & 1)
                        for k_, r_ in ((0, r0), (1, r1)):
                            e(f"v_and_b32 v{tp_+k_}, 0xffff0000, v{r_}" if t & 1 else f"v_lshlrev_b32 v{tp_+k_}, 16, v{r_}")
                        e(f"v_pk_mul_f32 v[{tp_}:{tp_+1}], v[{tp_}:{tp_+1}], s[{sC}:{sC+1}] op_sel_hi:[1,0]\nv_cvt_pk_bf16_f32 v{q+jl}, v{tp_}, v{tp_+1}")
                    else:
                        e(f"v_perm_b32 v{q+jl}, v{r1}, v{r0}, s{sHi if t&1 else sLo}")
                e(f"ds_write_b128 v{vAD}, {vr(q,4)} offset:{hf*1024}")
        e("s_waitcnt lgkmcnt(0)\ns_barrier")
        nrd = 0
        for f, s in plan[ri].items():
            if f in lds_slot: continue
            for hf in range(2):
                if s < 18: e(f"ds_read_b128 {rr(f,4*hf,4)}, v{vVW} offset:{s*2048+hf*1024}")
                else: e(f"ds_read_b128 {rr(f,4*hf,4)}, v{vTS} offset:{(s-18)*2048+hf*1024}")
                nrd += 1
                if nrd == 12: e("s_waitcnt lgkmcnt(4)")
    e("s_waitcnt lgkmcnt(0)\ns_barrier")
    for gi in range(4):
        kap, hf = gi >> 1, gi & 1
        if gi + 2 < 4: wo_loads(gi + 2)
        e(f"s_waitcnt vmcnt({8*min(2, 3-gi)})")
        raw = WRAW[gi % 3]
        for t in range(8):
            f = ('o', t, kap)
            q = reg[f][1] + 4 * hf if f in reg else TQ[t % 3]
            for jl in range(4):
                e(f"v_perm_b32 v{q+jl}, v{raw+(jl*2+1)*4+(t>>1)}, v{raw+(jl*2)*4+(t>>1)}, s{sHi if t&1 else sLo}")
            if f not in reg: e(f"ds_write_b128 v{vVW}, {vr(q,4)} offset:{lds_slot[f]*2048+hf*1024}")
    TL(2, 0)
    e(f"v_mov_b32 v3, 0\nv_lshlrev_b32 v4, 3, v0\nv_mov_b32 v6, 0\nv_mov_b32 v7, 0\nds_write_b64 v4, v[6:7] offset:{L_P-512}\nds_write_b64 v4, v[6:7] offset:{L_P+512}")
    e(f"{Ln('bar')}:\nglobal_load_dword v4, v3, s[{P_DBG}:{P_DBG+1}] offset:12 sc1\ns_waitcnt vmcnt(0)\nv_cmp_eq_u32 vcc, 32, v4\ns_cbranch_vccnz {Ln('bar_ok')}")
    fail_if_zero(10)
    e(f"s_branch {Ln('bar')}\n{Ln('bar_ok')}:")
    TL(3, 0)
    wait_flags_ready(11 + 20 * mode, 4)
    e(f"buffer_store_dword v9, v{vMS}, {WS}, s{sMH} offen sc1")
    def kv_refresh(lab, code):
        e(f"{lab}:\ns_mov_b32 s{sT+2}, {WS_FLAG+F_KV:#x}\nv_lshlrev_b32 v{JUNK}, 2, v{vL16}\ns_waitcnt vmcnt(0)\nbuffer_load_dword v{JUNK}, v{JUNK}, {WS}, s{sT+2} offen sc1\ns_waitcnt vmcnt(0)")
        e(f"v_cmp_le_u32 vcc, 32, v{JUNK}\ns_and_b32 s{sT+2}, vcc_lo, 0xffff\ns_ff0_i32_b32 s{sKv}, s{sT+2}\ns_cmp_lt_u32 s{sT}, s{sKv}\ns_cbranch_scc1 {lab}_ok")
        fail_if_zero(code)
        e(f"s_branch {lab}\n{lab}_ok:")
    e(f"s_mov_b32 s{sTag}, 0\ns_mov_b32 s{sRedo}, 0\ns_mov_b32 s{sT}, 0\ns_mov_b32 s{sKv}, 16\ns_mov_b32 s{sFlC}, {WS_FLAG+F_KV:#x}\ns_mov_b32 s{sOOB}, {OOB:#x}\ns_mov_b32 s{sFl}, s{sFlC}")
    if OPT.get('rounds') != 0: kv_refresh(Ln('kv0'), 12)
    TL(4, 0)
    if OPT.get('tl'): e("s_memtime s[92:93]\ns_waitcnt lgkmcnt(0)\ns_mov_b32 s94, 0")
    def kv_loads():
        r = []
        for j in range(4): r.append(f"buffer_load_dwordx4 {vr(KT+4*j,4)}, v{vKR}, {WS}, s{sSK} offen offset:{j*1024} sc1")
        for t in range(2): r.append(f"buffer_load_dwordx4 {vr(VT+4*t,4)}, v{vL16}, {WS}, s{sSV} offen offset:{t*1024} sc1")
        return r
    for x in kv_loads()[:4]: e(x)
    e(f"s_add_u32 s{sSK}, s{sSK}, {SEGS:#x}")
    if not OPT.get('vearly', 0):
        for x in kv_loads()[4:]: e(x)
        e(f"s_add_u32 s{sSV}, s{sSV}, {SEGS:#x}")
    warm = [f"buffer_load_dwordx3 {vr(JUNK,3)}, v{vL16}, {WS}, s{sPF} offen offset:{k*1024} sc1" for k in range(4)]
    e(f"s_add_u32 s{sPF}, s{sPF}, {SEGS:#x}")
    for x in warm: e(x)
    e(f"s_add_u32 s{sPF}, s{sPF}, {SEGS:#x}")
    FP_ = OPT.get('fprobe', 1)
    e(f"v_and_b32 v4, 31, v0\nv_lshlrev_b32 v{vSP2}, {2 if FP_ else 6}, v4")
    pcmp = lambda r: f"v_cmp_ne_u32 vcc, s{sStep}, v{r}" if FP_ else f"v_cmp_eq_u32 vcc, s{sSENT}, v{r}"
    X = OPT.get('x', ''); nc = 'nocomm' in X
    from asmlib import estimate
    mm = "v_mfma_f32_16x16x32_bf16"; m16 = "v_mfma_f32_16x16x16_bf16"
    cvt = lambda d, a, b: f"v_cvt_pk_bf16_f32 v{d}, v{a}, v{b}"
    add2 = lambda a: [f"v_add_f32 v{a}, v{a}, v{a+2}", f"v_add_f32 v{a+1}, v{a+1}, v{a+3}"]
    mul2 = lambda a: [f"v_mul_f32 v{a}, s{sC}, v{a}", f"v_mul_f32 v{a+1}, s{sC}, v{a+1}"]
    accof = {'q': (AQ0, AQ1), 'k': (AK0, AK1), 'v': (AV0, AV1)}
    ringslot = {f: i % 4 for i, f in enumerate(order[:12])}
    ringslot.update({f: (2, 3, 0, 1, 2, 3)[i] for i, f in enumerate(order[12:])})
    wtxt = lambda f, hf: f"ds_read_b128 {vr(VW+8*ringslot[f]+4*hf,4)}, v{vVW} offset:{lds_slot[f]*2048+hf*1024}"
    wreg = lambda f: vr(VW + 8 * ringslot[f], 8) if f in lds_slot else rr(f, 0, 8)
    stage = [wtxt(order[i], hf) for i in range(4) for hf in range(2)]
    zero_acc = [f"v_mov_b64 v[{AQ0+2*i}:{AQ0+2*i+1}], 0" for i in range(12)]
    SM = lambda f: f"v_smfmac_f32_16x16x64_bf16 {vr(accof[f[0]][f[1]],4)}, {vr(M+4*f[2],4)}, {wreg(f)}, v{vIDX}"
    STK, SMM, LA, OA = AQ0, AK1, AQ1, AK0
    PT = AQ1; KF = M; PM = AV0 + 2; RC = SMM + 2
    PLO, PHI, PAL, ONE4 = VW, VW + 4, VW + 8, VW + 12
    PRB, SENTQ = QF + 2, QF + 12
    LAND, SELQ, R = AQ0, QF, QF + 4
    mlo = f"s[{sMLO}:{sMLO+1}]"
    chainc = lambda a, j: '0' if j == 0 else vr(a, 4)
    pv_tok = [f"{mm} {vr(LA,4)}, {vr(ONE4,4)}, {vr(PAL,4)}, 0", f"{mm} {vr(OA,4)}, {vr(VT,4)}, {vr(PLO,4)}, 0",
              f"{mm} {vr(OA,4)}, {vr(VT+4,4)}, {vr(PHI,4)}, {vr(OA,4)}"]
    pv_mem = [f"{m16} {vr(LA,4)}, {vr(ONE4,2)}, {vr(PM,2)}, {vr(LA,4)}", f"{m16} {vr(OA,4)}, {vr(AV0,2)}, {vr(PM,2)}, {vr(OA,4)}"]
    zw = [f"v_mov_b64 v[{M+2*i}:{M+2*i+1}], 0" for i in range(16)]
    norm = [f"v_mul_f32 v{OA+r}, v{OA+r}, v{RC}" for r in range(4)] + [cvt(OA, OA, OA + 1), cvt(OA + 1, OA + 2, OA + 3)]
    ow = f"ds_write_b64 v{vOW}, {vr(OA,2)} offset:{L_O}"
    p2l = [f"buffer_load_dword v{LAND+i}, v{vRL}, {WS}, s{sRd[i]} offen sc1" for i in range(8)]
    shot = lambda r: [f"buffer_load_dword v{r}, v{vSP2}, {WS}, s{sRdR if FP_ else sMc} offen sc1", f"buffer_load_dwordx4 v{vL16}, {WS}, s{sMc} offen sc1 lds",
                      f"buffer_load_dwordx4 v{vL16}, {WS}, s{sMc} offen offset:1024 sc1 lds"]
    def pad(n):
        r = []
        while n > 0:
            k = min(n, 8); r.append(f"s_nop {k-1}"); n -= k
        return r
    dregs = list(range(4, 28, 2))
    NSW = OPT.get('nsw', [3, 3, 1, 1]); POST = OPT.get('post', [0, 0, 1, 1]); TOP1 = OPT.get('top1', 0); EX = OPT.get('ex', 5)
    e("s_waitcnt lgkmcnt(0)")
    for x in stage + zero_acc: e(x)
    e(f"s_lshl_b32 s{sT}, s{w}, 11\ns_add_u32 m0, s{sT}, {L_M}")
    e("s_waitcnt vmcnt(0)\ns_barrier")
    for k in range(1, 4): e(f"s_cmp_eq_u32 s{w}, {k}\ns_cbranch_scc1 {Ln('enter%d' % k)}")
    ta = {}
    for wv in range(4):
        Lw = lambda s: Ln(f"w{wv}_{s}")
        lds = []; vm = []; dn = []
        def WL(tag):
            k = max(i for i, t in enumerate(lds) if t == tag)
            return f"s_waitcnt lgkmcnt({min(len(lds) - 1 - k, 15)})"
        def WV(tag):
            k = max(i for i, t in enumerate(vm) if t == tag)
            return f"s_waitcnt vmcnt({len(vm) - 1 - k})"
        def DS(name):
            if OPT.get('one'):
                if name == 'wo_end':
                    if OPT['one'] == name: e("s_memtime s[6:7]")
                    e("s_waitcnt lgkmcnt(0)\ns_sub_u32 s6, s6, s4\ns_cmp_gt_u32 s{0}, 4\ns_cselect_b32 s6, s6, 0\ns_add_u32 s94, s94, s6\ns_memtime s[4:5]".format(sStep))
                elif OPT['one'] == name: e("s_memtime s[6:7]")
                return
            if not OPT.get('dst'): return
            e(f"{'s_memrealtime' if OPT.get('real') else 's_memtime'} s[{dregs[len(dn)]}:{dregs[len(dn)]+1}]"); dn.append(name)
        class Op:
            def __init__(s, txt, tag=None, wait=None, vwait=None): s.txt, s.tag, s.wait, s.vwait = txt, tag, wait, vwait
            def out(s):
                if s.wait is not None: return WL(s.wait)
                if s.vwait is not None: return WV(s.vwait)
                if s.txt.startswith('ds_'): lds.append(s.tag)
                if s.txt.startswith('buffer_'): vm.append(s.tag)
                return s.txt
        E = lambda x, tag=None: e(Op(x, tag).out())
        rd = lambda dst, a, off, tag: Op(f"ds_read_b128 {vr(dst,4)}, v{a} offset:{off}", tag)
        wt = lambda tag: Op("s_waitcnt lgkmcnt(0)", wait=tag)
        wtv = lambda tag: Op("s_waitcnt vmcnt(0)", vwait=tag)
        tacost = lambda t: (20 if 'store_dwordx4' in t else 16 if 'x4' in t or 'x2' in t or 'x3' in t else 6) if t.startswith('buffer_') else 0
        class Sched:
            def __init__(s, bb, book=False): s.bb = bb; s.g = [([], [], []) for _ in bb]; s.book = book
            def kind(s, x):
                t = x.txt
                return 2 if t.startswith('v_') and not t.startswith('v_cmp_') else (1 if t.startswith(('ds_', 'buffer_')) else 0)
            def over(s, g, extra=None):
                parts = [list(p) for p in s.g[g]]
                if extra: parts[s.kind(extra)].append(extra)
                ws = [x for x in parts[0] if x.wait is not None]
                parts[0] = ws[:1] + [x for x in parts[0] if x.wait is None]
                ls = [s.bb[g]] + [x.txt for p in parts for x in p] + [s.bb[g]]
                return estimate(ls)[-1] - 16
            def fix(s, g, *xs):
                for x in xs:
                    x = x if isinstance(x, Op) else Op(x)
                    s.g[g][s.kind(x)].append(x)
                    if s.book: ta[g] = ta.get(g, 0) + tacost(x.txt)
            def flex(s, lo, hi, x):
                x = x if isinstance(x, Op) else Op(x)
                c = tacost(x.txt)
                busy = lambda g: max(0, ta.get(g, 0) + c - 20) if c else 0
                crowd = lambda g: (4 if x.txt.startswith('ds_') and any(y.txt.startswith('ds_') for y in s.g[g][1]) else 0)
                best = min(range(lo, hi + 1), key=lambda g: (s.over(g, x) - s.over(g) + busy(g) + crowd(g), g))
                s.fix(best, x); return best
            def emit(s, names=None):
                for g, ins in enumerate(s.bb):
                    e(ins)
                    if names and (g in OPT.get('dst', []) or OPT.get('one')): DS(names % g)
                    ws = [x.out() for x in s.g[g][0] if x.wait is not None]
                    if ws: e(min(ws, key=lambda t: int(t[t.index('(')+1:-1])))
                    for p in s.g[g]:
                        for x in p:
                            if x.wait is None: e(x.out())
        kvl = kv_loads()
        if 'kv' in X: kvl = ['s_nop 0'] * 6
        if 'noK' in X: kvl[:4] = ['s_nop 0'] * 4
        if 'noV' in X: kvl[4:] = ['s_nop 0'] * 2
        if 'KVplain' in X: kvl = [x.replace(' sc1', '') for x in kvl]
        NS = NSW[wv]; PR0 = [PRB, PRB + 1, QF + 8, QF + 9][:NS]
        attop = wv == 0 or (wv == 1 and TOP1)
        e(f"{Ln('enter%d' % wv)}:")
        PRE = POST[wv] == 2
        if not POST[wv]:
            for r in PR0:
                for x in shot(r): e(x)
        if PRE:
            for x in shot(PRB + 1): e(x)
        e("s_waitcnt vmcnt(0)\n.p2align 6")
        e(f"{Lw('step')}:")
        loop0 = len(e.l)
        DS('top')
        probe_bad = lambda r, lab: [pcmp(r), f"s_cbranch_vccnz {Lw(lab)}" if not nc else "s_nop 0"]
        if not POST[wv]: vm += ['probe', 'dma0', 'dma'] + ['x'] * (3 * NS - 3)
        if PRE: vm += ['probe1', 'x', 'dma1']
        if attop:
            NR0 = [OPT.get('rw', 4), 8 - OPT.get('rw', 4)][wv] if OPT.get('fo', 1) and OPT.get('rk') == 8 else 0
            vm += ['x'] * NR0
            e(f"s_waitcnt vmcnt({3*NS-1+NR0}) lgkmcnt(0)")
            for x in probe_bad(PR0[0], 'spinA'): e(x)
            DS('hit'); e(f"s_waitcnt vmcnt({3*NS-3+NR0})\n{Lw('hit')}:"); DS('landed')
        else:
            e("s_waitcnt lgkmcnt(0)")
        e("s_barrier")
        DS('b1a')
        mrd = lambda sg: rd(M + 4 * sg, vL16, L_M + sg * 1024, ('m', sg))
        e(mrd(0).out()); e(mrd(1).out())
        PG = OPT.get('pg', -1)
        if POST[wv] and PG < 0:
            assert NS == 1
            for x, tg in zip(shot(PRB), ('probe', 'dma0', 'dma')): E(x, tg)
        e(WL(('m', 0)))
        gK1 = len(fr) - 1; gK0, gQ1, gQ0 = gK1 - 4, gK1 - 8, gK1 - 12
        gqw = gQ1 + 4; gSt = max(gqw + 2 * EX, gK1 + 1)
        gkw = gK1 + 5 + OPT.get('kp', 0); gSm = max(gkw + 2 * EX, gSt + 4)
        gpw = gSt + 8; gPv = max(gpw + 2 * EX - 1, gSm + 8)
        bb = [SM(f) for f in fr]; vs = list(vrest)
        def upto(g):
            while len(bb) < g: bb.append(SM(vs.pop(0)) if vs else 's_nop 0')
        upto(gSt); bb += [f"{mm} {vr(STK,4)}, {vr(KT+4*j,4)}, {vr(QF+4*j,4)}, {chainc(STK,j)}" for j in range(4)]
        upto(max(gSm, gPv - 4 - max(0, len(vs) - (gSm - len(bb))) if False else gSm))
        bb += [f"{mm} {vr(SMM,4)}, {vr(KF+4*j,4)}, {vr(QF+4*j,4)}, {chainc(SMM,j)}" for j in range(4)]
        gPv = max(gPv, len(bb) + len(vs))
        upto(gPv); bb += pv_tok + pv_mem
        gof = {f: bb.index(SM(f)) for f in fr + vrest}
        sc = Sched(bb, True)
        g2, g4 = gof[('q', 0, 2)], gof[('q', 0, 4)]
        b1b, b1c = g2 - 5, g4 - 5
        sc.fix(1, wt(('m', 1)))
        gmine = b1b if wv == 1 else b1c
        late2 = {}
        if POST[wv] and PG >= 0:
            for k_, (x, tg) in enumerate(zip(shot(PRB), ('probe', 'dma0', 'dma'))): sc.fix(PG + (k_ + 1) // 2, Op(x, tg))
        if PRE:
            class Mark(Op):
                def out(s_):
                    late2['p'] = WV('probe'); late2['d'] = WV('dma'); return s_.txt
            sc.fix(gmine - 1, wtv('probe1'), probe_bad(PRB + 1, 'second')[0], Mark(probe_bad(PRB + 1, 'second')[1])); sc.g[gmine - 1][0].append(Op(f"{Lw('hit')}:"))
            sc.fix(gmine, wtv('dma1'))
        elif not attop:
            sc.fix(gmine - 1, wtv('probe'), *probe_bad(PRB, 'spin1')); sc.g[gmine - 1][0].append(Op(f"{Lw('hit')}:"))
            sc.fix(gmine, wtv('dma'))
        if TOP1: sc.fix(0, mrd(2)); sc.fix(1, mrd(3))
        else: sc.fix(b1b, "s_barrier", mrd(2)); sc.fix(b1b + 1, mrd(3))
        sc.fix(g2 - 1, wt(('m', 2))); sc.fix(g2 + 3, wt(('m', 3)))
        sc.fix(b1c, "s_barrier", mrd(4)); sc.fix(b1c + 1, mrd(5)); sc.fix(b1c + 2, mrd(6)); sc.fix(b1c + 3, mrd(7))
        for k in range(4): sc.fix(g4 - 1 + k, wt(('m', 4 + k)))
        sc.fix(gQ0 + 2, add2(AQ0)[0]); sc.fix(gQ0 + 3, add2(AQ0)[1])
        sc.fix(gQ1 + 2, *add2(AQ1)); sc.fix(gQ1 + 3, cvt(AQ0, AQ0, AQ1), cvt(AQ0 + 1, AQ0 + 1, AQ1 + 1))
        sc.fix(gqw, Op(f"ds_write2_b32 v{vXW}, v{AQ0}, v{AQ0+1} offset0:0 offset1:4", 'qw'))
        gqb = gqw + EX
        sc.fix(gqb, wt('qw'), "s_barrier")
        for j in range(4): sc.fix(gqb + j, rd(QF + 4 * j, vQR, L_X + 1024 * j, ('qf', j))); sc.fix(gSt - 1 + j, wt(('qf', j)))
        sc.flex(gK0 + 2, gK1 + 1, add2(AK0)[0]); sc.flex(gK0 + 2, gK1 + 1, add2(AK0)[1])
        if OPT.get('kp', 0) == 0: sc.fix(gK1 + 2, add2(AK1)[0]); sc.fix(gK1 + 3, add2(AK1)[1], cvt(AK0, AK0, AK1)); sc.fix(gK1 + 4, cvt(AK0 + 1, AK0 + 1, AK1 + 1))
        else: sc.fix(gK1 + 2, add2(AK1)[0]); sc.fix(gK1 + 3, add2(AK1)[1]); sc.fix(gK1 + 4, cvt(AK0, AK0, AK1)); sc.fix(gK1 + 5, cvt(AK0 + 1, AK0 + 1, AK1 + 1))
        sc.fix(gkw, Op(f"ds_write2_b32 v{vXW}, v{AK0}, v{AK0+1} offset0:128 offset1:132", 'kw'))
        sc.fix(gkw + EX, wt('kw'), "s_barrier")
        for j in range(4):
            gj = max(gkw + EX + j, gof[('v', 1, j)])
            sc.fix(gj, rd(KF + 4 * j, vKR, L_X + 512 + 1024 * j, ('kf', j)))
            sc.fix(gSm - 1 + j, wt(('kf', j)))
        sc.fix(gSt + 5, f"v_exp_f32 v{PT}, v{STK}"); sc.fix(gSt + 6, f"v_exp_f32 v{PT+1}, v{STK+1}"); sc.fix(gSt + 7, cvt(PT, PT, PT + 1))
        sc.fix(gpw, Op(f"ds_write_b32 v{vQR}, v{PT} offset:{L_P+wv*4}", 'pw'))
        gpb = gpw + EX - 1
        sc.fix(gpb, wt('pw'), "s_barrier", rd(PAL, vQR, L_P, 'pal')); sc.fix(gpb + 1, rd(PLO, vPR, L_P, 'plo')); sc.fix(gpb + 2, rd(PHI, vPR, L_P - 512, 'phi'))
        sc.fix(gPv - 1, wt('pal')); sc.fix(gPv, wt('plo')); sc.fix(gPv + 1, wt('phi'))
        gV0 = max(gof[('v', 0, s)] for s in range(8))
        a = sc.flex(gV0 + 2, gPv - 2, add2(AV0)[0]); b = sc.flex(gV0 + 2, gPv - 2, add2(AV0)[1]); sc.flex(max(a, b) + 1, gPv - 1, cvt(AV0, AV0, AV0 + 1))
        sc.fix(gSm + 5, f"v_exp_f32 v{SMM+2}, v{SMM}"); sc.fix(gSm + 6, f"v_exp_f32 v{SMM+3}, v{SMM+1}"); sc.fix(gSm + 7, cvt(SMM + 2, SMM + 2, SMM + 3))
        sc.fix(gPv, f"v_cndmask_b32 v{PM}, 0, v{SMM+2}, {mlo}", f"v_cndmask_b32 v{PM+1}, v{SMM+2}, 0, {mlo}")
        sc.fix(gPv + 1, *add2(AV1)); sc.fix(gPv + 2, cvt(AV0 + 1, AV1, AV1 + 1), zw[0])
        sc.fix(gPv + 3, zw[1], zw[2]); sc.fix(gPv + 4, zw[3], zw[4])
        last = {k: gof[order[k]] for k in range(4)}; prev = 0
        for f in order[4:14]:
            use = gof.get(f, gPv + 4); lo = max(last[ringslot[f]], prev)
            a = sc.flex(lo, use - 5, Op(wtxt(f, 0), (f, 0))); prev = sc.flex(a, use - 4, Op(wtxt(f, 1), (f, 1)))
            if f in gof: sc.fix(use - 1, wt((f, 1)))
            last[ringslot[f]] = use
        sc.flex(last[1], gPv - 2, f"v_mov_b64 {vr(ONE4,2)}, s[{sONE}:{sONE+1}]"); sc.flex(last[1], gPv - 2, f"v_mov_b64 {vr(ONE4+2,2)}, s[{sONE}:{sONE+1}]")
        lo = (gmine + 1 if not attop and NS > 1 else OPT.get('kv0', 1))
        VE = OPT.get('vearly', 0)
        if VE:
            for j in (4, 5): lo = sc.flex(lo, max(lo, 4 + j), Op(kvl[j], ('kv', j))) + 1
            if 'kv' not in X and 'noV' not in X: sc.fix(gPv - 2, wtv(('kv', 5)))
        q0 = max(lo, OPT.get('q0', 1))
        lo = gSt + 1
        for j in range(4): lo = sc.flex(max(lo, gSt + j), gPv - 4 + j, kvl[j]) + 1
        RP = 0
        RK = OPT.get('rk', 1)
        SQ = QF + 12 - (4 if RK == 4 else 0)
        if RK == 0:
            a = sc.flex(0, 8, f"v_mov_b32 v{SQ}, s{sSENT}")
        elif RK != 8: a = sc.flex(0, q0, f"v_mov_b64 {vr(SQ,2)}, s[{sSENT}:{sSENT+1}]")
        if RK == 4:
            a = max(a, sc.flex(0, q0, f"v_mov_b64 {vr(SQ+2,2)}, s[{sSENT}:{sSENT+1}]")); sc.flex(0, 4, f"s_add_u32 s{sT+3}, s{sPn}, {wv*2048}")
            rs = [f"buffer_store_dwordx4 {vr(SQ,4)}, v{vL16}, {WS}, s{sT+3} offen offset:{o} {ST}" for o in (0, 1024)]
        elif RK == 8:
            SQ = M + 4
            hrs = [f"s_add_u32 s{sT+3}, s{sPp}, {wv*(1024*OPT.get('rw', 4) if OPT.get('fo', 1) else 2048)}", f"s_add_u32 s{sT+5}, s{sT+3}, 4096", f"v_mov_b64 {vr(SQ,2)}, s[{sSENT}:{sSENT+1}]", f"v_mov_b64 {vr(SQ+2,2)}, s[{sSENT}:{sSENT+1}]"]
            hst = [f"buffer_store_dwordx4 {vr(SQ,4)}, v{vL16}, {WS}, s{sT+3} offen offset:{o} {ST}" for o in (0, 1024)] + [f"buffer_store_dword v{SQ}, v{vMS}, {WS}, s{sMp} offen {ST}"]
            rs = []
            if OPT.get('r2') is not None:
                n2_ = OPT['r2']
                hrs[0] = f"s_add_u32 s{sT+3}, s{sPp}, {n2_*1024 if wv == 3 else 0}"
                hst = [f"buffer_store_dwordx4 {vr(SQ,4)}, v{vL16}, {WS}, s{sT+3+2*(o>>2)} offen offset:{(o&3)*1024} {ST}" for o in range([0, 0, n2_, 8 - n2_][wv])]
                a = sc.flex(0, 8, f"v_mov_b32 v{QF+12}, s{sSENT}"); sc.flex(a + 1, 24, f"buffer_store_dword v{QF+12}, v{vMS}, {WS}, s{sMp} offen {ST}")
            if OPT.get('fo', 1):
                hst = [f"buffer_store_dwordx4 {vr(SQ,4)}, v{vL16}, {WS}, s{sT+3+2*(o>>2)} offen offset:{(o&3)*1024} {ST}" for o in range([OPT.get('rw', 4), 8 - OPT.get('rw', 4), 0, 0][wv])]
                a = sc.flex(0, 8, f"v_mov_b32 v{QF+12}, s{sSENT}"); sc.flex(max(a + 1, PG + 2), 24, f"buffer_store_dword v{QF+12}, v{vMS}, {WS}, s{sMp} offen {ST}")
        elif RK == 0: rs = []
        else:
            sc.flex(0, 4, f"s_add_u32 s{sT+3}, s{sPn}, 4096")
            rs = [f"buffer_store_dword{'x2' if RK == 2 else ''} {vr(SQ,RK)}, v{vP8}, {WS}, s{sPn if tp < 2 else sT+3} offen offset:{(tp&1)*2048+o} {ST}" for tp in range(4) for o in ((0,) if RK == 2 else (0, 4))]
        if RK != 8: rs.append(f"buffer_store_dword v{SQ}, v{vMS}, {WS}, s{sMp} offen {ST}")
        for x in rs: sc.flex(max(a + 1, OPT.get('qr', 18)), gqb - 1, x)
        if 'pub' not in X: sc.flex(q0, q0 + 6, f"buffer_store_dword v{R}, v{vMS}, {WS}, s{sMHp} offen sc1")
        if 'pf' not in X:
            lo = max(OPT.get('qp', 0), PG + 2 if PG >= 0 else 0)
            for k in range(4): lo = sc.flex(lo, lo + 5, warm[k]) + OPT.get('pfs', 1)
            sc.flex(0, lo - 1, f"v_lshlrev_b32 v{QF+14}, 2, v{vL16}")
            sc.flex(lo, lo + 5, f"buffer_load_dword v{JUNK}, v{QF+14}, {WS}, s{sFl} offen sc1")
        if OPT.get('lat'):
            key = {'pf': f"s{sPF} offen offset:3072", 'K': f"s{sSK} offen offset:3072", 'V': f"s{sSV} offen offset:1024"}[OPT['lat']]
            for g in range(len(bb)):
                for k, x in enumerate(sc.g[g][1]):
                    if key in x.txt:
                        sc.g[g][1].insert(k, Op("s_waitcnt vmcnt(0) lgkmcnt(0)\ns_memtime s[4:5]\ns_waitcnt lgkmcnt(0)"))
                        sc.g[g][1].insert(k + 2, Op("s_waitcnt vmcnt(0)\ns_memtime s[6:7]\ns_waitcnt lgkmcnt(0)\ns_sub_u32 s6, s6, s4\n" + ("s_max_u32 s94, s94, s6" if OPT.get('latmax') else "s_add_u32 s94, s94, s6")))
                        break
        sc.emit('g%d')
        DS('pv_end'); e(f"v_rcp_f32 v{RC}, v{LA}"); DS('rcp'); e(zw[5]); e(zw[6])
        for x in norm: e(x)
        DS('ow'); E(ow, 'ow')
        e(f"v_subrev_u32 v{RC+1}, s{sLlo}, v{LA}\nv_cmp_lt_u32 vcc, s{sLrg}, v{RC+1}")
        e(zw[7]); e(zw[8])
        if not nc: e(f"s_cbranch_vccnz {Lw('fb')}")
        e(f"{Lw('fbret')}:")
        if not VE: e(kvl[4]); e(kvl[5])
        if RP: e(rs[0]); e(rs[2]); e(zw[9])
        else:
            for x in zw[9:12]: e(x)
        e("s_waitcnt lgkmcnt(0)"); DS('owdone'); e("s_barrier"); DS('b4')
        E(f"ds_read_b128 {vr(QF,4)}, v{vL16} offset:{L_O}", 'o0'); E(f"ds_read_b128 {vr(QF+4,4)}, v{vL16} offset:{L_O+1024}", 'o1')
        DS('o_rd')
        if RP: e(rs[1]); e(zw[10]); e(zw[11])
        else:
            for x in zw[12:16]: e(x)
        DS('wo_pre')
        wa = lambda t: add2(M + 4 * t)
        wc = lambda d: cvt(QF + 8 + d, M + 8 * (d >> 1) + (d & 1), M + 8 * (d >> 1) + 4 + (d & 1))
        tg = lambda tp: [f"v_bfi_b32 v{QF+8+2*tp+k}, 1, s{sTag}, v{QF+8+2*tp+k}" for k in range(2)] if RK == 0 else []
        pst = lambda tp: f"buffer_store_dwordx2 {vr(QF+8+2*tp,2)}, v{vP8}, {WS}, s{sPc if tp < 2 else sT+4} offen offset:{(tp&1)*2048} {ST}"
        wo = [f"v_smfmac_f32_16x16x64_bf16 {vr(M+4*(u>>1),4)}, {vr(QF+4*(u&1),4)}, {wreg(('o',u>>1,u&1))}, v{vIDX}" for u in range(16)]
        so = Sched(wo)
        e(WL('o0')); DS('o_w')
        so.fix(0, wt('o1')); so.fix(1, f"s_add_u32 s{sT+4}, s{sPc}, 4096")
        for f, g in ((order[16], 5), (order[17], 7)):
            so.fix(g + (g == 5) * 2 + (g == 7), Op(wtxt(f, 0), (f, 0))); so.fix(g + (g == 5) * 3 + (g == 7) * 2, Op(wtxt(f, 1), (f, 1)))
        for k in range(4): so.fix(k, Op(wtxt(order[14 + k // 2], k & 1), (order[14 + k // 2], k & 1)))
        for f in order[14:18]: so.fix(2 * f[1], wt((f, 1)))
        if RP:
            so.fix(0, zw[12]); so.fix(1, zw[13]); so.fix(2, zw[14]); so.fix(10 if OPT.get('wo1') else 4, zw[15])
        if OPT.get('wo1', 0) == 0:
            so.fix(3, *wa(0)); so.fix(5, *(wa(1) + [wc(0), wc(1)] + tg(0))); so.fix(6, pst(0))
            so.fix(7, wa(2)[0]); so.fix(8, wa(2)[1]); so.fix(9, *wa(3)); so.fix(10, wc(2), wc(3), *tg(1)); so.fix(11, pst(1))
            so.fix(12, wa(4)[0]); so.fix(13, wa(4)[1]); so.fix(14, wa(5)[0])
            tail = [wa(5)[1], wc(4), wc(5)] + tg(2) + [pst(2)] + wa(6) + wa(7) + [wc(6), wc(7)] + tg(3) + [pst(3)]
        else:
            so.fix(3, wa(0)[0]); so.fix(4, wa(0)[1]); so.fix(5, wa(1)[0]); so.fix(6, wa(1)[1]); so.fix(7, wc(0), wc(1), *(tg(0) + wa(2)))
            so.fix(8, pst(0), *(wa(3) + [wc(2), wc(3)] + tg(1))); so.fix(9, pst(1))
            so.fix(11, wa(4)[0]); so.fix(12, wa(4)[1]); so.fix(13, wa(5)[0]); so.fix(14, wa(5)[1])
            tail = [wc(4), wc(5)] + tg(2) + [pst(2)] + wa(6) + wa(7) + [wc(6), wc(7)] + tg(3) + [pst(3)]
        gp2 = OPT.get('gp2', 13)
        assert gp2 > 11
        early = wv == 0 and gp2 < 50
        if early:
            for k in range(8):
                if gp2 + k // 2 < 16: so.fix(gp2 + k // 2, p2l[k])
        so.emit('u%d' if OPT.get('one') else None)
        if early:
            for k in range(8):
                if gp2 + k // 2 >= 16: e(p2l[k])
        FO = OPT.get('fo', 1)
        for x in tail:
            if not (FO and x in (pst(2), pst(3))): e(x)
        DS('wo_end')
        sel = [f"v_mov_b32 v{SELQ+d}, v{vSEL}" for d in range(4)]
        rot = [f"s_mov_b32 s{sT}, s{sMp}", f"s_mov_b32 s{sMp}, s{sMc}", f"s_mov_b32 s{sMc}, s{sMn}", f"s_mov_b32 s{sMn}, s{sT}",
               f"s_add_u32 s{sMH}, s{sMH}, 8192", f"s_mov_b32 s{sMHp}, s{sMH}", f"s_add_u32 s{sStep}, s{sStep}, 1"]
        free = zero_acc[4:] + stage + [f"s_sub_u32 s{sDl}, s{sPn}, s{sPc}", f"s_mov_b32 s{sT+2}, s{sPp}",
                f"s_mov_b32 s{sPp}, s{sPc}", f"s_mov_b32 s{sPc}, s{sPn}", f"s_mov_b32 s{sPn}, s{sPp if RK == 0 else sT+2}",
                f"s_add_u32 s{sPF}, s{sPF}, {SEGS:#x}", f"s_mov_b32 s{sRedo}, 0",
                f"s_add_u32 s{sSK}, s{sSK}, {0 if 'KVfix' in X else SEGS}", f"s_add_u32 s{sSV}, s{sSV}, {0 if 'KVfix' in X else SEGS}"]
        kvn = [f"v_cmp_le_u32 vcc, 32, v{JUNK}", f"s_and_b32 s{sT}, vcc_lo, 0xffff", f"s_ff0_i32_b32 s{sT}, s{sT}", f"s_max_u32 s{sKv}, s{sKv}, s{sT}",
               f"s_add_u32 s{sT}, s{sStep}, {OPT.get('la', 4)}", f"s_lshr_b32 s{sT}, s{sT}, 2", f"s_min_u32 s{sT}, s{sT}, 15", f"s_cmp_lt_u32 s{sT}, s{sKv}",
               f"s_cselect_b32 s{sFl}, s{sOOB}, s{sFlC}", f"s_add_u32 s{sT}, s{sStep}, 2", f"s_lshr_b32 s{sT}, s{sT}, 2", f"s_min_u32 s{sT}, s{sT}, 15", f"s_cmp_lt_u32 s{sT}, s{sKv}", f"s_cbranch_scc0 {Lw('kvwait')}\n{Lw('kvok')}:"]
        dA = OPT.get('dA', [0, 0, 12, 34])[wv]; dB = OPT.get('dB', [30, 36, 36, 36])[wv]; dC = OPT.get('dC', 16)
        gaps = [0 if POST[wv] == 1 else dB] + [dC] * (len(PR0) - 1)
        late = zero_acc[:4] + kvn + [f"v_add_u32 v{vRL}, s{sDl}, v{vRL}", f"s_bfe_i32 s{sTag}, s{sStep}, 0x10001"]
        nA = min(dA, len(free)); partA = free[:nA]; rest = free[nA:]
        want = max(0, sum(gaps) - len(late)); keep = rest[max(0, len(rest) - want):] if want else []
        mid = rest[:len(rest) - len(keep)]
        after = late[:4] + keep + late[4:]
        if RK == 8:
            for x in hrs: e(x)
        if FO and wv >= 2:
            e("s_barrier"); e(pst(2)); e(pst(3))
        for x in partA + pad(dA - nA - (4 if RK == 8 else 0)): e(x)
        DS('p2top')
        if not early:
            for x in p2l: e(x)
        if FO and wv < 2:
            e("s_barrier"); e(pst(2)); e(pst(3))
        if RK == 8 and not FO:
            for x in hst: e(x)
        for x in rot + sel + [f"v_mov_b32 v{M+2}, s{sStep}"] + mid: e(x)
        yo = (2 if wv < 2 else 0) if FO else (2 if early else 0) + (len(hst) if RK == 8 else 0)
        e(f"s_waitcnt vmcnt({4+yo})")
        e(f"{Lw('p2w')}:"); DS('p2w')
        if RK == 0:
            bo = lambda d, x, y, z, t: f"v_bitop3_b32 v{d}, {x}, {y}, {z} bitop3:{t:#x}"
            e(f"{mm} {vr(R,4)}, {vr(SELQ,4)}, {vr(LAND,4)}, 0\n{bo(M, f'v{LAND}', f'v{LAND+1}', f's{sTag}', 0x7e)}\n{bo(M+1, f'v{LAND+2}', f'v{LAND+3}', f's{sTag}', 0x7e)}\ns_waitcnt vmcnt({yo})")
            e(f"{mm} {vr(R,4)}, {vr(SELQ,4)}, {vr(LAND+4,4)}, {vr(R,4)}\n{bo(M+3, f'v{LAND+4}', f'v{LAND+5}', f's{sTag}', 0x7e)}\n{bo(M+4, f'v{LAND+6}', f'v{LAND+7}', f's{sTag}', 0x7e)}")
            e(f"v_or3_b32 v{M}, v{M}, v{M+1}, v{M+3}\n{bo(M, f'v{M}', f'v{M+4}', '1', 0xa8)}\nv_cmp_ne_u32 vcc, 0, v{M}")
            if not nc: e(f"s_cbranch_vccnz {Lw('p2retry')}")
        else:
            e(f"{mm} {vr(R,4)}, {vr(SELQ,4)}, {vr(LAND,4)}, 0\nv_max3_i32 v{M}, v{LAND}, v{LAND+1}, v{LAND+2}\ns_waitcnt vmcnt({yo})")
            e(f"{mm} {vr(R,4)}, {vr(SELQ,4)}, {vr(LAND+4,4)}, {vr(R,4)}\nv_max3_i32 v{M+1}, v{LAND+3}, v{LAND+4}, v{LAND+5}\nv_max3_i32 v{M}, v{M}, v{LAND+6}, v{LAND+7}\nv_max_i32 v{M}, v{M}, v{M+1}")
            e(f"v_cmp_le_i32 vcc, s{sInf}, v{M}")
            if not nc: e(f"s_cbranch_vccnz {Lw('p2slow')}")
        e(f"{Lw('p2ok')}:"); DS('p2ok')
        e(cvt(R, R, R + 1))
        e(f"buffer_store_dword v{R}, v{vMS}, {WS}, s{sMc} offen {ST}")
        DS('mstore')
        e(f"s_cmp_eq_u32 s{sStep}, 63\ns_cbranch_scc1 {Ln('fin')}")
        if FP_:
            fd = OPT.get('fd', 0)
            after.insert(fd, f"buffer_store_dword v{M+2}, off, {WS}, s{sRdW} {ST}")
        for k, r in enumerate(PR0):
            part = after[:gaps[k]] if k < len(PR0) - 1 else after
            after = after[len(part):]
            for x in part + ([] if POST[wv] == 1 else pad(gaps[k] - len(part))): e(x)
            if k == 0: DS('shot1')
            if POST[wv] != 1:
                for x in shot(PRB + 1 if PRE else r): e(x)
        NR = len(hst) if (FO and RK == 8) else 0
        for x in (hst if NR else []): e(x)
        if OPT.get('est') == wv and mode == 0:
            ls = e.l[loop0:]
            for tt, x in zip(estimate(ls), ls): print(tt, x)
        DS('end') if OPT.get('one') else None
        if OPT.get('prof') and wv == 3:
            e(f"{'s_memtime' if OPT['prof'] == 2 else 's_memrealtime'} s[98:99]\ns_lshl_b32 s97, s{h}, 8\ns_lshl_b32 s96, s{sStep}, 2\ns_add_u32 s97, s97, s96\ns_add_u32 s97, s97, {WS_STAMP + 0x10000:#x}\ns_waitcnt lgkmcnt(0)\nv_mov_b32 v{M}, s98\nbuffer_store_dword v{M}, off, {WS}, s97")
        if OPT.get('dst'):
            DS('end')
            e(f"s_cmp_eq_u32 s{sStep}, 40\ns_cbranch_scc0 {Lw('step')}\ns_waitcnt lgkmcnt(0)")
            e(f"s_lshl_b32 s{sT}, s{h}, 2\ns_add_u32 s{sT}, s{sT}, s{w}\ns_lshl_b32 s{sT}, s{sT}, 7\ns_add_u32 s{sT}, s{sT}, {WS_STAMP:#x}")
            e("s_waitcnt vmcnt(0)")
            for k in range(len(dn)): e(f"v_mov_b32 v{M}, s{dregs[k]}\nbuffer_store_dword v{M}, off, {WS}, s{sT} offset:{4*k}")
            e("s_waitcnt vmcnt(0)")
            if mode == 0: open('dst_names.txt', 'w').write(' '.join(dn))
        e(f"s_branch {Lw('step')}")
        cnt = lambda inc: e(f"s_add_u32 s94, s94, {inc:#x}") if OPT.get('tl') and not OPT.get('one') and not OPT.get('lat') else None
        if PRE:
            e(f"{Lw('second')}:"); cnt(1)
            e(f"{late2['p']}\n{pcmp(PRB)}\ns_cbranch_vccnz {Lw('spin1')}\n{late2['d']}\ns_branch {Lw('hit')}")
        if attop:
            e(f"{Lw('spinA')}:")
            for k in range(NS):
                cnt(1)
                for x in shot(PR0[k]): e(x)
                if k < NS - 1: e(f"s_waitcnt vmcnt({3*NS-1+NR0})\n{pcmp(PR0[k+1])}\ns_cbranch_vccz {Lw('spunA')}")
            e(f"s_branch {Lw('spin0')}\n{Lw('spunA')}:\ns_waitcnt vmcnt({3*NS-3+NR0})\ns_branch {Lw('hit')}")
        e(f"{Lw('spin0')}:")
        e(f"s_waitcnt vmcnt({3*NS-1})\n{pcmp(PR0[0])}\ns_cbranch_vccz {Lw('spun')}")
        e(f"{Lw('spin1')}:")
        for k in range(NS):
            cnt(1)
            for x in shot(PR0[k]): e(x)
            if k < NS - 1: e(f"s_waitcnt vmcnt({3*NS-1})\n{pcmp(PR0[k+1])}\ns_cbranch_vccz {Lw('spun')}")
        fail_if_zero(12)
        e(f"s_branch {Lw('spin0')}")
        e(f"{Lw('spun')}:\ns_waitcnt vmcnt({3*NS-3})\ns_branch {Lw('hit')}")
        e(f"{Lw('redo')}:")
        cnt(0x400)
        e(f"s_mov_b32 s{sRedo}, 1\ns_mov_b32 s{sMHp}, {OOB:#x}\ns_sub_u32 s{sSK}, s{sSK}, {SEGS:#x}")
        for x in kv_loads()[:4]: e(x)
        e(f"s_add_u32 s{sSK}, s{sSK}, {SEGS:#x}")
        e(f"{Lw('redo1')}:\ns_waitcnt vmcnt(0) lgkmcnt(0)\ns_barrier")
        fail_if_zero(13)
        for x in shot(PRB)[1:]: e(x)
        e("s_waitcnt vmcnt(0)\ns_barrier")
        for k in range(8): e(f"ds_read_b128 {vr(M+4*k,4)}, v{vL16} offset:{L_M+k*1024}")
        e("s_waitcnt lgkmcnt(0)")
        for i in range(32): e(f"v_cmp_eq_u32 vcc, s{sSENT}, v{M+i}\ns_cbranch_vccnz {Lw('redo1')}")
        for x in stage + zero_acc + [f"v_mov_b32 v{r}, s{sStep}" for r in PR0 + [PRB + 1]]: e(x)
        e(f"s_branch {Lw('step')}")
        e(f"{Lw('p2slow')}:")
        for i in range(8): e(f"v_cmp_eq_u32 vcc, s{sSENT}, v{LAND+i}\ns_cbranch_vccnz {Lw('p2retry')}")
        e(f"s_branch {Lw('p2ok')}")
        e(f"{Lw('p2retry')}:")
        cnt(0x100000)
        fail_if_zero(14)
        for x in p2l: e(x)
        e(f"s_waitcnt vmcnt(0)\ns_branch {Lw('p2w')}")
        kv_refresh(Lw('kvwait'), 15)
        e(f"s_branch {Lw('kvok')}")
        e(f"{Lw('fb')}:")
        F = M
        e(f"s_cmp_eq_u32 s{sRedo}, 0\ns_cbranch_scc0 {Lw('fb1')}\nv_cmp_u_f32 vcc, v{LA}, v{LA}\ns_cbranch_vccnz {Lw('redo')}")
        e(f"{Lw('fb1')}:\ns_waitcnt vmcnt(0)\ns_barrier")
        e(f"ds_write_b64 v{vL16}, {vr(STK,2)} offset:{L_M+(wv>>1)*1024+(wv&1)*8}")
        e("s_waitcnt lgkmcnt(0)\ns_barrier")
        e(f"ds_read_b128 {vr(F,4)}, v{vL16} offset:{L_M}\nds_read_b128 {vr(F+4,4)}, v{vL16} offset:{L_M+1024}\nv_mov_b32 v{F+8}, v{SMM}\nv_mov_b32 v{F+9}, v{SMM+1}\ns_waitcnt lgkmcnt(0)")
        e(f"v_max3_f32 v{F+10}, v{F}, v{F+1}, v{F+2}\nv_max3_f32 v{F+11}, v{F+3}, v{F+4}, v{F+5}\nv_max3_f32 v{F+10}, v{F+10}, v{F+6}, v{F+7}\nv_max3_f32 v{F+11}, v{F+11}, v{F+8}, v{F+9}\nv_max_f32 v{F+10}, v{F+10}, v{F+11}")
        e(f"v_mov_b32 v{F+11}, v{F+10}\nv_permlane32_swap_b32 v{F+10}, v{F+11}\nv_max_f32 v{F+10}, v{F+10}, v{F+11}")
        e(f"v_mov_b32 v{F+11}, v{F+10}\nv_permlane16_swap_b32 v{F+10}, v{F+11}\nv_max_f32 v{F+10}, v{F+10}, v{F+11}")
        for r in range(10): e(f"v_sub_f32 v{F+r}, v{F+r}, v{F+10}")
        for r in range(10): e(f"v_exp_f32 v{F+r}, v{F+r}")
        for dd in range(4): e(cvt(PAL + dd, F + 2 * dd, F + 2 * dd + 1))
        e(cvt(F + 8, F + 8, F + 9))
        for dd in range(4): e(f"v_cndmask_b32 v{PLO+dd}, 0, v{PAL+dd}, {mlo}\nv_cndmask_b32 v{PHI+dd}, v{PAL+dd}, 0, {mlo}")
        e(f"v_cndmask_b32 v{PM}, 0, v{F+8}, {mlo}\nv_cndmask_b32 v{PM+1}, v{F+8}, 0, {mlo}")
        for x in pv_tok + pv_mem: e(x)
        for x in zw[:7]: e(x)
        e(f"v_rcp_f32 v{RC}, v{LA}")
        for x in norm: e(x)
        e(ow)
        e(f"s_branch {Lw('fbret')}")
    e(f"{Ln('fin')}:")
    e(f"buffer_store_dword v{R}, v{vMS}, {WS}, s{sMH} offen sc1")
    if OPT.get('wb', 1): e(f"s_or_b32 s{sT}, s{h}, s{w}\ns_cmp_eq_u32 s{sT}, 0\ns_cbranch_scc0 {Ln('nwb')}\ns_waitcnt vmcnt(0)\nbuffer_wbl2 sc1\n{Ln('nwb')}:")
    TL(5, 0)
    if OPT.get('tl'): e(f"s_memtime s[98:99]\ns_waitcnt lgkmcnt(0)\ns_sub_u32 s98, s98, s92\nv_mov_b32 v15, s98\nbuffer_store_dword v15, off, {WS}, s97 offset:4\ns_lshl_b32 s96, s{w}, 2\ns_add_u32 s97, s97, s96\nv_mov_b32 v15, s94\nbuffer_store_dword v15, off, {WS}, s97 offset:12")
    e("s_waitcnt vmcnt(0)\ns_branch L_end")
```

```python
def emit(G):
    globals().update(G)
    X, W, AUX = "s[40:43]", "s[44:47]", "s[48:51]"
    sRound, sTile, sPass, sType, sRS, sNB, sCnt, sBlk, sBlkN = 52, 53, 54, 55, 56, 57, 58, 59, 60
    s2RS = {1: 61, 2: 62, 3: 63}; sRow = list(range(64, 72)); sB, sT0, sT1, s128, sLo, sHi = 72, 73, 74, 75, 76, 77
    vL16, vA0, vA1, vW, vXo, vG, vC = 1, 2, 3, 4, 5, 6, 7
    RING = [160, 192, 224, 128]
    XN, WF = 16, 80
    acc = lambda t, T: (t * 8 + T) * 4

    e("L_worker:")
    TL(1, 32)
    if OPT.get('tl'): e(f"v_mov_b32 v15, s94\ns_sub_u32 s97, s97, 4\nbuffer_store_dword v15, off, {WS}, s97")
    srd(40, P_X, 2048 * 1024)
    e(f"v_lshlrev_b32 v{vL16}, 4, v0\nv_lshrrev_b32 v{vG}, 4, v0\nv_and_b32 v{vC}, 15, v0")
    e(f"v_lshlrev_b32 v{vXo}, 10, v{vC}\nv_lshl_add_u32 v{vXo}, v{vG}, 6, v{vXo}")
    e(f"v_lshrrev_b32 v8, 2, v{vC}\nv_and_b32 v9, 1, v{vC}\nv_lshl_add_u32 v8, v8, 1, v9\nv_lshlrev_b32 v8, 4, v8\nv_lshl_add_u32 v8, v{vG}, 7, v8\nv_bfe_u32 v9, v{vC}, 1, 1\nv_lshl_add_u32 v0, v9, 9, v8\nv_and_b32 v9, 1, v{vG}\nv_lshlrev_b32 v9, 6, v9\nv_xor_b32 v0, v0, v9")
    e(f"s_mov_b32 s{sLo}, 0x05040100\ns_mov_b32 s{sHi}, 0x07060302")
    e(f"s_mov_b32 s{sRound}, 0")
    if OPT.get('rounds') == 0: e("s_waitcnt vmcnt(0)\ns_branch L_end")
    sPg, sU, sPi, sHalf, sSkip = 87, 88, 89, 90, 91
    e(f"s_mul_i32 s{sPg}, s{S_IDX}, 1171\ns_lshr_b32 s{sPg}, s{sPg}, 16\ns_mul_i32 s79, s{sPg}, 56\ns_sub_u32 s79, s{S_IDX}, s79\ns_lshr_b32 s{sU}, s79, 2\ns_and_b32 s{sPi}, s79, 3")
    e(f"s_lshl_b32 s{sPass}, s{sPg}, 2\ns_add_u32 s{sPass}, s{sPass}, s{sPi}\ns_mov_b32 s{sSkip}, 0")
    e(f"s_sub_u32 s{sTile}, s{sU}, 2\ns_mov_b32 s{sHalf}, 0\ns_cmp_lt_u32 s{sU}, 4\ns_cbranch_scc0 L_dec2")
    e(f"s_lshr_b32 s{sTile}, s{sU}, 1\ns_and_b32 s{sHalf}, s{sU}, 1\ns_add_u32 s{sHalf}, s{sHalf}, 1\ns_branch L_dec2")
    e("L_task:")
    if OPT.get('rb'): e("s_waitcnt vmcnt(0)")
    e(f"s_mov_b32 s{sHalf}, 0\ns_cmp_eq_u32 s{sRound}, 1\ns_cbranch_scc0 L_dec1")
    e(f"s_cmp_lt_u32 s{sU}, 4\ns_cbranch_scc0 L_dec1\ns_add_u32 s{sTile}, s{sU}, 12\ns_branch L_dec2")
    e("L_dec1:")
    e(f"s_mov_b32 s{sRound}, 2\ns_mov_b32 s{sSkip}, 1\ns_mov_b32 s79, s{sPi}\ns_cmp_lt_u32 s{sPi}, 3\ns_cbranch_scc1 L_dec1b")
    e(f"s_sub_u32 s79, s{sU}, 4\ns_cmp_lt_u32 s79, 6\ns_cbranch_scc0 L_g1_end")
    e(f"s_mov_b32 s{sSkip}, 0\ns_cmp_ge_u32 s79, 3\ns_cselect_b32 s{sTile}, 1, 0\ns_cselect_b32 s80, 3, 0\ns_sub_u32 s79, s79, s80")
    e("L_dec1b:")
    e(f"s_lshl_b32 s80, s{sPg}, 1\ns_add_u32 s80, s80, s79\ns_add_u32 s{sPass}, s80, 15\ns_add_u32 s80, s{sPg}, 24\ns_cmp_eq_u32 s79, 0\ns_cselect_b32 s{sPass}, s80, s{sPass}")
    e("L_dec2:")
    e(f"s_and_b32 s78, s{sPass}, 7\ns_lshl_b32 s78, s78, 2\ns_add_u32 s78, s78, s{S_WAVE}\ns_lshl_b32 s79, s78, 8")
    e(f"s_mov_b32 s{sRS}, 8192\ns_mov_b32 s46, 0x400000\ns_mov_b32 s47, 0x20000\ns_mov_b32 s{sNB}, 4")
    e(f"s_mov_b32 s{sType}, 0\ns_mov_b32 s44, s{P_WK}\ns_mov_b32 s45, s{P_WK+1}\ns_cmp_lt_u32 s{sPass}, 8\ns_cbranch_scc1 L_dec3")
    e(f"s_mov_b32 s{sType}, 1\ns_mov_b32 s44, s{P_WV}\ns_mov_b32 s45, s{P_WV+1}\ns_cmp_lt_u32 s{sPass}, 16\ns_cbranch_scc1 L_dec3")
    e(f"s_mov_b32 s{sType}, 4\ns_mov_b32 s44, s{P_WQ}\ns_mov_b32 s45, s{P_WQ+1}\ns_cmp_lt_u32 s{sPass}, 24\ns_cbranch_scc1 L_dec3")
    e(f"s_mov_b32 s{sType}, 2\ns_mov_b32 s44, s{P_W1}\ns_mov_b32 s45, s{P_W1+1}\ns_mov_b32 s{sRS}, 3584\ns_mov_b32 s46, {512*3584}")
    e("L_dec3:")
    def wcalc(pi=False):
        if pi: e(f"v_and_b32 v8, 3, v{vC}\nv_lshrrev_b32 v9, 2, v{vC}\nv_lshl_add_u32 v8, v8, 2, v9\nv_lshlrev_b32 v8, 4, v8")
        else: e(f"v_lshlrev_b32 v8, 4, v{vC}")
        e(f"s_lshl_b32 s80, s{sRS}, 5\nv_mul_lo_u32 v9, s80, v{vG}\nv_add3_u32 v{vW}, v8, v9, s79")
        for i in range(8): e(f"s_mul_i32 s{sRow[i]}, s{sRS}, {8*(i>>1)+(i&1)}")
        for k in (1, 2, 3): e(f"s_mul_i32 s{s2RS[k]}, s{sRS}, {2*k}")
        e(f"s_lshl_b32 s{s128}, s{sRS}, 7")
    def wissue():
        for n in range(3):
            for i in range(8):
                if n: e(f"s_add_u32 s{sT0}, s{s2RS[n]}, s{sRow[i]}")
                so = f"s{sT0}" if n else f"s{sRow[i]}"
                e(f"buffer_load_dwordx4 {vr(RING[n]+4*i,4)}, v{vW}, {W}, {so} offen")
    def wsetup(pi=False): wcalc(pi); wissue()
    e(f"s_cmp_eq_u32 s{sSkip}, 1\ns_cbranch_scc0 L_ln")
    wsetup()
    e("s_branch L_gemm")
    e("L_ln:")
    e(f"s_cmp_eq_u32 s{sHalf}, 0\ns_cselect_b32 s82, 15, 14\ns_lshl_b32 s82, s{S_WAVE}, s82\ns_lshr_b32 s81, s{sHalf}, 1\ns_lshl_b32 s81, s81, 16")
    e(f"s_lshl_b32 s80, s{sTile}, 17\ns_add_u32 s80, s80, s81\ns_add_u32 s80, s80, s82")
    e(f"v_add_u32 v{vA0}, s82, v{vL16}")
    e(f"s_add_u32 s81, s80, 16384\ns_cmp_eq_u32 s{sHalf}, 0\ns_cselect_b32 s81, s81, {OOB:#x}")
    for u in range(2):
        for q in range(16):
            e(f"buffer_load_dwordx4 {vr(16+64*u+4*q,4)}, v{vXo}, {X}, s{80+u} offen offset:{(q>>2)*256+(q&3)*16}")
    confirm_issue('a4', vA1)
    wcalc()
    e("v_mov_b32 v8, 0x3f803f80")
    for i in range(4): e(f"v_accvgpr_write_b32 a{i}, v8")
    e("s_barrier")
    for u in range(2):
        RB = 16 + 64 * u
        if u: e(f"s_cmp_eq_u32 s{sHalf}, 0\ns_cbranch_scc0 L_ln_end")
        e(f"s_waitcnt vmcnt({17 if u == 0 else 25})")
        if OPT.get('tl2') and u == 0:
            e(f"s_cmp_eq_u32 s{sRound}, 0\ns_cbranch_scc0 L_tla"); TLV[0] = 15; TL(8, 32); e("s_waitcnt vmcnt(0)\nL_tla:")
        for q in range(16):
            e(f"v_mfma_f32_16x16x32_bf16 v[8:11], a[0:3], {vr(RB+4*q,4)}, {'0' if q == 0 else 'v[8:11]'}")
            for d in range(4):
                r = RB + 4 * q + d
                e(f"v_dot2_f32_bf16 v{12+d}, v{r}, v{r}, {'0' if q == 0 else 'v%d' % (12+d)}")
        if u == 0: wissue()
        e("v_add_f32 v12, v12, v13\nv_add_f32 v14, v14, v15\nv_add_f32 v12, v12, v14")
        e("v_mov_b32 v13, v12\nv_permlane32_swap_b32 v12, v13\nv_add_f32 v12, v12, v13")
        e("v_mov_b32 v13, v12\nv_permlane16_swap_b32 v12, v13\nv_add_f32 v12, v12, v13")
        e(f"v_mul_f32 v8, {fbits(1/512):#x}, v8\nv_mul_f32 v12, {fbits(1/512):#x}, v12")
        e(f"v_fma_f32 v12, -v8, v8, v12\nv_max_f32 v12, 0, v12\nv_add_f32 v12, {fbits(1e-5):#x}, v12\nv_rsq_f32 v144, v12")
        e("v_mul_f32 v146, -v8, v144".replace("v_mul_f32 v146, -v8, v144", "v_mul_f32_e64 v146, -v8, v144"))
        if OPT.get('tl2') and u == 0:
            e(f"s_cmp_eq_u32 s{sRound}, 0\ns_cbranch_scc0 L_tlb"); TL(9, 32); e("L_tlb:")
        k = 0
        for wp in range(4):
            for tp in range(4):
                oq = 152 + 4 * ((wp * 4 + tp) & 1)
                for r in range(4):
                    src = RB + (wp * 4 + r) * 4 + tp
                    t = 148 + 2 * (k & 1); k += 1
                    e(f"v_lshlrev_b32 v{t}, 16, v{src}\nv_and_b32 v{t+1}, 0xffff0000, v{src}")
                    e(f"v_pk_fma_f32 v[{t}:{t+1}], v[{t}:{t+1}], v[144:145], v[146:147] op_sel_hi:[1,0,0]")
                    e(f"v_cvt_pk_bf16_f32 v{oq+r}, v{t}, v{t+1}")
                e(f"ds_write_b128 v{vA0}, {vr(oq,4)} offset:{u*16384+(wp*4+tp)*1024}")
    e("L_ln_end:\ns_waitcnt vmcnt(24)\nv_accvgpr_read_b32 v8, a4")
    confirm_check(42, 8, 10)
    e(f"s_lshr_b32 s80, s{S_IDX}, 5\ns_or_b32 s80, s80, s{sRound}\ns_cmp_eq_u32 s80, 0\ns_cbranch_scc0 L_w_nz")
    e(f"v_mov_b32 v8, 0\nv_mov_b32 v9, 0\nv_mov_b32 v10, 0\nv_mov_b32 v11, 0\ns_lshl_b32 s80, s{S_WAVE}, 12\ns_add_u32 s81, s80, {WS_FLAG}\ns_cmp_eq_u32 s{S_IDX}, 0\ns_cselect_b32 s81, s81, {OOB:#x}")
    for i in range(4): e(f"buffer_store_dwordx4 v[8:11], v{vL16}, {WS}, s81 offen offset:{i*1024} sc1")
    e(f"v_mov_b32 v12, {SENT:#x}\nv_mov_b32 v13, v12\nv_mov_b32 v14, v12\nv_mov_b32 v15, v12\ns_lshl_b32 s81, s{S_IDX}, 14\ns_add_u32 s81, s81, s80\ns_add_u32 s81, s81, {WS_MH:#x}")
    for i in range(4): e(f"buffer_store_dwordx4 v[12:15], v{vL16}, {WS}, s81 offen offset:{i*1024} sc1")
    e(f"s_waitcnt vmcnt(0)\ns_barrier\ns_cmp_eq_u32 s{S_WAVE}, 0\ns_cbranch_scc0 L_w_nz")
    e(f"s_mov_b64 exec, 1\nv_mov_b32 v9, 1\nglobal_atomic_add v8, v9, s[{P_DBG}:{P_DBG+1}] offset:8\ns_mov_b64 exec, -1")
    e("L_w_nz:")
    e("L_gemm:")
    if OPT.get('tl'):
        e(f"s_cmp_eq_u32 s{sRound}, 0\ns_cbranch_scc0 L_tl1"); TL(2, 32); e("L_tl1:")
    for i in range(256): e(f"v_accvgpr_write_b32 a{i}, 0")
    e(f"v_mov_b32 v{vA0}, v{vL16}\nv_add_u32 v{vA1}, 0x10000, v{vL16}")
    e(f"s_mov_b32 s{sBlk}, 0\ns_mov_b32 s{sCnt}, 1")
    e("s_waitcnt lgkmcnt(0)\ns_barrier")
    e(f"s_cmp_eq_u32 s{sPass}, 27\ns_cselect_b32 s80, s{S_WAVE}, 0\ns_cmp_eq_u32 s{sType}, 2\ns_cselect_b32 s80, s80, 0\ns_cmp_ge_u32 s80, 2\ns_cbranch_scc1 L_epi")
    def xnread(T, jloc, base=16):
        return f"ds_read_b128 {vr(base+4*T,4)}, v{vA0 if T < 4 else vA1} offset:{(T&3)*16384+jloc*1024}"
    def perm(ring, t, rp, msk=1):
        return f"v_perm_b32 v{WF+4*(t&msk)+rp}, v{ring+4*(2*rp+1)+(t>>1)}, v{ring+4*(2*rp)+(t>>1)}, s{sHi if t&1 else sLo}"
    if OPT.get('tl2'):
        e(f"s_cmp_eq_u32 s{sRound}, 0\ns_cbranch_scc0 L_tlc"); TL(10, 32); e("s_waitcnt vmcnt(0)\nL_tlc:")
    if OPT.get('clk'): e("s_memtime s[92:93]\ns_memrealtime s[94:95]\ns_waitcnt lgkmcnt(0)")
    for T in range(8): e(xnread(T, 0))
    e("s_waitcnt vmcnt(16)")
    for rp in range(4): e(perm(RING[0], 0, rp)); e(perm(RING[0], 1, rp))
    e("s_waitcnt lgkmcnt(0)")
    e(f"s_cmp_eq_u32 s{sHalf}, 0\ns_cbranch_scc0 L_halfsel\ns_cmp_eq_u32 s{sType}, 1\ns_cbranch_scc1 L_loopB8\ns_branch L_loopA8")
    e(f"L_halfsel:\ns_cmp_eq_u32 s{sType}, 1\ns_cbranch_scc1 L_loopB4")
    for ori, NT in (("A", 4), ("B", 4), ("A", 8), ("B", 8)):
        e(f"L_loop{ori}{NT}:")
        if OPT.get('tl3') is not None:
            e(f"s_cmp_eq_u32 s{sRound}, {OPT['tl3']}\ns_cbranch_scc0 L_tle{ori}{NT}\ns_memrealtime s[98:99]\ns_lshl_b32 s97, s{S_IDX}, 6\ns_lshl_b32 s96, s{sCnt}, 2\ns_add_u32 s97, s97, s96\ns_add_u32 s97, s97, {WS_STAMP + 0x8000 + 32*64 + 28:#x}\ns_waitcnt lgkmcnt(0)\nv_mov_b32 v15, s98\nbuffer_store_dword v15, off, {WS}, s97\nL_tle{ori}{NT}:")
        e(f"s_add_u32 s{sBlkN}, s{sBlk}, s{s128}\ns_cmp_lt_u32 s{sCnt}, s{sNB}\ns_cselect_b32 s{sBlkN}, s{sBlkN}, {OOB:#x}")
        for tp in range(4):
            ring = RING[tp]; nring = RING[(tp + 1) & 3]; lring = RING[(tp + 3) & 3]
            tpp = (tp + 3) & 3
            base = sBlk if tp == 0 else sBlkN
            xc, xn_ = XN + (32 if tp & 1 else 0), XN + (0 if tp & 1 else 32)
            if tpp: e(f"s_add_u32 s{sB}, s{base}, s{s2RS[tpp]}")
            else: e(f"s_mov_b32 s{sB}, s{base}")
            for t in range(8):
                for T in range(NT):
                    a = ar(acc(t, T), 4); w = vr(WF + 4 * (t & (1 if NT == 8 else 3)), 4); x = vr(xc + 4 * T, 4)
                    e(f"v_mfma_f32_16x16x32_bf16 {a}, {w if ori == 'A' else x}, {x if ori == 'A' else w}, {a}")
                    li = None
                    if NT == 8 and 1 <= t <= 4 and T in (0, 6): li = (t - 1) * 2 + (T == 6)
                    if NT == 4 and t < 4 and T in (0, 2): li = 2 * t + (T == 2)
                    if li is not None:
                        e(f"s_add_u32 s{sT0}, s{sB}, s{sRow[li]}")
                        e(f"buffer_load_dwordx4 {vr(lring+4*li,4)}, v{vW}, {W}, s{sT0} offen")
                    if t == (7 if NT == 8 else 6) and T == 0: e("s_waitcnt vmcnt(16)")
                    if NT == 8 and T == 7 and t < 7: e(xnread(t, tp + 1, xn_))
                    if NT == 8 and T == 1 and t == 6: e(xnread(7, tp + 1, xn_))
                    if NT == 4 and T == 1 and t < 4: e(xnread(t, tp + 1, xn_))
                    if t == 7 and T == NT - 1: e("s_waitcnt lgkmcnt(0)")
                    if NT == 8 and 2 <= T < 6: e(perm(ring, t + 1, T - 2) if t < 7 else perm(nring, 0, T - 2))
                    if NT == 4: e(perm(ring, t + 2, T, 3) if t < 6 else perm(nring, t - 6, T, 3))
        e(f"v_add_u32 v{vA0}, 0x1000, v{vA0}\nv_add_u32 v{vA1}, 0x1000, v{vA1}")
        e(f"s_mov_b32 s{sBlk}, s{sBlkN}\ns_add_u32 s{sCnt}, s{sCnt}, 1\ns_cmp_le_u32 s{sCnt}, s{sNB}\ns_cbranch_scc1 L_loop{ori}{NT}")
        if (ori, NT) != ("B", 8): e("s_branch L_epi")
    e("L_epi:")
    if OPT.get('tl'):
        e(f"s_cmp_eq_u32 s{sRound}, 0\ns_cbranch_scc0 L_tl2"); TL(3, 32); e("L_tl2:")
    e("s_waitcnt vmcnt(0) lgkmcnt(0)\ns_nop 7")
    if OPT.get('clk'):
        e(f"s_cmp_eq_u32 s{sRound}, 0\ns_cbranch_scc0 L_clk\ns_memtime s[96:97]\ns_memrealtime s[98:99]\ns_waitcnt lgkmcnt(0)\ns_sub_u32 s96, s96, s92\ns_sub_u32 s98, s98, s94")
        e(f"s_lshl_b32 s97, s{S_IDX}, 6\ns_add_u32 s97, s97, {WS_STAMP + 0x8000 + 32*64 + 32:#x}\nv_mov_b32 v15, s96\nbuffer_store_dword v15, off, {WS}, s97\nv_mov_b32 v15, s98\nbuffer_store_dword v15, off, {WS}, s97 offset:4\nv_mov_b32 v15, s{sHalf}\nbuffer_store_dword v15, off, {WS}, s97 offset:8\nL_clk:")
    cnt = [0]
    def thr(first_half=False):
        if OPT.get('thr') is not None and not (first_half and OPT.get('thrh')): e(f"s_waitcnt vmcnt({OPT['thr']})")
    def pack(pairs, scale=None):
        k = cnt[0]; cnt[0] += 1
        tb = 64 + 8 * (k & 1); q = 80 + 4 * (k & 3)
        for r, (a, b) in enumerate(pairs):
            e(f"v_accvgpr_read_b32 v{tb+2*r}, a{a}\nv_accvgpr_read_b32 v{tb+2*r+1}, a{b}")
        for r in range(4):
            if scale: e(f"v_pk_mul_f32 v[{tb+2*r}:{tb+2*r+1}], v[{tb+2*r}:{tb+2*r+1}], {scale}")
        for r in range(4): e(f"v_cvt_pk_bf16_f32 v{q+r}, v{tb+2*r}, v{tb+2*r+1}")
        return q
    e(f"s_lshl_b32 s82, s{sTile}, {RS_+2}\ns_mul_i32 s83, s78, {RHS:#x}\ns_add_u32 s82, s82, s83\ns_lshr_b32 s83, s{sHalf}, 1\ns_lshl_b32 s83, s83, {RS_+1}\ns_add_u32 s82, s82, s83")
    e(f"s_cmp_eq_u32 s{sType}, 1\ns_cbranch_scc1 L_epiV\ns_cmp_eq_u32 s{sType}, 2\ns_cbranch_scc1 L_epiF1")
    e(f"s_cmp_eq_u32 s{sType}, 3\ns_cbranch_scc1 L_epiF2\ns_cmp_eq_u32 s{sType}, 4\ns_cbranch_scc1 L_epiQ")
    for nm, base, fl in (("K", WS_K, F_KV), ("Q", WS_Q, F_REST)):
        e(f"L_epi{nm}:")
        if nm == "Q": e(f"s_mov_b32 s84, {CSCALE:#x}\ns_mov_b32 s85, {CSCALE:#x}\ns_lshr_b32 s82, s82, 1")
        for T in range(8):
            if T == 4 and nm == "K": e(f"s_cmp_eq_u32 s{sHalf}, 0\ns_cbranch_scc0 L_kvdone")
            e(f"s_add_u32 s83, s82, {base + (T>>1)*(SEGS if nm == 'K' else SEGS//2) + (T&1)*4096:#x}")
            for j in range(4):
                q = pack([(acc(2*j, T)+r, acc(2*j+1, T)+r) for r in range(4)], "s[84:85]" if nm == "Q" else None)
                e(f"buffer_store_dwordx4 {vr(q,4)}, v{vL16 if nm == 'Q' else 0}, {WS}, s83 offen offset:{j*1024} sc1"); thr(T < 4 and nm == "K")
        e(f"s_mov_b32 s83, {WS_FLAG+fl:#x}\ns_branch L_done")
    e("L_epiV:")
    for sg in range(4):
        if sg == 2: e(f"s_cmp_eq_u32 s{sHalf}, 0\ns_cbranch_scc0 L_kvdone")
        for t in range(8):
            if (t & 3) == 0: e(f"s_add_u32 s83, s82, {WS_V + sg*SEGS + (t>>2)*4096:#x}")
            a0, a1 = acc(t, 2*sg), acc(t, 2*sg+1)
            q = pack([(a0, a0+1), (a0+2, a0+3), (a1, a1+1), (a1+2, a1+3)])
            e(f"buffer_store_dwordx4 {vr(q,4)}, v{vL16}, {WS}, s83 offen offset:{(t&3)*1024} sc1"); thr(sg < 2)
    e(f"L_kvdone:\ns_mov_b32 s83, {WS_FLAG+F_KV:#x}\ns_branch L_done")
    e("L_epiF2:")
    e(f"s_sub_u32 s83, s{sPass}, 24\ns_lshl_b32 s83, s83, 21\ns_lshl_b32 s84, s{sTile}, 17\ns_add_u32 s83, s83, s84\ns_lshl_b32 s84, s{S_WAVE}, 12\ns_add_u32 s82, s83, s84")
    for T in range(8):
        e(f"s_add_u32 s83, s82, {WS_FP + T*16384:#x}")
        for r in range(4):
            q = pack([(acc(2*tp, T)+r, acc(2*tp+1, T)+r) for tp in range(4)])
            e(f"buffer_store_dwordx4 {vr(q,4)}, v{vL16}, {WS}, s83 offen offset:{r*1024} sc1"); thr()
    e(f"s_mov_b32 s83, {WS_FLAG+F_REST:#x}\ns_branch L_done")
    e("L_epiF1:")
    srd(48, P_B1, 3584)
    e(f"v_lshlrev_b32 v8, 6, v{vG}")
    for r in range(4): e(f"buffer_load_dwordx4 {vr(16+4*r,4)}, v8, {AUX}, s79 offen offset:{r*16}")
    e(f"s_sub_u32 s83, s{sPass}, 24\ns_lshl_b32 s83, s83, 19\ns_lshl_b32 s79, s{S_WAVE}, 8\ns_add_u32 s79, s79, s83")
    e(f"s_mov_b32 s{sType}, 3\ns_mov_b32 s44, s{P_W2}\ns_mov_b32 s45, s{P_W2+1}\ns_mov_b32 s46, {1792*1024}\ns_mov_b32 s47, 0x20000\ns_mov_b32 s{sRS}, 1024")
    e(f"s_cmp_eq_u32 s{sPass}, 27\ns_cselect_b32 s{sNB}, 2, 4")
    wsetup()
    e("s_waitcnt vmcnt(24)")
    for r in range(4):
        for d in range(4):
            e(f"v_lshlrev_b32 v{32+r*8+2*d}, 16, v{16+4*r+d}\nv_and_b32 v{33+r*8+2*d}, 0xffff0000, v{16+4*r+d}")
    e(f"s_lshl_b32 s80, s{S_WAVE}, 12\nv_add_u32 v{vA0}, s80, v{vL16}\nv_add_u32 v{vA1}, 0x10000, v{vA0}")
    e("s_barrier")
    k = 0
    for T in range(8):
        for tp in range(4):
            tb = 64 + 16 * (k & 1); q = 96 + 4 * (k & 1); k += 1
            for r in range(4):
                e(f"v_accvgpr_read_b32 v{tb+2*r}, a{acc(2*tp,T)+r}\nv_accvgpr_read_b32 v{tb+2*r+1}, a{acc(2*tp+1,T)+r}")
            for r in range(4):
                b = 32 + r * 8 + 2 * tp
                e(f"v_pk_add_f32 v[{tb+2*r}:{tb+2*r+1}], v[{tb+2*r}:{tb+2*r+1}], v[{b}:{b+1}]")
            for r in range(8): e(f"v_max_f32 v{tb+r}, 0, v{tb+r}")
            for r in range(4): e(f"v_pk_mul_f32 v[{tb+2*r}:{tb+2*r+1}], v[{tb+2*r}:{tb+2*r+1}], v[{tb+2*r}:{tb+2*r+1}]")
            for r in range(4): e(f"v_cvt_pk_bf16_f32 v{q+r}, v{tb+2*r}, v{tb+2*r+1}")
            e(f"ds_write_b128 v{vA0 if T < 4 else vA1}, {vr(q,4)} offset:{(T&3)*16384+tp*1024}")
    e("s_branch L_gemm")
    e("L_done:")
    e(f"s_lshl_b32 s84, s{sTile}, 6\ns_add_u32 s83, s83, s84")
    if OPT.get('tl2'):
        e(f"s_cmp_eq_u32 s{sRound}, 0\ns_cbranch_scc0 L_tld"); TL(11, 32); e("L_tld:")
    e("s_waitcnt vmcnt(0)\ns_barrier")
    if OPT.get('rb'):
        e(f"s_cmp_gt_u32 s{sType}, 1\ns_cbranch_scc1 L_rb_end\ns_lshl_b32 s85, s{sType}, 13\ns_add_u32 s85, s85, s82\ns_add_u32 s85, s85, {WS_K:#x}")
        for sg in range(4):
            for k in range(8):
                if k == 4: e("s_add_u32 s85, s85, 4096")
                e(f"buffer_load_dwordx4 {vr(64+4*k,4)}, v{vL16}, {WS}, s85 offen offset:{(k&3)*1024} sc1")
            e(f"s_add_u32 s85, s85, {SEGS-4096}")
        e("L_rb_end:")
    e(f"s_cmp_eq_u32 s{S_WAVE}, 0\ns_cbranch_scc0 L_done2")
    wait_flags_ready(2, 8)
    e(f"s_cmp_eq_u32 s{sHalf}, 0\ns_cselect_b32 s84, 2, 1\ns_mov_b64 exec, 1\nv_mov_b32 v8, s84\nbuffer_atomic_add v8, off, {WS}, s83\ns_mov_b64 exec, -1")
    e("L_done2:")
    if OPT.get('tl'):
        e(f"s_cmp_eq_u32 s{sRound}, 0\ns_cbranch_scc0 L_tl3"); TL(4, 32); e("L_tl3:")
    e(f"s_add_u32 s{sRound}, s{sRound}, 1\ns_cmp_lt_u32 s{sRound}, {OPT.get('rounds', 3)}\ns_cbranch_scc1 L_task\nL_g1_end:")
    if OPT['skip_g3']:
        e("s_waitcnt vmcnt(0)\ns_branch L_end")
        return
    sH, sSeg, sSH, sTq, sEh = 52, 53, 54, 55, 56
    TL(5, 32)
    OUT, B2 = "s[44:47]", "s[48:51]"
    WO = 128
    e(f"s_and_b32 s{sH}, s{S_IDX}, 31\ns_lshr_b32 s{sSeg}, s{S_IDX}, 5\ns_and_b32 s{sTq}, s{S_WAVE}, 1\ns_lshr_b32 s{sEh}, s{S_WAVE}, 1")
    e(f"v_lshlrev_b32 v8, 4, v{vC}\nv_lshrrev_b32 v9, 1, v{vG}\nv_lshl_add_u32 v8, v9, 19, v8\nv_and_b32 v9, 1, v{vG}\nv_lshl_add_u32 v8, v9, 17, v8")
    e(f"s_lshl_b32 s78, s{S_WAVE}, 14\ns_lshl_b32 s79, s{sH}, 8\ns_add_u32 s78, s78, s79\nv_add_u32 v8, s78, v8")
    e(f"s_lshl_b32 s78, s{S_WAVE}, 12\nv_add_u32 v9, s78, v{vL16}\nv_add_u32 v10, 0x10000, v9\ns_lshl_b32 s78, s{S_WAVE}, 15\nv_add_u32 v11, s78, v{vL16}")
    for mi, ptr in enumerate((P_WK, P_WV)):
        srd(44, ptr, 0x400000)
        for par in range(2):
            for j2 in range(8):
                for hb in range(2):
                    row = 256 * par + 128 * (j2 >> 2) + 32 * (j2 & 1) + 8 * ((j2 & 3) >> 1) + hb
                    e(f"s_mov_b32 s78, {row*8192:#x}\nbuffer_load_dwordx4 {vr(24+64*par+(j2*2+hb)*4,4)}, v8, s[44:47], s78 offen")
        e("s_waitcnt lgkmcnt(0)\ns_barrier")
        k = 0
        for par in range(2):
            e(f"s_waitcnt vmcnt({16*(1-par)})")
            raw = 24 + 64 * par
            for t in range(8):
                for hf in range(2):
                    q = 160 + 4 * (k % 3); k += 1
                    for jl in range(4):
                        j2 = hf * 4 + jl
                        e(f"v_perm_b32 v{q+jl}, v{raw+(j2*2+1)*4+(t>>1)}, v{raw+(j2*2)*4+(t>>1)}, s{sHi if t&1 else sLo}")
                    e(f"ds_write_b128 v{9 if t < 4 else 10}, {vr(q,4)} offset:{(t&3)*16384+par*2048+hf*1024}")
        e("s_waitcnt lgkmcnt(0)\ns_barrier")
        for f in range(32): e(f"ds_read_b128 {ar(128*mi+4*f,4)}, v11 offset:{f*1024}")
    srd(44, P_WO, 0x400000)
    e(f"v_lshlrev_b32 v8, 4, v{vC}\nv_lshl_add_u32 v8, v{vG}, 15, v8")
    e(f"s_lshl_b32 s78, s{sH}, 17\ns_lshl_b32 s79, s{S_WAVE}, 8\ns_add_u32 s78, s78, s79")
    for half in range(2):
        for jj in range(2):
            for i in range(8):
                row = 8 * (i >> 1) + (i & 1) + 2 * (2 * half + jj)
                e(f"s_add_u32 s79, s78, {row*1024}\nbuffer_load_dwordx4 {vr(24+32*jj+4*i,4)}, v8, s[44:47], s79 offen")
        for jj in range(2):
            e(f"s_waitcnt vmcnt({8*(1-jj)})")
            for t in range(8):
                for rp in range(4):
                    rb = 24 + 32 * jj
                    e(f"v_perm_b32 v{WO+((2*half+jj)*8+t)*4+rp}, v{rb+4*(2*rp+1)+(t>>1)}, v{rb+4*(2*rp)+(t>>1)}, s{sHi if t&1 else sLo}")
    srd(44, P_OUT, 2048 * 1024)
    srd(48, P_B2, 1024)
    sRo, sCo = 57, 58
    e(f"s_lshr_b32 s78, s{sH}, 2\ns_lshl_b32 s78, s78, 2\ns_add_u32 s78, s78, s{S_WAVE}\ns_lshl_b32 s78, s78, 10\ns_and_b32 s79, s{sH}, 3\ns_lshl_b32 s{sRo}, s79, 8\ns_add_u32 s{sRo}, s{sRo}, s78")
    e(f"s_lshr_b32 s78, s{sH}, 3\ns_lshl_b32 s{sCo}, s78, 8\ns_lshl_b32 s79, s79, 6\ns_add_u32 s{sCo}, s{sCo}, s79\ns_lshl_b32 s79, s{S_WAVE}, 4\ns_add_u32 s{sCo}, s{sCo}, s79")
    e(f"v_lshlrev_b32 v11, 4, v{vC}\nv_lshl_add_u32 v9, v{vG}, 15, v11\nv_lshl_add_u32 v10, v{vG}, 21, v11\nv_lshlrev_b32 v11, 10, v{vC}\nv_lshl_add_u32 v12, v{vG}, 3, v11")
    e(f"v_mov_b32 v13, {OOB:#x}\nv_cmp_eq_u32 vcc, 0, v{vG}\nv_cndmask_b32 v11, v13, v11, vcc\nv_cndmask_b32 v8, v13, 0, vcc\nv_cmp_gt_u32 vcc, 2, v{vG}\nv_cndmask_b32 v12, v13, v12, vcc")
    e(f"s_lshl_b32 s78, s{sTq}, 4\nv_lshlrev_b32 v13, 2, v{vG}\nv_sub_u32 v13, v{vC}, v13\nv_add_u32 v13, s78, v13")
    for d in range(4):
        e(f"v_mov_b32 v{16+d}, 0\nv_mov_b32 v14, 0x3f80\nv_cmp_eq_u32 vcc, {2*d}, v{vC}\nv_cndmask_b32 v{16+d}, v{16+d}, v14, vcc")
        e(f"v_mov_b32 v14, 0x3f800000\nv_cmp_eq_u32 vcc, {2*d+1}, v{vC}\nv_cndmask_b32 v{16+d}, v{16+d}, v14, vcc\nv_mov_b32 v{20+d}, 0x3f803f80")
    e(f"v_lshrrev_b32 v14, 2, v{vC}\nv_lshlrev_b32 v14, 7, v14\nv_lshl_add_u32 v14, v{vG}, 5, v14\nv_and_b32 v15, 3, v{vC}\nv_lshl_add_u32 v14, v15, 2, v14\nv_bfe_u32 v15, v{vC}, 2, 1\nv_lshlrev_b32 v15, 6, v15\nv_xor_b32 v14, v14, v15")
    e(f"v_and_b32 v15, 2, v{vC}\nv_mov_b32 v{vG}, 0x4444\nv_mov_b32 v{vC}, 0xeeee\nv_cmp_eq_u32 vcc, 0, v15\nv_cndmask_b32 v{vG}, v{vC}, v{vG}, vcc")
    e(f"s_lshl_b32 s78, s{S_WAVE}, 9\ns_add_u32 s78, s78, 16384\nv_add_u32 v{vC}, s78, v14\ns_lshl_b32 s78, s{S_WAVE}, 11\ns_add_u32 m0, s78, 8192")
    vIDX, vXW = vG, vC
    wait_flags_ready(3, 14)
    e(f"s_mov_b32 s59, {SENT:#x}\ns_mov_b32 s60, {INF:#x}\ns_mov_b32 s61, 0\ns_mov_b32 s62, {OOB:#x}\ns_lshl_b32 s65, s{sSeg}, {20 if OPT.get('apfull') else 21}\ns_add_u32 s65, s65, {WS_AP:#x}\ns_waitcnt lgkmcnt(0)\ns_barrier")
    SEL, ONES = "v[16:19]", "v[20:23]"
    mm = "v_mfma_f32_16x16x32_bf16"; m16 = "v_mfma_f32_16x16x16_bf16"
    e("L_g3:")
    e(f"s_lshl_b32 s{sSH}, s{sSeg}, 5\ns_add_u32 s{sSH}, s{sSH}, s{sH}")
    e(f"s_lshr_b32 s78, s{sSeg}, 2\nL_g3_rdy:\ns_bitcmp1_b32 s61, s78\ns_cbranch_scc1 L_g3_rdyok")
    e(f"s_mov_b32 s79, {WS_FLAG+F_KV:#x}\nv_lshlrev_b32 v14, 2, v{vL16}\nbuffer_load_dword v14, v14, {WS}, s79 offen sc1\ns_waitcnt vmcnt(0)")
    e("v_cmp_le_u32 vcc, 24, v14\ns_lshr_b32 s61, vcc_lo, 16\nv_cmp_le_u32 vcc, 32, v14\ns_and_b32 s61, s61, vcc_lo")
    fail_if_zero(4)
    e("s_sleep 16\ns_branch L_g3_rdy\nL_g3_rdyok:")
    e(f"s_mul_i32 s86, s{sH}, {RHS:#x}\ns_lshl_b32 s80, s{sSeg}, {RS_}\ns_add_u32 s86, s86, s80")
    e(f"s_mov_b32 s80, s86\ns_lshl_b32 s81, s{sTq}, 12\ns_lshr_b32 s82, s80, 1\ns_add_u32 s81, s81, s82\ns_add_u32 s81, s81, {WS_Q:#x}")
    for j in range(4): e(f"buffer_load_dwordx4 {vr(24+4*j,4)}, v{vL16}, {WS}, s81 offen offset:{j*1024} sc1")
    e(f"s_add_u32 s81, s80, {WS_K:#x}\ns_add_u32 s82, s80, {WS_K+4096:#x}")
    for kt in range(2):
        for j in range(4): e(f"buffer_load_dwordx4 {vr(40+16*kt+4*j,4)}, v0, {WS}, s{81+kt} offen offset:{j*1024} sc1")
    e(f"s_lshl_b32 s81, s{sEh}, 12\ns_add_u32 s81, s81, s80\ns_add_u32 s81, s81, {WS_V:#x}")
    for t in range(4): e(f"buffer_load_dwordx4 {vr(72+4*t,4)}, v{vL16}, {WS}, s81 offen offset:{t*1024} sc1")
    e(f"s_bfe_u32 s84, s{sH}, 0x10002\ns_lshl_b32 s83, s{sSeg}, 1\ns_add_u32 s83, s83, s84\ns_lshl_b32 s83, s83, 14")
    e(f"s_lshr_b32 s84, s{sH}, 3\ns_lshl_b32 s84, s84, 2\ns_add_u32 s84, s84, s{S_WAVE}\ns_lshl_b32 s84, s84, 10\ns_and_b32 s85, s{sH}, 3\ns_lshl_b32 s85, s85, 8\ns_add_u32 s85, s85, s84")
    e(f"s_add_u32 s85, s85, s83\ns_add_u32 s85, s85, {WS_FP:#x}\ns_add_u32 s83, s83, s{sCo}")
    e(f"buffer_load_dwordx4 v[88:91], v11, {X}, s83 offen\nbuffer_load_dwordx4 v[92:95], v8, {B2}, s{sCo} offen\nbuffer_load_dwordx4 v[96:99], v10, {WS}, s85 offen sc1")
    def reduce(code):
        e(f"L_rp{code}:\nv_lshrrev_b32 v14, 2, v{vL16}\nbuffer_load_dword v14, v14, {WS}, s62 offen sc1\ns_waitcnt vmcnt(0)\nv_cmp_eq_u32 vcc, 1, v14\ns_cmp_eq_u32 vcc_lo, -1\ns_cbranch_scc1 L_rp{code}_ok")
        fail_if_zero(code)
        e(f"s_branch L_rp{code}\nL_rp{code}_ok:")
        if OPT.get('tlg') and code == 17: TLV[0] = 15; TL(11, 32)
        for hf in range(2):
            for i in range(4): e(f"buffer_load_dwordx4 {vr(100+4*i,4)}, v9, {WS}, s64 offen sc1\ns_add_u32 s64, s64, 0x20000")
            for i in range(4): e(f"s_waitcnt vmcnt({3-i})\n{mm} v[2:5], {SEL}, {vr(100+4*i,4)}, v[2:5]")
        e("v_cvt_pk_bf16_f32 v14, v2, v3\nv_cvt_pk_bf16_f32 v15, v4, v5")
        e(f"buffer_store_dwordx2 v[14:15], v12, {OUT}, s63 offen")
    e(f"s_cmp_eq_u32 s62, {OOB:#x}\ns_cbranch_scc1 L_g3_first")
    reduce(7)
    if OPT.get('wb', 1):
        e(f"s_cmp_lt_u32 s{sSeg}, 57\ns_cbranch_scc1 L_g3_first\ns_or_b32 s78, s{sH}, s{S_WAVE}\ns_cmp_eq_u32 s78, 0\ns_cbranch_scc0 L_g3_first\nbuffer_wbl2 sc1")
    e("L_g3_first:")
    e("s_waitcnt vmcnt(7)")
    for kt in range(2):
        for j in range(4):
            s = vr(108 + 4 * kt, 4)
            e(f"{mm} {s}, {vr(40+16*kt+4*j,4)}, {vr(24+4*j,4)}, {'0' if j == 0 else s}")
    e("s_waitcnt vmcnt(0)")
    e(f"{mm} v[2:5], {SEL}, v[88:91], 0\n{mm} v[2:5], {SEL}, v[92:95], v[2:5]\n{mm} v[2:5], {SEL}, v[96:99], v[2:5]")
    e(f"v_mov_b32 v15, {fbits(-3.0e38):#x}")
    for kt in range(2):
        for r in range(4):
            e(f"v_cmp_le_i32 vcc, {16*kt+r}, v13\nv_cndmask_b32 v{108+4*kt+r}, v15, v{108+4*kt+r}, vcc")
    e("v_max3_f32 v124, v108, v109, v110\nv_max3_f32 v125, v111, v112, v113\nv_max3_f32 v124, v124, v114, v115\nv_max_f32 v124, v124, v125")
    for i in range(8): e(f"v_mov_b64 v[{88+2*i}:{89+2*i}], 0")
    e(f"s_lshl_b32 s80, s{sSeg}, 13\ns_add_u32 s80, s80, {WS_MH:#x}\ns_sub_u32 s79, s80, 8192\ns_cmp_eq_u32 s{sSeg}, 0\ns_cbranch_scc1 L_g3_m")
    e(f"L_g3_pre:\nbuffer_load_dword v14, off, {WS}, s79 sc1\ns_waitcnt vmcnt(0)\nv_cmp_eq_u32 vcc, s59, v14\ns_cbranch_vccz L_g3_m")
    fail_if_zero(6)
    e("s_sleep 4\ns_branch L_g3_pre")
    e(f"L_g3_m:\ns_lshl_b32 s79, s{S_WAVE}, 11\ns_add_u32 s79, s79, s80")
    e(f"L_g3_mp:\nbuffer_load_dwordx4 v{vL16}, {WS}, s79 offen sc1 lds\nbuffer_load_dwordx4 v{vL16}, {WS}, s79 offen offset:1024 sc1 lds\ns_waitcnt vmcnt(0)\ns_barrier")
    for k in range(8): e(f"ds_read_b128 {vr(40+4*k,4)}, v{vL16} offset:{8192+k*1024}")
    e("s_waitcnt lgkmcnt(0)\nv_max3_i32 v14, v40, v41, v42")
    for k in range(43, 71, 2): e(f"v_max3_i32 v14, v14, v{k}, v{k+1}")
    e("v_max_i32 v14, v14, v71\nv_cmp_le_i32 vcc, s60, v14\ns_cbranch_vccnz L_g3_mslow\nL_g3_mok:")
    if OPT.get('tlg'): TLV[0] = 15; TL(8, 32)
    for mi in range(2):
        for tt in range(2):
            for sg in range(8):
                e(f"v_smfmac_f32_16x16x64_bf16 {vr(88+8*mi+4*tt,4)}, {vr(40+4*sg,4)}, {ar(128*mi+(tt*8+sg)*8,8)}, v{vIDX}")
                if (mi, tt, sg) == (1, 0, 3):
                    e("v_add_f32 v88, v88, v90\nv_add_f32 v89, v89, v91\nv_add_f32 v92, v92, v94\nv_add_f32 v93, v93, v95\nv_cvt_pk_bf16_f32 v88, v88, v92\nv_cvt_pk_bf16_f32 v89, v89, v93")
                    e(f"ds_write2_b32 v{vXW}, v88, v89 offset0:0 offset1:4")
    e(f"s_lshl_b32 s78, s{S_WAVE}, 9\nv_lshrrev_b32 v15, 1, v{vL16}\nv_add_u32 v14, s78, v15")
    e("v_add_f32 v96, v96, v98\nv_add_f32 v97, v97, v99\nv_add_f32 v100, v100, v102\nv_add_f32 v101, v101, v103\nv_cvt_pk_bf16_f32 v96, v96, v97\nv_cvt_pk_bf16_f32 v97, v100, v101")
    e(f"ds_write_b64 v14, v[96:97] offset:18432\ns_lshl_b32 s78, s{sEh}, 10\nv_add_u32 v15, s78, v15\nv_and_b32 v14, 0x1ff, v0\ns_waitcnt lgkmcnt(0)\ns_barrier")
    for j in range(4): e(f"ds_read_b128 {vr(88+4*j,4)}, v14 offset:{16384+j*512}")
    for jj in range(2): e(f"ds_read_b64 {vr(104+2*jj,2)}, v15 offset:{18432+jj*512}")
    for j in range(4):
        e(f"s_waitcnt lgkmcnt({5-j})\n{mm} v[116:119], {vr(88+4*j,4)}, {vr(24+4*j,4)}, {'0' if j == 0 else 'v[116:119]'}")
    e("v_mov_b32 v45, 0\nv_mov_b32 v46, 0")
    e("v_max3_f32 v124, v124, v116, v117")
    e("v_mov_b32 v125, v124\nv_permlane32_swap_b32 v124, v125\nv_max_f32 v124, v124, v125")
    e("v_mov_b32 v125, v124\nv_permlane16_swap_b32 v124, v125\nv_max_f32 v124, v124, v125")
    for r in range(10): e(f"v_sub_f32 v{108+r}, v{108+r}, v124")
    for r in range(10): e(f"v_exp_f32 v{108+r}, v{108+r}")
    for d in range(4): e(f"v_cvt_pk_bf16_f32 v{40+d}, v{108+2*d}, v{109+2*d}")
    e("v_cvt_pk_bf16_f32 v44, v116, v117\nv_cvt_pk_bf16_f32 v47, v116, v117")
    e("s_waitcnt lgkmcnt(0)")
    e(f"{mm} v[120:123], {ONES}, v[40:43], 0")
    for t in range(4): e(f"{mm} {vr(48+4*t,4)}, {vr(72+4*t,4)}, v[40:43], 0")
    e(f"{m16} v[120:123], v[20:21], v[44:45], v[120:123]")
    for t in range(4):
        o = vr(48 + 4 * t, 4)
        e(f"{m16} {o}, {vr(104+2*(t>>1),2)}, {'v[46:47]' if t&1 else 'v[44:45]'}, {o}")
    e("v_rcp_f32 v124, v120")
    for r in range(16): e(f"v_mul_f32 v{48+r}, v{48+r}, v124")
    e(f"s_lshl_b32 s78, s{sTq}, 12\ns_lshl_b32 s79, s{sEh}, 11\ns_add_u32 s78, s78, s79\nv_add_u32 v14, s78, v{vL16}")
    for jj in range(2):
        for r in range(4): e(f"v_cvt_pk_bf16_f32 v{64+4*jj+r}, v{48+8*jj+r}, v{52+8*jj+r}")
        e(f"ds_write_b128 v14, {vr(64+4*jj,4)} offset:{jj*1024}")
    e("s_waitcnt lgkmcnt(0)\ns_barrier")
    if OPT.get('tlg'): TLV[0] = 15; TL(9, 32)
    for q in range(8): e(f"ds_read_b128 {vr(24+4*q,4)}, v{vL16} offset:{q*1024}")
    e(f"s_lshl_b32 s80, s{sH}, 15\ns_lshl_b32 s81, s{S_WAVE}, 13\ns_add_u32 s80, s80, s81\ns_add_u32 s80, s80, s65\ns_add_u32 s81, s80, 4096")
    for tq in range(2):
        for j in range(4):
            e(f"s_waitcnt lgkmcnt({7-(tq*4+j)})")
            for t in range(8):
                a = vr(56 + (tq * 8 + t) * 4, 4)
                e(f"{mm} {a}, {vr(WO+(j*8+t)*4,4)}, {vr(24+(tq*4+j)*4,4)}, {'0' if j == 0 else a}")
    e(f"s_lshl_b32 s62, s{sSeg}, 7\ns_add_u32 s62, s62, {WS_FLAG+F_G3:#x}\ns_lshl_b32 s78, s{sH}, 2\ns_add_u32 s78, s78, s62\ns_cmp_eq_u32 s{S_WAVE}, 0\ns_cselect_b32 s78, s78, {OOB:#x}")
    e(f"s_mov_b32 s63, s83\ns_add_u32 s64, s65, s{sRo}\n{'s_add_u32 s65, s65, 0x700000' if OPT.get('apfull') else 's_xor_b32 s65, s65, 0x100000'}\ns_cmp_eq_u32 s{S_MIX}, 0\ns_cbranch_scc0 L_g3_stx")
    for fl in ("", "sc1"):
        if fl: e("L_g3_stx:")
        for tq in range(2):
            for r in range(4):
                q = 120 + 4 * (r & 1)
                for tp in range(4):
                    e(f"v_cvt_pk_bf16_f32 v{q+tp}, v{56+(tq*8+2*tp)*4+r}, v{56+(tq*8+2*tp+1)*4+r}")
                e(f"buffer_store_dwordx4 {vr(q,4)}, v{vL16}, {WS}, s{80+tq} offen offset:{r*1024} {fl}")
        e("v_mov_b32 v14, 1\ns_waitcnt vmcnt(0)\ns_barrier")
        if OPT.get('tlg'): TLV[0] = 15; TL(10, 32)
        e(f"buffer_store_dword v14, off, {WS}, s78 {fl}")
        if not fl: e("s_branch L_g3_ste")
    e("L_g3_ste:")
    if OPT.get('tl'):
        e(f"s_cmp_lt_u32 s{sSeg}, 7\ns_cbranch_scc0 L_tl4"); TLV[0] = 124; TL(6, 32); e("L_tl4:")
    e(f"s_add_u32 s{sSeg}, s{sSeg}, 7\ns_cmp_lt_u32 s{sSeg}, 64\ns_cbranch_scc1 L_g3")
    reduce(17)
    TL(7, 32)
    if OPT.get('wb', 1): e(f"s_or_b32 s78, s{sH}, s{S_WAVE}\ns_cmp_eq_u32 s78, 0\ns_cbranch_scc0 L_g3_nwb\nbuffer_wbl2 sc1\nL_g3_nwb:")
    e("s_waitcnt vmcnt(0)\ns_branch L_end")
    e("L_g3_mslow:")
    for k in range(40, 72): e(f"v_cmp_eq_u32 vcc, s59, v{k}\ns_cbranch_vccnz L_g3_mre")
    e("s_branch L_g3_mok\nL_g3_mre:")
    fail_if_zero(9)
    e("s_barrier\ns_branch L_g3_mp")
```

```python
def emit(G, mode):
    globals().update(G)
    ST = "sc1" if mode else ""
    Ln = lambda s: f"L_c{mode}_{s}"
    W = "s[40:43]"
    WSTR = 36864
    L_M = 0; L_X = L_M + 8192; L_P = L_X + 4096 + 512; L_O = L_P + 1024; L_W = 16384
    assert L_O + 2048 <= L_W
    M = 0
    AQ0, AQ1, AK0, AK1, AV0, AV1 = 32, 36, 40, 44, 48, 52
    VW = 56; KT = 88; VT = 104; QF = 112
    JUNK = 128
    vIDX, vP8, vSP2, vVW, vXW, vQR, vKR, vPR, vOW, vL16, vRL, vMS, vSEL = range(131, 144)
    vW16 = 18
    WOB = 144
    sStep, sMc, sMn, sMp, sPc, sPp, sSK, sSV, sPF, sMH, sMHp, sFl, sKv = range(44, 57)
    sRd = list(range(57, 65))
    sSENT, sONE, sMLO = 66, 68, 70
    sC, sInf, sLlo, sLrg, sW1k, sLo, sHi, sPW = range(72, 80)
    sT = 80
    sPn, sDl, sRdR, sRdW, sRedo, sOOB, sFlC, sTag = sPW, 95, 65, 90, 91, 88, 89, 87
    WS_RDY = WS_M + 0x8000
    lds_slot = {}
    nb1, nb2 = OPT.get('nb1', 0), OPT.get('nb2', 0)
    vq = [('v', tt, sg) for sg in range(4) for tt in range(2)] + [('v', tt, sg) for tt in range(2) for sg in range(4, 8)]
    qk = lambda sg: [('q', 0, sg), ('q', 1, sg), ('k', 0, sg), ('k', 1, sg)]
    fr = qk(0) + qk(1) + vq[:nb1] + qk(2) + qk(3) + vq[nb1:nb1 + nb2] + [(mt, tt, sg) for mt in 'qk' for tt in range(2) for sg in range(4, 8)]
    vrest = vq[nb1 + nb2:]
    step_ = (len(fr) - 1 - 9) / 7.0
    order = [fr[g] for g in (0, 2, 4, 6)] + [fr[9 + int(round(k * step_))] for k in range(8)]
    order += [('o', 2, 1), ('o', 3, 1), ('o', 4, 1), ('o', 5, 1), ('o', 6, 1), ('o', 7, 1)]
    for i, f in enumerate(order): lds_slot[f] = i
    NQ = 12
    reg = {}
    n = 0
    for mt in 'qkv':
        for tt in range(2):
            for sg in range(8):
                if (mt, tt, sg) not in lds_slot:
                    reg[(mt, tt, sg)] = ('a', 8 * n) if n < 32 else ('v', 224 + 8 * (n - 32)); n += 1
    assert n == 36
    n = 0
    for t in range(8):
        for k in range(2):
            if ('o', t, k) not in lds_slot: reg[('o', t, k)] = ('v', WOB + 8 * n); n += 1
    assert n == 10
    rr = lambda f, o, n: (ar if reg[f][0] == 'a' else vr)(reg[f][1] + o, n)

    e(f"L_chain{mode}:")
    if OPT['skip_chain']:
        e("s_branch L_end"); return
    h = S_IDX; w = S_WAVE
    TLV[0] = 15
    TL(1, 0)
    if OPT.get('tl'): e(f"v_mov_b32 v15, s94\ns_sub_u32 s97, s97, 4\nbuffer_store_dword v15, off, {WS}, s97")
    e(f"v_lshrrev_b32 v1, 4, v0\nv_and_b32 v2, 15, v0")
    e(f"v_lshlrev_b32 v{vL16}, 4, v0")
    e(f"s_lshl_b32 s{sT}, s{w}, 11\nv_add_u32 v{vW16}, s{sT}, v{vL16}")
    e(f"s_lshl_b32 s{sT}, s{w}, 9\nv_lshlrev_b32 v{vP8}, 3, v0\nv_add_u32 v{vP8}, s{sT}, v{vP8}")
    e(f"s_mul_i32 s{sT}, s{w}, {WSTR}\ns_add_u32 s{sT}, s{sT}, {L_W}\nv_add_u32 v{vVW}, s{sT}, v{vL16}")
    e(f"v_mov_b32 v{vIDX}, 0x4444\nv_mov_b32 v3, 0xeeee\nv_and_b32 v4, 2, v2\nv_cmp_eq_u32 vcc, 0, v4\nv_cndmask_b32 v{vIDX}, v3, v{vIDX}, vcc")
    e(f"s_lshl_b32 s{sW1k}, s{w}, 10\nv_lshrrev_b32 v3, 2, v2\nv_lshlrev_b32 v3, 7, v3\nv_lshl_add_u32 v3, v1, 5, v3\nv_and_b32 v4, 3, v2\nv_lshl_add_u32 v3, v4, 2, v3")
    e(f"v_bfe_u32 v4, v2, 2, 1\nv_lshlrev_b32 v4, 6, v4\nv_xor_b32 v3, v3, v4\nv_add_u32 v3, s{sW1k}, v3\nv_add_u32 v{vXW}, {L_X}, v3")
    e(f"v_and_b32 v4, 7, v2\nv_lshlrev_b32 v4, 4, v4\nv_lshl_add_u32 v{vQR}, v1, 7, v4")
    e(f"v_lshrrev_b32 v3, 2, v2\nv_and_b32 v4, 1, v2\nv_lshl_add_u32 v3, v3, 1, v4\nv_lshlrev_b32 v3, 4, v3\nv_lshl_add_u32 v{vKR}, v1, 7, v3")
    e(f"v_and_b32 v4, 1, v1\nv_lshlrev_b32 v4, 6, v4\nv_xor_b32 v{vQR}, v{vQR}, v4\nv_xor_b32 v{vKR}, v{vKR}, v4")
    e(f"v_lshrrev_b32 v5, 3, v2\nv_lshl_add_u32 v{vPR}, v5, 9, v{vQR}")
    e(f"v_and_b32 v3, 6, v2\nv_lshlrev_b32 v3, 1, v3\nv_and_b32 v4, 1, v2\nv_add_u32 v3, v3, v4\nv_lshl_add_u32 v3, v1, 4, v3\nv_lshlrev_b32 v3, 4, v3\nv_lshl_add_u32 v3, v5, 3, v3")
    e(f"s_lshr_b32 s{sT}, s{w}, 1\ns_lshl_b32 s{sT}, s{sT}, 10\ns_and_b32 s{sT+1}, s{w}, 1\ns_lshl_b32 s{sT+1}, s{sT+1}, 5\ns_add_u32 s{sT}, s{sT}, s{sT+1}\nv_add_u32 v{vOW}, s{sT}, v3")
    e(f"s_lshl_b32 s{sT}, s{w}, 11\ns_lshl_b32 s{sT+1}, s{h}, 6\ns_add_u32 s{sT}, s{sT}, s{sT+1}")
    e(f"v_mul_u32_u24 v3, {HS}, v1\nv_lshl_add_u32 v3, v2, 2, v3\nv_add_u32 v{vRL}, s{sT}, v3")
    sWp, sGp, sHc = sT + 2, sT + 3, sT + 4
    e(f"s_lshr_b32 s{sWp}, s{h}, 3\ns_bfe_u32 s{sGp}, s{h}, 0x20001\ns_and_b32 s{sHc}, s{h}, 1")
    e(f"s_lshl_b32 s{sT}, s{sWp}, 9\ns_lshl_b32 s{sT+1}, s{sHc}, 8\ns_add_u32 s{sT}, s{sT}, s{sT+1}\ns_lshl_b32 s{sT+1}, s{sGp}, 6\ns_add_u32 s{sT}, s{sT}, s{sT+1}")
    e(f"v_and_b32 v3, 1, v2\nv_lshrrev_b32 v4, 1, v2\nv_lshrrev_b32 v6, 3, v2\nv_lshl_add_u32 v6, v6, 1, v3\nv_lshlrev_b32 v6, 4, v6\nv_and_b32 v8, 3, v4\nv_lshl_add_u32 v6, v8, 2, v6\nv_add_u32 v6, s{sT}, v6")
    e(f"v_mov_b32 v7, {OOB:#x}\nv_cmp_eq_u32 vcc, 0, v1\nv_cndmask_b32 v{vMS}, v7, v6, vcc")
    e(f"v_lshlrev_b32 v6, 10, v3\nv_lshl_add_u32 v6, v4, 4, v6")
    e(f"s_lshl_b32 s{sT}, s{sGp}, 11\ns_lshl_b32 s{sT+1}, s{sWp}, 8\ns_add_u32 s{sT}, s{sT}, s{sT+1}\ns_lshl_b32 s{sT+1}, s{sHc}, 7\ns_add_u32 s{sT}, s{sT}, s{sT+1}\ns_lshl_b32 s{sT+1}, s{w}, 2\ns_add_u32 s{sT}, s{sT}, s{sT+1}")
    srd(40, P_MEM0, 8192)
    e(f"buffer_load_dword v9, v6, {W}, s{sT} offen")
    e(f"v_mov_b32 v{vSEL}, 0\nv_mov_b32 v3, 0x3f80\nv_cmp_eq_u32 vcc, 0, v2\nv_cndmask_b32 v{vSEL}, v{vSEL}, v3, vcc\nv_mov_b32 v3, 0x3f800000\nv_cmp_eq_u32 vcc, 1, v2\nv_cndmask_b32 v{vSEL}, v{vSEL}, v3, vcc")
    e(f"s_mov_b32 s{sStep}, 0\ns_lshl_b32 s{sMc}, s{w}, 11\ns_add_u32 s{sMc}, s{sMc}, {WS_M}\ns_add_u32 s{sMn}, s{sMc}, 8192\ns_add_u32 s{sMp}, s{sMc}, 16384")
    e(f"s_mul_i32 s{sPc}, s{h}, {HS}\ns_add_u32 s{sPc}, s{sPc}, {WS_P:#x}\ns_add_u32 s{sPn}, s{sPc}, {PRING:#x}\ns_add_u32 s{sPp}, s{sPn}, {PRING:#x}")
    for i in range(8): e(f"s_mov_b32 s{sRd[i]}, {WS_P + i*4*HS:#x}")
    e(f"s_mul_i32 s{sT}, s{h}, {RHS:#x}\ns_lshr_b32 s{sT+1}, s{w}, 1\ns_lshl_b32 s{sT+1}, s{sT+1}, 12\ns_add_u32 s{sSK}, s{sT}, s{sT+1}\ns_and_b32 s{sT+1}, s{w}, 1\ns_lshl_b32 s{sT+1}, s{sT+1}, 9\ns_add_u32 s{sSK}, s{sSK}, s{sT+1}\ns_add_u32 s{sSK}, s{sSK}, {WS_K:#x}")
    e(f"s_lshl_b32 s{sT+1}, s{w}, 11\ns_add_u32 s{sSV}, s{sT}, s{sT+1}\ns_add_u32 s{sSV}, s{sSV}, {WS_V:#x}")
    e(f"s_lshl_b32 s{sT+1}, s{w}, 12\ns_add_u32 s{sPF}, s{sT}, s{sT+1}\ns_add_u32 s{sPF}, s{sPF}, {WS_K:#x}")
    e(f"s_add_u32 s{sMH}, s{sMc}, {WS_MH - WS_M:#x}\ns_lshl_b32 s{sRdR}, s{w}, 7\ns_add_u32 s{sRdR}, s{sRdR}, {WS_RDY:#x}\ns_lshl_b32 s{sRdW}, s{h}, 2\ns_add_u32 s{sRdW}, s{sRdW}, s{sRdR}")
    e(f"s_mov_b32 s{sSENT}, {SENT:#x}\ns_mov_b32 s{sSENT+1}, {SENT:#x}\ns_mov_b32 s{sONE}, 0x3f803f80\ns_mov_b32 s{sONE+1}, 0x3f803f80")
    e(f"s_mov_b32 s{sMLO}, 0x00ff00ff\ns_mov_b32 s{sMLO+1}, 0x00ff00ff\ns_mov_b32 s{sC}, {CSCALE:#x}\ns_mov_b32 s{sInf}, {INF:#x}")
    LLO, LHI = fbits(2.0 ** -60), fbits(2.0 ** 60)
    e(f"s_mov_b32 s{sLlo}, {LLO:#x}\ns_mov_b32 s{sLrg}, {(0 if OPT['force_fallback'] else LHI-LLO):#x}\ns_mov_b32 s{sLo}, 0x05040100\ns_mov_b32 s{sHi}, 0x07060302")
    vWA, vTS, vAD = 10, 11, 16
    e(f"v_lshlrev_b32 v3, 4, v2")
    e(f"v_lshrrev_b32 v4, 1, v1\nv_lshl_add_u32 v3, v4, 19, v3\nv_and_b32 v4, 1, v1\nv_lshl_add_u32 v3, v4, 17, v3")
    e(f"s_lshl_b32 s{sT}, s{w}, 14\ns_lshl_b32 s{sT+1}, s{h}, 8\ns_add_u32 s{sT}, s{sT}, s{sT+1}\nv_add_u32 v{vWA}, s{sT}, v3")
    e(f"s_lshl_b32 s{sT}, s{w}, 12\ns_add_u32 s{sT}, s{sT}, {L_M}\nv_add_u32 v{vTS}, s{sT}, v{vL16}")
    e(f"s_lshl_b32 s{sT+8}, s{w}, 3")
    RAW = [20, 144]
    TQ = [84, 88, 92]
    rounds = [('v', 0), ('v', 1), ('q', 1), ('k', 1), ('q', 0), ('k', 0)]
    ptr = {'q': P_WQ, 'k': P_WK, 'v': P_WV}
    def qkv_loads(ri):
        mt, par = rounds[ri]
        srd(40, ptr[mt], 0x400000)
        for j2 in range(8):
            for hb in range(2):
                row = 256 * par + 128 * (j2 >> 2) + 32 * (j2 & 1) + 8 * ((j2 & 3) >> 1) + hb
                e(f"s_mov_b32 s{sT}, {row*8192:#x}\nbuffer_load_dwordx4 {vr(RAW[ri&1]+(j2*2+hb)*4,4)}, v{vWA}, {W}, s{sT} offen")
    placed = set(); plan = []
    for ri, (mt, par) in enumerate(rounds):
        fs = [(mt, tt, sg) for tt in range(2) for sg in range(par, 8, 2)]
        for f in fs:
            if f in lds_slot: placed.add(lds_slot[f])
        free = [s for s in range(19, -1, -1) if s not in placed]
        loc = {}
        for f in fs:
            loc[f] = lds_slot[f] if f in lds_slot else free.pop(0)
        plan.append(loc)
    absslot = lambda wd, s: (8 + wd * 18 + s) if s < 18 else (wd * 2 + s - 18)
    vWO = 17
    e(f"v_lshrrev_b32 v3, 1, v1\nv_lshlrev_b32 v3, 5, v3\nv_and_b32 v4, 1, v1\nv_add_u32 v3, v3, v4\nv_lshlrev_b32 v3, 10, v3\nv_lshl_add_u32 v3, v2, 4, v3")
    e(f"s_lshl_b32 s{sT}, s{h}, 17\ns_lshl_b32 s{sT+1}, s{w}, 8\ns_add_u32 s{sT}, s{sT}, s{sT+1}\nv_add_u32 v{vWO}, s{sT}, v3")
    WRAW = [20, 52, 96]
    def wo_loads(gi):
        kap, hf = gi >> 1, gi & 1
        for jl in range(4):
            for hb in range(2):
                row = 64 * hf + 16 * (jl >> 1) + 8 * hb + 4 * kap + 2 * (jl & 1)
                e(f"s_mov_b32 s{sT}, {row*1024:#x}\nbuffer_load_dwordx4 {vr(WRAW[gi%3]+(jl*2+hb)*4,4)}, v{vWO}, {W}, s{sT} offen")
    def init_handoff():
        e(f"v_mov_b64 v[12:13], s[{sSENT}:{sSENT+1}]\nv_mov_b64 v[14:15], s[{sSENT}:{sSENT+1}]")
        for s in (sPc, sPn, sPp):
            for o in (0, 1024): e(f"buffer_store_dwordx4 v[12:15], v{vW16}, {WS}, s{s} offen offset:{o} {ST}")
        e(f"buffer_store_dword v12, v{vMS}, {WS}, s{sMn} offen {ST}\nbuffer_store_dword v12, v{vMS}, {WS}, s{sMp} offen {ST}")
        e(f"buffer_store_dword v9, v{vMS}, {WS}, s{sMc} offen {ST}\ns_mov_b32 s{sMHp}, {OOB:#x}\nv_mov_b32 v8, 0\nbuffer_store_dword v8, off, {WS}, s{sRdW} {ST}")
    def arrive():
        e(f"s_cmp_eq_u32 s{w}, 0\ns_cbranch_scc0 {Ln('na')}")
        e(f"s_mov_b64 exec, 1\nv_mov_b32 v3, 0\nv_mov_b32 v4, 1\nglobal_atomic_add v3, v4, s[{P_DBG}:{P_DBG+1}] offset:12\ns_mov_b64 exec, -1")
        e(f"{Ln('na')}:")
    qkv_loads(0)
    confirm_issue('v6', 8)
    tq = 0
    for ri, (mt, par) in enumerate(rounds):
        if ri + 1 < 6:
            qkv_loads(ri + 1); e("s_waitcnt vmcnt(16)")
        else:
            srd(40, P_WO, 0x400000); wo_loads(0); wo_loads(1); e("s_waitcnt vmcnt(16)")
        if OPT.get('tlw') and ri in (0, 1, 3, 5):
            TLV[0] = 15; TL(8 + (0, 1, 3, 5).index(ri), 0)
        if ri == 0:
            confirm_check(40 + mode, 6, 8); init_handoff()
        if ri: e("s_waitcnt lgkmcnt(0)\ns_barrier")
        if ri == 2: arrive()
        raw = RAW[ri & 1]
        for t in range(8):
            wd, tt = t >> 1, t & 1
            const = 0
            for wl in range(4):
                sg = 2 * wl + par
                const |= absslot(wd, plan[ri][(mt, tt, sg)]) << (8 * wl)
            e(f"s_lshr_b32 s{sT}, {const:#x}, s{sT+8}\ns_and_b32 s{sT}, s{sT}, 0xff\ns_lshl_b32 s{sT}, s{sT}, 11\nv_add_u32 v{vAD}, s{sT}, v{vL16}")
            for hf in range(2):
                q = TQ[tq % 3]; tq += 1
                for jl in range(4):
                    j2 = hf * 4 + jl
                    r0, r1 = raw + (j2 * 2) * 4 + (t >> 1), raw + (j2 * 2 + 1) * 4 + (t >> 1)
                    if mt == 'q':
                        tp_ = 96 + 2 * (jl & 1)
                        for k_, r_ in ((0, r0), (1, r1)):
                            e(f"v_and_b32 v{tp_+k_}, 0xffff0000, v{r_}" if t & 1 else f"v_lshlrev_b32 v{tp_+k_}, 16, v{r_}")
                        e(f"v_pk_mul_f32 v[{tp_}:{tp_+1}], v[{tp_}:{tp_+1}], s[{sC}:{sC+1}] op_sel_hi:[1,0]\nv_cvt_pk_bf16_f32 v{q+jl}, v{tp_}, v{tp_+1}")
                    else:
                        e(f"v_perm_b32 v{q+jl}, v{r1}, v{r0}, s{sHi if t&1 else sLo}")
                e(f"ds_write_b128 v{vAD}, {vr(q,4)} offset:{hf*1024}")
        e("s_waitcnt lgkmcnt(0)\ns_barrier")
        nrd = 0
        for f, s in plan[ri].items():
            if f in lds_slot: continue
            for hf in range(2):
                if s < 18: e(f"ds_read_b128 {rr(f,4*hf,4)}, v{vVW} offset:{s*2048+hf*1024}")
                else: e(f"ds_read_b128 {rr(f,4*hf,4)}, v{vTS} offset:{(s-18)*2048+hf*1024}")
                nrd += 1
                if nrd == 12: e("s_waitcnt lgkmcnt(4)")
    e("s_waitcnt lgkmcnt(0)\ns_barrier")
    for gi in range(4):
        kap, hf = gi >> 1, gi & 1
        if gi + 2 < 4: wo_loads(gi + 2)
        e(f"s_waitcnt vmcnt({8*min(2, 3-gi)})")
        raw = WRAW[gi % 3]
        for t in range(8):
            f = ('o', t, kap)
            q = reg[f][1] + 4 * hf if f in reg else TQ[t % 3]
            for jl in range(4):
                e(f"v_perm_b32 v{q+jl}, v{raw+(jl*2+1)*4+(t>>1)}, v{raw+(jl*2)*4+(t>>1)}, s{sHi if t&1 else sLo}")
            if f not in reg: e(f"ds_write_b128 v{vVW}, {vr(q,4)} offset:{lds_slot[f]*2048+hf*1024}")
    TL(2, 0); DTL(4, 14)
    e(f"v_mov_b32 v3, 0\nv_lshlrev_b32 v4, 3, v0\nv_mov_b32 v6, 0\nv_mov_b32 v7, 0\nds_write_b64 v4, v[6:7] offset:{L_P-512}\nds_write_b64 v4, v[6:7] offset:{L_P+512}")
    e(f"{Ln('bar')}:\nglobal_load_dword v4, v3, s[{P_DBG}:{P_DBG+1}] offset:12 sc1\ns_waitcnt vmcnt(0)\nv_cmp_eq_u32 vcc, 32, v4\ns_cbranch_vccnz {Ln('bar_ok')}")
    fail_if_zero(10)
    e(f"s_branch {Ln('bar')}\n{Ln('bar_ok')}:")
    TL(3, 0)
    wait_flags_ready(11 + 20 * mode, 4)
    e(f"buffer_store_dword v9, v{vMS}, {WS}, s{sMH} offen sc1")
    def kv_refresh(lab, code):
        e(f"{lab}:\ns_mov_b32 s{sT+2}, {WS_FLAG+F_KV:#x}\nv_lshlrev_b32 v{JUNK}, 2, v{vL16}\ns_waitcnt vmcnt(0)\nbuffer_load_dword v{JUNK}, v{JUNK}, {WS}, s{sT+2} offen sc1\ns_waitcnt vmcnt(0)")
        e(f"v_cmp_le_u32 vcc, 32, v{JUNK}\ns_and_b32 s{sT+2}, vcc_lo, 0xffff\ns_ff0_i32_b32 s{sKv}, s{sT+2}\ns_cmp_lt_u32 s{sT}, s{sKv}\ns_cbranch_scc1 {lab}_ok")
        fail_if_zero(code)
        e(f"s_branch {lab}\n{lab}_ok:")
    e(f"s_mov_b32 s{sTag}, 0\ns_mov_b32 s{sRedo}, 0\ns_mov_b32 s{sT}, 0\ns_mov_b32 s{sKv}, 16\ns_mov_b32 s{sFlC}, {WS_FLAG+F_KV:#x}\ns_mov_b32 s{sOOB}, {OOB:#x}\ns_mov_b32 s{sFl}, s{sFlC}")
    if OPT.get('rounds') != 0: kv_refresh(Ln('kv0'), 12)
    TL(4, 0); DTL(5, 14)
    if OPT.get('dtl'): e('s_memtime s[92:93]\ns_waitcnt lgkmcnt(0)')
    if OPT.get('tl'): e("s_memtime s[92:93]\ns_waitcnt lgkmcnt(0)\ns_mov_b32 s94, 0")
    def kv_loads():
        r = []
        for j in range(4): r.append(f"buffer_load_dwordx4 {vr(KT+4*j,4)}, v{vKR}, {WS}, s{sSK} offen offset:{j*1024} sc1")
        for t in range(2): r.append(f"buffer_load_dwordx4 {vr(VT+4*t,4)}, v{vL16}, {WS}, s{sSV} offen offset:{t*1024} sc1")
        return r
    for x in kv_loads()[:4]: e(x)
    e(f"s_add_u32 s{sSK}, s{sSK}, {SEGS:#x}")
    if not OPT.get('vearly', 0):
        for x in kv_loads()[4:]: e(x)
        e(f"s_add_u32 s{sSV}, s{sSV}, {SEGS:#x}")
    warm = [f"buffer_load_dwordx3 {vr(JUNK,3)}, v{vL16}, {WS}, s{sPF} offen offset:{k*1024} sc1" for k in range(4)]
    e(f"s_add_u32 s{sPF}, s{sPF}, {SEGS:#x}")
    for x in warm: e(x)
    e(f"s_add_u32 s{sPF}, s{sPF}, {SEGS:#x}")
    FP_ = OPT.get('fprobe', 1)
    e(f"v_and_b32 v4, 31, v0\nv_lshlrev_b32 v{vSP2}, {2 if FP_ else 6}, v4")
    pcmp = lambda r: f"v_cmp_ne_u32 vcc, s{sStep}, v{r}" if FP_ else f"v_cmp_eq_u32 vcc, s{sSENT}, v{r}"
    X = OPT.get('x', ''); nc = 'nocomm' in X
    from asmlib import estimate
    mm = "v_mfma_f32_16x16x32_bf16"; m16 = "v_mfma_f32_16x16x16_bf16"
    cvt = lambda d, a, b: f"v_cvt_pk_bf16_f32 v{d}, v{a}, v{b}"
    add2 = lambda a: [f"v_add_f32 v{a}, v{a}, v{a+2}", f"v_add_f32 v{a+1}, v{a+1}, v{a+3}"]
    mul2 = lambda a: [f"v_mul_f32 v{a}, s{sC}, v{a}", f"v_mul_f32 v{a+1}, s{sC}, v{a+1}"]
    accof = {'q': (AQ0, AQ1), 'k': (AK0, AK1), 'v': (AV0, AV1)}
    ringslot = {f: i % 4 for i, f in enumerate(order[:12])}
    ringslot.update({f: (2, 3, 0, 1, 2, 3)[i] for i, f in enumerate(order[12:])})
    wtxt = lambda f, hf: f"ds_read_b128 {vr(VW+8*ringslot[f]+4*hf,4)}, v{vVW} offset:{lds_slot[f]*2048+hf*1024}"
    wreg = lambda f: vr(VW + 8 * ringslot[f], 8) if f in lds_slot else rr(f, 0, 8)
    stage = [wtxt(order[i], hf) for i in range(4) for hf in range(2)]
    zero_acc = [f"v_mov_b64 v[{AQ0+2*i}:{AQ0+2*i+1}], 0" for i in range(12)]
    SM = lambda f: f"v_smfmac_f32_16x16x64_bf16 {vr(accof[f[0]][f[1]],4)}, {vr(M+4*f[2],4)}, {wreg(f)}, v{vIDX}"
    STK, SMM, LA, OA = AQ0, AK1, AQ1, AK0
    PT = AQ1; KF = M; PM = AV0 + 2; RC = SMM + 2
    PLO, PHI, PAL, ONE4 = VW, VW + 4, VW + 8, VW + 12
    PRB, SENTQ = QF + 2, QF + 12
    LAND, SELQ, R = AQ0, QF, QF + 4
    mlo = f"s[{sMLO}:{sMLO+1}]"
    chainc = lambda a, j: '0' if j == 0 else vr(a, 4)
    pv_tok = [f"{mm} {vr(LA,4)}, {vr(ONE4,4)}, {vr(PAL,4)}, 0", f"{mm} {vr(OA,4)}, {vr(VT,4)}, {vr(PLO,4)}, 0",
              f"{mm} {vr(OA,4)}, {vr(VT+4,4)}, {vr(PHI,4)}, {vr(OA,4)}"]
    pv_mem = [f"{m16} {vr(LA,4)}, {vr(ONE4,2)}, {vr(PM,2)}, {vr(LA,4)}", f"{m16} {vr(OA,4)}, {vr(AV0,2)}, {vr(PM,2)}, {vr(OA,4)}"]
    zw = [f"v_mov_b64 v[{M+2*i}:{M+2*i+1}], 0" for i in range(16)]
    norm = [f"v_mul_f32 v{OA+r}, v{OA+r}, v{RC}" for r in range(4)] + [cvt(OA, OA, OA + 1), cvt(OA + 1, OA + 2, OA + 3)]
    ow = f"ds_write_b64 v{vOW}, {vr(OA,2)} offset:{L_O}"
    p2l = [f"buffer_load_dword v{LAND+i}, v{vRL}, {WS}, s{sRd[i]} offen sc1" for i in range(8)]
    shot = lambda r: [f"buffer_load_dword v{r}, v{vSP2}, {WS}, s{sRdR if FP_ else sMc} offen sc1", f"buffer_load_dwordx4 v{vL16}, {WS}, s{sMc} offen sc1 lds",
                      f"buffer_load_dwordx4 v{vL16}, {WS}, s{sMc} offen offset:1024 sc1 lds"]
    def pad(n):
        r = []
        while n > 0:
            k = min(n, 8); r.append(f"s_nop {k-1}"); n -= k
        return r
    dregs = list(range(4, 28, 2))
    NSW = OPT.get('nsw', [3, 3, 1, 1]); POST = OPT.get('post', [0, 0, 1, 1]); TOP1 = OPT.get('top1', 0); EX = OPT.get('ex', 5)
    e("s_waitcnt lgkmcnt(0)")
    for x in stage + zero_acc: e(x)
    e(f"s_lshl_b32 s{sT}, s{w}, 11\ns_add_u32 m0, s{sT}, {L_M}")
    e("s_waitcnt vmcnt(0)\ns_barrier")
    for k in range(1, 4): e(f"s_cmp_eq_u32 s{w}, {k}\ns_cbranch_scc1 {Ln('enter%d' % k)}")
    ta = {}
    for wv in range(4):
        Lw = lambda s: Ln(f"w{wv}_{s}")
        lds = []; vm = []; dn = []
        def WL(tag):
            k = max(i for i, t in enumerate(lds) if t == tag)
            return f"s_waitcnt lgkmcnt({min(len(lds) - 1 - k, 15)})"
        def WV(tag):
            k = max(i for i, t in enumerate(vm) if t == tag)
            return f"s_waitcnt vmcnt({len(vm) - 1 - k})"
        def DS(name):
            if OPT.get('one'):
                if name == 'wo_end':
                    if OPT['one'] == name: e("s_memtime s[6:7]")
                    e("s_waitcnt lgkmcnt(0)\ns_sub_u32 s6, s6, s4\ns_cmp_gt_u32 s{0}, 4\ns_cselect_b32 s6, s6, 0\ns_add_u32 s94, s94, s6\ns_memtime s[4:5]".format(sStep))
                elif OPT['one'] == name: e("s_memtime s[6:7]")
                return
            if not OPT.get('dst'): return
            e(f"{'s_memrealtime' if OPT.get('real') else 's_memtime'} s[{dregs[len(dn)]}:{dregs[len(dn)]+1}]"); dn.append(name)
        class Op:
            def __init__(s, txt, tag=None, wait=None, vwait=None): s.txt, s.tag, s.wait, s.vwait = txt, tag, wait, vwait
            def out(s):
                if s.wait is not None: return WL(s.wait)
                if s.vwait is not None: return WV(s.vwait)
                if s.txt.startswith('ds_'): lds.append(s.tag)
                if s.txt.startswith('buffer_'): vm.append(s.tag)
                return s.txt
        E = lambda x, tag=None: e(Op(x, tag).out())
        rd = lambda dst, a, off, tag: Op(f"ds_read_b128 {vr(dst,4)}, v{a} offset:{off}", tag)
        wt = lambda tag: Op("s_waitcnt lgkmcnt(0)", wait=tag)
        wtv = lambda tag: Op("s_waitcnt vmcnt(0)", vwait=tag)
        tacost = lambda t: (20 if 'store_dwordx4' in t else 16 if 'x4' in t or 'x2' in t or 'x3' in t else 6) if t.startswith('buffer_') else 0
        class Sched:
            def __init__(s, bb, book=False): s.bb = bb; s.g = [([], [], []) for _ in bb]; s.book = book
            def kind(s, x):
                t = x.txt
                return 2 if t.startswith('v_') and not t.startswith('v_cmp_') else (1 if t.startswith(('ds_', 'buffer_')) else 0)
            def over(s, g, extra=None):
                parts = [list(p) for p in s.g[g]]
                if extra: parts[s.kind(extra)].append(extra)
                ws = [x for x in parts[0] if x.wait is not None]
                parts[0] = ws[:1] + [x for x in parts[0] if x.wait is None]
                ls = [s.bb[g]] + [x.txt for p in parts for x in p] + [s.bb[g]]
                return estimate(ls)[-1] - 16
            def fix(s, g, *xs):
                for x in xs:
                    x = x if isinstance(x, Op) else Op(x)
                    s.g[g][s.kind(x)].append(x)
                    if s.book: ta[g] = ta.get(g, 0) + tacost(x.txt)
            def flex(s, lo, hi, x):
                x = x if isinstance(x, Op) else Op(x)
                c = tacost(x.txt)
                busy = lambda g: max(0, ta.get(g, 0) + c - 20) if c else 0
                crowd = lambda g: (4 if x.txt.startswith('ds_') and any(y.txt.startswith('ds_') for y in s.g[g][1]) else 0)
                best = min(range(lo, hi + 1), key=lambda g: (s.over(g, x) - s.over(g) + busy(g) + crowd(g), g))
                s.fix(best, x); return best
            def emit(s, names=None):
                for g, ins in enumerate(s.bb):
                    e(ins)
                    if names and (g in OPT.get('dst', []) or OPT.get('one')): DS(names % g)
                    ws = [x.out() for x in s.g[g][0] if x.wait is not None]
                    if ws: e(min(ws, key=lambda t: int(t[t.index('(')+1:-1])))
                    for p in s.g[g]:
                        for x in p:
                            if x.wait is None: e(x.out())
        kvl = kv_loads()
        if 'kv' in X: kvl = ['s_nop 0'] * 6
        if 'noK' in X: kvl[:4] = ['s_nop 0'] * 4
        if 'noV' in X: kvl[4:] = ['s_nop 0'] * 2
        if 'KVplain' in X: kvl = [x.replace(' sc1', '') for x in kvl]
        NS = NSW[wv]; PR0 = [PRB, PRB + 1, QF + 8, QF + 9][:NS]
        attop = wv == 0 or (wv == 1 and TOP1)
        e(f"{Ln('enter%d' % wv)}:")
        PRE = POST[wv] == 2
        if not POST[wv]:
            for r in PR0:
                for x in shot(r): e(x)
        if PRE:
            for x in shot(PRB + 1): e(x)
        e("s_waitcnt vmcnt(0)\n.p2align 6")
        e(f"{Lw('step')}:")
        loop0 = len(e.l)
        DS('top')
        probe_bad = lambda r, lab: [pcmp(r), f"s_cbranch_vccnz {Lw(lab)}" if not nc else "s_nop 0"]
        if not POST[wv]: vm += ['probe', 'dma0', 'dma'] + ['x'] * (3 * NS - 3)
        if PRE: vm += ['probe1', 'x', 'dma1']
        if attop:
            NR0 = [OPT.get('rw', 4), 8 - OPT.get('rw', 4)][wv] if OPT.get('fo', 1) and OPT.get('rk') == 8 else 0
            vm += ['x'] * NR0
            e(f"s_waitcnt vmcnt({3*NS-1+NR0}) lgkmcnt(0)")
            for x in probe_bad(PR0[0], 'spinA'): e(x)
            DS('hit'); e(f"s_waitcnt vmcnt({3*NS-3+NR0})\n{Lw('hit')}:"); DS('landed')
        else:
            e("s_waitcnt lgkmcnt(0)")
        e("s_barrier")
        DS('b1a')
        mrd = lambda sg: rd(M + 4 * sg, vL16, L_M + sg * 1024, ('m', sg))
        e(mrd(0).out()); e(mrd(1).out())
        PG = OPT.get('pg', -1)
        if POST[wv] and PG < 0:
            assert NS == 1
            for x, tg in zip(shot(PRB), ('probe', 'dma0', 'dma')): E(x, tg)
        e(WL(('m', 0)))
        gK1 = len(fr) - 1; gK0, gQ1, gQ0 = gK1 - 4, gK1 - 8, gK1 - 12
        gqw = gQ1 + 4; gSt = max(gqw + 2 * EX, gK1 + 1)
        gkw = gK1 + 5 + OPT.get('kp', 0); gSm = max(gkw + 2 * EX, gSt + 4)
        gpw = gSt + 8; gPv = max(gpw + 2 * EX - 1, gSm + 8)
        bb = [SM(f) for f in fr]; vs = list(vrest)
        def upto(g):
            while len(bb) < g: bb.append(SM(vs.pop(0)) if vs else 's_nop 0')
        upto(gSt); bb += [f"{mm} {vr(STK,4)}, {vr(KT+4*j,4)}, {vr(QF+4*j,4)}, {chainc(STK,j)}" for j in range(4)]
        upto(max(gSm, gPv - 4 - max(0, len(vs) - (gSm - len(bb))) if False else gSm))
        bb += [f"{mm} {vr(SMM,4)}, {vr(KF+4*j,4)}, {vr(QF+4*j,4)}, {chainc(SMM,j)}" for j in range(4)]
        gPv = max(gPv, len(bb) + len(vs))
        upto(gPv); bb += pv_tok + pv_mem
        gof = {f: bb.index(SM(f)) for f in fr + vrest}
        sc = Sched(bb, True)
        g2, g4 = gof[('q', 0, 2)], gof[('q', 0, 4)]
        b1b, b1c = g2 - 5, g4 - 5
        sc.fix(1, wt(('m', 1)))
        gmine = b1b if wv == 1 else b1c
        late2 = {}
        if POST[wv] and PG >= 0:
            for k_, (x, tg) in enumerate(zip(shot(PRB), ('probe', 'dma0', 'dma'))): sc.fix(PG + (k_ + 1) // 2, Op(x, tg))
        if PRE:
            class Mark(Op):
                def out(s_):
                    late2['p'] = WV('probe'); late2['d'] = WV('dma'); return s_.txt
            sc.fix(gmine - 1, wtv('probe1'), probe_bad(PRB + 1, 'second')[0], Mark(probe_bad(PRB + 1, 'second')[1])); sc.g[gmine - 1][0].append(Op(f"{Lw('hit')}:"))
            sc.fix(gmine, wtv('dma1'))
        elif not attop:
            sc.fix(gmine - 1, wtv('probe'), *probe_bad(PRB, 'spin1')); sc.g[gmine - 1][0].append(Op(f"{Lw('hit')}:"))
            sc.fix(gmine, wtv('dma'))
        if TOP1: sc.fix(0, mrd(2)); sc.fix(1, mrd(3))
        else: sc.fix(b1b, "s_barrier", mrd(2)); sc.fix(b1b + 1, mrd(3))
        sc.fix(g2 - 1, wt(('m', 2))); sc.fix(g2 + 3, wt(('m', 3)))
        sc.fix(b1c, "s_barrier", mrd(4)); sc.fix(b1c + 1, mrd(5)); sc.fix(b1c + 2, mrd(6)); sc.fix(b1c + 3, mrd(7))
        for k in range(4): sc.fix(g4 - 1 + k, wt(('m', 4 + k)))
        sc.fix(gQ0 + 2, add2(AQ0)[0]); sc.fix(gQ0 + 3, add2(AQ0)[1])
        sc.fix(gQ1 + 2, *add2(AQ1)); sc.fix(gQ1 + 3, cvt(AQ0, AQ0, AQ1), cvt(AQ0 + 1, AQ0 + 1, AQ1 + 1))
        sc.fix(gqw, Op(f"ds_write2_b32 v{vXW}, v{AQ0}, v{AQ0+1} offset0:0 offset1:4", 'qw'))
        gqb = gqw + EX
        sc.fix(gqb, wt('qw'), "s_barrier")
        for j in range(4): sc.fix(gqb + j, rd(QF + 4 * j, vQR, L_X + 1024 * j, ('qf', j))); sc.fix(gSt - 1 + j, wt(('qf', j)))
        sc.flex(gK0 + 2, gK1 + 1, add2(AK0)[0]); sc.flex(gK0 + 2, gK1 + 1, add2(AK0)[1])
        if OPT.get('kp', 0) == 0: sc.fix(gK1 + 2, add2(AK1)[0]); sc.fix(gK1 + 3, add2(AK1)[1], cvt(AK0, AK0, AK1)); sc.fix(gK1 + 4, cvt(AK0 + 1, AK0 + 1, AK1 + 1))
        else: sc.fix(gK1 + 2, add2(AK1)[0]); sc.fix(gK1 + 3, add2(AK1)[1]); sc.fix(gK1 + 4, cvt(AK0, AK0, AK1)); sc.fix(gK1 + 5, cvt(AK0 + 1, AK0 + 1, AK1 + 1))
        sc.fix(gkw, Op(f"ds_write2_b32 v{vXW}, v{AK0}, v{AK0+1} offset0:128 offset1:132", 'kw'))
        sc.fix(gkw + EX, wt('kw'), "s_barrier")
        for j in range(4):
            gj = max(gkw + EX + j, gof[('v', 1, j)])
            sc.fix(gj, rd(KF + 4 * j, vKR, L_X + 512 + 1024 * j, ('kf', j)))
            sc.fix(gSm - 1 + j, wt(('kf', j)))
        sc.fix(gSt + 5, f"v_exp_f32 v{PT}, v{STK}"); sc.fix(gSt + 6, f"v_exp_f32 v{PT+1}, v{STK+1}"); sc.fix(gSt + 7, cvt(PT, PT, PT + 1))
        sc.fix(gpw, Op(f"ds_write_b32 v{vQR}, v{PT} offset:{L_P+wv*4}", 'pw'))
        gpb = gpw + EX - 1
        sc.fix(gpb, wt('pw'), "s_barrier", rd(PAL, vQR, L_P, 'pal')); sc.fix(gpb + 1, rd(PLO, vPR, L_P, 'plo')); sc.fix(gpb + 2, rd(PHI, vPR, L_P - 512, 'phi'))
        sc.fix(gPv - 1, wt('pal')); sc.fix(gPv, wt('plo')); sc.fix(gPv + 1, wt('phi'))
        gV0 = max(gof[('v', 0, s)] for s in range(8))
        a = sc.flex(gV0 + 2, gPv - 2, add2(AV0)[0]); b = sc.flex(gV0 + 2, gPv - 2, add2(AV0)[1]); sc.flex(max(a, b) + 1, gPv - 1, cvt(AV0, AV0, AV0 + 1))
        sc.fix(gSm + 5, f"v_exp_f32 v{SMM+2}, v{SMM}"); sc.fix(gSm + 6, f"v_exp_f32 v{SMM+3}, v{SMM+1}"); sc.fix(gSm + 7, cvt(SMM + 2, SMM + 2, SMM + 3))
        sc.fix(gPv, f"v_cndmask_b32 v{PM}, 0, v{SMM+2}, {mlo}", f"v_cndmask_b32 v{PM+1}, v{SMM+2}, 0, {mlo}")
        sc.fix(gPv + 1, *add2(AV1)); sc.fix(gPv + 2, cvt(AV0 + 1, AV1, AV1 + 1), zw[0])
        sc.fix(gPv + 3, zw[1], zw[2]); sc.fix(gPv + 4, zw[3], zw[4])
        last = {k: gof[order[k]] for k in range(4)}; prev = 0
        for f in order[4:14]:
            use = gof.get(f, gPv + 4); lo = max(last[ringslot[f]], prev)
            a = sc.flex(lo, use - 5, Op(wtxt(f, 0), (f, 0))); prev = sc.flex(a, use - 4, Op(wtxt(f, 1), (f, 1)))
            if f in gof: sc.fix(use - 1, wt((f, 1)))
            last[ringslot[f]] = use
        sc.flex(last[1], gPv - 2, f"v_mov_b64 {vr(ONE4,2)}, s[{sONE}:{sONE+1}]"); sc.flex(last[1], gPv - 2, f"v_mov_b64 {vr(ONE4+2,2)}, s[{sONE}:{sONE+1}]")
        lo = (gmine + 1 if not attop and NS > 1 else OPT.get('kv0', 1))
        VE = OPT.get('vearly', 0)
        if VE:
            for j in (4, 5): lo = sc.flex(lo, max(lo, 4 + j), Op(kvl[j], ('kv', j))) + 1
            if 'kv' not in X and 'noV' not in X: sc.fix(gPv - 2, wtv(('kv', 5)))
        q0 = max(lo, OPT.get('q0', 1))
        lo = gSt + 1
        for j in range(4): lo = sc.flex(max(lo, gSt + j), gPv - 4 + j, kvl[j]) + 1
        RP = 0
        RK = OPT.get('rk', 1)
        SQ = QF + 12 - (4 if RK == 4 else 0)
        if RK == 0:
            a = sc.flex(0, 8, f"v_mov_b32 v{SQ}, s{sSENT}")
        elif RK != 8: a = sc.flex(0, q0, f"v_mov_b64 {vr(SQ,2)}, s[{sSENT}:{sSENT+1}]")
        if RK == 4:
            a = max(a, sc.flex(0, q0, f"v_mov_b64 {vr(SQ+2,2)}, s[{sSENT}:{sSENT+1}]")); sc.flex(0, 4, f"s_add_u32 s{sT+3}, s{sPn}, {wv*2048}")
            rs = [f"buffer_store_dwordx4 {vr(SQ,4)}, v{vL16}, {WS}, s{sT+3} offen offset:{o} {ST}" for o in (0, 1024)]
        elif RK == 8:
            SQ = M + 4
            hrs = [f"s_add_u32 s{sT+3}, s{sPp}, {wv*(1024*OPT.get('rw', 4) if OPT.get('fo', 1) else 2048)}", f"s_add_u32 s{sT+5}, s{sT+3}, 4096", f"v_mov_b64 {vr(SQ,2)}, s[{sSENT}:{sSENT+1}]", f"v_mov_b64 {vr(SQ+2,2)}, s[{sSENT}:{sSENT+1}]"]
            hst = [f"buffer_store_dwordx4 {vr(SQ,4)}, v{vL16}, {WS}, s{sT+3} offen offset:{o} {ST}" for o in (0, 1024)] + [f"buffer_store_dword v{SQ}, v{vMS}, {WS}, s{sMp} offen {ST}"]
            rs = []
            if OPT.get('r2') is not None:
                n2_ = OPT['r2']
                hrs[0] = f"s_add_u32 s{sT+3}, s{sPp}, {n2_*1024 if wv == 3 else 0}"
                hst = [f"buffer_store_dwordx4 {vr(SQ,4)}, v{vL16}, {WS}, s{sT+3+2*(o>>2)} offen offset:{(o&3)*1024} {ST}" for o in range([0, 0, n2_, 8 - n2_][wv])]
                a = sc.flex(0, 8, f"v_mov_b32 v{QF+12}, s{sSENT}"); sc.flex(a + 1, 24, f"buffer_store_dword v{QF+12}, v{vMS}, {WS}, s{sMp} offen {ST}")
            if OPT.get('fo', 1):
                hst = [f"buffer_store_dwordx4 {vr(SQ,4)}, v{vL16}, {WS}, s{sT+3+2*(o>>2)} offen offset:{(o&3)*1024} {ST}" for o in range([OPT.get('rw', 4), 8 - OPT.get('rw', 4), 0, 0][wv])]
                a = sc.flex(0, 8, f"v_mov_b32 v{QF+12}, s{sSENT}"); sc.flex(max(a + 1, PG + 2), 24, f"buffer_store_dword v{QF+12}, v{vMS}, {WS}, s{sMp} offen {ST}")
        elif RK == 0: rs = []
        else:
            sc.flex(0, 4, f"s_add_u32 s{sT+3}, s{sPn}, 4096")
            rs = [f"buffer_store_dword{'x2' if RK == 2 else ''} {vr(SQ,RK)}, v{vP8}, {WS}, s{sPn if tp < 2 else sT+3} offen offset:{(tp&1)*2048+o} {ST}" for tp in range(4) for o in ((0,) if RK == 2 else (0, 4))]
        if RK != 8: rs.append(f"buffer_store_dword v{SQ}, v{vMS}, {WS}, s{sMp} offen {ST}")
        for x in rs: sc.flex(max(a + 1, OPT.get('qr', 18)), gqb - 1, x)
        if 'pub' not in X: sc.flex(q0, q0 + 6, f"buffer_store_dword v{R}, v{vMS}, {WS}, s{sMHp} offen sc1")
        if 'pf' not in X:
            lo = max(OPT.get('qp', 0), PG + 2 if PG >= 0 else 0)
            for k in range(4): lo = sc.flex(lo, lo + 5, warm[k]) + OPT.get('pfs', 1)
            sc.flex(0, lo - 1, f"v_lshlrev_b32 v{QF+14}, 2, v{vL16}")
            sc.flex(lo, lo + 5, f"buffer_load_dword v{JUNK}, v{QF+14}, {WS}, s{sFl} offen sc1")
        if OPT.get('lat'):
            key = {'pf': f"s{sPF} offen offset:3072", 'K': f"s{sSK} offen offset:3072", 'V': f"s{sSV} offen offset:1024"}[OPT['lat']]
            for g in range(len(bb)):
                for k, x in enumerate(sc.g[g][1]):
                    if key in x.txt:
                        sc.g[g][1].insert(k, Op("s_waitcnt vmcnt(0) lgkmcnt(0)\ns_memtime s[4:5]\ns_waitcnt lgkmcnt(0)"))
                        sc.g[g][1].insert(k + 2, Op("s_waitcnt vmcnt(0)\ns_memtime s[6:7]\ns_waitcnt lgkmcnt(0)\ns_sub_u32 s6, s6, s4\n" + ("s_max_u32 s94, s94, s6" if OPT.get('latmax') else "s_add_u32 s94, s94, s6")))
                        break
        sc.emit('g%d')
        DS('pv_end'); e(f"v_rcp_f32 v{RC}, v{LA}"); DS('rcp'); e(zw[5]); e(zw[6])
        for x in norm: e(x)
        DS('ow'); E(ow, 'ow')
        e(f"v_subrev_u32 v{RC+1}, s{sLlo}, v{LA}\nv_cmp_lt_u32 vcc, s{sLrg}, v{RC+1}")
        e(zw[7]); e(zw[8])
        if not nc: e(f"s_cbranch_vccnz {Lw('fb')}")
        e(f"{Lw('fbret')}:")
        if not VE: e(kvl[4]); e(kvl[5])
        if RP: e(rs[0]); e(rs[2]); e(zw[9])
        else:
            for x in zw[9:12]: e(x)
        e("s_waitcnt lgkmcnt(0)"); DS('owdone'); e("s_barrier"); DS('b4')
        E(f"ds_read_b128 {vr(QF,4)}, v{vL16} offset:{L_O}", 'o0'); E(f"ds_read_b128 {vr(QF+4,4)}, v{vL16} offset:{L_O+1024}", 'o1')
        DS('o_rd')
        if RP: e(rs[1]); e(zw[10]); e(zw[11])
        else:
            for x in zw[12:16]: e(x)
        DS('wo_pre')
        wa = lambda t: add2(M + 4 * t)
        wc = lambda d: cvt(QF + 8 + d, M + 8 * (d >> 1) + (d & 1), M + 8 * (d >> 1) + 4 + (d & 1))
        tg = lambda tp: [f"v_bfi_b32 v{QF+8+2*tp+k}, 1, s{sTag}, v{QF+8+2*tp+k}" for k in range(2)] if RK == 0 else []
        pst = lambda tp: f"buffer_store_dwordx2 {vr(QF+8+2*tp,2)}, v{vP8}, {WS}, s{sPc if tp < 2 else sT+4} offen offset:{(tp&1)*2048} {ST}"
        wo = [f"v_smfmac_f32_16x16x64_bf16 {vr(M+4*(u>>1),4)}, {vr(QF+4*(u&1),4)}, {wreg(('o',u>>1,u&1))}, v{vIDX}" for u in range(16)]
        so = Sched(wo)
        e(WL('o0')); DS('o_w')
        so.fix(0, wt('o1')); so.fix(1, f"s_add_u32 s{sT+4}, s{sPc}, 4096")
        for f, g in ((order[16], 5), (order[17], 7)):
            so.fix(g + (g == 5) * 2 + (g == 7), Op(wtxt(f, 0), (f, 0))); so.fix(g + (g == 5) * 3 + (g == 7) * 2, Op(wtxt(f, 1), (f, 1)))
        for k in range(4): so.fix(k, Op(wtxt(order[14 + k // 2], k & 1), (order[14 + k // 2], k & 1)))
        for f in order[14:18]: so.fix(2 * f[1], wt((f, 1)))
        if RP:
            so.fix(0, zw[12]); so.fix(1, zw[13]); so.fix(2, zw[14]); so.fix(10 if OPT.get('wo1') else 4, zw[15])
        if OPT.get('wo1', 0) == 0:
            so.fix(3, *wa(0)); so.fix(5, *(wa(1) + [wc(0), wc(1)] + tg(0))); so.fix(6, pst(0))
            so.fix(7, wa(2)[0]); so.fix(8, wa(2)[1]); so.fix(9, *wa(3)); so.fix(10, wc(2), wc(3), *tg(1)); so.fix(11, pst(1))
            so.fix(12, wa(4)[0]); so.fix(13, wa(4)[1]); so.fix(14, wa(5)[0])
            tail = [wa(5)[1], wc(4), wc(5)] + tg(2) + [pst(2)] + wa(6) + wa(7) + [wc(6), wc(7)] + tg(3) + [pst(3)]
        else:
            so.fix(3, wa(0)[0]); so.fix(4, wa(0)[1]); so.fix(5, wa(1)[0]); so.fix(6, wa(1)[1]); so.fix(7, wc(0), wc(1), *(tg(0) + wa(2)))
            so.fix(8, pst(0), *(wa(3) + [wc(2), wc(3)] + tg(1))); so.fix(9, pst(1))
            so.fix(11, wa(4)[0]); so.fix(12, wa(4)[1]); so.fix(13, wa(5)[0]); so.fix(14, wa(5)[1])
            tail = [wc(4), wc(5)] + tg(2) + [pst(2)] + wa(6) + wa(7) + [wc(6), wc(7)] + tg(3) + [pst(3)]
        gp2 = OPT.get('gp2', 13)
        assert gp2 > 11
        early = wv == 0 and gp2 < 50
        if early:
            for k in range(8):
                if gp2 + k // 2 < 16: so.fix(gp2 + k // 2, p2l[k])
        so.emit('u%d' if OPT.get('one') else None)
        if early:
            for k in range(8):
                if gp2 + k // 2 >= 16: e(p2l[k])
        FO = OPT.get('fo', 1)
        for x in tail:
            if not (FO and x in (pst(2), pst(3))): e(x)
        DS('wo_end')
        sel = [f"v_mov_b32 v{SELQ+d}, v{vSEL}" for d in range(4)]
        rot = [f"s_mov_b32 s{sT}, s{sMp}", f"s_mov_b32 s{sMp}, s{sMc}", f"s_mov_b32 s{sMc}, s{sMn}", f"s_mov_b32 s{sMn}, s{sT}",
               f"s_add_u32 s{sMH}, s{sMH}, 8192", f"s_mov_b32 s{sMHp}, s{sMH}", f"s_add_u32 s{sStep}, s{sStep}, 1"]
        free = zero_acc[4:] + stage + [f"s_sub_u32 s{sDl}, s{sPn}, s{sPc}", f"s_mov_b32 s{sT+2}, s{sPp}",
                f"s_mov_b32 s{sPp}, s{sPc}", f"s_mov_b32 s{sPc}, s{sPn}", f"s_mov_b32 s{sPn}, s{sPp if RK == 0 else sT+2}",
                f"s_add_u32 s{sPF}, s{sPF}, {SEGS:#x}", f"s_mov_b32 s{sRedo}, 0",
                f"s_add_u32 s{sSK}, s{sSK}, {0 if 'KVfix' in X else SEGS}", f"s_add_u32 s{sSV}, s{sSV}, {0 if 'KVfix' in X else SEGS}"]
        kvn = [f"v_cmp_le_u32 vcc, 32, v{JUNK}", f"s_and_b32 s{sT}, vcc_lo, 0xffff", f"s_ff0_i32_b32 s{sT}, s{sT}", f"s_max_u32 s{sKv}, s{sKv}, s{sT}",
               f"s_add_u32 s{sT}, s{sStep}, {OPT.get('la', 4)}", f"s_lshr_b32 s{sT}, s{sT}, 2", f"s_min_u32 s{sT}, s{sT}, 15", f"s_cmp_lt_u32 s{sT}, s{sKv}",
               f"s_cselect_b32 s{sFl}, s{sOOB}, s{sFlC}", f"s_add_u32 s{sT}, s{sStep}, 2", f"s_lshr_b32 s{sT}, s{sT}, 2", f"s_min_u32 s{sT}, s{sT}, 15", f"s_cmp_lt_u32 s{sT}, s{sKv}", f"s_cbranch_scc0 {Lw('kvwait')}\n{Lw('kvok')}:"]
        dA = OPT.get('dA', [0, 0, 12, 34])[wv]; dB = OPT.get('dB', [30, 36, 36, 36])[wv]; dC = OPT.get('dC', 16)
        gaps = [0 if POST[wv] == 1 else dB] + [dC] * (len(PR0) - 1)
        late = zero_acc[:4] + kvn + [f"v_add_u32 v{vRL}, s{sDl}, v{vRL}", f"s_bfe_i32 s{sTag}, s{sStep}, 0x10001"]
        nA = min(dA, len(free)); partA = free[:nA]; rest = free[nA:]
        want = max(0, sum(gaps) - len(late)); keep = rest[max(0, len(rest) - want):] if want else []
        mid = rest[:len(rest) - len(keep)]
        after = late[:4] + keep + late[4:]
        if RK == 8:
            for x in hrs: e(x)
        if FO and wv >= 2:
            e("s_barrier"); e(pst(2)); e(pst(3))
        for x in partA + pad(dA - nA - (4 if RK == 8 else 0)): e(x)
        DS('p2top')
        if not early:
            for x in p2l: e(x)
        if FO and wv < 2:
            e("s_barrier"); e(pst(2)); e(pst(3))
        if RK == 8 and not FO:
            for x in hst: e(x)
        for x in rot + sel + [f"v_mov_b32 v{M+2}, s{sStep}"] + mid: e(x)
        yo = (2 if wv < 2 else 0) if FO else (2 if early else 0) + (len(hst) if RK == 8 else 0)
        e(f"s_waitcnt vmcnt({4+yo})")
        e(f"{Lw('p2w')}:"); DS('p2w')
        if RK == 0:
            bo = lambda d, x, y, z, t: f"v_bitop3_b32 v{d}, {x}, {y}, {z} bitop3:{t:#x}"
            e(f"{mm} {vr(R,4)}, {vr(SELQ,4)}, {vr(LAND,4)}, 0\n{bo(M, f'v{LAND}', f'v{LAND+1}', f's{sTag}', 0x7e)}\n{bo(M+1, f'v{LAND+2}', f'v{LAND+3}', f's{sTag}', 0x7e)}\ns_waitcnt vmcnt({yo})")
            e(f"{mm} {vr(R,4)}, {vr(SELQ,4)}, {vr(LAND+4,4)}, {vr(R,4)}\n{bo(M+3, f'v{LAND+4}', f'v{LAND+5}', f's{sTag}', 0x7e)}\n{bo(M+4, f'v{LAND+6}', f'v{LAND+7}', f's{sTag}', 0x7e)}")
            e(f"v_or3_b32 v{M}, v{M}, v{M+1}, v{M+3}\n{bo(M, f'v{M}', f'v{M+4}', '1', 0xa8)}\nv_cmp_ne_u32 vcc, 0, v{M}")
            if not nc: e(f"s_cbranch_vccnz {Lw('p2retry')}")
        else:
            e(f"{mm} {vr(R,4)}, {vr(SELQ,4)}, {vr(LAND,4)}, 0\nv_max3_i32 v{M}, v{LAND}, v{LAND+1}, v{LAND+2}\ns_waitcnt vmcnt({yo})")
            e(f"{mm} {vr(R,4)}, {vr(SELQ,4)}, {vr(LAND+4,4)}, {vr(R,4)}\nv_max3_i32 v{M+1}, v{LAND+3}, v{LAND+4}, v{LAND+5}\nv_max3_i32 v{M}, v{M}, v{LAND+6}, v{LAND+7}\nv_max_i32 v{M}, v{M}, v{M+1}")
            e(f"v_cmp_le_i32 vcc, s{sInf}, v{M}")
            if not nc: e(f"s_cbranch_vccnz {Lw('p2slow')}")
        e(f"{Lw('p2ok')}:"); DS('p2ok')
        e(cvt(R, R, R + 1))
        e(f"buffer_store_dword v{R}, v{vMS}, {WS}, s{sMc} offen {ST}")
        DS('mstore')
        e(f"s_cmp_eq_u32 s{sStep}, 63\ns_cbranch_scc1 {Ln('fin')}")
        if FP_:
            fd = OPT.get('fd', 0)
            after.insert(fd, f"buffer_store_dword v{M+2}, off, {WS}, s{sRdW} {ST}")
        for k, r in enumerate(PR0):
            part = after[:gaps[k]] if k < len(PR0) - 1 else after
            after = after[len(part):]
            for x in part + ([] if POST[wv] == 1 else pad(gaps[k] - len(part))): e(x)
            if k == 0: DS('shot1')
            if POST[wv] != 1:
                for x in shot(PRB + 1 if PRE else r): e(x)
        NR = len(hst) if (FO and RK == 8) else 0
        for x in (hst if NR else []): e(x)
        if OPT.get('est') == wv and mode == 0:
            ls = e.l[loop0:]
            for tt, x in zip(estimate(ls), ls): print(tt, x)
        DS('end') if OPT.get('one') else None
        if OPT.get('prof') and wv == 3:
            e(f"{'s_memtime' if OPT['prof'] == 2 else 's_memrealtime'} s[98:99]\ns_lshl_b32 s97, s{h}, 8\ns_lshl_b32 s96, s{sStep}, 2\ns_add_u32 s97, s97, s96\ns_add_u32 s97, s97, {WS_STAMP + 0x10000:#x}\ns_waitcnt lgkmcnt(0)\nv_mov_b32 v{M}, s98\nbuffer_store_dword v{M}, off, {WS}, s97")
        if OPT.get('dst'):
            DS('end')
            e(f"s_cmp_eq_u32 s{sStep}, 40\ns_cbranch_scc0 {Lw('step')}\ns_waitcnt lgkmcnt(0)")
            e(f"s_lshl_b32 s{sT}, s{h}, 2\ns_add_u32 s{sT}, s{sT}, s{w}\ns_lshl_b32 s{sT}, s{sT}, 7\ns_add_u32 s{sT}, s{sT}, {WS_STAMP:#x}")
            e("s_waitcnt vmcnt(0)")
            for k in range(len(dn)): e(f"v_mov_b32 v{M}, s{dregs[k]}\nbuffer_store_dword v{M}, off, {WS}, s{sT} offset:{4*k}")
            e("s_waitcnt vmcnt(0)")
            if mode == 0: open('dst_names.txt', 'w').write(' '.join(dn))
        e(f"s_branch {Lw('step')}")
        cnt = lambda inc: e(f"s_add_u32 s94, s94, {inc:#x}") if OPT.get('tl') and not OPT.get('one') and not OPT.get('lat') else None
        if PRE:
            e(f"{Lw('second')}:"); cnt(1)
            e(f"{late2['p']}\n{pcmp(PRB)}\ns_cbranch_vccnz {Lw('spin1')}\n{late2['d']}\ns_branch {Lw('hit')}")
        if attop:
            e(f"{Lw('spinA')}:")
            for k in range(NS):
                cnt(1)
                for x in shot(PR0[k]): e(x)
                if k < NS - 1: e(f"s_waitcnt vmcnt({3*NS-1+NR0})\n{pcmp(PR0[k+1])}\ns_cbranch_vccz {Lw('spunA')}")
            e(f"s_branch {Lw('spin0')}\n{Lw('spunA')}:\ns_waitcnt vmcnt({3*NS-3+NR0})\ns_branch {Lw('hit')}")
        e(f"{Lw('spin0')}:")
        e(f"s_waitcnt vmcnt({3*NS-1})\n{pcmp(PR0[0])}\ns_cbranch_vccz {Lw('spun')}")
        e(f"{Lw('spin1')}:")
        for k in range(NS):
            cnt(1)
            for x in shot(PR0[k]): e(x)
            if k < NS - 1: e(f"s_waitcnt vmcnt({3*NS-1})\n{pcmp(PR0[k+1])}\ns_cbranch_vccz {Lw('spun')}")
        fail_if_zero(12)
        e(f"s_branch {Lw('spin0')}")
        e(f"{Lw('spun')}:\ns_waitcnt vmcnt({3*NS-3})\ns_branch {Lw('hit')}")
        e(f"{Lw('redo')}:")
        cnt(0x400)
        e(f"s_mov_b32 s{sRedo}, 1\ns_mov_b32 s{sMHp}, {OOB:#x}\ns_sub_u32 s{sSK}, s{sSK}, {SEGS:#x}")
        for x in kv_loads()[:4]: e(x)
        e(f"s_add_u32 s{sSK}, s{sSK}, {SEGS:#x}")
        e(f"{Lw('redo1')}:\ns_waitcnt vmcnt(0) lgkmcnt(0)\ns_barrier")
        fail_if_zero(13)
        for x in shot(PRB)[1:]: e(x)
        e("s_waitcnt vmcnt(0)\ns_barrier")
        for k in range(8): e(f"ds_read_b128 {vr(M+4*k,4)}, v{vL16} offset:{L_M+k*1024}")
        e("s_waitcnt lgkmcnt(0)")
        for i in range(32): e(f"v_cmp_eq_u32 vcc, s{sSENT}, v{M+i}\ns_cbranch_vccnz {Lw('redo1')}")
        for x in stage + zero_acc + [f"v_mov_b32 v{r}, s{sStep}" for r in PR0 + [PRB + 1]]: e(x)
        e(f"s_branch {Lw('step')}")
        e(f"{Lw('p2slow')}:")
        for i in range(8): e(f"v_cmp_eq_u32 vcc, s{sSENT}, v{LAND+i}\ns_cbranch_vccnz {Lw('p2retry')}")
        e(f"s_branch {Lw('p2ok')}")
        e(f"{Lw('p2retry')}:")
        cnt(0x100000)
        fail_if_zero(14)
        for x in p2l: e(x)
        e(f"s_waitcnt vmcnt(0)\ns_branch {Lw('p2w')}")
        kv_refresh(Lw('kvwait'), 15)
        e(f"s_branch {Lw('kvok')}")
        e(f"{Lw('fb')}:")
        F = M
        e(f"s_cmp_eq_u32 s{sRedo}, 0\ns_cbranch_scc0 {Lw('fb1')}\nv_cmp_u_f32 vcc, v{LA}, v{LA}\ns_cbranch_vccnz {Lw('redo')}")
        e(f"{Lw('fb1')}:\ns_waitcnt vmcnt(0)\ns_barrier")
        e(f"ds_write_b64 v{vL16}, {vr(STK,2)} offset:{L_M+(wv>>1)*1024+(wv&1)*8}")
        e("s_waitcnt lgkmcnt(0)\ns_barrier")
        e(f"ds_read_b128 {vr(F,4)}, v{vL16} offset:{L_M}\nds_read_b128 {vr(F+4,4)}, v{vL16} offset:{L_M+1024}\nv_mov_b32 v{F+8}, v{SMM}\nv_mov_b32 v{F+9}, v{SMM+1}\ns_waitcnt lgkmcnt(0)")
        e(f"v_max3_f32 v{F+10}, v{F}, v{F+1}, v{F+2}\nv_max3_f32 v{F+11}, v{F+3}, v{F+4}, v{F+5}\nv_max3_f32 v{F+10}, v{F+10}, v{F+6}, v{F+7}\nv_max3_f32 v{F+11}, v{F+11}, v{F+8}, v{F+9}\nv_max_f32 v{F+10}, v{F+10}, v{F+11}")
        e(f"v_mov_b32 v{F+11}, v{F+10}\nv_permlane32_swap_b32 v{F+10}, v{F+11}\nv_max_f32 v{F+10}, v{F+10}, v{F+11}")
        e(f"v_mov_b32 v{F+11}, v{F+10}\nv_permlane16_swap_b32 v{F+10}, v{F+11}\nv_max_f32 v{F+10}, v{F+10}, v{F+11}")
        for r in range(10): e(f"v_sub_f32 v{F+r}, v{F+r}, v{F+10}")
        for r in range(10): e(f"v_exp_f32 v{F+r}, v{F+r}")
        for dd in range(4): e(cvt(PAL + dd, F + 2 * dd, F + 2 * dd + 1))
        e(cvt(F + 8, F + 8, F + 9))
        for dd in range(4): e(f"v_cndmask_b32 v{PLO+dd}, 0, v{PAL+dd}, {mlo}\nv_cndmask_b32 v{PHI+dd}, v{PAL+dd}, 0, {mlo}")
        e(f"v_cndmask_b32 v{PM}, 0, v{F+8}, {mlo}\nv_cndmask_b32 v{PM+1}, v{F+8}, 0, {mlo}")
        for x in pv_tok + pv_mem: e(x)
        for x in zw[:7]: e(x)
        e(f"v_rcp_f32 v{RC}, v{LA}")
        for x in norm: e(x)
        e(ow)
        e(f"s_branch {Lw('fbret')}")
    e(f"{Ln('fin')}:")
    e(f"buffer_store_dword v{R}, v{vMS}, {WS}, s{sMH} offen sc1")
    if OPT.get('wb', 1): e(f"s_or_b32 s{sT}, s{h}, s{w}\ns_cmp_eq_u32 s{sT}, 0\ns_cbranch_scc0 {Ln('nwb')}\ns_waitcnt vmcnt(0)\nbuffer_wbl2 sc1\n{Ln('nwb')}:")
    TL(5, 0); DTL(6, 14)
    if OPT.get('dtl'): e(f's_memtime s[98:99]\ns_waitcnt lgkmcnt(0)\ns_sub_u32 s98, s98, s92\ns_mov_b64 exec, 1\nv_mov_b32 v14, s98\nv_mov_b32 v15, 0\nglobal_store_dword v15, v14, s[{P_DBG}:{P_DBG+1}] offset:28\ns_mov_b64 exec, -1')
    if OPT.get('tl'): e(f"s_memtime s[98:99]\ns_waitcnt lgkmcnt(0)\ns_sub_u32 s98, s98, s92\nv_mov_b32 v15, s98\nbuffer_store_dword v15, off, {WS}, s97 offset:4\ns_lshl_b32 s96, s{w}, 2\ns_add_u32 s97, s97, s96\nv_mov_b32 v15, s94\nbuffer_store_dword v15, off, {WS}, s97 offset:{28 if OPT.get('tlw') else 12}")
    e("s_waitcnt vmcnt(0)\ns_branch L_end")
```

```python
def emit(G):
    globals().update(G)
    X, W, AUX = "s[40:43]", "s[44:47]", "s[48:51]"
    sRound, sTile, sPass, sType, sRS, sNB, sCnt, sBlk, sBlkN = 52, 53, 54, 55, 56, 57, 58, 59, 60
    s2RS = {1: 61, 2: 62, 3: 63}; sRow = list(range(64, 72)); sB, sT0, sT1, s128, sLo, sHi = 72, 73, 74, 75, 76, 77
    vL16, vA0, vA1, vW, vXo, vG, vC = 1, 2, 3, 4, 5, 6, 7
    RING = [160, 192, 224, 128]
    XN, WF = 16, 80
    acc = lambda t, T: (t * 8 + T) * 4

    e("L_worker:")
    TL(1, 32)
    if OPT.get('tl'): e(f"v_mov_b32 v15, s94\ns_sub_u32 s97, s97, 4\nbuffer_store_dword v15, off, {WS}, s97")
    srd(40, P_X, 2048 * 1024)
    e(f"v_lshlrev_b32 v{vL16}, 4, v0\nv_lshrrev_b32 v{vG}, 4, v0\nv_and_b32 v{vC}, 15, v0")
    e(f"v_lshlrev_b32 v{vXo}, 10, v{vC}\nv_lshl_add_u32 v{vXo}, v{vG}, 6, v{vXo}")
    e(f"v_lshrrev_b32 v8, 2, v{vC}\nv_and_b32 v9, 1, v{vC}\nv_lshl_add_u32 v8, v8, 1, v9\nv_lshlrev_b32 v8, 4, v8\nv_lshl_add_u32 v8, v{vG}, 7, v8\nv_bfe_u32 v9, v{vC}, 1, 1\nv_lshl_add_u32 v0, v9, 9, v8\nv_and_b32 v9, 1, v{vG}\nv_lshlrev_b32 v9, 6, v9\nv_xor_b32 v0, v0, v9")
    e(f"s_mov_b32 s{sLo}, 0x05040100\ns_mov_b32 s{sHi}, 0x07060302")
    e(f"s_mov_b32 s{sRound}, 0")
    if OPT.get('rounds') == 0: e("s_waitcnt vmcnt(0)\ns_branch L_end")
    sPg, sU, sPi, sHalf, sSkip = 87, 88, 89, 90, 91
    e(f"s_mul_i32 s{sPg}, s{S_IDX}, 1171\ns_lshr_b32 s{sPg}, s{sPg}, 16\ns_mul_i32 s79, s{sPg}, 56\ns_sub_u32 s79, s{S_IDX}, s79\ns_lshr_b32 s{sU}, s79, 2\ns_and_b32 s{sPi}, s79, 3")
    e(f"s_lshl_b32 s{sPass}, s{sPg}, 2\ns_add_u32 s{sPass}, s{sPass}, s{sPi}\ns_mov_b32 s{sSkip}, 0")
    e(f"s_sub_u32 s{sTile}, s{sU}, 2\ns_mov_b32 s{sHalf}, 0\ns_cmp_lt_u32 s{sU}, 4\ns_cbranch_scc0 L_dec2")
    e(f"s_lshr_b32 s{sTile}, s{sU}, 1\ns_and_b32 s{sHalf}, s{sU}, 1\ns_add_u32 s{sHalf}, s{sHalf}, 1\ns_branch L_dec2")
    e("L_task:")
    if OPT.get('rb'): e("s_waitcnt vmcnt(0)")
    e(f"s_mov_b32 s{sHalf}, 0\ns_cmp_eq_u32 s{sRound}, 1\ns_cbranch_scc0 L_dec1")
    e(f"s_cmp_lt_u32 s{sU}, 4\ns_cbranch_scc0 L_dec1\ns_add_u32 s{sTile}, s{sU}, 12\ns_branch L_dec2")
    e("L_dec1:")
    e(f"s_mov_b32 s{sRound}, 2\ns_mov_b32 s{sSkip}, 1\ns_mov_b32 s79, s{sPi}\ns_cmp_lt_u32 s{sPi}, 3\ns_cbranch_scc1 L_dec1b")
    e(f"s_sub_u32 s79, s{sU}, 4\ns_cmp_lt_u32 s79, 6\ns_cbranch_scc0 L_g1_end")
    e(f"s_mov_b32 s{sSkip}, 0\ns_cmp_ge_u32 s79, 3\ns_cselect_b32 s{sTile}, 1, 0\ns_cselect_b32 s80, 3, 0\ns_sub_u32 s79, s79, s80")
    e("L_dec1b:")
    e(f"s_lshl_b32 s80, s{sPg}, 1\ns_add_u32 s80, s80, s79\ns_add_u32 s{sPass}, s80, 15\ns_add_u32 s80, s{sPg}, 24\ns_cmp_eq_u32 s79, 0\ns_cselect_b32 s{sPass}, s80, s{sPass}")
    e("L_dec2:")
    e(f"s_and_b32 s78, s{sPass}, 7\ns_lshl_b32 s78, s78, 2\ns_add_u32 s78, s78, s{S_WAVE}\ns_lshl_b32 s79, s78, 8")
    e(f"s_mov_b32 s{sRS}, 8192\ns_mov_b32 s46, 0x400000\ns_mov_b32 s47, 0x20000\ns_mov_b32 s{sNB}, 4")
    e(f"s_mov_b32 s{sType}, 0\ns_mov_b32 s44, s{P_WK}\ns_mov_b32 s45, s{P_WK+1}\ns_cmp_lt_u32 s{sPass}, 8\ns_cbranch_scc1 L_dec3")
    e(f"s_mov_b32 s{sType}, 1\ns_mov_b32 s44, s{P_WV}\ns_mov_b32 s45, s{P_WV+1}\ns_cmp_lt_u32 s{sPass}, 16\ns_cbranch_scc1 L_dec3")
    e(f"s_mov_b32 s{sType}, 4\ns_mov_b32 s44, s{P_WQ}\ns_mov_b32 s45, s{P_WQ+1}\ns_cmp_lt_u32 s{sPass}, 24\ns_cbranch_scc1 L_dec3")
    e(f"s_mov_b32 s{sType}, 2\ns_mov_b32 s44, s{P_W1}\ns_mov_b32 s45, s{P_W1+1}\ns_mov_b32 s{sRS}, 3584\ns_mov_b32 s46, {512*3584}")
    e("L_dec3:")
    def wcalc(pi=False):
        if pi: e(f"v_and_b32 v8, 3, v{vC}\nv_lshrrev_b32 v9, 2, v{vC}\nv_lshl_add_u32 v8, v8, 2, v9\nv_lshlrev_b32 v8, 4, v8")
        else: e(f"v_lshlrev_b32 v8, 4, v{vC}")
        e(f"s_lshl_b32 s80, s{sRS}, 5\nv_mul_lo_u32 v9, s80, v{vG}\nv_add3_u32 v{vW}, v8, v9, s79")
        for i in range(8): e(f"s_mul_i32 s{sRow[i]}, s{sRS}, {8*(i>>1)+(i&1)}")
        for k in (1, 2, 3): e(f"s_mul_i32 s{s2RS[k]}, s{sRS}, {2*k}")
        e(f"s_lshl_b32 s{s128}, s{sRS}, 7")
    def wissue():
        for n in range(3):
            for i in range(8):
                if n: e(f"s_add_u32 s{sT0}, s{s2RS[n]}, s{sRow[i]}")
                so = f"s{sT0}" if n else f"s{sRow[i]}"
                e(f"buffer_load_dwordx4 {vr(RING[n]+4*i,4)}, v{vW}, {W}, {so} offen")
    def wsetup(pi=False): wcalc(pi); wissue()
    e(f"s_cmp_eq_u32 s{sSkip}, 1\ns_cbranch_scc0 L_ln")
    wsetup()
    e("s_branch L_gemm")
    e("L_ln:")
    e(f"s_cmp_eq_u32 s{sHalf}, 0\ns_cselect_b32 s82, 15, 14\ns_lshl_b32 s82, s{S_WAVE}, s82\ns_lshr_b32 s81, s{sHalf}, 1\ns_lshl_b32 s81, s81, 16")
    e(f"s_lshl_b32 s80, s{sTile}, 17\ns_add_u32 s80, s80, s81\ns_add_u32 s80, s80, s82\nv_add_u32 v{vA0}, s82, v{vL16}")
    for r in range(16): e(f"v_xor_b32 v{16+r}, {r*16}, v{vL16}")
    e("s_barrier")
    for u in range(2):
        if u: e(f"s_cmp_eq_u32 s{sHalf}, 0\ns_cbranch_scc0 L_ln_x")
        for r in range(16):
            if (r & 3) == 0: e(f"s_add_u32 m0, s82, {u*16384+r*1024}\ns_add_u32 s81, s80, {u*16384+r*1024}")
            e(f"buffer_load_dwordx4 v{16+r}, {X}, s81 offen offset:{(r&3)*1024} lds")
    e('L_ln_x:')
    confirm_issue('a4', vA1)
    wcalc()
    e("v_mov_b32 v8, 0x3f803f80")
    for i in range(4): e(f"v_accvgpr_write_b32 a{i}, v8")
    e(f"v_lshlrev_b32 v12, 10, v{vC}\nv_add_u32 v12, s82, v12\nv_lshlrev_b32 v13, 2, v{vG}\nv_xor_b32 v13, v13, v{vC}")
    AX = 156
    for r in range(4): e(f"v_xor_b32 v14, {r}, v13\nv_lshl_add_u32 v{AX+r}, v14, 4, v12")
    for u in range(2):
        RB = 16 + 64 * u
        if u: e(f"s_cmp_eq_u32 s{sHalf}, 0\ns_cbranch_scc0 L_ln_end")
        if u == 0: e(f"s_waitcnt vmcnt(17)\ns_cmp_eq_u32 s{sHalf}, 0\ns_cbranch_scc1 L_ln_w\ns_waitcnt vmcnt(1)\nL_ln_w:")
        else: e("s_waitcnt vmcnt(25)")
        for q in range(16): e(f"ds_read_b128 {vr(RB+4*q,4)}, v{AX+(q&3)} offset:{u*16384+(q>>2)*256}")
        if OPT.get('tl2') and u == 0:
            e(f"s_cmp_eq_u32 s{sRound}, 0\ns_cbranch_scc0 L_tla"); TLV[0] = 15; TL(8, 32); e("s_waitcnt vmcnt(0)\nL_tla:")
        for q in range(16):
            e(f"s_waitcnt lgkmcnt({15-q})\nv_mfma_f32_16x16x32_bf16 v[8:11], a[0:3], {vr(RB+4*q,4)}, {'0' if q == 0 else 'v[8:11]'}")
            for d in range(4):
                r = RB + 4 * q + d
                e(f"v_dot2_f32_bf16 v{12+d}, v{r}, v{r}, {'0' if q == 0 else 'v%d' % (12+d)}")
        if u == 0: wissue()
        e("v_add_f32 v12, v12, v13\nv_add_f32 v14, v14, v15\nv_add_f32 v12, v12, v14")
        e("v_mov_b32 v13, v12\nv_permlane32_swap_b32 v12, v13\nv_add_f32 v12, v12, v13")
        e("v_mov_b32 v13, v12\nv_permlane16_swap_b32 v12, v13\nv_add_f32 v12, v12, v13")
        e(f"v_mul_f32 v8, {fbits(1/512):#x}, v8\nv_mul_f32 v12, {fbits(1/512):#x}, v12")
        e(f"v_fma_f32 v12, -v8, v8, v12\nv_max_f32 v12, 0, v12\nv_add_f32 v12, {fbits(1e-5):#x}, v12\nv_rsq_f32 v144, v12")
        e("v_mul_f32 v146, -v8, v144".replace("v_mul_f32 v146, -v8, v144", "v_mul_f32_e64 v146, -v8, v144"))
        if OPT.get('tl2') and u == 0:
            e(f"s_cmp_eq_u32 s{sRound}, 0\ns_cbranch_scc0 L_tlb"); TL(9, 32); e("L_tlb:")
        k = 0
        for wp in range(4):
            for tp in range(4):
                oq = 152 if (wp * 4 + tp) & 1 else 12
                for r in range(4):
                    src = RB + (wp * 4 + r) * 4 + tp
                    t = 148 + 2 * (k & 1); k += 1
                    e(f"v_lshlrev_b32 v{t}, 16, v{src}\nv_and_b32 v{t+1}, 0xffff0000, v{src}")
                    e(f"v_pk_fma_f32 v[{t}:{t+1}], v[{t}:{t+1}], v[144:145], v[146:147] op_sel_hi:[1,0,0]")
                    e(f"v_cvt_pk_bf16_f32 v{oq+r}, v{t}, v{t+1}")
                e(f"ds_write_b128 v{vA0}, {vr(oq,4)} offset:{u*16384+(wp*4+tp)*1024}")
    e("L_ln_end:\ns_waitcnt vmcnt(24)\nv_accvgpr_read_b32 v8, a4")
    confirm_check(42, 8, 10)
    e(f"s_lshr_b32 s80, s{S_IDX}, 5\ns_or_b32 s80, s80, s{sRound}\ns_cmp_eq_u32 s80, 0\ns_cbranch_scc0 L_w_nz")
    e(f"v_mov_b32 v8, 0\nv_mov_b32 v9, 0\nv_mov_b32 v10, 0\nv_mov_b32 v11, 0\ns_lshl_b32 s80, s{S_WAVE}, 12\ns_add_u32 s81, s80, {WS_FLAG}\ns_cmp_eq_u32 s{S_IDX}, 0\ns_cselect_b32 s81, s81, {OOB:#x}")
    for i in range(4): e(f"buffer_store_dwordx4 v[8:11], v{vL16}, {WS}, s81 offen offset:{i*1024} sc1")
    e(f"v_mov_b32 v12, {SENT:#x}\nv_mov_b32 v13, v12\nv_mov_b32 v14, v12\nv_mov_b32 v15, v12\ns_lshl_b32 s81, s{S_IDX}, 14\ns_add_u32 s81, s81, s80\ns_add_u32 s81, s81, {WS_MH:#x}")
    for i in range(4): e(f"buffer_store_dwordx4 v[12:15], v{vL16}, {WS}, s81 offen offset:{i*1024} sc1")
    e(f"s_waitcnt vmcnt(0)\ns_barrier\ns_cmp_eq_u32 s{S_WAVE}, 0\ns_cbranch_scc0 L_w_nz")
    e(f"s_mov_b64 exec, 1\nv_mov_b32 v9, 1\nglobal_atomic_add v8, v9, s[{P_DBG}:{P_DBG+1}] offset:8\ns_mov_b64 exec, -1")
    e("L_w_nz:")
    e("L_gemm:")
    if OPT.get('tl'):
        e(f"s_cmp_eq_u32 s{sRound}, 0\ns_cbranch_scc0 L_tl1"); TL(2, 32); e("L_tl1:")
    for i in range(256): e(f"v_accvgpr_write_b32 a{i}, 0")
    e(f"v_mov_b32 v{vA0}, v{vL16}\nv_add_u32 v{vA1}, 0x10000, v{vL16}")
    e(f"s_mov_b32 s{sBlk}, 0\ns_mov_b32 s{sCnt}, 1")
    e("s_waitcnt lgkmcnt(0)\ns_barrier")
    e(f"s_cmp_eq_u32 s{sPass}, 27\ns_cselect_b32 s80, s{S_WAVE}, 0\ns_cmp_eq_u32 s{sType}, 2\ns_cselect_b32 s80, s80, 0\ns_cmp_ge_u32 s80, 2\ns_cbranch_scc1 L_epi")
    def xnread(T, jloc, base=16):
        return f"ds_read_b128 {vr(base+4*T,4)}, v{vA0 if T < 4 else vA1} offset:{(T&3)*16384+jloc*1024}"
    def perm(ring, t, rp, msk=1):
        return f"v_perm_b32 v{WF+4*(t&msk)+rp}, v{ring+4*(2*rp+1)+(t>>1)}, v{ring+4*(2*rp)+(t>>1)}, s{sHi if t&1 else sLo}"
    if OPT.get('tl2'):
        e(f"s_cmp_eq_u32 s{sRound}, 0\ns_cbranch_scc0 L_tlc"); TL(10, 32); e("s_waitcnt vmcnt(0)\nL_tlc:")
    if OPT.get('clk'): e("s_memtime s[92:93]\ns_memrealtime s[94:95]\ns_waitcnt lgkmcnt(0)")
    for T in range(8): e(xnread(T, 0))
    e("s_waitcnt vmcnt(16)")
    for rp in range(4): e(perm(RING[0], 0, rp)); e(perm(RING[0], 1, rp))
    e("s_waitcnt lgkmcnt(0)")
    e(f"s_cmp_eq_u32 s{sHalf}, 0\ns_cbranch_scc0 L_halfsel\ns_cmp_eq_u32 s{sType}, 1\ns_cbranch_scc1 L_loopB8\ns_branch L_loopA8")
    e(f"L_halfsel:\ns_cmp_eq_u32 s{sType}, 1\ns_cbranch_scc1 L_loopB4")
    for ori, NT in (("A", 4), ("B", 4), ("A", 8), ("B", 8)):
        e(f"L_loop{ori}{NT}:")
        if OPT.get('tl3') is not None:
            e(f"s_cmp_eq_u32 s{sRound}, {OPT['tl3']}\ns_cbranch_scc0 L_tle{ori}{NT}\ns_memrealtime s[98:99]\ns_lshl_b32 s97, s{S_IDX}, 6\ns_lshl_b32 s96, s{sCnt}, 2\ns_add_u32 s97, s97, s96\ns_add_u32 s97, s97, {WS_STAMP + 0x8000 + 32*64 + 28:#x}\ns_waitcnt lgkmcnt(0)\nv_mov_b32 v15, s98\nbuffer_store_dword v15, off, {WS}, s97\nL_tle{ori}{NT}:")
        e(f"s_add_u32 s{sBlkN}, s{sBlk}, s{s128}\ns_cmp_lt_u32 s{sCnt}, s{sNB}\ns_cselect_b32 s{sBlkN}, s{sBlkN}, {OOB:#x}")
        for tp in range(4):
            ring = RING[tp]; nring = RING[(tp + 1) & 3]; lring = RING[(tp + 3) & 3]
            tpp = (tp + 3) & 3
            base = sBlk if tp == 0 else sBlkN
            xc, xn_ = XN + (32 if tp & 1 else 0), XN + (0 if tp & 1 else 32)
            if tpp: e(f"s_add_u32 s{sB}, s{base}, s{s2RS[tpp]}")
            else: e(f"s_mov_b32 s{sB}, s{base}")
            for t in range(8):
                for T in range(NT):
                    a = ar(acc(t, T), 4); w = vr(WF + 4 * (t & (1 if NT == 8 else 3)), 4); x = vr(xc + 4 * T, 4)
                    e(f"v_mfma_f32_16x16x32_bf16 {a}, {w if ori == 'A' else x}, {x if ori == 'A' else w}, {a}")
                    li = None
                    if NT == 8 and 1 <= t <= 4 and T in (0, 6): li = (t - 1) * 2 + (T == 6)
                    if NT == 4 and t < 4 and T in (0, 2): li = 2 * t + (T == 2)
                    if li is not None:
                        e(f"s_add_u32 s{sT0}, s{sB}, s{sRow[li]}")
                        e(f"buffer_load_dwordx4 {vr(lring+4*li,4)}, v{vW}, {W}, s{sT0} offen")
                    if t == (7 if NT == 8 else 6) and T == 0: e("s_waitcnt vmcnt(16)")
                    if NT == 8 and T == 7 and t < 7: e(xnread(t, tp + 1, xn_))
                    if NT == 8 and T == 1 and t == 6: e(xnread(7, tp + 1, xn_))
                    if NT == 4 and T == 1 and t < 4: e(xnread(t, tp + 1, xn_))
                    if t == 7 and T == NT - 1: e("s_waitcnt lgkmcnt(0)")
                    if NT == 8 and 2 <= T < 6: e(perm(ring, t + 1, T - 2) if t < 7 else perm(nring, 0, T - 2))
                    if NT == 4: e(perm(ring, t + 2, T, 3) if t < 6 else perm(nring, t - 6, T, 3))
        e(f"v_add_u32 v{vA0}, 0x1000, v{vA0}\nv_add_u32 v{vA1}, 0x1000, v{vA1}")
        e(f"s_mov_b32 s{sBlk}, s{sBlkN}\ns_add_u32 s{sCnt}, s{sCnt}, 1\ns_cmp_le_u32 s{sCnt}, s{sNB}\ns_cbranch_scc1 L_loop{ori}{NT}")
        if (ori, NT) != ("B", 8): e("s_branch L_epi")
    e("L_epi:")
    if OPT.get('tl'):
        e(f"s_cmp_eq_u32 s{sRound}, 0\ns_cbranch_scc0 L_tl2"); TL(3, 32); e("L_tl2:")
    e("s_waitcnt vmcnt(0) lgkmcnt(0)\ns_nop 7")
    e(f"v_mov_b32 v10, 0\nglobal_load_dword v10, v10, s[{P_DBG}:{P_DBG+1}] offset:8 sc1")
    if OPT.get('clk'):
        e(f"s_cmp_eq_u32 s{sRound}, 0\ns_cbranch_scc0 L_clk\ns_memtime s[96:97]\ns_memrealtime s[98:99]\ns_waitcnt lgkmcnt(0)\ns_sub_u32 s96, s96, s92\ns_sub_u32 s98, s98, s94")
        e(f"s_lshl_b32 s97, s{S_IDX}, 6\ns_add_u32 s97, s97, {WS_STAMP + 0x8000 + 32*64 + 32:#x}\nv_mov_b32 v15, s96\nbuffer_store_dword v15, off, {WS}, s97\nv_mov_b32 v15, s98\nbuffer_store_dword v15, off, {WS}, s97 offset:4\nv_mov_b32 v15, s{sHalf}\nbuffer_store_dword v15, off, {WS}, s97 offset:8\nL_clk:")
    cnt = [0]
    def thr(first_half=False):
        if OPT.get('thr') is not None and not (first_half and OPT.get('thrh')): e(f"s_waitcnt vmcnt({OPT['thr']})")
    def pack(pairs, scale=None):
        k = cnt[0]; cnt[0] += 1
        tb = 64 + 8 * (k & 1); q = 80 + 4 * (k & 3)
        for r, (a, b) in enumerate(pairs):
            e(f"v_accvgpr_read_b32 v{tb+2*r}, a{a}\nv_accvgpr_read_b32 v{tb+2*r+1}, a{b}")
        for r in range(4):
            if scale: e(f"v_pk_mul_f32 v[{tb+2*r}:{tb+2*r+1}], v[{tb+2*r}:{tb+2*r+1}], {scale}")
        for r in range(4): e(f"v_cvt_pk_bf16_f32 v{q+r}, v{tb+2*r}, v{tb+2*r+1}")
        return q
    e(f"s_lshl_b32 s82, s{sTile}, {RS_+2}\ns_mul_i32 s83, s78, {RHS:#x}\ns_add_u32 s82, s82, s83\ns_lshr_b32 s83, s{sHalf}, 1\ns_lshl_b32 s83, s83, {RS_+1}\ns_add_u32 s82, s82, s83")
    e(f"s_cmp_eq_u32 s{sType}, 1\ns_cbranch_scc1 L_epiV\ns_cmp_eq_u32 s{sType}, 2\ns_cbranch_scc1 L_epiF1")
    e(f"s_cmp_eq_u32 s{sType}, 3\ns_cbranch_scc1 L_epiF2\ns_cmp_eq_u32 s{sType}, 4\ns_cbranch_scc1 L_epiQ")
    for nm, base, fl in (("K", WS_K, F_KV), ("Q", WS_Q, F_REST)):
        e(f"L_epi{nm}:")
        if nm == "Q": e(f"s_mov_b32 s84, {CSCALE:#x}\ns_mov_b32 s85, {CSCALE:#x}\ns_lshr_b32 s82, s82, 1")
        for T in range(8):
            if T == 4 and nm == "K": e(f"s_cmp_eq_u32 s{sHalf}, 0\ns_cbranch_scc0 L_kvdone")
            e(f"s_add_u32 s83, s82, {base + (T>>1)*(SEGS if nm == 'K' else SEGS//2) + (T&1)*4096:#x}")
            for j in range(4):
                q = pack([(acc(2*j, T)+r, acc(2*j+1, T)+r) for r in range(4)], "s[84:85]" if nm == "Q" else None)
                e(f"buffer_store_dwordx4 {vr(q,4)}, v{vL16 if nm == 'Q' else 0}, {WS}, s83 offen offset:{j*1024} sc1"); thr(T < 4 and nm == "K")
        e(f"s_mov_b32 s83, {WS_FLAG+fl:#x}\ns_branch L_done")
    e("L_epiV:")
    for sg in range(4):
        if sg == 2: e(f"s_cmp_eq_u32 s{sHalf}, 0\ns_cbranch_scc0 L_kvdone")
        for t in range(8):
            if (t & 3) == 0: e(f"s_add_u32 s83, s82, {WS_V + sg*SEGS + (t>>2)*4096:#x}")
            a0, a1 = acc(t, 2*sg), acc(t, 2*sg+1)
            q = pack([(a0, a0+1), (a0+2, a0+3), (a1, a1+1), (a1+2, a1+3)])
            e(f"buffer_store_dwordx4 {vr(q,4)}, v{vL16}, {WS}, s83 offen offset:{(t&3)*1024} sc1"); thr(sg < 2)
    e(f"L_kvdone:\ns_mov_b32 s83, {WS_FLAG+F_KV:#x}\ns_branch L_done")
    e("L_epiF2:")
    e(f"s_sub_u32 s83, s{sPass}, 24\ns_lshl_b32 s83, s83, 21\ns_lshl_b32 s84, s{sTile}, 17\ns_add_u32 s83, s83, s84\ns_lshl_b32 s84, s{S_WAVE}, 12\ns_add_u32 s82, s83, s84")
    for T in range(8):
        e(f"s_add_u32 s83, s82, {WS_FP + T*16384:#x}")
        for r in range(4):
            q = pack([(acc(2*tp, T)+r, acc(2*tp+1, T)+r) for tp in range(4)])
            e(f"buffer_store_dwordx4 {vr(q,4)}, v{vL16}, {WS}, s83 offen offset:{r*1024} sc1"); thr()
    e(f"s_mov_b32 s83, {WS_FLAG+F_REST:#x}\ns_branch L_done")
    e("L_epiF1:")
    srd(48, P_B1, 3584)
    e(f"v_lshlrev_b32 v8, 6, v{vG}")
    for r in range(4): e(f"buffer_load_dwordx4 {vr(16+4*r,4)}, v8, {AUX}, s79 offen offset:{r*16}")
    e(f"s_sub_u32 s83, s{sPass}, 24\ns_lshl_b32 s83, s83, 19\ns_lshl_b32 s79, s{S_WAVE}, 8\ns_add_u32 s79, s79, s83")
    e(f"s_mov_b32 s{sType}, 3\ns_mov_b32 s44, s{P_W2}\ns_mov_b32 s45, s{P_W2+1}\ns_mov_b32 s46, {1792*1024}\ns_mov_b32 s47, 0x20000\ns_mov_b32 s{sRS}, 1024")
    e(f"s_cmp_eq_u32 s{sPass}, 27\ns_cselect_b32 s{sNB}, 2, 4")
    wsetup()
    e("s_waitcnt vmcnt(24)")
    for r in range(4):
        for d in range(4):
            e(f"v_lshlrev_b32 v{32+r*8+2*d}, 16, v{16+4*r+d}\nv_and_b32 v{33+r*8+2*d}, 0xffff0000, v{16+4*r+d}")
    e(f"s_lshl_b32 s80, s{S_WAVE}, 12\nv_add_u32 v{vA0}, s80, v{vL16}\nv_add_u32 v{vA1}, 0x10000, v{vA0}")
    e("s_barrier")
    k = 0
    for T in range(8):
        for tp in range(4):
            tb = 64 + 16 * (k & 1); q = 96 + 4 * (k & 1); k += 1
            for r in range(4):
                e(f"v_accvgpr_read_b32 v{tb+2*r}, a{acc(2*tp,T)+r}\nv_accvgpr_read_b32 v{tb+2*r+1}, a{acc(2*tp+1,T)+r}")
            for r in range(4):
                b = 32 + r * 8 + 2 * tp
                e(f"v_pk_add_f32 v[{tb+2*r}:{tb+2*r+1}], v[{tb+2*r}:{tb+2*r+1}], v[{b}:{b+1}]")
            for r in range(8): e(f"v_max_f32 v{tb+r}, 0, v{tb+r}")
            for r in range(4): e(f"v_pk_mul_f32 v[{tb+2*r}:{tb+2*r+1}], v[{tb+2*r}:{tb+2*r+1}], v[{tb+2*r}:{tb+2*r+1}]")
            for r in range(4): e(f"v_cvt_pk_bf16_f32 v{q+r}, v{tb+2*r}, v{tb+2*r+1}")
            e(f"ds_write_b128 v{vA0 if T < 4 else vA1}, {vr(q,4)} offset:{(T&3)*16384+tp*1024}")
    e("s_branch L_gemm")
    e("L_done:")
    e(f"s_lshl_b32 s84, s{sTile}, 6\ns_add_u32 s83, s83, s84")
    if OPT.get('tl2'):
        e(f"s_cmp_eq_u32 s{sRound}, 0\ns_cbranch_scc0 L_tld"); TL(11, 32); e("L_tld:")
    e("s_waitcnt vmcnt(0)\ns_barrier")
    if OPT.get('rb'):
        e(f"s_cmp_gt_u32 s{sType}, 1\ns_cbranch_scc1 L_rb_end\ns_lshl_b32 s85, s{sType}, 13\ns_add_u32 s85, s85, s82\ns_add_u32 s85, s85, {WS_K:#x}")
        for sg in range(4):
            for k in range(8):
                if k == 4: e("s_add_u32 s85, s85, 4096")
                e(f"buffer_load_dwordx4 {vr(64+4*k,4)}, v{vL16}, {WS}, s85 offen offset:{(k&3)*1024} sc1")
            e(f"s_add_u32 s85, s85, {SEGS-4096}")
        e("L_rb_end:")
    e(f"s_cmp_eq_u32 s{S_WAVE}, 0\ns_cbranch_scc0 L_done2")
    e("v_cmp_eq_u32 vcc, 32, v10\ns_cbranch_vccnz L_fr2_ok")
    wait_flags_ready(2, 8)
    e(f"s_cmp_eq_u32 s{sHalf}, 0\ns_cselect_b32 s84, 2, 1\ns_mov_b64 exec, 1\nv_mov_b32 v8, s84\nbuffer_atomic_add v8, off, {WS}, s83\ns_mov_b64 exec, -1")
    e("L_done2:")
    if OPT.get('tl'):
        e(f"s_cmp_eq_u32 s{sRound}, 0\ns_cbranch_scc0 L_tl3"); TL(4, 32); e("L_tl3:")
    e(f"s_add_u32 s{sRound}, s{sRound}, 1\ns_cmp_lt_u32 s{sRound}, {OPT.get('rounds', 3)}\ns_cbranch_scc1 L_task\nL_g1_end:")
    if OPT['skip_g3']:
        e("s_waitcnt vmcnt(0)\ns_branch L_end")
        return
    sH, sSeg, sSH, sTq, sEh = 52, 53, 54, 55, 56
    TL(5, 32); DTL(10, 14)
    OUT, B2 = "s[44:47]", "s[48:51]"
    WO = 128
    e(f"s_and_b32 s{sH}, s{S_IDX}, 31\ns_lshr_b32 s{sSeg}, s{S_IDX}, 5\ns_and_b32 s{sTq}, s{S_WAVE}, 1\ns_lshr_b32 s{sEh}, s{S_WAVE}, 1")
    e(f"v_lshlrev_b32 v8, 4, v{vC}\nv_lshrrev_b32 v9, 1, v{vG}\nv_lshl_add_u32 v8, v9, 19, v8\nv_and_b32 v9, 1, v{vG}\nv_lshl_add_u32 v8, v9, 17, v8")
    e(f"s_lshl_b32 s78, s{S_WAVE}, 14\ns_lshl_b32 s79, s{sH}, 8\ns_add_u32 s78, s78, s79\nv_add_u32 v8, s78, v8")
    e(f"s_lshl_b32 s78, s{S_WAVE}, 12\nv_add_u32 v9, s78, v{vL16}\nv_add_u32 v10, 0x10000, v9\ns_lshl_b32 s78, s{S_WAVE}, 15\nv_add_u32 v11, s78, v{vL16}")
    for mi, ptr in enumerate((P_WK, P_WV)):
        srd(44, ptr, 0x400000)
        for par in range(2):
            for j2 in range(8):
                for hb in range(2):
                    row = 256 * par + 128 * (j2 >> 2) + 32 * (j2 & 1) + 8 * ((j2 & 3) >> 1) + hb
                    e(f"s_mov_b32 s78, {row*8192:#x}\nbuffer_load_dwordx4 {vr(24+64*par+(j2*2+hb)*4,4)}, v8, s[44:47], s78 offen")
        e("s_waitcnt lgkmcnt(0)\ns_barrier")
        k = 0
        for par in range(2):
            e(f"s_waitcnt vmcnt({16*(1-par)})")
            raw = 24 + 64 * par
            for t in range(8):
                for hf in range(2):
                    q = 160 + 4 * (k % 3); k += 1
                    for jl in range(4):
                        j2 = hf * 4 + jl
                        e(f"v_perm_b32 v{q+jl}, v{raw+(j2*2+1)*4+(t>>1)}, v{raw+(j2*2)*4+(t>>1)}, s{sHi if t&1 else sLo}")
                    e(f"ds_write_b128 v{9 if t < 4 else 10}, {vr(q,4)} offset:{(t&3)*16384+par*2048+hf*1024}")
        e("s_waitcnt lgkmcnt(0)\ns_barrier")
        for f in range(32): e(f"ds_read_b128 {ar(128*mi+4*f,4)}, v11 offset:{f*1024}")
    srd(44, P_WO, 0x400000)
    e(f"v_lshlrev_b32 v8, 4, v{vC}\nv_lshl_add_u32 v8, v{vG}, 15, v8")
    e(f"s_lshl_b32 s78, s{sH}, 17\ns_lshl_b32 s79, s{S_WAVE}, 8\ns_add_u32 s78, s78, s79")
    for half in range(2):
        for jj in range(2):
            for i in range(8):
                row = 8 * (i >> 1) + (i & 1) + 2 * (2 * half + jj)
                e(f"s_add_u32 s79, s78, {row*1024}\nbuffer_load_dwordx4 {vr(24+32*jj+4*i,4)}, v8, s[44:47], s79 offen")
        for jj in range(2):
            e(f"s_waitcnt vmcnt({8*(1-jj)})")
            for t in range(8):
                for rp in range(4):
                    rb = 24 + 32 * jj
                    e(f"v_perm_b32 v{WO+((2*half+jj)*8+t)*4+rp}, v{rb+4*(2*rp+1)+(t>>1)}, v{rb+4*(2*rp)+(t>>1)}, s{sHi if t&1 else sLo}")
    srd(44, P_OUT, 2048 * 1024)
    srd(48, P_B2, 1024)
    sRo, sCo = 57, 58
    e(f"s_lshr_b32 s78, s{sH}, 2\ns_lshl_b32 s78, s78, 2\ns_add_u32 s78, s78, s{S_WAVE}\ns_lshl_b32 s78, s78, 10\ns_and_b32 s79, s{sH}, 3\ns_lshl_b32 s{sRo}, s79, 8\ns_add_u32 s{sRo}, s{sRo}, s78")
    e(f"s_lshr_b32 s78, s{sH}, 3\ns_lshl_b32 s{sCo}, s78, 8\ns_lshl_b32 s79, s79, 6\ns_add_u32 s{sCo}, s{sCo}, s79\ns_lshl_b32 s79, s{S_WAVE}, 4\ns_add_u32 s{sCo}, s{sCo}, s79")
    e(f"v_lshlrev_b32 v11, 4, v{vC}\nv_lshl_add_u32 v9, v{vG}, 15, v11\nv_lshl_add_u32 v10, v{vG}, 21, v11\nv_lshlrev_b32 v11, 10, v{vC}\nv_lshl_add_u32 v12, v{vG}, 3, v11")
    e(f"v_mov_b32 v13, {OOB:#x}\nv_cmp_eq_u32 vcc, 0, v{vG}\nv_cndmask_b32 v11, v13, v11, vcc\nv_cndmask_b32 v8, v13, 0, vcc\nv_cmp_gt_u32 vcc, 2, v{vG}\nv_cndmask_b32 v12, v13, v12, vcc")
    e(f"s_lshl_b32 s78, s{sTq}, 4\nv_lshlrev_b32 v13, 2, v{vG}\nv_sub_u32 v13, v{vC}, v13\nv_add_u32 v13, s78, v13")
    for d in range(4):
        e(f"v_mov_b32 v{16+d}, 0\nv_mov_b32 v14, 0x3f80\nv_cmp_eq_u32 vcc, {2*d}, v{vC}\nv_cndmask_b32 v{16+d}, v{16+d}, v14, vcc")
        e(f"v_mov_b32 v14, 0x3f800000\nv_cmp_eq_u32 vcc, {2*d+1}, v{vC}\nv_cndmask_b32 v{16+d}, v{16+d}, v14, vcc\nv_mov_b32 v{20+d}, 0x3f803f80")
    e(f"v_lshrrev_b32 v14, 2, v{vC}\nv_lshlrev_b32 v14, 7, v14\nv_lshl_add_u32 v14, v{vG}, 5, v14\nv_and_b32 v15, 3, v{vC}\nv_lshl_add_u32 v14, v15, 2, v14\nv_bfe_u32 v15, v{vC}, 2, 1\nv_lshlrev_b32 v15, 6, v15\nv_xor_b32 v14, v14, v15")
    e(f"v_and_b32 v15, 2, v{vC}\nv_mov_b32 v{vG}, 0x4444\nv_mov_b32 v{vC}, 0xeeee\nv_cmp_eq_u32 vcc, 0, v15\nv_cndmask_b32 v{vG}, v{vC}, v{vG}, vcc")
    e(f"s_lshl_b32 s78, s{S_WAVE}, 9\ns_add_u32 s78, s78, 16384\nv_add_u32 v{vC}, s78, v14\ns_lshl_b32 s78, s{S_WAVE}, 11\ns_add_u32 m0, s78, 8192")
    vIDX, vXW = vG, vC
    wait_flags_ready(3, 14)
    e(f"s_mov_b32 s59, {SENT:#x}\ns_mov_b32 s60, {INF:#x}\ns_mov_b32 s61, 0\ns_mov_b32 s62, {OOB:#x}\ns_lshl_b32 s65, s{sSeg}, {20 if OPT.get('apfull') else 21}\ns_add_u32 s65, s65, {WS_AP:#x}\ns_waitcnt lgkmcnt(0)\ns_barrier")
    SEL, ONES = "v[16:19]", "v[20:23]"
    mm = "v_mfma_f32_16x16x32_bf16"; m16 = "v_mfma_f32_16x16x16_bf16"
    e("L_g3:")
    e(f"s_lshl_b32 s{sSH}, s{sSeg}, 5\ns_add_u32 s{sSH}, s{sSH}, s{sH}")
    e(f"s_lshr_b32 s78, s{sSeg}, 2\nL_g3_rdy:\ns_bitcmp1_b32 s61, s78\ns_cbranch_scc1 L_g3_rdyok")
    e(f"s_mov_b32 s79, {WS_FLAG+F_KV:#x}\nv_lshlrev_b32 v14, 2, v{vL16}\nbuffer_load_dword v14, v14, {WS}, s79 offen sc1\ns_waitcnt vmcnt(0)")
    e("v_cmp_le_u32 vcc, 24, v14\ns_lshr_b32 s61, vcc_lo, 16\nv_cmp_le_u32 vcc, 32, v14\ns_and_b32 s61, s61, vcc_lo")
    fail_if_zero(4)
    e("s_sleep 16\ns_branch L_g3_rdy\nL_g3_rdyok:")
    e(f"s_mul_i32 s86, s{sH}, {RHS:#x}\ns_lshl_b32 s80, s{sSeg}, {RS_}\ns_add_u32 s86, s86, s80")
    e(f"s_mov_b32 s80, s86\ns_lshl_b32 s81, s{sTq}, 12\ns_lshr_b32 s82, s80, 1\ns_add_u32 s81, s81, s82\ns_add_u32 s81, s81, {WS_Q:#x}")
    for j in range(4): e(f"buffer_load_dwordx4 {vr(24+4*j,4)}, v{vL16}, {WS}, s81 offen offset:{j*1024} sc1")
    e(f"s_add_u32 s81, s80, {WS_K:#x}\ns_add_u32 s82, s80, {WS_K+4096:#x}")
    for kt in range(2):
        for j in range(4): e(f"buffer_load_dwordx4 {vr(40+16*kt+4*j,4)}, v0, {WS}, s{81+kt} offen offset:{j*1024} sc1")
    e(f"s_lshl_b32 s81, s{sEh}, 12\ns_add_u32 s81, s81, s80\ns_add_u32 s81, s81, {WS_V:#x}")
    for t in range(4): e(f"buffer_load_dwordx4 {vr(72+4*t,4)}, v{vL16}, {WS}, s81 offen offset:{t*1024} sc1")
    e(f"s_bfe_u32 s84, s{sH}, 0x10002\ns_lshl_b32 s83, s{sSeg}, 1\ns_add_u32 s83, s83, s84\ns_lshl_b32 s83, s83, 14")
    e(f"s_lshr_b32 s84, s{sH}, 3\ns_lshl_b32 s84, s84, 2\ns_add_u32 s84, s84, s{S_WAVE}\ns_lshl_b32 s84, s84, 10\ns_and_b32 s85, s{sH}, 3\ns_lshl_b32 s85, s85, 8\ns_add_u32 s85, s85, s84")
    e(f"s_add_u32 s85, s85, s83\ns_add_u32 s85, s85, {WS_FP:#x}\ns_add_u32 s83, s83, s{sCo}")
    e(f"buffer_load_dwordx4 v[88:91], v11, {X}, s83 offen\nbuffer_load_dwordx4 v[92:95], v8, {B2}, s{sCo} offen\nbuffer_load_dwordx4 v[96:99], v10, {WS}, s85 offen sc1")
    def reduce(code):
        e(f"L_rp{code}:\nv_lshrrev_b32 v14, 2, v{vL16}\nbuffer_load_dword v14, v14, {WS}, s62 offen sc1\ns_waitcnt vmcnt(0)\nv_cmp_eq_u32 vcc, 1, v14\ns_cmp_eq_u32 vcc_lo, -1\ns_cbranch_scc1 L_rp{code}_ok")
        fail_if_zero(code)
        e(f"s_branch L_rp{code}\nL_rp{code}_ok:")
        if OPT.get('tlg') and code == 17: TLV[0] = 15; TL(11, 32)
        for hf in range(2):
            for i in range(4): e(f"buffer_load_dwordx4 {vr(100+4*i,4)}, v9, {WS}, s64 offen sc1\ns_add_u32 s64, s64, 0x20000")
            for i in range(4): e(f"s_waitcnt vmcnt({3-i})\n{mm} v[2:5], {SEL}, {vr(100+4*i,4)}, v[2:5]")
        e("v_cvt_pk_bf16_f32 v14, v2, v3\nv_cvt_pk_bf16_f32 v15, v4, v5")
        e(f"buffer_store_dwordx2 v[14:15], v12, {OUT}, s63 offen")
    e(f"s_cmp_eq_u32 s62, {OOB:#x}\ns_cbranch_scc1 L_g3_first")
    reduce(7)
    if OPT.get('wb', 1):
        e(f"s_cmp_lt_u32 s{sSeg}, 57\ns_cbranch_scc1 L_g3_first\ns_or_b32 s78, s{sH}, s{S_WAVE}\ns_cmp_eq_u32 s78, 0\ns_cbranch_scc0 L_g3_first\nbuffer_wbl2 sc1")
    e("L_g3_first:")
    e("s_waitcnt vmcnt(7)")
    for kt in range(2):
        for j in range(4):
            s = vr(108 + 4 * kt, 4)
            e(f"{mm} {s}, {vr(40+16*kt+4*j,4)}, {vr(24+4*j,4)}, {'0' if j == 0 else s}")
    e("s_waitcnt vmcnt(0)")
    e(f"{mm} v[2:5], {SEL}, v[88:91], 0\n{mm} v[2:5], {SEL}, v[92:95], v[2:5]\n{mm} v[2:5], {SEL}, v[96:99], v[2:5]")
    e(f"v_mov_b32 v15, {fbits(-3.0e38):#x}")
    for kt in range(2):
        for r in range(4):
            e(f"v_cmp_le_i32 vcc, {16*kt+r}, v13\nv_cndmask_b32 v{108+4*kt+r}, v15, v{108+4*kt+r}, vcc")
    e("v_max3_f32 v124, v108, v109, v110\nv_max3_f32 v125, v111, v112, v113\nv_max3_f32 v124, v124, v114, v115\nv_max_f32 v124, v124, v125")
    for i in range(8): e(f"v_mov_b64 v[{88+2*i}:{89+2*i}], 0")
    e(f"s_lshl_b32 s80, s{sSeg}, 13\ns_add_u32 s80, s80, {WS_MH:#x}\ns_sub_u32 s79, s80, 8192\ns_cmp_eq_u32 s{sSeg}, 0\ns_cbranch_scc1 L_g3_m")
    e(f"L_g3_pre:\nbuffer_load_dword v14, off, {WS}, s79 sc1\ns_waitcnt vmcnt(0)\nv_cmp_eq_u32 vcc, s59, v14\ns_cbranch_vccz L_g3_m")
    fail_if_zero(6)
    e("s_sleep 4\ns_branch L_g3_pre")
    e(f"L_g3_m:\ns_lshl_b32 s79, s{S_WAVE}, 11\ns_add_u32 s79, s79, s80")
    e(f"L_g3_mp:\nbuffer_load_dwordx4 v{vL16}, {WS}, s79 offen sc1 lds\nbuffer_load_dwordx4 v{vL16}, {WS}, s79 offen offset:1024 sc1 lds\ns_waitcnt vmcnt(0)\ns_barrier")
    for k in range(8): e(f"ds_read_b128 {vr(40+4*k,4)}, v{vL16} offset:{8192+k*1024}")
    e("s_waitcnt lgkmcnt(0)\nv_max3_i32 v14, v40, v41, v42")
    for k in range(43, 71, 2): e(f"v_max3_i32 v14, v14, v{k}, v{k+1}")
    e("v_max_i32 v14, v14, v71\nv_cmp_le_i32 vcc, s60, v14\ns_cbranch_vccnz L_g3_mslow\nL_g3_mok:")
    if OPT.get('tlg'): TLV[0] = 15; TL(8, 32)
    for mi in range(2):
        for tt in range(2):
            for sg in range(8):
                e(f"v_smfmac_f32_16x16x64_bf16 {vr(88+8*mi+4*tt,4)}, {vr(40+4*sg,4)}, {ar(128*mi+(tt*8+sg)*8,8)}, v{vIDX}")
                if (mi, tt, sg) == (1, 0, 3):
                    e("v_add_f32 v88, v88, v90\nv_add_f32 v89, v89, v91\nv_add_f32 v92, v92, v94\nv_add_f32 v93, v93, v95\nv_cvt_pk_bf16_f32 v88, v88, v92\nv_cvt_pk_bf16_f32 v89, v89, v93")
                    e(f"ds_write2_b32 v{vXW}, v88, v89 offset0:0 offset1:4")
    e(f"s_lshl_b32 s78, s{S_WAVE}, 9\nv_lshrrev_b32 v15, 1, v{vL16}\nv_add_u32 v14, s78, v15")
    e("v_add_f32 v96, v96, v98\nv_add_f32 v97, v97, v99\nv_add_f32 v100, v100, v102\nv_add_f32 v101, v101, v103\nv_cvt_pk_bf16_f32 v96, v96, v97\nv_cvt_pk_bf16_f32 v97, v100, v101")
    e(f"ds_write_b64 v14, v[96:97] offset:18432\ns_lshl_b32 s78, s{sEh}, 10\nv_add_u32 v15, s78, v15\nv_and_b32 v14, 0x1ff, v0\ns_waitcnt lgkmcnt(0)\ns_barrier")
    for j in range(4): e(f"ds_read_b128 {vr(88+4*j,4)}, v14 offset:{16384+j*512}")
    for jj in range(2): e(f"ds_read_b64 {vr(104+2*jj,2)}, v15 offset:{18432+jj*512}")
    for j in range(4):
        e(f"s_waitcnt lgkmcnt({5-j})\n{mm} v[116:119], {vr(88+4*j,4)}, {vr(24+4*j,4)}, {'0' if j == 0 else 'v[116:119]'}")
    e("v_mov_b32 v45, 0\nv_mov_b32 v46, 0")
    e("v_max3_f32 v124, v124, v116, v117")
    e("v_mov_b32 v125, v124\nv_permlane32_swap_b32 v124, v125\nv_max_f32 v124, v124, v125")
    e("v_mov_b32 v125, v124\nv_permlane16_swap_b32 v124, v125\nv_max_f32 v124, v124, v125")
    for r in range(10): e(f"v_sub_f32 v{108+r}, v{108+r}, v124")
    for r in range(10): e(f"v_exp_f32 v{108+r}, v{108+r}")
    for d in range(4): e(f"v_cvt_pk_bf16_f32 v{40+d}, v{108+2*d}, v{109+2*d}")
    e("v_cvt_pk_bf16_f32 v44, v116, v117\nv_cvt_pk_bf16_f32 v47, v116, v117")
    e("s_waitcnt lgkmcnt(0)")
    e(f"{mm} v[120:123], {ONES}, v[40:43], 0")
    for t in range(4): e(f"{mm} {vr(48+4*t,4)}, {vr(72+4*t,4)}, v[40:43], 0")
    e(f"{m16} v[120:123], v[20:21], v[44:45], v[120:123]")
    for t in range(4):
        o = vr(48 + 4 * t, 4)
        e(f"{m16} {o}, {vr(104+2*(t>>1),2)}, {'v[46:47]' if t&1 else 'v[44:45]'}, {o}")
    e("v_rcp_f32 v124, v120")
    for r in range(16): e(f"v_mul_f32 v{48+r}, v{48+r}, v124")
    e(f"s_lshl_b32 s78, s{sTq}, 12\ns_lshl_b32 s79, s{sEh}, 11\ns_add_u32 s78, s78, s79\nv_add_u32 v14, s78, v{vL16}")
    for jj in range(2):
        for r in range(4): e(f"v_cvt_pk_bf16_f32 v{64+4*jj+r}, v{48+8*jj+r}, v{52+8*jj+r}")
        e(f"ds_write_b128 v14, {vr(64+4*jj,4)} offset:{jj*1024}")
    e("s_waitcnt lgkmcnt(0)\ns_barrier")
    if OPT.get('tlg'): TLV[0] = 15; TL(9, 32)
    for q in range(8): e(f"ds_read_b128 {vr(24+4*q,4)}, v{vL16} offset:{q*1024}")
    e(f"s_lshl_b32 s80, s{sH}, 15\ns_lshl_b32 s81, s{S_WAVE}, 13\ns_add_u32 s80, s80, s81\ns_add_u32 s80, s80, s65\ns_add_u32 s81, s80, 4096")
    for tq in range(2):
        for j in range(4):
            e(f"s_waitcnt lgkmcnt({7-(tq*4+j)})")
            for t in range(8):
                a = vr(56 + (tq * 8 + t) * 4, 4)
                e(f"{mm} {a}, {vr(WO+(j*8+t)*4,4)}, {vr(24+(tq*4+j)*4,4)}, {'0' if j == 0 else a}")
    e(f"s_lshl_b32 s62, s{sSeg}, 7\ns_add_u32 s62, s62, {WS_FLAG+F_G3:#x}\ns_lshl_b32 s78, s{sH}, 2\ns_add_u32 s78, s78, s62\ns_cmp_eq_u32 s{S_WAVE}, 0\ns_cselect_b32 s78, s78, {OOB:#x}")
    e(f"s_mov_b32 s63, s83\ns_add_u32 s64, s65, s{sRo}\n{'s_add_u32 s65, s65, 0x700000' if OPT.get('apfull') else 's_xor_b32 s65, s65, 0x100000'}\ns_cmp_eq_u32 s{S_MIX}, 0\ns_cbranch_scc0 L_g3_stx")
    for fl in ("", "sc1"):
        if fl: e("L_g3_stx:")
        for tq in range(2):
            for r in range(4):
                q = 120 + 4 * (r & 1)
                for tp in range(4):
                    e(f"v_cvt_pk_bf16_f32 v{q+tp}, v{56+(tq*8+2*tp)*4+r}, v{56+(tq*8+2*tp+1)*4+r}")
                e(f"buffer_store_dwordx4 {vr(q,4)}, v{vL16}, {WS}, s{80+tq} offen offset:{r*1024} {fl}")
        e("v_mov_b32 v14, 1\ns_waitcnt vmcnt(0)\ns_barrier")
        if OPT.get('tlg'): TLV[0] = 15; TL(10, 32)
        e(f"buffer_store_dword v14, off, {WS}, s78 {fl}")
        if not fl: e("s_branch L_g3_ste")
    e("L_g3_ste:")
    if OPT.get('tl'):
        e(f"s_cmp_lt_u32 s{sSeg}, 7\ns_cbranch_scc0 L_tl4"); TLV[0] = 124; TL(6, 32); e("L_tl4:")
    e(f"s_add_u32 s{sSeg}, s{sSeg}, 7\ns_cmp_lt_u32 s{sSeg}, 64\ns_cbranch_scc1 L_g3")
    reduce(17)
    TL(7, 32); DTL(9, 14)
    if OPT.get('probe_num'):
        e(f"v_mov_b32 v14, 0\nglobal_load_dword v14, v14, s[{P_DBG}:{P_DBG+1}] offset:24 sc1\ns_waitcnt vmcnt(0)\nv_readfirstlane_b32 s78, v14\ns_bcnt1_i32_b32 s78, s78\ns_cmp_eq_u32 s78, 1\ns_cbranch_scc1 L_pn\ns_mov_b32 s78, 40\nL_pn1:\ns_sleep 64\ns_sub_u32 s78, s78, 1\ns_cmp_lg_u32 s78, 0\ns_cbranch_scc1 L_pn1\nL_pn:")
    if OPT.get('wb', 1): e(f"s_or_b32 s78, s{sH}, s{S_WAVE}\ns_cmp_eq_u32 s78, 0\ns_cbranch_scc0 L_g3_nwb\nbuffer_wbl2 sc1\nL_g3_nwb:")
    e("s_waitcnt vmcnt(0)\ns_branch L_end")
    e("L_g3_mslow:")
    for k in range(40, 72): e(f"v_cmp_eq_u32 vcc, s59, v{k}\ns_cbranch_vccnz L_g3_mre")
    e("s_branch L_g3_mok\nL_g3_mre:")
    fail_if_zero(9)
    e("s_barrier\ns_branch L_g3_mp")
```

```python
import sys, math, struct
from asmlib import Asm

NAME = "parallel_sum__memory_aug_recurrent_mem_tr__dense_activation_squared_relu__prompt"
OPT = dict(stamps=False, skip_chain=False, skip_g3=False, force_fallback=False, force_mixed=False,
           top1=1, gp2=99, nb2=4, dA=[10, 40, 64, 80], dB=[50, 36, 0, 0], nsw=[2, 2, 1, 1], dC=24, q0=34, qr=4, kp=0, ex=4, pfs=4, fd=3, wb=0, thr=2, thrh=1, rk=0, fo=0, wo1=1)
for a in sys.argv[2:]:
    k, v = a.split('='); OPT[k] = eval(v)

WS_M = 0x0
WS_P = 0x100000
PRING = 0x42000
HS = 8192 + 128
WS_FLAG = 0x40000
F_KV, F_REST, F_G3 = 0, 1024, 8192
WS_STAMP = 0x50000
WS_MH = 0x400000
WS_K, WS_V, WS_Q = 0x1000000, 0x1002000, 0x3000000
RHS, RS_ = 0x4000, 19
SEGS = 1 << RS_
WS_FP = 0x5800000
WS_AP = 0x6000000
WS_SIZE = 0x10000000
OOB = 0x80000000
SENT = 0x7F817F81
INF = 0x7F800000
CSCALE = struct.unpack('<I', struct.pack('<f', (128 ** -0.5) * math.log2(math.e)))[0]
POLLMAX = 1 << 18
def fbits(x): return struct.unpack('<I', struct.pack('<f', x))[0]

e = Asm()
def srd(base, ptr, size):
    e(f"s_mov_b32 s{base}, s{ptr}\ns_mov_b32 s{base+1}, s{ptr+1}\ns_mov_b32 s{base+2}, {size:#x}\ns_mov_b32 s{base+3}, 0x20000")
def vr(a, n): return f"v[{a}:{a+n-1}]" if n > 1 else f"v{a}"
def ar(a, n): return f"a[{a}:{a+n-1}]" if n > 1 else f"a{a}"

P_X, P_MEM0, P_WQ, P_WK, P_WV, P_WO = 4, 6, 8, 10, 12, 14
P_W1, P_B1, P_W2, P_B2, P_OUT, P_DBG, P_WS = 20, 22, 24, 26, 28, 30, 32
S_WAVE, S_IDX = 34, 35
WS = "s[36:39]"
S_TMO = 100
S_ERR = 101
S_MIX = 18
S_GT, S_OK = 16, 17

def fail_if_zero(code):
    e(f"s_sub_u32 s{S_TMO}, s{S_TMO}, 1\ns_mov_b32 s{S_ERR}, {code}\ns_cbranch_scc1 L_fail")

e("s_cmp_ge_u32 s2, 256\ns_cbranch_scc1 L_end")
e("s_load_dwordx16 s[4:19], s[0:1], 0\ns_load_dwordx8 s[20:27], s[0:1], 64\ns_load_dwordx4 s[28:31], s[0:1], 96\ns_load_dwordx2 s[32:33], s[0:1], 112")
e("s_getreg_b32 s3, hwreg(HW_REG_XCC_ID, 0, 3)")
if OPT.get("tl"): e("s_memrealtime s[94:95]")
if OPT.get("dtl"): e("s_memrealtime s[98:99]\ns_waitcnt lgkmcnt(0)\ns_mov_b32 s19, s98")
e(f"v_lshrrev_b32 v1, 6, v0\nv_and_b32 v0, 63, v0\nv_readfirstlane_b32 s{S_WAVE}, v1")
e(f"s_mov_b32 s{S_TMO}, {POLLMAX}\ns_mov_b32 s{S_ERR}, 0")
e("s_waitcnt lgkmcnt(0)")
srd(36, P_WS, WS_SIZE)
e(f"s_cmp_eq_u32 s{S_WAVE}, 0\ns_cbranch_scc1 L_role_ask")
if OPT.get('warm', 0):
    e(f"s_lshr_b32 s40, s2, 3\nv_lshlrev_b32 v2, 4, v0\ns_cmp_eq_u32 s3, 0\ns_cbranch_scc0 L_warm_x")
    srd(44, P_WV, 0x400000)
    e(f"v_lshrrev_b32 v3, 4, v0\nv_and_b32 v2, 15, v0\nv_lshlrev_b32 v2, 4, v2\nv_lshl_add_u32 v2, v3, 13, v2\ns_lshl_b32 s40, s40, 8\ns_sub_u32 s41, s{S_WAVE}, 1\ns_lshl_b32 s41, s41, 15\ns_add_u32 s40, s40, s41")
    for k in range(21): e(f"buffer_load_dwordx4 v[240:243], v2, s[44:47], s40 offen\ns_add_u32 s40, s40, {3*4*8192:#x}")
    e("s_branch L_role_wait\nL_warm_x:")
    srd(44, P_X, 2048 * 1024)
    e(f"s_sub_u32 s41, s3, 1\ns_lshl_b32 s41, s41, 5\ns_add_u32 s40, s40, s41\ns_mul_i32 s41, s40, 1171\ns_lshr_b32 s41, s41, 16\ns_mul_i32 s41, s41, 56\ns_sub_u32 s40, s40, s41")
    e(f"s_and_b32 s42, s40, 3\ns_lshr_b32 s40, s40, 2\ns_sub_u32 s41, s40, 2\ns_lshl_b32 s41, s41, 17\ns_lshl_b32 s43, s42, 15\ns_add_u32 s41, s41, s43")
    e(f"s_lshl_b32 s43, s40, 16\ns_lshl_b32 s42, s42, 14\ns_add_u32 s43, s43, s42\ns_cmp_lt_u32 s40, 4\ns_cselect_b32 s40, s43, s41\ns_sub_u32 s41, s{S_WAVE}, 1\ns_mul_i32 s41, s41, {11*1024}\ns_add_u32 s40, s40, s41")
    for k in range(11): e(f"buffer_load_dwordx4 v[240:243], v2, s[44:47], s40 offen\ns_add_u32 s40, s40, 1024")
e("s_branch L_role_wait\nL_role_ask:")
e("s_mov_b64 exec, 1")
DIE_OFF = [4 * (16 * (1 + (x - 1) % 3 if x else 0) + 8 + ((x - 1) // 3 if x else 0)) for x in range(8)]
pk = sum((o // 4) << (8 * x) for x, o in enumerate(DIE_OFF))
e(f"s_mov_b32 s40, {pk & 0xffffffff:#x}\ns_mov_b32 s41, {pk >> 32:#x}\ns_lshl_b32 s42, s3, 3\ns_lshr_b64 s[40:41], s[40:41], s42\ns_and_b32 s40, s40, 0xff\ns_lshl_b32 s40, s40, 2")
e(f"v_mov_b32 v1, s40\nv_mov_b32 v2, 1\nglobal_atomic_add v4, v1, v2, s[{P_DBG}:{P_DBG+1}] sc0\nv_mov_b32 v1, 0")
e("s_waitcnt vmcnt(0)\nds_write_b32 v1, v4\ns_waitcnt lgkmcnt(0)\ns_mov_b64 exec, -1")
if OPT.get('probe_num'):
    e(f"s_mov_b64 exec, 1\ns_sub_u32 s41, s3, s2\ns_and_b32 s41, s41, 7\ns_lshl_b32 s41, 1, s41\nv_mov_b32 v5, s41\nv_mov_b32 v6, 0\nglobal_atomic_or v6, v5, s[{P_DBG}:{P_DBG+1}] offset:24\ns_mov_b64 exec, -1")
e("L_role_wait:")
e("s_barrier\nv_mov_b32 v1, 0\nds_read_b32 v4, v1\ns_waitcnt lgkmcnt(0)\nv_readfirstlane_b32 s40, v4\ns_barrier")
e(f"s_mov_b32 s{S_GT}, s40\ns_and_b32 s40, s40, 31\ns_mov_b32 s{S_OK}, 0\ns_mov_b32 s{S_MIX}, 0")
e(f"s_mov_b32 s{S_IDX}, s40\ns_cmp_eq_u32 s3, 0\ns_cbranch_scc1 L_chain0")
e(f"s_sub_u32 s41, s3, 1\ns_lshl_b32 s41, s41, 5\ns_add_u32 s{S_IDX}, s40, s41\ns_branch L_worker")
e("L_role_mixed:")
e(f"s_waitcnt vmcnt(0) lgkmcnt(0)\ns_barrier\nv_mbcnt_lo_u32_b32 v0, -1, 0\nv_mbcnt_hi_u32_b32 v0, -1, v0\ns_mov_b32 s{S_OK}, 1\ns_mov_b32 s{S_MIX}, 1")
for x in range(7):
    e(f"v_readlane_b32 s40, v1, {DIE_OFF[x]//4}\ns_cmp_gt_u32 s3, {x}\ns_cselect_b32 s40, s40, 0\ns_add_u32 s{S_GT}, s{S_GT}, s40")
if OPT['force_mixed']: e(f"s_mul_i32 s{S_GT}, s{S_GT}, 37\ns_and_b32 s{S_GT}, s{S_GT}, 255")
e(f"s_mov_b32 s{S_IDX}, s{S_GT}\ns_cmp_lt_u32 s{S_GT}, 32\ns_cbranch_scc1 L_chain1")
e(f"s_sub_u32 s{S_IDX}, s{S_GT}, 32\ns_branch L_worker")

def confirm_issue(dst, t):
    e(f"v_mbcnt_lo_u32_b32 v{t}, -1, 0\nv_mbcnt_hi_u32_b32 v{t}, -1, v{t}\nv_lshlrev_b32 v{t}, 2, v{t}\nglobal_load_dword {dst}, v{t}, s[{P_DBG}:{P_DBG+1}] sc1")
def confirm_check(code, r, t):
    msk = sum(1 << (o // 4) for o in DIE_OFF)
    e(f"s_cmp_eq_u32 s{S_OK}, 1\ns_cbranch_scc1 L_cf{code}_ok")
    e(f"L_cf{code}:\ns_mov_b32 s96, 0")
    for x in range(8): e(f"v_readlane_b32 s97, v{r}, {DIE_OFF[x]//4}\ns_add_u32 s96, s96, s97")
    e(f"s_cmp_eq_u32 s96, 0x100\ns_cbranch_scc1 L_cf{code}_all")
    fail_if_zero(code)
    confirm_issue(f"v{r}", t)
    e(f"s_waitcnt vmcnt(0)\ns_branch L_cf{code}")
    e(f"L_cf{code}_all:\nv_cmp_eq_u32 vcc, {33 if OPT['force_mixed'] else 32}, v{r}\ns_and_b32 s96, vcc_lo, {msk & 0xffffffff:#x}\ns_and_b32 s97, vcc_hi, {msk >> 32:#x}")
    e(f"s_xor_b32 s96, s96, {msk & 0xffffffff:#x}\ns_xor_b32 s97, s97, {msk >> 32:#x}\ns_or_b32 s96, s96, s97\ns_cmp_eq_u32 s96, 0\ns_cbranch_scc1 L_cf{code}_std")
    e(f"v_mov_b32 v1, v{r}\ns_branch L_role_mixed\nL_cf{code}_std:")
    e(f"s_mov_b32 s{S_OK}, 1\nL_cf{code}_ok:")

def wait_flags_ready(code, tmp):
    e(f"L_fr{code}:")
    e(f"v_mov_b32 v{tmp}, 0\nglobal_load_dword v{tmp}, v{tmp}, s[{P_DBG}:{P_DBG+1}] offset:8 sc1\ns_waitcnt vmcnt(0)")
    e(f"v_cmp_eq_u32 vcc, 32, v{tmp}\ns_cbranch_vccnz L_fr{code}_ok")
    fail_if_zero(code)
    e(f"s_sleep 2\ns_branch L_fr{code}\nL_fr{code}_ok:")

def poll_ge(code, soff, val, tmp, sleep=2):
    e(f"L_pg{code}:")
    e(f"buffer_load_dword v{tmp}, off, {WS}, {soff} sc1\ns_waitcnt vmcnt(0)")
    e(f"v_cmp_le_u32 vcc, {val}, v{tmp}\ns_cbranch_vccnz L_pg{code}_ok")
    fail_if_zero(code)
    if sleep: e(f"s_sleep {sleep}")
    e(f"s_branch L_pg{code}\nL_pg{code}_ok:")

def TL(k, base):
    if not OPT.get('tl'): return
    e(f"s_memrealtime s[98:99]\ns_lshl_b32 s97, s{S_IDX}, 6\ns_add_u32 s97, s97, {WS_STAMP + 0x8000 + base*64 + 4*k:#x}\ns_waitcnt lgkmcnt(0)")
    e(f"v_mov_b32 v255, s98\nbuffer_store_dword v255, off, {WS}, s97".replace('v255', 'v%d' % TLV[0]))
TLV = [15]
DT = [0]
def DTL(k, v, op="umax"):
    if not OPT.get('dtl'): return
    DT[0] += 1
    e(f"s_cmp_eq_u32 s{S_WAVE}, 0\ns_cbranch_scc0 L_dt{DT[0]}\ns_memrealtime s[98:99]\ns_waitcnt lgkmcnt(0)\ns_sub_u32 s98, s98, s19\ns_mov_b64 exec, 1\nv_mov_b32 v{v}, s98\nv_mov_b32 v{v+1}, 0\nglobal_atomic_{op} v{v+1}, v{v}, s[{P_DBG}:{P_DBG+1}] offset:{4*k}\ns_mov_b64 exec, -1\nL_dt{DT[0]}:")
import worker, chain
worker.emit(globals())
chain.emit(globals(), 0)
chain.emit(globals(), 1)

e("L_fail:")
e(f"s_mov_b64 exec, 1\nv_mov_b32 v0, s{S_ERR}\nv_mov_b32 v1, 0\nglobal_store_dword v1, v0, s[{P_DBG}:{P_DBG+1}] offset:16")
e(f"v_mov_b32 v0, s{S_IDX}\nglobal_store_dword v1, v0, s[{P_DBG}:{P_DBG+1}] offset:20\ns_waitcnt vmcnt(0)")
e("L_end:")

body = e.finish(verbose=OPT.get('v', False))
ref = open(f"cdna_kernels/{NAME}.s.ref").read().split('\n')
head = [l for l in ref if l.startswith(';') and '@launch' not in l]
out = '\n'.join(head) + "\n; @launch grid=(256,1,1) block=(256,1,1) lds=163840\n"
out += f""".amdgcn_target "amdgcn-amd-amdhsa--gfx950"
.text
.globl {NAME}_kernel
.p2align 8
.type {NAME}_kernel,@function
{NAME}_kernel:
{body}
    s_endpgm
.section .rodata,"a"
.p2align 6
.amdhsa_kernel {NAME}_kernel
  .amdhsa_next_free_vgpr 512
  .amdhsa_next_free_sgpr 102
  .amdhsa_accum_offset 256
  .amdhsa_group_segment_fixed_size 0
  .amdhsa_kernarg_size 120
  .amdhsa_user_sgpr_count 2
  .amdhsa_user_sgpr_kernarg_segment_ptr 1
  .amdhsa_system_sgpr_workgroup_id_x 1
.end_amdhsa_kernel
"""
open(sys.argv[1], 'w').write(out)
```

```python
def emit(G, mode):
    globals().update(G)
    ST = "sc1" if mode else ""
    Ln = lambda s: f"L_c{mode}_{s}"
    W = "s[40:43]"
    WSTR = 36864
    L_M = 0; L_X = L_M + 8192; L_P = L_X + 4096 + 512; L_O = L_P + 1024; L_W = 16384
    assert L_O + 2048 <= L_W
    M = 0
    AQ0, AQ1, AK0, AK1, AV0, AV1 = 32, 36, 40, 44, 48, 52
    VW = 56; KT = 88; VT = 104; QF = 112
    JUNK = 128
    vIDX, vP8, vSP2, vVW, vXW, vQR, vKR, vPR, vOW, vL16, vRL, vMS, vSEL = range(131, 144)
    vW16 = 18
    WOB = 144
    sStep, sMc, sMn, sMp, sPc, sPp, sSK, sSV, sPF, sMH, sMHp, sFl, sKv = range(44, 57)
    sRd = list(range(57, 65))
    sSENT, sONE, sMLO = 66, 68, 70
    sC, sInf, sLlo, sLrg, sW1k, sLo, sHi, sPW = range(72, 80)
    sT = 80
    sPn, sDl, sRdR, sRdW, sRedo, sOOB, sFlC, sTag = sPW, 95, 65, 90, 91, 88, 89, 87
    WS_RDY = WS_M + 0x8000
    lds_slot = {}
    nb1, nb2 = OPT.get('nb1', 0), OPT.get('nb2', 0)
    vq = [('v', tt, sg) for sg in range(4) for tt in range(2)] + [('v', tt, sg) for tt in range(2) for sg in range(4, 8)]
    qk = lambda sg: [('q', 0, sg), ('q', 1, sg), ('k', 0, sg), ('k', 1, sg)]
    fr = qk(0) + qk(1) + vq[:nb1] + qk(2) + qk(3) + vq[nb1:nb1 + nb2] + [(mt, tt, sg) for mt in 'qk' for tt in range(2) for sg in range(4, 8)]
    vrest = vq[nb1 + nb2:]
    step_ = (len(fr) - 1 - 9) / 7.0
    order = [fr[g] for g in (0, 2, 4, 6)] + [fr[9 + int(round(k * step_))] for k in range(8)]
    order += [('o', 2, 1), ('o', 3, 1), ('o', 4, 1), ('o', 5, 1), ('o', 6, 1), ('o', 7, 1)]
    for i, f in enumerate(order): lds_slot[f] = i
    NQ = 12
    reg = {}
    n = 0
    for mt in 'qkv':
        for tt in range(2):
            for sg in range(8):
                if (mt, tt, sg) not in lds_slot:
                    reg[(mt, tt, sg)] = ('a', 8 * n) if n < 32 else ('v', 224 + 8 * (n - 32)); n += 1
    assert n == 36
    n = 0
    for t in range(8):
        for k in range(2):
            if ('o', t, k) not in lds_slot: reg[('o', t, k)] = ('v', WOB + 8 * n); n += 1
    assert n == 10
    rr = lambda f, o, n: (ar if reg[f][0] == 'a' else vr)(reg[f][1] + o, n)

    e(f"L_chain{mode}:")
    if OPT['skip_chain']:
        e("s_branch L_end"); return
    h = S_IDX; w = S_WAVE
    TLV[0] = 15
    TL(1, 0)
    if OPT.get('tl'): e(f"v_mov_b32 v15, s94\ns_sub_u32 s97, s97, 4\nbuffer_store_dword v15, off, {WS}, s97")
    e(f"v_lshrrev_b32 v1, 4, v0\nv_and_b32 v2, 15, v0")
    e(f"v_lshlrev_b32 v{vL16}, 4, v0")
    e(f"s_lshl_b32 s{sT}, s{w}, 11\nv_add_u32 v{vW16}, s{sT}, v{vL16}")
    e(f"s_lshl_b32 s{sT}, s{w}, 9\nv_lshlrev_b32 v{vP8}, 3, v0\nv_add_u32 v{vP8}, s{sT}, v{vP8}")
    e(f"s_mul_i32 s{sT}, s{w}, {WSTR}\ns_add_u32 s{sT}, s{sT}, {L_W}\nv_add_u32 v{vVW}, s{sT}, v{vL16}")
    e(f"v_mov_b32 v{vIDX}, 0x4444\nv_mov_b32 v3, 0xeeee\nv_and_b32 v4, 2, v2\nv_cmp_eq_u32 vcc, 0, v4\nv_cndmask_b32 v{vIDX}, v3, v{vIDX}, vcc")
    e(f"s_lshl_b32 s{sW1k}, s{w}, 10\nv_lshrrev_b32 v3, 2, v2\nv_lshlrev_b32 v3, 7, v3\nv_lshl_add_u32 v3, v1, 5, v3\nv_and_b32 v4, 3, v2\nv_lshl_add_u32 v3, v4, 2, v3")
    e(f"v_bfe_u32 v4, v2, 2, 1\nv_lshlrev_b32 v4, 6, v4\nv_xor_b32 v3, v3, v4\nv_add_u32 v3, s{sW1k}, v3\nv_add_u32 v{vXW}, {L_X}, v3")
    e(f"v_and_b32 v4, 7, v2\nv_lshlrev_b32 v4, 4, v4\nv_lshl_add_u32 v{vQR}, v1, 7, v4")
    e(f"v_lshrrev_b32 v3, 2, v2\nv_and_b32 v4, 1, v2\nv_lshl_add_u32 v3, v3, 1, v4\nv_lshlrev_b32 v3, 4, v3\nv_lshl_add_u32 v{vKR}, v1, 7, v3")
    e(f"v_and_b32 v4, 1, v1\nv_lshlrev_b32 v4, 6, v4\nv_xor_b32 v{vQR}, v{vQR}, v4\nv_xor_b32 v{vKR}, v{vKR}, v4")
    e(f"v_lshrrev_b32 v5, 3, v2\nv_lshl_add_u32 v{vPR}, v5, 9, v{vQR}")
    e(f"v_and_b32 v3, 6, v2\nv_lshlrev_b32 v3, 1, v3\nv_and_b32 v4, 1, v2\nv_add_u32 v3, v3, v4\nv_lshl_add_u32 v3, v1, 4, v3\nv_lshlrev_b32 v3, 4, v3\nv_lshl_add_u32 v3, v5, 3, v3")
    e(f"s_lshr_b32 s{sT}, s{w}, 1\ns_lshl_b32 s{sT}, s{sT}, 10\ns_and_b32 s{sT+1}, s{w}, 1\ns_lshl_b32 s{sT+1}, s{sT+1}, 5\ns_add_u32 s{sT}, s{sT}, s{sT+1}\nv_add_u32 v{vOW}, s{sT}, v3")
    e(f"s_lshl_b32 s{sT}, s{w}, 11\ns_lshl_b32 s{sT+1}, s{h}, 6\ns_add_u32 s{sT}, s{sT}, s{sT+1}")
    e(f"v_mul_u32_u24 v3, {HS}, v1\nv_lshl_add_u32 v3, v2, 2, v3\nv_add_u32 v{vRL}, s{sT}, v3")
    sWp, sGp, sHc = sT + 2, sT + 3, sT + 4
    e(f"s_lshr_b32 s{sWp}, s{h}, 3\ns_bfe_u32 s{sGp}, s{h}, 0x20001\ns_and_b32 s{sHc}, s{h}, 1")
    e(f"s_lshl_b32 s{sT}, s{sWp}, 9\ns_lshl_b32 s{sT+1}, s{sHc}, 8\ns_add_u32 s{sT}, s{sT}, s{sT+1}\ns_lshl_b32 s{sT+1}, s{sGp}, 6\ns_add_u32 s{sT}, s{sT}, s{sT+1}")
    e(f"v_and_b32 v3, 1, v2\nv_lshrrev_b32 v4, 1, v2\nv_lshrrev_b32 v6, 3, v2\nv_lshl_add_u32 v6, v6, 1, v3\nv_lshlrev_b32 v6, 4, v6\nv_and_b32 v8, 3, v4\nv_lshl_add_u32 v6, v8, 2, v6\nv_add_u32 v6, s{sT}, v6")
    e(f"v_mov_b32 v7, {OOB:#x}\nv_cmp_eq_u32 vcc, 0, v1\nv_cndmask_b32 v{vMS}, v7, v6, vcc")
    e(f"v_lshlrev_b32 v6, 10, v3\nv_lshl_add_u32 v6, v4, 4, v6")
    e(f"s_lshl_b32 s{sT}, s{sGp}, 11\ns_lshl_b32 s{sT+1}, s{sWp}, 8\ns_add_u32 s{sT}, s{sT}, s{sT+1}\ns_lshl_b32 s{sT+1}, s{sHc}, 7\ns_add_u32 s{sT}, s{sT}, s{sT+1}\ns_lshl_b32 s{sT+1}, s{w}, 2\ns_add_u32 s{sT}, s{sT}, s{sT+1}")
    srd(40, P_MEM0, 8192)
    e(f"buffer_load_dword v9, v6, {W}, s{sT} offen")
    e(f"v_mov_b32 v{vSEL}, 0\nv_mov_b32 v3, 0x3f80\nv_cmp_eq_u32 vcc, 0, v2\nv_cndmask_b32 v{vSEL}, v{vSEL}, v3, vcc\nv_mov_b32 v3, 0x3f800000\nv_cmp_eq_u32 vcc, 1, v2\nv_cndmask_b32 v{vSEL}, v{vSEL}, v3, vcc")
    e(f"s_mov_b32 s{sStep}, 0\ns_lshl_b32 s{sMc}, s{w}, 11\ns_add_u32 s{sMc}, s{sMc}, {WS_M}\ns_add_u32 s{sMn}, s{sMc}, 8192\ns_add_u32 s{sMp}, s{sMc}, 16384")
    e(f"s_mul_i32 s{sPc}, s{h}, {HS}\ns_add_u32 s{sPc}, s{sPc}, {WS_P:#x}\ns_add_u32 s{sPn}, s{sPc}, {PRING:#x}\ns_add_u32 s{sPp}, s{sPn}, {PRING:#x}")
    for i in range(8): e(f"s_mov_b32 s{sRd[i]}, {WS_P + i*4*HS:#x}")
    e(f"s_mul_i32 s{sT}, s{h}, {RHS:#x}\ns_lshr_b32 s{sT+1}, s{w}, 1\ns_lshl_b32 s{sT+1}, s{sT+1}, 12\ns_add_u32 s{sSK}, s{sT}, s{sT+1}\ns_and_b32 s{sT+1}, s{w}, 1\ns_lshl_b32 s{sT+1}, s{sT+1}, 9\ns_add_u32 s{sSK}, s{sSK}, s{sT+1}\ns_add_u32 s{sSK}, s{sSK}, {WS_K:#x}")
    e(f"s_lshl_b32 s{sT+1}, s{w}, 11\ns_add_u32 s{sSV}, s{sT}, s{sT+1}\ns_add_u32 s{sSV}, s{sSV}, {WS_V:#x}")
    e(f"s_lshl_b32 s{sT+1}, s{w}, 12\ns_add_u32 s{sPF}, s{sT}, s{sT+1}\ns_add_u32 s{sPF}, s{sPF}, {WS_K:#x}")
    e(f"s_add_u32 s{sMH}, s{sMc}, {WS_MH - WS_M:#x}\ns_lshl_b32 s{sRdR}, s{w}, 7\ns_add_u32 s{sRdR}, s{sRdR}, {WS_RDY:#x}\ns_lshl_b32 s{sRdW}, s{h}, 2\ns_add_u32 s{sRdW}, s{sRdW}, s{sRdR}")
    e(f"s_mov_b32 s{sSENT}, {SENT:#x}\ns_mov_b32 s{sSENT+1}, {SENT:#x}\ns_mov_b32 s{sONE}, 0x3f803f80\ns_mov_b32 s{sONE+1}, 0x3f803f80")
    e(f"s_mov_b32 s{sMLO}, 0x00ff00ff\ns_mov_b32 s{sMLO+1}, 0x00ff00ff\ns_mov_b32 s{sC}, {CSCALE:#x}\ns_mov_b32 s{sInf}, {INF:#x}")
    LLO, LHI = fbits(2.0 ** -60), fbits(2.0 ** 60)
    e(f"s_mov_b32 s{sLlo}, {LLO:#x}\ns_mov_b32 s{sLrg}, {(0 if OPT['force_fallback'] else LHI-LLO):#x}\ns_mov_b32 s{sLo}, 0x05040100\ns_mov_b32 s{sHi}, 0x07060302")
    vWA, vTS, vAD = 10, 11, 16
    e(f"v_lshlrev_b32 v3, 4, v2")
    e(f"v_lshrrev_b32 v4, 1, v1\nv_lshl_add_u32 v3, v4, 19, v3\nv_and_b32 v4, 1, v1\nv_lshl_add_u32 v3, v4, 17, v3")
    e(f"s_lshl_b32 s{sT}, s{w}, 14\ns_lshl_b32 s{sT+1}, s{h}, 8\ns_add_u32 s{sT}, s{sT}, s{sT+1}\nv_add_u32 v{vWA}, s{sT}, v3")
    e(f"s_lshl_b32 s{sT}, s{w}, 12\ns_add_u32 s{sT}, s{sT}, {L_M}\nv_add_u32 v{vTS}, s{sT}, v{vL16}")
    e(f"s_lshl_b32 s{sT+8}, s{w}, 3")
    RAW = [20, 144]
    TQ = [84, 88, 92]
    rounds = [(OPT.get('ro', 'vvqkqk')[i], (0, 1, 1, 1, 0, 0)[i] if OPT.get('ro', 'vvqkqk')[2] != OPT.get('ro', 'vvqkqk')[3] else i & 1) for i in range(6)]
    assert rounds[5][0] != 'q'
    ptr = {'q': P_WQ, 'k': P_WK, 'v': P_WV}
    def qkv_loads(ri):
        mt, par = rounds[ri]
        srd(40, ptr[mt], 0x400000)
        for j2 in range(8):
            for hb in range(2):
                row = 256 * par + 128 * (j2 >> 2) + 32 * (j2 & 1) + 8 * ((j2 & 3) >> 1) + hb
                e(f"s_mov_b32 s{sT}, {row*8192:#x}\nbuffer_load_dwordx4 {vr(RAW[ri&1]+(j2*2+hb)*4,4)}, v{vWA}, {W}, s{sT} offen")
    placed = set(); plan = []
    for ri, (mt, par) in enumerate(rounds):
        fs = [(mt, tt, sg) for tt in range(2) for sg in range(par, 8, 2)]
        for f in fs:
            if f in lds_slot: placed.add(lds_slot[f])
        free = [s for s in range(19, -1, -1) if s not in placed]
        loc = {}
        for f in fs:
            loc[f] = lds_slot[f] if f in lds_slot else free.pop(0)
        plan.append(loc)
    absslot = lambda wd, s: (8 + wd * 18 + s) if s < 18 else (wd * 2 + s - 18)
    vWO = 17
    e(f"v_lshrrev_b32 v3, 1, v1\nv_lshlrev_b32 v3, 5, v3\nv_and_b32 v4, 1, v1\nv_add_u32 v3, v3, v4\nv_lshlrev_b32 v3, 10, v3\nv_lshl_add_u32 v3, v2, 4, v3")
    e(f"s_lshl_b32 s{sT}, s{h}, 17\ns_lshl_b32 s{sT+1}, s{w}, 8\ns_add_u32 s{sT}, s{sT}, s{sT+1}\nv_add_u32 v{vWO}, s{sT}, v3")
    WRAW = [20, 52, 96]
    def wo_loads(gi):
        kap, hf = gi >> 1, gi & 1
        for jl in range(4):
            for hb in range(2):
                row = 64 * hf + 16 * (jl >> 1) + 8 * hb + 4 * kap + 2 * (jl & 1)
                e(f"s_mov_b32 s{sT}, {row*1024:#x}\nbuffer_load_dwordx4 {vr(WRAW[gi%3]+(jl*2+hb)*4,4)}, v{vWO}, {W}, s{sT} offen")
    def init_handoff():
        e(f"v_mov_b64 v[12:13], s[{sSENT}:{sSENT+1}]\nv_mov_b64 v[14:15], s[{sSENT}:{sSENT+1}]")
        for s in (sPc, sPn, sPp):
            for o in (0, 1024): e(f"buffer_store_dwordx4 v[12:15], v{vW16}, {WS}, s{s} offen offset:{o} {ST}")
        e(f"buffer_store_dword v12, v{vMS}, {WS}, s{sMn} offen {ST}\nbuffer_store_dword v12, v{vMS}, {WS}, s{sMp} offen {ST}")
        e(f"buffer_store_dword v9, v{vMS}, {WS}, s{sMc} offen {ST}\nbuffer_store_dword v9, v{vMS}, {WS}, s{sMH} offen sc1\ns_mov_b32 s{sMHp}, {OOB:#x}\nv_mov_b32 v8, 0\nbuffer_store_dword v8, off, {WS}, s{sRdW} {ST}")
    def arrive():
        e(f"s_lshl_b32 s{sT}, s{h}, 2\ns_add_u32 s{sT}, s{sT}, {WS_FLAG+F_BAR:#x}\ns_cmp_eq_u32 s{w}, 0\ns_cselect_b32 s{sT}, s{sT}, {OOB:#x}\nv_mov_b32 v4, 1\nbuffer_store_dword v4, off, {WS}, s{sT} {ST}")
    qkv_loads(0)
    tq = 0
    for ri, (mt, par) in enumerate(rounds):
        if ri == 4: confirm_issue('v6', 8)
        if ri + 1 < 6:
            qkv_loads(ri + 1); e("s_waitcnt vmcnt(16)")
        else:
            srd(40, P_WO, 0x400000); wo_loads(0); wo_loads(1); wo_loads(2); e("s_waitcnt vmcnt(24)")
        if OPT.get('tlw') and ri in (0, 1, 3, 5):
            TLV[0] = 15; TL(8 + (0, 1, 3, 5).index(ri), 0)
        if ri == 4:
            confirm_check(40 + mode, 6, 8); init_handoff()
        if ri: e("s_waitcnt lgkmcnt(0)\ns_barrier")
        if ri == 1: report(40 + mode, 6)
        raw = RAW[ri & 1]
        for t in range(8):
            wd, tt = t >> 1, t & 1
            const = 0
            for wl in range(4):
                sg = 2 * wl + par
                const |= absslot(wd, plan[ri][(mt, tt, sg)]) << (8 * wl)
            e(f"s_lshr_b32 s{sT}, {const:#x}, s{sT+8}\ns_and_b32 s{sT}, s{sT}, 0xff\ns_lshl_b32 s{sT}, s{sT}, 11\nv_add_u32 v{vAD}, s{sT}, v{vL16}")
            for hf in range(2):
                q = TQ[tq % 3]; tq += 1
                for jl in range(4):
                    j2 = hf * 4 + jl
                    r0, r1 = raw + (j2 * 2) * 4 + (t >> 1), raw + (j2 * 2 + 1) * 4 + (t >> 1)
                    if mt == 'q':
                        tp_ = 96 + 2 * (jl & 1)
                        for k_, r_ in ((0, r0), (1, r1)):
                            e(f"v_and_b32 v{tp_+k_}, 0xffff0000, v{r_}" if t & 1 else f"v_lshlrev_b32 v{tp_+k_}, 16, v{r_}")
                        e(f"v_pk_mul_f32 v[{tp_}:{tp_+1}], v[{tp_}:{tp_+1}], s[{sC}:{sC+1}] op_sel_hi:[1,0]\nv_cvt_pk_bf16_f32 v{q+jl}, v{tp_}, v{tp_+1}")
                    else:
                        e(f"v_perm_b32 v{q+jl}, v{r1}, v{r0}, s{sHi if t&1 else sLo}")
                e(f"ds_write_b128 v{vAD}, {vr(q,4)} offset:{hf*1024}")
        e("s_waitcnt lgkmcnt(0)\ns_barrier")
        nrd = 0
        for f, s in plan[ri].items():
            if f in lds_slot: continue
            for hf in range(2):
                if s < 18: e(f"ds_read_b128 {rr(f,4*hf,4)}, v{vVW} offset:{s*2048+hf*1024}")
                else: e(f"ds_read_b128 {rr(f,4*hf,4)}, v{vTS} offset:{(s-18)*2048+hf*1024}")
                nrd += 1
                if nrd == 12: e("s_waitcnt lgkmcnt(4)")
    e("s_waitcnt lgkmcnt(0)\ns_barrier")
    arrive()
    for gi in range(4):
        kap, hf = gi >> 1, gi & 1
        if gi == 1: wo_loads(3)
        if gi == 2:
            e(f"s_mov_b32 s{sT}, {WS_FLAG+F_KV:#x}\nv_lshlrev_b32 v8, 2, v{vL16}\nbuffer_load_dword v8, v8, {WS}, s{sT} offen sc1")
            for k in range(4): e(f"buffer_load_dwordx3 {vr(JUNK,3)}, v{vL16}, {WS}, s{sPF} offen offset:{k*1024} sc1") if OPT.get('w0') else None
        e(f"s_waitcnt vmcnt({[16, 16, 9, 1][gi]})")
        raw = WRAW[gi % 3]
        for t in range(8):
            f = ('o', t, kap)
            q = reg[f][1] + 4 * hf if f in reg else TQ[t % 3]
            for jl in range(4):
                e(f"v_perm_b32 v{q+jl}, v{raw+(jl*2+1)*4+(t>>1)}, v{raw+(jl*2)*4+(t>>1)}, s{sHi if t&1 else sLo}")
            if f not in reg: e(f"ds_write_b128 v{vVW}, {vr(q,4)} offset:{lds_slot[f]*2048+hf*1024}")
    TL(2, 0); DTL(4, 14)
    e(f"v_mov_b32 v3, 0\nv_lshlrev_b32 v4, 3, v0\nv_mov_b32 v6, 0\nv_mov_b32 v7, 0\nds_write_b64 v4, v[6:7] offset:{L_P-512}\nds_write_b64 v4, v[6:7] offset:{L_P+512}")
    e(f"v_and_b32 v3, 31, v0\nv_lshlrev_b32 v3, 2, v3\ns_mov_b32 s{sT}, {WS_FLAG+F_BAR:#x}")
    e(f"{Ln('bar')}:\nbuffer_load_dword v4, v3, {WS}, s{sT} offen sc1\ns_waitcnt vmcnt(0)\nv_cmp_ne_u32 vcc, 1, v4\ns_cbranch_vccz {Ln('bar_ok')}")
    fail_if_zero(10)
    e(f"s_branch {Ln('bar')}\n{Ln('bar_ok')}:")
    TL(3, 0)
    e(f"v_cmp_le_u32 vcc, 32, v8\ns_and_b32 s{sT}, vcc_lo, 0xffff\ns_ff0_i32_b32 s{sKv}, s{sT}")
    def kv_refresh(lab, code):
        e(f"{lab}:\ns_mov_b32 s{sT+2}, {WS_FLAG+F_KV:#x}\nv_lshlrev_b32 v{JUNK}, 2, v{vL16}\ns_waitcnt vmcnt(0)\nbuffer_load_dword v{JUNK}, v{JUNK}, {WS}, s{sT+2} offen sc1\ns_waitcnt vmcnt(0)")
        e(f"v_cmp_le_u32 vcc, 32, v{JUNK}\ns_and_b32 s{sT+2}, vcc_lo, 0xffff\ns_ff0_i32_b32 s{sKv}, s{sT+2}\ns_cmp_lt_u32 s{sT}, s{sKv}\ns_cbranch_scc1 {lab}_ok")
        fail_if_zero(code)
        e(f"s_branch {lab}\n{lab}_ok:")
    e(f"s_mov_b32 s{sTag}, 0\ns_mov_b32 s{sRedo}, 0\ns_mov_b32 s{sT}, 0\ns_mov_b32 s{sFlC}, {WS_FLAG+F_KV:#x}\ns_mov_b32 s{sOOB}, {OOB:#x}\ns_mov_b32 s{sFl}, s{sFlC}")
    e(f"s_cmp_lg_u32 s{sKv}, 0\ns_cbranch_scc1 {Ln('kv0')}_ok")
    kv_refresh(Ln('kv0'), 12)
    TL(4, 0); DTL(5, 14)
    if OPT.get('dtl'): e('s_memtime s[92:93]\ns_waitcnt lgkmcnt(0)')
    if OPT.get('tl'): e("s_memtime s[92:93]\ns_waitcnt lgkmcnt(0)\ns_mov_b32 s94, 0")
    def kv_loads():
        r = []
        for j in range(4): r.append(f"buffer_load_dwordx4 {vr(KT+4*j,4)}, v{vKR}, {WS}, s{sSK} offen offset:{j*1024} sc1")
        for t in range(2): r.append(f"buffer_load_dwordx4 {vr(VT+4*t,4)}, v{vL16}, {WS}, s{sSV} offen offset:{t*1024} sc1")
        return r
    for x in kv_loads()[:4]: e(x)
    e(f"s_add_u32 s{sSK}, s{sSK}, {SEGS:#x}")
    if not OPT.get('vearly', 0):
        for x in kv_loads()[4:]: e(x)
        e(f"s_add_u32 s{sSV}, s{sSV}, {SEGS:#x}")
    warm = [f"buffer_load_dwordx3 {vr(JUNK,3)}, v{vL16}, {WS}, s{sPF} offen offset:{k*1024} sc1" for k in range(4)]
    e(f"s_add_u32 s{sPF}, s{sPF}, {SEGS:#x}")
    for x in warm: e(x)
    e(f"s_add_u32 s{sPF}, s{sPF}, {SEGS:#x}")
    FP_ = OPT.get('fprobe', 1)
    e(f"v_and_b32 v4, 31, v0\nv_lshlrev_b32 v{vSP2}, {2 if FP_ else 6}, v4")
    pcmp = lambda r: f"v_cmp_ne_u32 vcc, s{sStep}, v{r}" if FP_ else f"v_cmp_eq_u32 vcc, s{sSENT}, v{r}"
    X = OPT.get('x', ''); nc = 'nocomm' in X
    from asmlib import estimate
    mm = "v_mfma_f32_16x16x32_bf16"; m16 = "v_mfma_f32_16x16x16_bf16"
    cvt = lambda d, a, b: f"v_cvt_pk_bf16_f32 v{d}, v{a}, v{b}"
    add2 = lambda a: [f"v_add_f32 v{a}, v{a}, v{a+2}", f"v_add_f32 v{a+1}, v{a+1}, v{a+3}"]
    mul2 = lambda a: [f"v_mul_f32 v{a}, s{sC}, v{a}", f"v_mul_f32 v{a+1}, s{sC}, v{a+1}"]
    accof = {'q': (AQ0, AQ1), 'k': (AK0, AK1), 'v': (AV0, AV1)}
    ringslot = {f: i % 4 for i, f in enumerate(order[:12])}
    ringslot.update({f: (2, 3, 0, 1, 2, 3)[i] for i, f in enumerate(order[12:])})
    wtxt = lambda f, hf: f"ds_read_b128 {vr(VW+8*ringslot[f]+4*hf,4)}, v{vVW} offset:{lds_slot[f]*2048+hf*1024}"
    wreg = lambda f: vr(VW + 8 * ringslot[f], 8) if f in lds_slot else rr(f, 0, 8)
    stage = [wtxt(order[i], hf) for i in range(4) for hf in range(2)]
    zero_acc = [f"v_mov_b64 v[{AQ0+2*i}:{AQ0+2*i+1}], 0" for i in range(12)]
    SM = lambda f: f"v_smfmac_f32_16x16x64_bf16 {vr(accof[f[0]][f[1]],4)}, {vr(M+4*f[2],4)}, {wreg(f)}, v{vIDX}"
    STK, SMM, LA, OA = AQ0, AK1, AQ1, AK0
    PT = AQ1; KF = M; PM = AV0 + 2; RC = SMM + 2
    PLO, PHI, PAL, ONE4 = VW, VW + 4, VW + 8, VW + 12
    PRB, SENTQ = QF + 2, QF + 12
    LAND, SELQ, R = AQ0, QF, QF + 4
    mlo = f"s[{sMLO}:{sMLO+1}]"
    chainc = lambda a, j: '0' if j == 0 else vr(a, 4)
    pv_tok = [f"{mm} {vr(LA,4)}, {vr(ONE4,4)}, {vr(PAL,4)}, 0", f"{mm} {vr(OA,4)}, {vr(VT,4)}, {vr(PLO,4)}, 0",
              f"{mm} {vr(OA,4)}, {vr(VT+4,4)}, {vr(PHI,4)}, {vr(OA,4)}"]
    pv_mem = [f"{m16} {vr(LA,4)}, {vr(ONE4,2)}, {vr(PM,2)}, {vr(LA,4)}", f"{m16} {vr(OA,4)}, {vr(AV0,2)}, {vr(PM,2)}, {vr(OA,4)}"]
    zw = [f"v_mov_b64 v[{M+2*i}:{M+2*i+1}], 0" for i in range(16)]
    norm = [f"v_mul_f32 v{OA+r}, v{OA+r}, v{RC}" for r in range(4)] + [cvt(OA, OA, OA + 1), cvt(OA + 1, OA + 2, OA + 3)]
    ow = f"ds_write_b64 v{vOW}, {vr(OA,2)} offset:{L_O}"
    p2l = [f"buffer_load_dword v{LAND+i}, v{vRL}, {WS}, s{sRd[i]} offen sc1" for i in range(8)]
    shot = lambda r: [f"buffer_load_dword v{r}, v{vSP2}, {WS}, s{sRdR if FP_ else sMc} offen sc1", f"buffer_load_dwordx4 v{vL16}, {WS}, s{sMc} offen sc1 lds",
                      f"buffer_load_dwordx4 v{vL16}, {WS}, s{sMc} offen offset:1024 sc1 lds"]
    def pad(n):
        r = []
        while n > 0:
            k = min(n, 8); r.append(f"s_nop {k-1}"); n -= k
        return r
    dregs = list(range(4, 28, 2))
    NSW = OPT.get('nsw', [3, 3, 1, 1]); POST = OPT.get('post', [0, 0, 1, 1]); TOP1 = OPT.get('top1', 0); EX = OPT.get('ex', 5)
    e("s_waitcnt lgkmcnt(0)")
    for x in stage + zero_acc: e(x)
    e(f"s_lshl_b32 s{sT}, s{w}, 11\ns_add_u32 m0, s{sT}, {L_M}")
    e("s_waitcnt vmcnt(0)\ns_barrier")
    for k in range(1, 4): e(f"s_cmp_eq_u32 s{w}, {k}\ns_cbranch_scc1 {Ln('enter%d' % k)}")
    ta = {}
    for wv in range(4):
        Lw = lambda s: Ln(f"w{wv}_{s}")
        lds = []; vm = []; dn = []
        def WL(tag):
            k = max(i for i, t in enumerate(lds) if t == tag)
            return f"s_waitcnt lgkmcnt({min(len(lds) - 1 - k, 15)})"
        def WV(tag):
            k = max(i for i, t in enumerate(vm) if t == tag)
            return f"s_waitcnt vmcnt({len(vm) - 1 - k})"
        def DS(name):
            if OPT.get('one'):
                if name == 'wo_end':
                    if OPT['one'] == name: e("s_memtime s[6:7]")
                    e("s_waitcnt lgkmcnt(0)\ns_sub_u32 s6, s6, s4\ns_cmp_gt_u32 s{0}, 4\ns_cselect_b32 s6, s6, 0\ns_add_u32 s94, s94, s6\ns_memtime s[4:5]".format(sStep))
                elif OPT['one'] == name: e("s_memtime s[6:7]")
                return
            if not OPT.get('dst'): return
            e(f"{'s_memrealtime' if OPT.get('real') else 's_memtime'} s[{dregs[len(dn)]}:{dregs[len(dn)]+1}]"); dn.append(name)
        class Op:
            def __init__(s, txt, tag=None, wait=None, vwait=None): s.txt, s.tag, s.wait, s.vwait = txt, tag, wait, vwait
            def out(s):
                if s.wait is not None: return WL(s.wait)
                if s.vwait is not None: return WV(s.vwait)
                if s.txt.startswith('ds_'): lds.append(s.tag)
                if s.txt.startswith('buffer_'): vm.append(s.tag)
                return s.txt
        E = lambda x, tag=None: e(Op(x, tag).out())
        rd = lambda dst, a, off, tag: Op(f"ds_read_b128 {vr(dst,4)}, v{a} offset:{off}", tag)
        wt = lambda tag: Op("s_waitcnt lgkmcnt(0)", wait=tag)
        wtv = lambda tag: Op("s_waitcnt vmcnt(0)", vwait=tag)
        tacost = lambda t: (20 if 'store_dwordx4' in t else 16 if 'x4' in t or 'x2' in t or 'x3' in t else 6) if t.startswith('buffer_') else 0
        class Sched:
            def __init__(s, bb, book=False): s.bb = bb; s.g = [([], [], []) for _ in bb]; s.book = book
            def kind(s, x):
                t = x.txt
                return 2 if t.startswith('v_') and not t.startswith('v_cmp_') else (1 if t.startswith(('ds_', 'buffer_')) else 0)
            def over(s, g, extra=None):
                parts = [list(p) for p in s.g[g]]
                if extra: parts[s.kind(extra)].append(extra)
                ws = [x for x in parts[0] if x.wait is not None]
                parts[0] = ws[:1] + [x for x in parts[0] if x.wait is None]
                ls = [s.bb[g]] + [x.txt for p in parts for x in p] + [s.bb[g]]
                return estimate(ls)[-1] - 16
            def fix(s, g, *xs):
                for x in xs:
                    x = x if isinstance(x, Op) else Op(x)
                    s.g[g][s.kind(x)].append(x)
                    if s.book: ta[g] = ta.get(g, 0) + tacost(x.txt)
            def flex(s, lo, hi, x):
                x = x if isinstance(x, Op) else Op(x)
                c = tacost(x.txt)
                busy = lambda g: max(0, ta.get(g, 0) + c - 20) if c else 0
                crowd = lambda g: (4 if x.txt.startswith('ds_') and any(y.txt.startswith('ds_') for y in s.g[g][1]) else 0)
                best = min(range(lo, hi + 1), key=lambda g: (s.over(g, x) - s.over(g) + busy(g) + crowd(g), g))
                s.fix(best, x); return best
            def emit(s, names=None):
                for g, ins in enumerate(s.bb):
                    e(ins)
                    if names and (g in OPT.get('dst', []) or OPT.get('one')): DS(names % g)
                    ws = [x.out() for x in s.g[g][0] if x.wait is not None]
                    if ws: e(min(ws, key=lambda t: int(t[t.index('(')+1:-1])))
                    for p in s.g[g]:
                        for x in p:
                            if x.wait is None: e(x.out())
        kvl = kv_loads()
        if 'kv' in X: kvl = ['s_nop 0'] * 6
        if 'noK' in X: kvl[:4] = ['s_nop 0'] * 4
        if 'noV' in X: kvl[4:] = ['s_nop 0'] * 2
        if 'KVplain' in X: kvl = [x.replace(' sc1', '') for x in kvl]
        NS = NSW[wv]; PR0 = [PRB, PRB + 1, QF + 8, QF + 9][:NS]
        attop = wv == 0 or (wv == 1 and TOP1)
        e(f"{Ln('enter%d' % wv)}:")
        PRE = POST[wv] == 2
        if not POST[wv]:
            for r in PR0:
                for x in shot(r): e(x)
        if PRE:
            for x in shot(PRB + 1): e(x)
        e("s_waitcnt vmcnt(0)\n.p2align 6")
        e(f"{Lw('step')}:")
        loop0 = len(e.l)
        DS('top')
        probe_bad = lambda r, lab: [pcmp(r), f"s_cbranch_vccnz {Lw(lab)}" if not nc else "s_nop 0"]
        if not POST[wv]: vm += ['probe', 'dma0', 'dma'] + ['x'] * (3 * NS - 3)
        if PRE: vm += ['probe1', 'x', 'dma1']
        if attop:
            NR0 = [OPT.get('rw', 4), 8 - OPT.get('rw', 4)][wv] if OPT.get('fo', 1) and OPT.get('rk') == 8 else 0
            vm += ['x'] * NR0
            e(f"s_waitcnt vmcnt({3*NS-1+NR0}) lgkmcnt(0)")
            for x in probe_bad(PR0[0], 'spinA'): e(x)
            DS('hit'); e(f"s_waitcnt vmcnt({3*NS-3+NR0})\n{Lw('hit')}:"); DS('landed')
        else:
            e("s_waitcnt lgkmcnt(0)")
        e("s_barrier")
        DS('b1a')
        mrd = lambda sg: rd(M + 4 * sg, vL16, L_M + sg * 1024, ('m', sg))
        e(mrd(0).out()); e(mrd(1).out())
        PG = OPT.get('pg', -1)
        if POST[wv] and PG < 0:
            assert NS == 1
            for x, tg in zip(shot(PRB), ('probe', 'dma0', 'dma')): E(x, tg)
        e(WL(('m', 0)))
        gK1 = len(fr) - 1; gK0, gQ1, gQ0 = gK1 - 4, gK1 - 8, gK1 - 12
        gqw = gQ1 + 4; gSt = max(gqw + 2 * EX, gK1 + 1)
        gkw = gK1 + 5 + OPT.get('kp', 0); gSm = max(gkw + 2 * EX, gSt + 4)
        gpw = gSt + 8; gPv = max(gpw + 2 * EX - 1, gSm + 8)
        bb = [SM(f) for f in fr]; vs = list(vrest)
        def upto(g):
            while len(bb) < g: bb.append(SM(vs.pop(0)) if vs else 's_nop 0')
        upto(gSt); bb += [f"{mm} {vr(STK,4)}, {vr(KT+4*j,4)}, {vr(QF+4*j,4)}, {chainc(STK,j)}" for j in range(4)]
        upto(max(gSm, gPv - 4 - max(0, len(vs) - (gSm - len(bb))) if False else gSm))
        bb += [f"{mm} {vr(SMM,4)}, {vr(KF+4*j,4)}, {vr(QF+4*j,4)}, {chainc(SMM,j)}" for j in range(4)]
        gPv = max(gPv, len(bb) + len(vs))
        upto(gPv); bb += pv_tok + pv_mem
        gof = {f: bb.index(SM(f)) for f in fr + vrest}
        sc = Sched(bb, True)
        g2, g4 = gof[('q', 0, 2)], gof[('q', 0, 4)]
        b1b, b1c = g2 - 5, g4 - 5
        sc.fix(1, wt(('m', 1)))
        gmine = b1b if wv == 1 else b1c
        late2 = {}
        if POST[wv] and PG >= 0:
            for k_, (x, tg) in enumerate(zip(shot(PRB), ('probe', 'dma0', 'dma'))): sc.fix(PG + (k_ + 1) // 2, Op(x, tg))
        if PRE:
            class Mark(Op):
                def out(s_):
                    late2['p'] = WV('probe'); late2['d'] = WV('dma'); return s_.txt
            sc.fix(gmine - 1, wtv('probe1'), probe_bad(PRB + 1, 'second')[0], Mark(probe_bad(PRB + 1, 'second')[1])); sc.g[gmine - 1][0].append(Op(f"{Lw('hit')}:"))
            sc.fix(gmine, wtv('dma1'))
        elif not attop:
            sc.fix(gmine - 1, wtv('probe'), *probe_bad(PRB, 'spin1')); sc.g[gmine - 1][0].append(Op(f"{Lw('hit')}:"))
            sc.fix(gmine, wtv('dma'))
        if TOP1: sc.fix(0, mrd(2)); sc.fix(1, mrd(3))
        else: sc.fix(b1b, "s_barrier", mrd(2)); sc.fix(b1b + 1, mrd(3))
        sc.fix(g2 - 1, wt(('m', 2))); sc.fix(g2 + 3, wt(('m', 3)))
        sc.fix(b1c, "s_barrier", mrd(4)); sc.fix(b1c + 1, mrd(5)); sc.fix(b1c + 2, mrd(6)); sc.fix(b1c + 3, mrd(7))
        for k in range(4): sc.fix(g4 - 1 + k, wt(('m', 4 + k)))
        sc.fix(gQ0 + 2, add2(AQ0)[0]); sc.fix(gQ0 + 3, add2(AQ0)[1])
        sc.fix(gQ1 + 2, *add2(AQ1)); sc.fix(gQ1 + 3, cvt(AQ0, AQ0, AQ1), cvt(AQ0 + 1, AQ0 + 1, AQ1 + 1))
        sc.fix(gqw, Op(f"ds_write2_b32 v{vXW}, v{AQ0}, v{AQ0+1} offset0:0 offset1:4", 'qw'))
        gqb = gqw + EX
        sc.fix(gqb, wt('qw'), "s_barrier")
        for j in range(4): sc.fix(gqb + j, rd(QF + 4 * j, vQR, L_X + 1024 * j, ('qf', j))); sc.fix(gSt - 1 + j, wt(('qf', j)))
        sc.flex(gK0 + 2, gK1 + 1, add2(AK0)[0]); sc.flex(gK0 + 2, gK1 + 1, add2(AK0)[1])
        if OPT.get('kp', 0) == 0: sc.fix(gK1 + 2, add2(AK1)[0]); sc.fix(gK1 + 3, add2(AK1)[1], cvt(AK0, AK0, AK1)); sc.fix(gK1 + 4, cvt(AK0 + 1, AK0 + 1, AK1 + 1))
        else: sc.fix(gK1 + 2, add2(AK1)[0]); sc.fix(gK1 + 3, add2(AK1)[1]); sc.fix(gK1 + 4, cvt(AK0, AK0, AK1)); sc.fix(gK1 + 5, cvt(AK0 + 1, AK0 + 1, AK1 + 1))
        sc.fix(gkw, Op(f"ds_write2_b32 v{vXW}, v{AK0}, v{AK0+1} offset0:128 offset1:132", 'kw'))
        sc.fix(gkw + EX, wt('kw'), "s_barrier")
        for j in range(4):
            gj = max(gkw + EX + j, gof[('v', 1, j)])
            sc.fix(gj, rd(KF + 4 * j, vKR, L_X + 512 + 1024 * j, ('kf', j)))
            sc.fix(gSm - 1 + j, wt(('kf', j)))
        sc.fix(gSt + 5, f"v_exp_f32 v{PT}, v{STK}"); sc.fix(gSt + 6, f"v_exp_f32 v{PT+1}, v{STK+1}"); sc.fix(gSt + 7, cvt(PT, PT, PT + 1))
        sc.fix(gpw, Op(f"ds_write_b32 v{vQR}, v{PT} offset:{L_P+wv*4}", 'pw'))
        gpb = gpw + EX - 1
        sc.fix(gpb, wt('pw'), "s_barrier", rd(PAL, vQR, L_P, 'pal')); sc.fix(gpb + 1, rd(PLO, vPR, L_P, 'plo')); sc.fix(gpb + 2, rd(PHI, vPR, L_P - 512, 'phi'))
        sc.fix(gPv - 1, wt('pal')); sc.fix(gPv, wt('plo')); sc.fix(gPv + 1, wt('phi'))
        gV0 = max(gof[('v', 0, s)] for s in range(8))
        a = sc.flex(gV0 + 2, gPv - 2, add2(AV0)[0]); b = sc.flex(gV0 + 2, gPv - 2, add2(AV0)[1]); sc.flex(max(a, b) + 1, gPv - 1, cvt(AV0, AV0, AV0 + 1))
        sc.fix(gSm + 5, f"v_exp_f32 v{SMM+2}, v{SMM}"); sc.fix(gSm + 6, f"v_exp_f32 v{SMM+3}, v{SMM+1}"); sc.fix(gSm + 7, cvt(SMM + 2, SMM + 2, SMM + 3))
        sc.fix(gPv, f"v_cndmask_b32 v{PM}, 0, v{SMM+2}, {mlo}", f"v_cndmask_b32 v{PM+1}, v{SMM+2}, 0, {mlo}")
        sc.fix(gPv + 1, *add2(AV1)); sc.fix(gPv + 2, cvt(AV0 + 1, AV1, AV1 + 1), zw[0])
        sc.fix(gPv + 3, zw[1], zw[2]); sc.fix(gPv + 4, zw[3], zw[4])
        last = {k: gof[order[k]] for k in range(4)}; prev = 0
        for f in order[4:14]:
            use = gof.get(f, gPv + 4); lo = max(last[ringslot[f]], prev)
            a = sc.flex(lo, use - 5, Op(wtxt(f, 0), (f, 0))); prev = sc.flex(a, use - 4, Op(wtxt(f, 1), (f, 1)))
            if f in gof: sc.fix(use - 1, wt((f, 1)))
            last[ringslot[f]] = use
        sc.flex(last[1], gPv - 2, f"v_mov_b64 {vr(ONE4,2)}, s[{sONE}:{sONE+1}]"); sc.flex(last[1], gPv - 2, f"v_mov_b64 {vr(ONE4+2,2)}, s[{sONE}:{sONE+1}]")
        lo = (gmine + 1 if not attop and NS > 1 else OPT.get('kv0', 1))
        VE = OPT.get('vearly', 0)
        if VE:
            for j in (4, 5): lo = sc.flex(lo, max(lo, 4 + j), Op(kvl[j], ('kv', j))) + 1
            if 'kv' not in X and 'noV' not in X: sc.fix(gPv - 2, wtv(('kv', 5)))
        q0 = max(lo, OPT.get('q0', 1))
        lo = gSt + 1
        for j in range(4): lo = sc.flex(max(lo, gSt + j), gPv - 4 + j, kvl[j]) + 1
        RP = 0
        RK = OPT.get('rk', 1)
        SQ = QF + 12 - (4 if RK == 4 else 0)
        if RK == 0:
            a = sc.flex(0, 8, f"v_mov_b32 v{SQ}, s{sSENT}")
        elif RK != 8: a = sc.flex(0, q0, f"v_mov_b64 {vr(SQ,2)}, s[{sSENT}:{sSENT+1}]")
        if RK == 4:
            a = max(a, sc.flex(0, q0, f"v_mov_b64 {vr(SQ+2,2)}, s[{sSENT}:{sSENT+1}]")); sc.flex(0, 4, f"s_add_u32 s{sT+3}, s{sPn}, {wv*2048}")
            rs = [f"buffer_store_dwordx4 {vr(SQ,4)}, v{vL16}, {WS}, s{sT+3} offen offset:{o} {ST}" for o in (0, 1024)]
        elif RK == 8:
            SQ = M + 4
            hrs = [f"s_add_u32 s{sT+3}, s{sPp}, {wv*(1024*OPT.get('rw', 4) if OPT.get('fo', 1) else 2048)}", f"s_add_u32 s{sT+5}, s{sT+3}, 4096", f"v_mov_b64 {vr(SQ,2)}, s[{sSENT}:{sSENT+1}]", f"v_mov_b64 {vr(SQ+2,2)}, s[{sSENT}:{sSENT+1}]"]
            hst = [f"buffer_store_dwordx4 {vr(SQ,4)}, v{vL16}, {WS}, s{sT+3} offen offset:{o} {ST}" for o in (0, 1024)] + [f"buffer_store_dword v{SQ}, v{vMS}, {WS}, s{sMp} offen {ST}"]
            rs = []
            if OPT.get('r2') is not None:
                n2_ = OPT['r2']
                hrs[0] = f"s_add_u32 s{sT+3}, s{sPp}, {n2_*1024 if wv == 3 else 0}"
                hst = [f"buffer_store_dwordx4 {vr(SQ,4)}, v{vL16}, {WS}, s{sT+3+2*(o>>2)} offen offset:{(o&3)*1024} {ST}" for o in range([0, 0, n2_, 8 - n2_][wv])]
                a = sc.flex(0, 8, f"v_mov_b32 v{QF+12}, s{sSENT}"); sc.flex(a + 1, 24, f"buffer_store_dword v{QF+12}, v{vMS}, {WS}, s{sMp} offen {ST}")
            if OPT.get('fo', 1):
                hst = [f"buffer_store_dwordx4 {vr(SQ,4)}, v{vL16}, {WS}, s{sT+3+2*(o>>2)} offen offset:{(o&3)*1024} {ST}" for o in range([OPT.get('rw', 4), 8 - OPT.get('rw', 4), 0, 0][wv])]
                a = sc.flex(0, 8, f"v_mov_b32 v{QF+12}, s{sSENT}"); sc.flex(max(a + 1, PG + 2), 24, f"buffer_store_dword v{QF+12}, v{vMS}, {WS}, s{sMp} offen {ST}")
        elif RK == 0: rs = []
        else:
            sc.flex(0, 4, f"s_add_u32 s{sT+3}, s{sPn}, 4096")
            rs = [f"buffer_store_dword{'x2' if RK == 2 else ''} {vr(SQ,RK)}, v{vP8}, {WS}, s{sPn if tp < 2 else sT+3} offen offset:{(tp&1)*2048+o} {ST}" for tp in range(4) for o in ((0,) if RK == 2 else (0, 4))]
        if RK != 8: rs.append(f"buffer_store_dword v{SQ}, v{vMS}, {WS}, s{sMp} offen {ST}")
        for x in rs: sc.flex(max(a + 1, OPT.get('qr', 18)), gqb - 1, x)
        if 'pub' not in X: sc.flex(q0, q0 + 6, f"buffer_store_dword v{R}, v{vMS}, {WS}, s{sMHp} offen sc1")
        if 'pf' not in X:
            lo = max(OPT.get('qp', 0), PG + 2 if PG >= 0 else 0)
            for k in range(4): lo = sc.flex(lo, lo + 5, warm[k]) + OPT.get('pfs', 1)
            sc.flex(0, lo - 1, f"v_lshlrev_b32 v{QF+14}, 2, v{vL16}")
            sc.flex(lo, lo + 5, f"buffer_load_dword v{JUNK}, v{QF+14}, {WS}, s{sFl} offen sc1")
        if OPT.get('lat'):
            key = {'pf': f"s{sPF} offen offset:3072", 'K': f"s{sSK} offen offset:3072", 'V': f"s{sSV} offen offset:1024"}[OPT['lat']]
            for g in range(len(bb)):
                for k, x in enumerate(sc.g[g][1]):
                    if key in x.txt:
                        sc.g[g][1].insert(k, Op("s_waitcnt vmcnt(0) lgkmcnt(0)\ns_memtime s[4:5]\ns_waitcnt lgkmcnt(0)"))
                        sc.g[g][1].insert(k + 2, Op("s_waitcnt vmcnt(0)\ns_memtime s[6:7]\ns_waitcnt lgkmcnt(0)\ns_sub_u32 s6, s6, s4\n" + ("s_max_u32 s94, s94, s6" if OPT.get('latmax') else "s_add_u32 s94, s94, s6")))
                        break
        sc.emit('g%d')
        DS('pv_end'); e(f"v_rcp_f32 v{RC}, v{LA}"); DS('rcp'); e(zw[5]); e(zw[6])
        for x in norm: e(x)
        DS('ow'); E(ow, 'ow')
        e(f"v_subrev_u32 v{RC+1}, s{sLlo}, v{LA}\nv_cmp_lt_u32 vcc, s{sLrg}, v{RC+1}")
        e(zw[7]); e(zw[8])
        if not nc: e(f"s_cbranch_vccnz {Lw('fb')}")
        e(f"{Lw('fbret')}:")
        if not VE: e(kvl[4]); e(kvl[5])
        if RP: e(rs[0]); e(rs[2]); e(zw[9])
        else:
            for x in zw[9:12]: e(x)
        e("s_waitcnt lgkmcnt(0)"); DS('owdone'); e("s_barrier"); DS('b4')
        E(f"ds_read_b128 {vr(QF,4)}, v{vL16} offset:{L_O}", 'o0'); E(f"ds_read_b128 {vr(QF+4,4)}, v{vL16} offset:{L_O+1024}", 'o1')
        DS('o_rd')
        if RP: e(rs[1]); e(zw[10]); e(zw[11])
        else:
            for x in zw[12:16]: e(x)
        DS('wo_pre')
        wa = lambda t: add2(M + 4 * t)
        wc = lambda d: cvt(QF + 8 + d, M + 8 * (d >> 1) + (d & 1), M + 8 * (d >> 1) + 4 + (d & 1))
        tg = lambda tp: [f"v_bfi_b32 v{QF+8+2*tp+k}, 1, s{sTag}, v{QF+8+2*tp+k}" for k in range(2)] if RK == 0 else []
        pst = lambda tp: f"buffer_store_dwordx2 {vr(QF+8+2*tp,2)}, v{vP8}, {WS}, s{sPc if tp < 2 else sT+4} offen offset:{(tp&1)*2048} {ST}"
        wo = [f"v_smfmac_f32_16x16x64_bf16 {vr(M+4*(u>>1),4)}, {vr(QF+4*(u&1),4)}, {wreg(('o',u>>1,u&1))}, v{vIDX}" for u in range(16)]
        so = Sched(wo)
        e(WL('o0')); DS('o_w')
        so.fix(0, wt('o1')); so.fix(1, f"s_add_u32 s{sT+4}, s{sPc}, 4096")
        for f, g in ((order[16], 5), (order[17], 7)):
            so.fix(g + (g == 5) * 2 + (g == 7), Op(wtxt(f, 0), (f, 0))); so.fix(g + (g == 5) * 3 + (g == 7) * 2, Op(wtxt(f, 1), (f, 1)))
        for k in range(4): so.fix(k, Op(wtxt(order[14 + k // 2], k & 1), (order[14 + k // 2], k & 1)))
        for f in order[14:18]: so.fix(2 * f[1], wt((f, 1)))
        if RP:
            so.fix(0, zw[12]); so.fix(1, zw[13]); so.fix(2, zw[14]); so.fix(10 if OPT.get('wo1') else 4, zw[15])
        if OPT.get('wo1', 0) == 0:
            so.fix(3, *wa(0)); so.fix(5, *(wa(1) + [wc(0), wc(1)] + tg(0))); so.fix(6, pst(0))
            so.fix(7, wa(2)[0]); so.fix(8, wa(2)[1]); so.fix(9, *wa(3)); so.fix(10, wc(2), wc(3), *tg(1)); so.fix(11, pst(1))
            so.fix(12, wa(4)[0]); so.fix(13, wa(4)[1]); so.fix(14, wa(5)[0])
            tail = [wa(5)[1], wc(4), wc(5)] + tg(2) + [pst(2)] + wa(6) + wa(7) + [wc(6), wc(7)] + tg(3) + [pst(3)]
        else:
            so.fix(3, wa(0)[0]); so.fix(4, wa(0)[1]); so.fix(5, wa(1)[0]); so.fix(6, wa(1)[1]); so.fix(7, wc(0), wc(1), *(tg(0) + wa(2)))
            so.fix(8, pst(0), *(wa(3) + [wc(2), wc(3)] + tg(1))); so.fix(9, pst(1))
            so.fix(11, wa(4)[0]); so.fix(12, wa(4)[1]); so.fix(13, wa(5)[0]); so.fix(14, wa(5)[1])
            tail = [wc(4), wc(5)] + tg(2) + [pst(2)] + wa(6) + wa(7) + [wc(6), wc(7)] + tg(3) + [pst(3)]
        gp2 = OPT.get('gp2', 13)
        assert gp2 > 11
        early = wv == 0 and gp2 < 50
        if early:
            for k in range(8):
                if gp2 + k // 2 < 16: so.fix(gp2 + k // 2, p2l[k])
        so.emit('u%d' if OPT.get('one') else None)
        if early:
            for k in range(8):
                if gp2 + k // 2 >= 16: e(p2l[k])
        FO = OPT.get('fo', 1)
        for x in tail:
            if not (FO and x in (pst(2), pst(3))): e(x)
        DS('wo_end')
        sel = [f"v_mov_b32 v{SELQ+d}, v{vSEL}" for d in range(4)]
        rot = [f"s_mov_b32 s{sT}, s{sMp}", f"s_mov_b32 s{sMp}, s{sMc}", f"s_mov_b32 s{sMc}, s{sMn}", f"s_mov_b32 s{sMn}, s{sT}",
               f"s_add_u32 s{sMH}, s{sMH}, 8192", f"s_mov_b32 s{sMHp}, s{sMH}", f"s_add_u32 s{sStep}, s{sStep}, 1"]
        free = zero_acc[4:] + stage + [f"s_sub_u32 s{sDl}, s{sPn}, s{sPc}", f"s_mov_b32 s{sT+2}, s{sPp}",
                f"s_mov_b32 s{sPp}, s{sPc}", f"s_mov_b32 s{sPc}, s{sPn}", f"s_mov_b32 s{sPn}, s{sPp if RK == 0 else sT+2}",
                f"s_add_u32 s{sPF}, s{sPF}, {SEGS:#x}", f"s_mov_b32 s{sRedo}, 0",
                f"s_add_u32 s{sSK}, s{sSK}, {0 if 'KVfix' in X else SEGS}", f"s_add_u32 s{sSV}, s{sSV}, {0 if 'KVfix' in X else SEGS}"]
        kvn = [f"v_cmp_le_u32 vcc, 32, v{JUNK}", f"s_and_b32 s{sT}, vcc_lo, 0xffff", f"s_ff0_i32_b32 s{sT}, s{sT}", f"s_max_u32 s{sKv}, s{sKv}, s{sT}",
               f"s_add_u32 s{sT}, s{sStep}, {OPT.get('la', 4)}", f"s_lshr_b32 s{sT}, s{sT}, 2", f"s_min_u32 s{sT}, s{sT}, 15", f"s_cmp_lt_u32 s{sT}, s{sKv}",
               f"s_cselect_b32 s{sFl}, s{sOOB}, s{sFlC}", f"s_add_u32 s{sT}, s{sStep}, 2", f"s_lshr_b32 s{sT}, s{sT}, 2", f"s_min_u32 s{sT}, s{sT}, 15", f"s_cmp_lt_u32 s{sT}, s{sKv}", f"s_cbranch_scc0 {Lw('kvwait')}\n{Lw('kvok')}:"]
        dA = OPT.get('dA', [0, 0, 12, 34])[wv]; dB = OPT.get('dB', [30, 36, 36, 36])[wv]; dC = OPT.get('dC', 16)
        gaps = [0 if POST[wv] == 1 else dB] + [dC] * (len(PR0) - 1)
        late = zero_acc[:4] + kvn + [f"v_add_u32 v{vRL}, s{sDl}, v{vRL}", f"s_bfe_i32 s{sTag}, s{sStep}, 0x10001"]
        nA = min(dA, len(free)); partA = free[:nA]; rest = free[nA:]
        want = max(0, sum(gaps) - len(late)); keep = rest[max(0, len(rest) - want):] if want else []
        mid = rest[:len(rest) - len(keep)]
        after = late[:4] + keep + late[4:]
        if RK == 8:
            for x in hrs: e(x)
        if FO and wv >= 2:
            e("s_barrier"); e(pst(2)); e(pst(3))
        for x in partA + pad(dA - nA - (4 if RK == 8 else 0)): e(x)
        DS('p2top')
        if not early:
            for x in p2l: e(x)
        if FO and wv < 2:
            e("s_barrier"); e(pst(2)); e(pst(3))
        if RK == 8 and not FO:
            for x in hst: e(x)
        for x in rot + sel + [f"v_mov_b32 v{M+2}, s{sStep}"] + mid: e(x)
        yo = (2 if wv < 2 else 0) if FO else (2 if early else 0) + (len(hst) if RK == 8 else 0)
        e(f"s_waitcnt vmcnt({4+yo})")
        e(f"{Lw('p2w')}:"); DS('p2w')
        if RK == 0:
            bo = lambda d, x, y, z, t: f"v_bitop3_b32 v{d}, {x}, {y}, {z} bitop3:{t:#x}"
            e(f"{mm} {vr(R,4)}, {vr(SELQ,4)}, {vr(LAND,4)}, 0\n{bo(M, f'v{LAND}', f'v{LAND+1}', f's{sTag}', 0x7e)}\n{bo(M+1, f'v{LAND+2}', f'v{LAND+3}', f's{sTag}', 0x7e)}\ns_waitcnt vmcnt({yo})")
            e(f"{mm} {vr(R,4)}, {vr(SELQ,4)}, {vr(LAND+4,4)}, {vr(R,4)}\n{bo(M+3, f'v{LAND+4}', f'v{LAND+5}', f's{sTag}', 0x7e)}\n{bo(M+4, f'v{LAND+6}', f'v{LAND+7}', f's{sTag}', 0x7e)}")
            e(f"v_or3_b32 v{M}, v{M}, v{M+1}, v{M+3}\n{bo(M, f'v{M}', f'v{M+4}', '1', 0xa8)}\nv_cmp_ne_u32 vcc, 0, v{M}")
            if not nc: e(f"s_cbranch_vccnz {Lw('p2retry')}")
        else:
            e(f"{mm} {vr(R,4)}, {vr(SELQ,4)}, {vr(LAND,4)}, 0\nv_max3_i32 v{M}, v{LAND}, v{LAND+1}, v{LAND+2}\ns_waitcnt vmcnt({yo})")
            e(f"{mm} {vr(R,4)}, {vr(SELQ,4)}, {vr(LAND+4,4)}, {vr(R,4)}\nv_max3_i32 v{M+1}, v{LAND+3}, v{LAND+4}, v{LAND+5}\nv_max3_i32 v{M}, v{M}, v{LAND+6}, v{LAND+7}\nv_max_i32 v{M}, v{M}, v{M+1}")
            e(f"v_cmp_le_i32 vcc, s{sInf}, v{M}")
            if not nc: e(f"s_cbranch_vccnz {Lw('p2slow')}")
        e(f"{Lw('p2ok')}:"); DS('p2ok')
        e(cvt(R, R, R + 1))
        e(f"buffer_store_dword v{R}, v{vMS}, {WS}, s{sMc} offen {ST}")
        DS('mstore')
        e(f"s_cmp_eq_u32 s{sStep}, 63\ns_cbranch_scc1 {Ln('fin')}")
        if FP_:
            fd = OPT.get('fd', 0)
            after.insert(fd, f"buffer_store_dword v{M+2}, off, {WS}, s{sRdW} {ST}")
        for k, r in enumerate(PR0):
            part = after[:gaps[k]] if k < len(PR0) - 1 else after
            after = after[len(part):]
            for x in part + ([] if POST[wv] == 1 else pad(gaps[k] - len(part))): e(x)
            if k == 0: DS('shot1')
            if POST[wv] != 1:
                for x in shot(PRB + 1 if PRE else r): e(x)
        NR = len(hst) if (FO and RK == 8) else 0
        for x in (hst if NR else []): e(x)
        if OPT.get('est') == wv and mode == 0:
            ls = e.l[loop0:]
            for tt, x in zip(estimate(ls), ls): print(tt, x)
        DS('end') if OPT.get('one') else None
        if OPT.get('prof') and wv == 3:
            e(f"{'s_memtime' if OPT['prof'] == 2 else 's_memrealtime'} s[98:99]\ns_lshl_b32 s97, s{h}, 8\ns_lshl_b32 s96, s{sStep}, 2\ns_add_u32 s97, s97, s96\ns_add_u32 s97, s97, {WS_STAMP + 0x10000:#x}\ns_waitcnt lgkmcnt(0)\nv_mov_b32 v{M}, s98\nbuffer_store_dword v{M}, off, {WS}, s97")
        if OPT.get('dst'):
            DS('end')
            e(f"s_cmp_eq_u32 s{sStep}, 40\ns_cbranch_scc0 {Lw('step')}\ns_waitcnt lgkmcnt(0)")
            e(f"s_lshl_b32 s{sT}, s{h}, 2\ns_add_u32 s{sT}, s{sT}, s{w}\ns_lshl_b32 s{sT}, s{sT}, 7\ns_add_u32 s{sT}, s{sT}, {WS_STAMP:#x}")
            e("s_waitcnt vmcnt(0)")
            for k in range(len(dn)): e(f"v_mov_b32 v{M}, s{dregs[k]}\nbuffer_store_dword v{M}, off, {WS}, s{sT} offset:{4*k}")
            e("s_waitcnt vmcnt(0)")
            if mode == 0: open('dst_names.txt', 'w').write(' '.join(dn))
        e(f"s_branch {Lw('step')}")
        cnt = lambda inc: e(f"s_add_u32 s94, s94, {inc:#x}") if OPT.get('tl') and not OPT.get('one') and not OPT.get('lat') else None
        if PRE:
            e(f"{Lw('second')}:"); cnt(1)
            e(f"{late2['p']}\n{pcmp(PRB)}\ns_cbranch_vccnz {Lw('spin1')}\n{late2['d']}\ns_branch {Lw('hit')}")
        if attop:
            e(f"{Lw('spinA')}:")
            for k in range(NS):
                cnt(1)
                for x in shot(PR0[k]): e(x)
                if k < NS - 1: e(f"s_waitcnt vmcnt({3*NS-1+NR0})\n{pcmp(PR0[k+1])}\ns_cbranch_vccz {Lw('spunA')}")
            e(f"s_branch {Lw('spin0')}\n{Lw('spunA')}:\ns_waitcnt vmcnt({3*NS-3+NR0})\ns_branch {Lw('hit')}")
        e(f"{Lw('spin0')}:")
        e(f"s_waitcnt vmcnt({3*NS-1})\n{pcmp(PR0[0])}\ns_cbranch_vccz {Lw('spun')}")
        e(f"{Lw('spin1')}:")
        for k in range(NS):
            cnt(1)
            for x in shot(PR0[k]): e(x)
            if k < NS - 1: e(f"s_waitcnt vmcnt({3*NS-1})\n{pcmp(PR0[k+1])}\ns_cbranch_vccz {Lw('spun')}")
        fail_if_zero(12)
        e(f"s_branch {Lw('spin0')}")
        e(f"{Lw('spun')}:\ns_waitcnt vmcnt({3*NS-3})\ns_branch {Lw('hit')}")
        e(f"{Lw('redo')}:")
        cnt(0x400)
        e(f"s_mov_b32 s{sRedo}, 1\ns_mov_b32 s{sMHp}, {OOB:#x}\ns_sub_u32 s{sSK}, s{sSK}, {SEGS:#x}")
        for x in kv_loads()[:4]: e(x)
        e(f"s_add_u32 s{sSK}, s{sSK}, {SEGS:#x}")
        e(f"{Lw('redo1')}:\ns_waitcnt vmcnt(0) lgkmcnt(0)\ns_barrier")
        fail_if_zero(13)
        for x in shot(PRB)[1:]: e(x)
        e("s_waitcnt vmcnt(0)\ns_barrier")
        for k in range(8): e(f"ds_read_b128 {vr(M+4*k,4)}, v{vL16} offset:{L_M+k*1024}")
        e("s_waitcnt lgkmcnt(0)")
        for i in range(32): e(f"v_cmp_eq_u32 vcc, s{sSENT}, v{M+i}\ns_cbranch_vccnz {Lw('redo1')}")
        for x in stage + zero_acc + [f"v_mov_b32 v{r}, s{sStep}" for r in PR0 + [PRB + 1]]: e(x)
        e(f"s_branch {Lw('step')}")
        e(f"{Lw('p2slow')}:")
        for i in range(8): e(f"v_cmp_eq_u32 vcc, s{sSENT}, v{LAND+i}\ns_cbranch_vccnz {Lw('p2retry')}")
        e(f"s_branch {Lw('p2ok')}")
        e(f"{Lw('p2retry')}:")
        cnt(0x100000)
        fail_if_zero(14)
        for x in p2l: e(x)
        e(f"s_waitcnt vmcnt(0)\ns_branch {Lw('p2w')}")
        kv_refresh(Lw('kvwait'), 15)
        e(f"s_branch {Lw('kvok')}")
        e(f"{Lw('fb')}:")
        F = M
        e(f"s_cmp_eq_u32 s{sRedo}, 0\ns_cbranch_scc0 {Lw('fb1')}\nv_cmp_u_f32 vcc, v{LA}, v{LA}\ns_cbranch_vccnz {Lw('redo')}")
        e(f"{Lw('fb1')}:\ns_waitcnt vmcnt(0)\ns_barrier")
        e(f"ds_write_b64 v{vL16}, {vr(STK,2)} offset:{L_M+(wv>>1)*1024+(wv&1)*8}")
        e("s_waitcnt lgkmcnt(0)\ns_barrier")
        e(f"ds_read_b128 {vr(F,4)}, v{vL16} offset:{L_M}\nds_read_b128 {vr(F+4,4)}, v{vL16} offset:{L_M+1024}\nv_mov_b32 v{F+8}, v{SMM}\nv_mov_b32 v{F+9}, v{SMM+1}\ns_waitcnt lgkmcnt(0)")
        e(f"v_max3_f32 v{F+10}, v{F}, v{F+1}, v{F+2}\nv_max3_f32 v{F+11}, v{F+3}, v{F+4}, v{F+5}\nv_max3_f32 v{F+10}, v{F+10}, v{F+6}, v{F+7}\nv_max3_f32 v{F+11}, v{F+11}, v{F+8}, v{F+9}\nv_max_f32 v{F+10}, v{F+10}, v{F+11}")
        e(f"v_mov_b32 v{F+11}, v{F+10}\nv_permlane32_swap_b32 v{F+10}, v{F+11}\nv_max_f32 v{F+10}, v{F+10}, v{F+11}")
        e(f"v_mov_b32 v{F+11}, v{F+10}\nv_permlane16_swap_b32 v{F+10}, v{F+11}\nv_max_f32 v{F+10}, v{F+10}, v{F+11}")
        for r in range(10): e(f"v_sub_f32 v{F+r}, v{F+r}, v{F+10}")
        for r in range(10): e(f"v_exp_f32 v{F+r}, v{F+r}")
        for dd in range(4): e(cvt(PAL + dd, F + 2 * dd, F + 2 * dd + 1))
        e(cvt(F + 8, F + 8, F + 9))
        for dd in range(4): e(f"v_cndmask_b32 v{PLO+dd}, 0, v{PAL+dd}, {mlo}\nv_cndmask_b32 v{PHI+dd}, v{PAL+dd}, 0, {mlo}")
        e(f"v_cndmask_b32 v{PM}, 0, v{F+8}, {mlo}\nv_cndmask_b32 v{PM+1}, v{F+8}, 0, {mlo}")
        for x in pv_tok + pv_mem: e(x)
        for x in zw[:7]: e(x)
        e(f"v_rcp_f32 v{RC}, v{LA}")
        for x in norm: e(x)
        e(ow)
        e(f"s_branch {Lw('fbret')}")
    e(f"{Ln('fin')}:")
    e(f"buffer_store_dword v{R}, v{vMS}, {WS}, s{sMH} offen sc1")
    if OPT.get('wb', 1): e(f"s_or_b32 s{sT}, s{h}, s{w}\ns_cmp_eq_u32 s{sT}, 0\ns_cbranch_scc0 {Ln('nwb')}\ns_waitcnt vmcnt(0)\nbuffer_wbl2 sc1\n{Ln('nwb')}:")
    TL(5, 0); DTL(6, 14)
    if OPT.get('dtl'): e(f's_memtime s[98:99]\ns_waitcnt lgkmcnt(0)\ns_sub_u32 s98, s98, s92\ns_mov_b64 exec, 1\nv_mov_b32 v14, s98\nv_mov_b32 v15, 0\nglobal_store_dword v15, v14, s[{P_DBG}:{P_DBG+1}] offset:28\ns_mov_b64 exec, -1')
    if OPT.get('tl'): e(f"s_memtime s[98:99]\ns_waitcnt lgkmcnt(0)\ns_sub_u32 s98, s98, s92\nv_mov_b32 v15, s98\nbuffer_store_dword v15, off, {WS}, s97 offset:4\ns_lshl_b32 s96, s{w}, 2\ns_add_u32 s97, s97, s96\nv_mov_b32 v15, s94\nbuffer_store_dword v15, off, {WS}, s97 offset:{28 if OPT.get('tlw') else 12}")
    e("s_waitcnt vmcnt(0)\ns_branch L_end")
```

```python
def emit(G):
    globals().update(G)
    X, W, AUX = "s[40:43]", "s[44:47]", "s[48:51]"
    sRound, sTile, sPass, sType, sRS, sNB, sCnt, sBlk, sBlkN = 52, 53, 54, 55, 56, 57, 58, 59, 60
    s2RS = {1: 61, 2: 62, 3: 63}; sRow = list(range(64, 72)); sB, sT0, sT1, s128, sLo, sHi = 72, 73, 74, 75, 76, 77
    vL16, vA0, vA1, vW, vXo, vG, vC = 1, 2, 3, 4, 5, 6, 7
    RING = [160, 192, 224, 128]
    XN, WF = 16, 80
    acc = lambda t, T: (t * 8 + T) * 4

    e("L_worker:")
    TL(1, 32)
    if OPT.get('tl'): e(f"v_mov_b32 v15, s94\ns_sub_u32 s97, s97, 4\nbuffer_store_dword v15, off, {WS}, s97")
    srd(40, P_X, 2048 * 1024)
    e(f"v_lshlrev_b32 v{vL16}, 4, v0\nv_lshrrev_b32 v{vG}, 4, v0\nv_and_b32 v{vC}, 15, v0")
    e(f"v_lshlrev_b32 v{vXo}, 10, v{vC}\nv_lshl_add_u32 v{vXo}, v{vG}, 6, v{vXo}")
    e(f"v_lshrrev_b32 v8, 2, v{vC}\nv_and_b32 v9, 1, v{vC}\nv_lshl_add_u32 v8, v8, 1, v9\nv_lshlrev_b32 v8, 4, v8\nv_lshl_add_u32 v8, v{vG}, 7, v8\nv_bfe_u32 v9, v{vC}, 1, 1\nv_lshl_add_u32 v0, v9, 9, v8\nv_and_b32 v9, 1, v{vG}\nv_lshlrev_b32 v9, 6, v9\nv_xor_b32 v0, v0, v9")
    e(f"s_mov_b32 s{sLo}, 0x05040100\ns_mov_b32 s{sHi}, 0x07060302")
    e(f"s_mov_b32 s{sRound}, 0")
    if OPT.get('rounds') == 0: e("s_waitcnt vmcnt(0)\ns_branch L_end")
    sPg, sU, sPi, sHalf, sSkip = 87, 88, 89, 90, 91
    e(f"s_mul_i32 s{sPg}, s{S_IDX}, 1171\ns_lshr_b32 s{sPg}, s{sPg}, 16\ns_mul_i32 s79, s{sPg}, 56\ns_sub_u32 s79, s{S_IDX}, s79\ns_lshr_b32 s{sU}, s79, 2\ns_and_b32 s{sPi}, s79, 3")
    e(f"s_lshl_b32 s{sPass}, s{sPg}, 2\ns_add_u32 s{sPass}, s{sPass}, s{sPi}\ns_mov_b32 s{sSkip}, 0")
    e(f"s_sub_u32 s{sTile}, s{sU}, 2\ns_mov_b32 s{sHalf}, 0\ns_cmp_lt_u32 s{sU}, 4\ns_cbranch_scc0 L_dec2")
    e(f"s_lshr_b32 s{sTile}, s{sU}, 1\ns_and_b32 s{sHalf}, s{sU}, 1\ns_add_u32 s{sHalf}, s{sHalf}, 1\ns_branch L_dec2")
    e("L_task:")
    if OPT.get('rb'): e("s_waitcnt vmcnt(0)")
    e(f"s_mov_b32 s{sHalf}, 0\ns_cmp_eq_u32 s{sRound}, 1\ns_cbranch_scc0 L_dec1")
    e(f"s_cmp_lt_u32 s{sU}, 4\ns_cbranch_scc0 L_dec1\ns_add_u32 s{sTile}, s{sU}, 12\ns_branch L_dec2")
    e("L_dec1:")
    e(f"s_mov_b32 s{sRound}, 2\ns_mov_b32 s{sSkip}, 1\ns_mov_b32 s79, s{sPi}\ns_cmp_lt_u32 s{sPi}, 3\ns_cbranch_scc1 L_dec1b")
    e(f"s_sub_u32 s79, s{sU}, 4\ns_cmp_lt_u32 s79, 6\ns_cbranch_scc0 L_g1_end")
    e(f"s_mov_b32 s{sSkip}, 0\ns_cmp_ge_u32 s79, 3\ns_cselect_b32 s{sTile}, 1, 0\ns_cselect_b32 s80, 3, 0\ns_sub_u32 s79, s79, s80")
    e("L_dec1b:")
    e(f"s_lshl_b32 s80, s{sPg}, 1\ns_add_u32 s80, s80, s79\ns_add_u32 s{sPass}, s80, 15\ns_add_u32 s80, s{sPg}, 24\ns_cmp_eq_u32 s79, 0\ns_cselect_b32 s{sPass}, s80, s{sPass}")
    e("L_dec2:")
    e(f"s_and_b32 s78, s{sPass}, 7\ns_lshl_b32 s78, s78, 2\ns_add_u32 s78, s78, s{S_WAVE}\ns_lshl_b32 s79, s78, 8")
    e(f"s_mov_b32 s{sRS}, 8192\ns_mov_b32 s46, 0x400000\ns_mov_b32 s47, 0x20000\ns_mov_b32 s{sNB}, 4")
    e(f"s_mov_b32 s{sType}, 0\ns_mov_b32 s44, s{P_WK}\ns_mov_b32 s45, s{P_WK+1}\ns_cmp_lt_u32 s{sPass}, 8\ns_cbranch_scc1 L_dec3")
    e(f"s_mov_b32 s{sType}, 1\ns_mov_b32 s44, s{P_WV}\ns_mov_b32 s45, s{P_WV+1}\ns_cmp_lt_u32 s{sPass}, 16\ns_cbranch_scc1 L_dec3")
    e(f"s_mov_b32 s{sType}, 4\ns_mov_b32 s44, s{P_WQ}\ns_mov_b32 s45, s{P_WQ+1}\ns_cmp_lt_u32 s{sPass}, 24\ns_cbranch_scc1 L_dec3")
    e(f"s_mov_b32 s{sType}, 2\ns_mov_b32 s44, s{P_W1}\ns_mov_b32 s45, s{P_W1+1}\ns_mov_b32 s{sRS}, 3584\ns_mov_b32 s46, {512*3584}")
    e("L_dec3:")
    def wcalc(pi=False):
        if pi: e(f"v_and_b32 v8, 3, v{vC}\nv_lshrrev_b32 v9, 2, v{vC}\nv_lshl_add_u32 v8, v8, 2, v9\nv_lshlrev_b32 v8, 4, v8")
        else: e(f"v_lshlrev_b32 v8, 4, v{vC}")
        e(f"s_lshl_b32 s80, s{sRS}, 5\nv_mul_lo_u32 v9, s80, v{vG}\nv_add3_u32 v{vW}, v8, v9, s79")
        for i in range(8): e(f"s_mul_i32 s{sRow[i]}, s{sRS}, {8*(i>>1)+(i&1)}")
        for k in (1, 2, 3): e(f"s_mul_i32 s{s2RS[k]}, s{sRS}, {2*k}")
        e(f"s_lshl_b32 s{s128}, s{sRS}, 7")
    def wissue():
        for n in range(3):
            for i in range(8):
                if n: e(f"s_add_u32 s{sT0}, s{s2RS[n]}, s{sRow[i]}")
                so = f"s{sT0}" if n else f"s{sRow[i]}"
                e(f"buffer_load_dwordx4 {vr(RING[n]+4*i,4)}, v{vW}, {W}, {so} offen")
    def wsetup(pi=False): wcalc(pi); wissue()
    e(f"s_cmp_eq_u32 s{sSkip}, 1\ns_cbranch_scc0 L_ln")
    wsetup()
    e("s_branch L_gemm")
    e("L_ln:")
    e(f"s_cmp_eq_u32 s{sHalf}, 0\ns_cselect_b32 s82, 15, 14\ns_lshl_b32 s82, s{S_WAVE}, s82\ns_lshr_b32 s81, s{sHalf}, 1\ns_lshl_b32 s81, s81, 16")
    e(f"s_lshl_b32 s80, s{sTile}, 17\ns_add_u32 s80, s80, s81\ns_add_u32 s80, s80, s82\nv_add_u32 v{vA0}, s82, v{vL16}")
    for r in range(16): e(f"v_xor_b32 v{16+r}, {r*16}, v{vL16}")
    e("s_barrier")
    for u in range(2):
        if u: e(f"s_cmp_eq_u32 s{sHalf}, 0\ns_cbranch_scc0 L_ln_x")
        for r in range(16):
            if (r & 3) == 0: e(f"s_add_u32 m0, s82, {u*16384+r*1024}\ns_add_u32 s81, s80, {u*16384+r*1024}")
            e(f"buffer_load_dwordx4 v{16+r}, {X}, s81 offen offset:{(r&3)*1024} lds")
    e('L_ln_x:')
    wcalc()
    e("v_mov_b32 v8, 0x3f803f80")
    for i in range(4): e(f"v_accvgpr_write_b32 a{i}, v8")
    e(f"v_lshlrev_b32 v12, 10, v{vC}\nv_add_u32 v12, s82, v12\nv_lshlrev_b32 v13, 2, v{vG}\nv_xor_b32 v13, v13, v{vC}")
    AX = 156
    for r in range(4): e(f"v_xor_b32 v14, {r}, v13\nv_lshl_add_u32 v{AX+r}, v14, 4, v12")
    for u in range(2):
        RB = 16 + 64 * u
        if u: e(f"s_cmp_eq_u32 s{sHalf}, 0\ns_cbranch_scc0 L_ln_end")
        if u == 0: e(f"s_waitcnt vmcnt(16)\ns_cmp_eq_u32 s{sHalf}, 0\ns_cbranch_scc1 L_ln_w\ns_waitcnt vmcnt(0)\nL_ln_w:")
        else: e("s_waitcnt vmcnt(24)")
        for q in range(16): e(f"ds_read_b128 {vr(RB+4*q,4)}, v{AX+(q&3)} offset:{u*16384+(q>>2)*256}")
        if OPT.get('tl2') and u == 0:
            e(f"s_cmp_eq_u32 s{sRound}, 0\ns_cbranch_scc0 L_tla"); TLV[0] = 15; TL(8, 32); e("s_waitcnt vmcnt(0)\nL_tla:")
        for q in range(16):
            e(f"s_waitcnt lgkmcnt({15-q})\nv_mfma_f32_16x16x32_bf16 v[8:11], a[0:3], {vr(RB+4*q,4)}, {'0' if q == 0 else 'v[8:11]'}")
            for d in range(4):
                r = RB + 4 * q + d
                e(f"v_dot2_f32_bf16 v{12+d}, v{r}, v{r}, {'0' if q == 0 else 'v%d' % (12+d)}")
        if u == 0: wissue()
        e("v_add_f32 v12, v12, v13\nv_add_f32 v14, v14, v15\nv_add_f32 v12, v12, v14")
        e("v_mov_b32 v13, v12\nv_permlane32_swap_b32 v12, v13\nv_add_f32 v12, v12, v13")
        e("v_mov_b32 v13, v12\nv_permlane16_swap_b32 v12, v13\nv_add_f32 v12, v12, v13")
        e(f"v_mul_f32 v8, {fbits(1/512):#x}, v8\nv_mul_f32 v12, {fbits(1/512):#x}, v12")
        e(f"v_fma_f32 v12, -v8, v8, v12\nv_max_f32 v12, 0, v12\nv_add_f32 v12, {fbits(1e-5):#x}, v12\nv_rsq_f32 v144, v12")
        e("v_mul_f32 v146, -v8, v144".replace("v_mul_f32 v146, -v8, v144", "v_mul_f32_e64 v146, -v8, v144"))
        if OPT.get('tl2') and u == 0:
            e(f"s_cmp_eq_u32 s{sRound}, 0\ns_cbranch_scc0 L_tlb"); TL(9, 32); e("L_tlb:")
        k = 0
        for wp in range(4):
            for tp in range(4):
                oq = 152 if (wp * 4 + tp) & 1 else 12
                for r in range(4):
                    src = RB + (wp * 4 + r) * 4 + tp
                    t = 148 + 2 * (k & 1); k += 1
                    e(f"v_lshlrev_b32 v{t}, 16, v{src}\nv_and_b32 v{t+1}, 0xffff0000, v{src}")
                    e(f"v_pk_fma_f32 v[{t}:{t+1}], v[{t}:{t+1}], v[144:145], v[146:147] op_sel_hi:[1,0,0]")
                    e(f"v_cvt_pk_bf16_f32 v{oq+r}, v{t}, v{t+1}")
                e(f"ds_write_b128 v{vA0}, {vr(oq,4)} offset:{u*16384+(wp*4+tp)*1024}")
    e("L_ln_end:")
    e("L_gemm:")
    if OPT.get('tl'):
        e(f"s_cmp_eq_u32 s{sRound}, 0\ns_cbranch_scc0 L_tl1"); TL(2, 32); e("L_tl1:")
    for i in range(256): e(f"v_accvgpr_write_b32 a{i}, 0")
    e(f"v_mov_b32 v{vA0}, v{vL16}\nv_add_u32 v{vA1}, 0x10000, v{vL16}\nv_lshrrev_b32 v15, 2, v{vL16}\nv_mov_b32 v14, 0\ns_or_b32 s92, s{S_WAVE}, s{S_OK}\ns_cmp_eq_u32 s92, 0\ns_cselect_b32 s92, s{sNB}, 0")
    e(f"s_mov_b32 s{sBlk}, 0\ns_mov_b32 s{sCnt}, 1")
    e("s_waitcnt lgkmcnt(0)\ns_barrier")
    report(42, 8)
    e(f"s_cmp_eq_u32 s{sPass}, 27\ns_cselect_b32 s80, s{S_WAVE}, 0\ns_cmp_eq_u32 s{sType}, 2\ns_cselect_b32 s80, s80, 0\ns_cmp_ge_u32 s80, 2\ns_cbranch_scc1 L_epi")
    def xnread(T, jloc, base=16):
        return f"ds_read_b128 {vr(base+4*T,4)}, v{vA0 if T < 4 else vA1} offset:{(T&3)*16384+jloc*1024}"
    def perm(ring, t, rp, msk=1):
        return f"v_perm_b32 v{WF+4*(t&msk)+rp}, v{ring+4*(2*rp+1)+(t>>1)}, v{ring+4*(2*rp)+(t>>1)}, s{sHi if t&1 else sLo}"
    if OPT.get('tl2'):
        e(f"s_cmp_eq_u32 s{sRound}, 0\ns_cbranch_scc0 L_tlc"); TL(10, 32); e("s_waitcnt vmcnt(0)\nL_tlc:")
    if OPT.get('clk'): e("s_memtime s[84:85]\ns_memrealtime s[94:95]\ns_waitcnt lgkmcnt(0)")
    for T in range(8): e(xnread(T, 0))
    e("s_waitcnt vmcnt(16)")
    for rp in range(4): e(perm(RING[0], 0, rp)); e(perm(RING[0], 1, rp))
    e("s_waitcnt lgkmcnt(0)")
    e(f"s_cmp_eq_u32 s{sHalf}, 0\ns_cbranch_scc0 L_halfsel\ns_cmp_eq_u32 s{sType}, 1\ns_cbranch_scc1 L_loopB8\ns_branch L_loopA8")
    e(f"L_halfsel:\ns_cmp_eq_u32 s{sType}, 1\ns_cbranch_scc1 L_loopB4")
    for ori, NT in (("A", 4), ("B", 4), ("A", 8), ("B", 8)):
        e(f"L_loop{ori}{NT}:")
        if OPT.get('tl3') is not None:
            e(f"s_cmp_eq_u32 s{sRound}, {OPT['tl3']}\ns_cbranch_scc0 L_tle{ori}{NT}\ns_memrealtime s[98:99]\ns_lshl_b32 s97, s{S_IDX}, 6\ns_lshl_b32 s96, s{sCnt}, 2\ns_add_u32 s97, s97, s96\ns_add_u32 s97, s97, {WS_STAMP + 0x8000 + 32*64 + 28:#x}\ns_waitcnt lgkmcnt(0)\nv_mov_b32 v15, s98\nbuffer_store_dword v15, off, {WS}, s97\nL_tle{ori}{NT}:")
        e(f"s_add_u32 s{sBlkN}, s{sBlk}, s{s128}\ns_cmp_lt_u32 s{sCnt}, s{sNB}\ns_cselect_b32 s{sBlkN}, s{sBlkN}, {OOB:#x}")
        for tp in range(4):
            ring = RING[tp]; nring = RING[(tp + 1) & 3]; lring = RING[(tp + 3) & 3]
            tpp = (tp + 3) & 3
            base = sBlk if tp == 0 else sBlkN
            xc, xn_ = XN + (32 if tp & 1 else 0), XN + (0 if tp & 1 else 32)
            if tpp: e(f"s_add_u32 s{sB}, s{base}, s{s2RS[tpp]}")
            else: e(f"s_mov_b32 s{sB}, s{base}")
            for t in range(8):
                for T in range(NT):
                    a = ar(acc(t, T), 4); w = vr(WF + 4 * (t & (1 if NT == 8 else 3)), 4); x = vr(xc + 4 * T, 4)
                    e(f"v_mfma_f32_16x16x32_bf16 {a}, {w if ori == 'A' else x}, {x if ori == 'A' else w}, {a}")
                    li = None
                    if NT == 8 and 1 <= t <= 4 and T in (0, 6): li = (t - 1) * 2 + (T == 6)
                    if NT == 4 and t < 4 and T in (0, 2): li = 2 * t + (T == 2)
                    if li is not None:
                        e(f"s_add_u32 s{sT0}, s{sB}, s{sRow[li]}")
                        e(f"buffer_load_dwordx4 {vr(lring+4*li,4)}, v{vW}, {W}, s{sT0} offen")
                    if tp == 1 and t == 5 and T == 0:
                        e(f"s_cmp_eq_u32 s{sCnt}, s92\ns_cbranch_scc0 L_nc{ori}{NT}\nglobal_load_dword v14, v15, s[{P_DBG}:{P_DBG+1}] sc1\nL_nc{ori}{NT}:")
                    if t == (7 if NT == 8 else 6) and T == 0: e("s_waitcnt vmcnt(16)")
                    if NT == 8 and T == 7 and t < 7: e(xnread(t, tp + 1, xn_))
                    if NT == 8 and T == 1 and t == 6: e(xnread(7, tp + 1, xn_))
                    if NT == 4 and T == 1 and t < 4: e(xnread(t, tp + 1, xn_))
                    if t == 7 and T == NT - 1: e("s_waitcnt lgkmcnt(0)")
                    if NT == 8 and 2 <= T < 6: e(perm(ring, t + 1, T - 2) if t < 7 else perm(nring, 0, T - 2))
                    if NT == 4: e(perm(ring, t + 2, T, 3) if t < 6 else perm(nring, t - 6, T, 3))
        e(f"v_add_u32 v{vA0}, 0x1000, v{vA0}\nv_add_u32 v{vA1}, 0x1000, v{vA1}")
        e(f"s_mov_b32 s{sBlk}, s{sBlkN}\ns_add_u32 s{sCnt}, s{sCnt}, 1\ns_cmp_le_u32 s{sCnt}, s{sNB}\ns_cbranch_scc1 L_loop{ori}{NT}")
        if (ori, NT) != ("B", 8): e("s_branch L_epi")
    e("L_epi:")
    if OPT.get('tl'):
        e(f"s_cmp_eq_u32 s{sRound}, 0\ns_cbranch_scc0 L_tl2"); TL(3, 32); e("L_tl2:")
    e("s_waitcnt vmcnt(0) lgkmcnt(0)\ns_nop 7")
    e(f"s_cmp_eq_u32 s{S_OK}, 1\ns_cbranch_scc1 L_cf42_ok\nv_add_u32 v15, 0x20000, v15\ns_cmp_eq_u32 s{S_WAVE}, 0\ns_cbranch_scc0 L_cfb\nds_write_b32 v15, v14\ns_waitcnt lgkmcnt(0)\nL_cfb:\ns_barrier\nds_read_b32 v14, v15\ns_waitcnt lgkmcnt(0)")
    confirm_check(42, 14, 10)
    if OPT.get('clk'):
        e(f"s_cmp_eq_u32 s{sRound}, 0\ns_cbranch_scc0 L_clk\ns_memtime s[96:97]\ns_memrealtime s[98:99]\ns_waitcnt lgkmcnt(0)\ns_sub_u32 s96, s96, s84\ns_sub_u32 s98, s98, s94")
        e(f"s_lshl_b32 s97, s{S_IDX}, 6\ns_add_u32 s97, s97, {WS_STAMP + 0x8000 + 32*64 + 32:#x}\nv_mov_b32 v15, s96\nbuffer_store_dword v15, off, {WS}, s97\nv_mov_b32 v15, s98\nbuffer_store_dword v15, off, {WS}, s97 offset:4\nv_mov_b32 v15, s{sHalf}\nbuffer_store_dword v15, off, {WS}, s97 offset:8\nL_clk:")
    cnt = [0]
    def thr(first_half=False):
        if OPT.get('thr') is not None and not (first_half and OPT.get('thrh')): e(f"s_waitcnt vmcnt({OPT['thr']})")
    def pack(pairs, scale=None):
        k = cnt[0]; cnt[0] += 1
        tb = 64 + 8 * (k & 1); q = 80 + 4 * (k & 3)
        for r, (a, b) in enumerate(pairs):
            e(f"v_accvgpr_read_b32 v{tb+2*r}, a{a}\nv_accvgpr_read_b32 v{tb+2*r+1}, a{b}")
        for r in range(4):
            if scale: e(f"v_pk_mul_f32 v[{tb+2*r}:{tb+2*r+1}], v[{tb+2*r}:{tb+2*r+1}], {scale}")
        for r in range(4): e(f"v_cvt_pk_bf16_f32 v{q+r}, v{tb+2*r}, v{tb+2*r+1}")
        return q
    e(f"s_lshl_b32 s82, s{sTile}, {RS_+2}\ns_mul_i32 s83, s78, {RHS:#x}\ns_add_u32 s82, s82, s83\ns_lshr_b32 s83, s{sHalf}, 1\ns_lshl_b32 s83, s83, {RS_+1}\ns_add_u32 s82, s82, s83")
    e(f"s_cmp_eq_u32 s{sType}, 1\ns_cbranch_scc1 L_epiV\ns_cmp_eq_u32 s{sType}, 2\ns_cbranch_scc1 L_epiF1")
    e(f"s_cmp_eq_u32 s{sType}, 3\ns_cbranch_scc1 L_epiF2\ns_cmp_eq_u32 s{sType}, 4\ns_cbranch_scc1 L_epiQ")
    for nm, base, fl in (("K", WS_K, F_KV), ("Q", WS_Q, F_REST)):
        e(f"L_epi{nm}:")
        if nm == "Q": e(f"s_mov_b32 s84, {CSCALE:#x}\ns_mov_b32 s85, {CSCALE:#x}\ns_lshr_b32 s82, s82, 1")
        for T in range(8):
            if T == 4 and nm == "K": e(f"s_cmp_eq_u32 s{sHalf}, 0\ns_cbranch_scc0 L_kvdone")
            e(f"s_add_u32 s83, s82, {base + (T>>1)*(SEGS if nm == 'K' else SEGS//2) + (T&1)*4096:#x}")
            for j in range(4):
                q = pack([(acc(2*j, T)+r, acc(2*j+1, T)+r) for r in range(4)], "s[84:85]" if nm == "Q" else None)
                e(f"buffer_store_dwordx4 {vr(q,4)}, v{vL16 if nm == 'Q' else 0}, {WS}, s83 offen offset:{j*1024} sc1"); thr(T < 4 and nm == "K")
        e(f"s_mov_b32 s83, {WS_FLAG+fl:#x}\ns_branch L_done")
    e("L_epiV:")
    for sg in range(4):
        if sg == 2: e(f"s_cmp_eq_u32 s{sHalf}, 0\ns_cbranch_scc0 L_kvdone")
        for t in range(8):
            if (t & 3) == 0: e(f"s_add_u32 s83, s82, {WS_V + sg*SEGS + (t>>2)*4096:#x}")
            a0, a1 = acc(t, 2*sg), acc(t, 2*sg+1)
            q = pack([(a0, a0+1), (a0+2, a0+3), (a1, a1+1), (a1+2, a1+3)])
            e(f"buffer_store_dwordx4 {vr(q,4)}, v{vL16}, {WS}, s83 offen offset:{(t&3)*1024} sc1"); thr(sg < 2)
    e(f"L_kvdone:\ns_mov_b32 s83, {WS_FLAG+F_KV:#x}\ns_branch L_done")
    e("L_epiF2:")
    e(f"s_sub_u32 s83, s{sPass}, 24\ns_lshl_b32 s83, s83, 21\ns_lshl_b32 s84, s{sTile}, 17\ns_add_u32 s83, s83, s84\ns_lshl_b32 s84, s{S_WAVE}, 12\ns_add_u32 s82, s83, s84")
    for T in range(8):
        e(f"s_add_u32 s83, s82, {WS_FP + T*16384:#x}")
        for r in range(4):
            q = pack([(acc(2*tp, T)+r, acc(2*tp+1, T)+r) for tp in range(4)])
            e(f"buffer_store_dwordx4 {vr(q,4)}, v{vL16}, {WS}, s83 offen offset:{r*1024} sc1"); thr()
    e(f"s_mov_b32 s83, {WS_FLAG+F_REST:#x}\ns_branch L_done")
    e("L_epiF1:")
    srd(48, P_B1, 3584)
    e(f"v_lshlrev_b32 v8, 6, v{vG}")
    for r in range(4): e(f"buffer_load_dwordx4 {vr(16+4*r,4)}, v8, {AUX}, s79 offen offset:{r*16}")
    e(f"s_sub_u32 s83, s{sPass}, 24\ns_lshl_b32 s83, s83, 19\ns_lshl_b32 s79, s{S_WAVE}, 8\ns_add_u32 s79, s79, s83")
    e(f"s_mov_b32 s{sType}, 3\ns_mov_b32 s44, s{P_W2}\ns_mov_b32 s45, s{P_W2+1}\ns_mov_b32 s46, {1792*1024}\ns_mov_b32 s47, 0x20000\ns_mov_b32 s{sRS}, 1024")
    e(f"s_cmp_eq_u32 s{sPass}, 27\ns_cselect_b32 s{sNB}, 2, 4")
    wsetup()
    e("s_waitcnt vmcnt(24)")
    for r in range(4):
        for d in range(4):
            e(f"v_lshlrev_b32 v{32+r*8+2*d}, 16, v{16+4*r+d}\nv_and_b32 v{33+r*8+2*d}, 0xffff0000, v{16+4*r+d}")
    e(f"s_lshl_b32 s80, s{S_WAVE}, 12\nv_add_u32 v{vA0}, s80, v{vL16}\nv_add_u32 v{vA1}, 0x10000, v{vA0}")
    e("s_barrier")
    k = 0
    for T in range(8):
        for tp in range(4):
            tb = 64 + 16 * (k & 1); q = 96 + 4 * (k & 1); k += 1
            for r in range(4):
                e(f"v_accvgpr_read_b32 v{tb+2*r}, a{acc(2*tp,T)+r}\nv_accvgpr_read_b32 v{tb+2*r+1}, a{acc(2*tp+1,T)+r}")
            for r in range(4):
                b = 32 + r * 8 + 2 * tp
                e(f"v_pk_add_f32 v[{tb+2*r}:{tb+2*r+1}], v[{tb+2*r}:{tb+2*r+1}], v[{b}:{b+1}]")
            for r in range(8): e(f"v_max_f32 v{tb+r}, 0, v{tb+r}")
            for r in range(4): e(f"v_pk_mul_f32 v[{tb+2*r}:{tb+2*r+1}], v[{tb+2*r}:{tb+2*r+1}], v[{tb+2*r}:{tb+2*r+1}]")
            for r in range(4): e(f"v_cvt_pk_bf16_f32 v{q+r}, v{tb+2*r}, v{tb+2*r+1}")
            e(f"ds_write_b128 v{vA0 if T < 4 else vA1}, {vr(q,4)} offset:{(T&3)*16384+tp*1024}")
    e("s_branch L_gemm")
    e("L_done:")
    e(f"s_lshl_b32 s84, s{sTile}, 6\ns_add_u32 s83, s83, s84")
    if OPT.get('tl2'):
        e(f"s_cmp_eq_u32 s{sRound}, 0\ns_cbranch_scc0 L_tld"); TL(11, 32); e("L_tld:")
    e("s_waitcnt vmcnt(0)\ns_barrier")
    if OPT.get('rb'):
        e(f"s_cmp_gt_u32 s{sType}, 1\ns_cbranch_scc1 L_rb_end\ns_lshl_b32 s85, s{sType}, 13\ns_add_u32 s85, s85, s82\ns_add_u32 s85, s85, {WS_K:#x}")
        for sg in range(4):
            for k in range(8):
                if k == 4: e("s_add_u32 s85, s85, 4096")
                e(f"buffer_load_dwordx4 {vr(64+4*k,4)}, v{vL16}, {WS}, s85 offen offset:{(k&3)*1024} sc1")
            e(f"s_add_u32 s85, s85, {SEGS-4096}")
        e("L_rb_end:")
    e(f"s_cmp_eq_u32 s{S_WAVE}, 0\ns_cbranch_scc0 L_done2")
    e(f"s_cmp_eq_u32 s{sHalf}, 0\ns_cselect_b32 s84, 2, 1\ns_mov_b64 exec, 1\nv_mov_b32 v8, s84\nbuffer_atomic_add v8, off, {WS}, s83\ns_mov_b64 exec, -1")
    e("L_done2:")
    if OPT.get('tl'):
        e(f"s_cmp_eq_u32 s{sRound}, 0\ns_cbranch_scc0 L_tl3"); TL(4, 32); e("L_tl3:")
    e(f"s_add_u32 s{sRound}, s{sRound}, 1\ns_cmp_lt_u32 s{sRound}, {OPT.get('rounds', 3)}\ns_cbranch_scc1 L_task\nL_g1_end:")
    if OPT['skip_g3']:
        e("s_waitcnt vmcnt(0)\ns_branch L_end")
        return
    sH, sSeg, sSH, sTq, sEh = 52, 53, 54, 55, 56
    TL(5, 32); DTL(10, 14)
    OUT, B2 = "s[44:47]", "s[48:51]"
    WO = 128
    e(f"s_and_b32 s{sH}, s{S_IDX}, 31\ns_lshr_b32 s{sSeg}, s{S_IDX}, 5\ns_and_b32 s{sTq}, s{S_WAVE}, 1\ns_lshr_b32 s{sEh}, s{S_WAVE}, 1")
    e(f"v_lshlrev_b32 v8, 4, v{vC}\nv_lshrrev_b32 v9, 1, v{vG}\nv_lshl_add_u32 v8, v9, 19, v8\nv_and_b32 v9, 1, v{vG}\nv_lshl_add_u32 v8, v9, 17, v8")
    e(f"s_lshl_b32 s78, s{S_WAVE}, 14\ns_lshl_b32 s79, s{sH}, 8\ns_add_u32 s78, s78, s79\nv_add_u32 v8, s78, v8")
    e(f"s_lshl_b32 s78, s{S_WAVE}, 12\nv_add_u32 v9, s78, v{vL16}\nv_add_u32 v10, 0x10000, v9\ns_lshl_b32 s78, s{S_WAVE}, 15\nv_add_u32 v11, s78, v{vL16}")
    for mi, ptr in enumerate((P_WK, P_WV)):
        srd(44, ptr, 0x400000)
        for par in range(2):
            for j2 in range(8):
                for hb in range(2):
                    row = 256 * par + 128 * (j2 >> 2) + 32 * (j2 & 1) + 8 * ((j2 & 3) >> 1) + hb
                    e(f"s_mov_b32 s78, {row*8192:#x}\nbuffer_load_dwordx4 {vr(24+64*par+(j2*2+hb)*4,4)}, v8, s[44:47], s78 offen")
        e("s_waitcnt lgkmcnt(0)\ns_barrier")
        k = 0
        for par in range(2):
            e(f"s_waitcnt vmcnt({16*(1-par)})")
            raw = 24 + 64 * par
            for t in range(8):
                for hf in range(2):
                    q = 160 + 4 * (k % 3); k += 1
                    for jl in range(4):
                        j2 = hf * 4 + jl
                        e(f"v_perm_b32 v{q+jl}, v{raw+(j2*2+1)*4+(t>>1)}, v{raw+(j2*2)*4+(t>>1)}, s{sHi if t&1 else sLo}")
                    e(f"ds_write_b128 v{9 if t < 4 else 10}, {vr(q,4)} offset:{(t&3)*16384+par*2048+hf*1024}")
        e("s_waitcnt lgkmcnt(0)\ns_barrier")
        for f in range(32): e(f"ds_read_b128 {ar(128*mi+4*f,4)}, v11 offset:{f*1024}")
    srd(44, P_WO, 0x400000)
    e(f"v_lshlrev_b32 v8, 4, v{vC}\nv_lshl_add_u32 v8, v{vG}, 15, v8")
    e(f"s_lshl_b32 s78, s{sH}, 17\ns_lshl_b32 s79, s{S_WAVE}, 8\ns_add_u32 s78, s78, s79")
    for half in range(2):
        for jj in range(2):
            for i in range(8):
                row = 8 * (i >> 1) + (i & 1) + 2 * (2 * half + jj)
                e(f"s_add_u32 s79, s78, {row*1024}\nbuffer_load_dwordx4 {vr(24+32*jj+4*i,4)}, v8, s[44:47], s79 offen")
        for jj in range(2):
            e(f"s_waitcnt vmcnt({8*(1-jj)})")
            for t in range(8):
                for rp in range(4):
                    rb = 24 + 32 * jj
                    e(f"v_perm_b32 v{WO+((2*half+jj)*8+t)*4+rp}, v{rb+4*(2*rp+1)+(t>>1)}, v{rb+4*(2*rp)+(t>>1)}, s{sHi if t&1 else sLo}")
    srd(44, P_OUT, 2048 * 1024)
    srd(48, P_B2, 1024)
    sRo, sCo = 57, 58
    e(f"s_lshr_b32 s78, s{sH}, 2\ns_lshl_b32 s78, s78, 2\ns_add_u32 s78, s78, s{S_WAVE}\ns_lshl_b32 s78, s78, 10\ns_and_b32 s79, s{sH}, 3\ns_lshl_b32 s{sRo}, s79, 8\ns_add_u32 s{sRo}, s{sRo}, s78")
    e(f"s_lshr_b32 s78, s{sH}, 3\ns_lshl_b32 s{sCo}, s78, 8\ns_lshl_b32 s79, s79, 6\ns_add_u32 s{sCo}, s{sCo}, s79\ns_lshl_b32 s79, s{S_WAVE}, 4\ns_add_u32 s{sCo}, s{sCo}, s79")
    e(f"v_lshlrev_b32 v11, 4, v{vC}\nv_lshl_add_u32 v9, v{vG}, 15, v11\nv_lshl_add_u32 v10, v{vG}, 21, v11\nv_lshlrev_b32 v11, 10, v{vC}\nv_lshl_add_u32 v12, v{vG}, 3, v11")
    e(f"v_mov_b32 v13, {OOB:#x}\nv_cmp_eq_u32 vcc, 0, v{vG}\nv_cndmask_b32 v11, v13, v11, vcc\nv_cndmask_b32 v8, v13, 0, vcc\nv_cmp_gt_u32 vcc, 2, v{vG}\nv_cndmask_b32 v12, v13, v12, vcc")
    e(f"s_lshl_b32 s78, s{sTq}, 4\nv_lshlrev_b32 v13, 2, v{vG}\nv_sub_u32 v13, v{vC}, v13\nv_add_u32 v13, s78, v13")
    for d in range(4):
        e(f"v_mov_b32 v{16+d}, 0\nv_mov_b32 v14, 0x3f80\nv_cmp_eq_u32 vcc, {2*d}, v{vC}\nv_cndmask_b32 v{16+d}, v{16+d}, v14, vcc")
        e(f"v_mov_b32 v14, 0x3f800000\nv_cmp_eq_u32 vcc, {2*d+1}, v{vC}\nv_cndmask_b32 v{16+d}, v{16+d}, v14, vcc\nv_mov_b32 v{20+d}, 0x3f803f80")
    e(f"v_lshrrev_b32 v14, 2, v{vC}\nv_lshlrev_b32 v14, 7, v14\nv_lshl_add_u32 v14, v{vG}, 5, v14\nv_and_b32 v15, 3, v{vC}\nv_lshl_add_u32 v14, v15, 2, v14\nv_bfe_u32 v15, v{vC}, 2, 1\nv_lshlrev_b32 v15, 6, v15\nv_xor_b32 v14, v14, v15")
    e(f"v_and_b32 v15, 2, v{vC}\nv_mov_b32 v{vG}, 0x4444\nv_mov_b32 v{vC}, 0xeeee\nv_cmp_eq_u32 vcc, 0, v15\nv_cndmask_b32 v{vG}, v{vC}, v{vG}, vcc")
    e(f"s_lshl_b32 s78, s{S_WAVE}, 9\ns_add_u32 s78, s78, 16384\nv_add_u32 v{vC}, s78, v14\ns_lshl_b32 s78, s{S_WAVE}, 11\ns_add_u32 m0, s78, 8192")
    vIDX, vXW = vG, vC
    e(f"s_mov_b32 s59, {SENT:#x}\ns_mov_b32 s60, {INF:#x}\ns_mov_b32 s61, 0\ns_mov_b32 s62, {OOB:#x}\ns_lshl_b32 s65, s{sSeg}, {20 if OPT.get('apfull') else 21}\ns_add_u32 s65, s65, {WS_AP:#x}\ns_waitcnt lgkmcnt(0)\ns_barrier")
    SEL, ONES = "v[16:19]", "v[20:23]"
    mm = "v_mfma_f32_16x16x32_bf16"; m16 = "v_mfma_f32_16x16x16_bf16"
    e("L_g3:")
    e(f"s_lshl_b32 s{sSH}, s{sSeg}, 5\ns_add_u32 s{sSH}, s{sSH}, s{sH}")
    e(f"s_lshr_b32 s78, s{sSeg}, 2\nL_g3_rdy:\ns_bitcmp1_b32 s61, s78\ns_cbranch_scc1 L_g3_rdyok")
    e(f"s_mov_b32 s79, {WS_FLAG+F_KV:#x}\nv_lshlrev_b32 v14, 2, v{vL16}\nbuffer_load_dword v14, v14, {WS}, s79 offen sc1\ns_waitcnt vmcnt(0)")
    e("v_cmp_le_u32 vcc, 24, v14\ns_lshr_b32 s61, vcc_lo, 16\nv_cmp_le_u32 vcc, 32, v14\ns_and_b32 s61, s61, vcc_lo")
    fail_if_zero(4)
    e("s_sleep 16\ns_branch L_g3_rdy\nL_g3_rdyok:")
    e(f"s_mul_i32 s86, s{sH}, {RHS:#x}\ns_lshl_b32 s80, s{sSeg}, {RS_}\ns_add_u32 s86, s86, s80")
    e(f"s_mov_b32 s80, s86\ns_lshl_b32 s81, s{sTq}, 12\ns_lshr_b32 s82, s80, 1\ns_add_u32 s81, s81, s82\ns_add_u32 s81, s81, {WS_Q:#x}")
    for j in range(4): e(f"buffer_load_dwordx4 {vr(24+4*j,4)}, v{vL16}, {WS}, s81 offen offset:{j*1024} sc1")
    e(f"s_add_u32 s81, s80, {WS_K:#x}\ns_add_u32 s82, s80, {WS_K+4096:#x}")
    for kt in range(2):
        for j in range(4): e(f"buffer_load_dwordx4 {vr(40+16*kt+4*j,4)}, v0, {WS}, s{81+kt} offen offset:{j*1024} sc1")
    e(f"s_lshl_b32 s81, s{sEh}, 12\ns_add_u32 s81, s81, s80\ns_add_u32 s81, s81, {WS_V:#x}")
    for t in range(4): e(f"buffer_load_dwordx4 {vr(72+4*t,4)}, v{vL16}, {WS}, s81 offen offset:{t*1024} sc1")
    e(f"s_bfe_u32 s84, s{sH}, 0x10002\ns_lshl_b32 s83, s{sSeg}, 1\ns_add_u32 s83, s83, s84\ns_lshl_b32 s83, s83, 14")
    e(f"s_lshr_b32 s84, s{sH}, 3\ns_lshl_b32 s84, s84, 2\ns_add_u32 s84, s84, s{S_WAVE}\ns_lshl_b32 s84, s84, 10\ns_and_b32 s85, s{sH}, 3\ns_lshl_b32 s85, s85, 8\ns_add_u32 s85, s85, s84")
    e(f"s_add_u32 s85, s85, s83\ns_add_u32 s85, s85, {WS_FP:#x}\ns_add_u32 s83, s83, s{sCo}")
    e(f"buffer_load_dwordx4 v[88:91], v11, {X}, s83 offen\nbuffer_load_dwordx4 v[92:95], v8, {B2}, s{sCo} offen\nbuffer_load_dwordx4 v[96:99], v10, {WS}, s85 offen sc1")
    def reduce(code):
        e(f"L_rp{code}:\nv_lshrrev_b32 v14, 2, v{vL16}\nbuffer_load_dword v14, v14, {WS}, s62 offen sc1\ns_waitcnt vmcnt(0)\nv_cmp_eq_u32 vcc, 1, v14\ns_cmp_eq_u32 vcc_lo, -1\ns_cbranch_scc1 L_rp{code}_ok")
        fail_if_zero(code)
        e(f"s_branch L_rp{code}\nL_rp{code}_ok:")
        if OPT.get('tlg') and code == 17: TLV[0] = 15; TL(11, 32)
        for hf in range(2):
            for i in range(4): e(f"buffer_load_dwordx4 {vr(100+4*i,4)}, v9, {WS}, s64 offen sc1\ns_add_u32 s64, s64, 0x20000")
            for i in range(4): e(f"s_waitcnt vmcnt({3-i})\n{mm} v[2:5], {SEL}, {vr(100+4*i,4)}, v[2:5]")
        e("v_cvt_pk_bf16_f32 v14, v2, v3\nv_cvt_pk_bf16_f32 v15, v4, v5")
        e(f"buffer_store_dwordx2 v[14:15], v12, {OUT}, s63 offen")
    e(f"s_cmp_eq_u32 s62, {OOB:#x}\ns_cbranch_scc1 L_g3_first")
    reduce(7)
    if OPT.get('wb', 1):
        e(f"s_cmp_lt_u32 s{sSeg}, 57\ns_cbranch_scc1 L_g3_first\ns_or_b32 s78, s{sH}, s{S_WAVE}\ns_cmp_eq_u32 s78, 0\ns_cbranch_scc0 L_g3_first\nbuffer_wbl2 sc1")
    e("L_g3_first:")
    e("s_waitcnt vmcnt(7)")
    for kt in range(2):
        for j in range(4):
            s = vr(108 + 4 * kt, 4)
            e(f"{mm} {s}, {vr(40+16*kt+4*j,4)}, {vr(24+4*j,4)}, {'0' if j == 0 else s}")
    e("s_waitcnt vmcnt(0)")
    e(f"{mm} v[2:5], {SEL}, v[88:91], 0\n{mm} v[2:5], {SEL}, v[92:95], v[2:5]\n{mm} v[2:5], {SEL}, v[96:99], v[2:5]")
    e(f"v_mov_b32 v15, {fbits(-3.0e38):#x}")
    for kt in range(2):
        for r in range(4):
            e(f"v_cmp_le_i32 vcc, {16*kt+r}, v13\nv_cndmask_b32 v{108+4*kt+r}, v15, v{108+4*kt+r}, vcc")
    e("v_max3_f32 v124, v108, v109, v110\nv_max3_f32 v125, v111, v112, v113\nv_max3_f32 v124, v124, v114, v115\nv_max_f32 v124, v124, v125")
    for i in range(8): e(f"v_mov_b64 v[{88+2*i}:{89+2*i}], 0")
    e(f"s_lshl_b32 s80, s{sSeg}, 13\ns_add_u32 s80, s80, {WS_MH:#x}\ns_sub_u32 s79, s80, 8192\ns_cmp_eq_u32 s{sSeg}, 0\ns_cbranch_scc1 L_g3_m")
    e(f"L_g3_pre:\nbuffer_load_dword v14, off, {WS}, s79 sc1\ns_waitcnt vmcnt(0)\nv_cmp_eq_u32 vcc, s59, v14\ns_cbranch_vccz L_g3_m")
    fail_if_zero(6)
    e("s_sleep 4\ns_branch L_g3_pre")
    e(f"L_g3_m:\ns_lshl_b32 s79, s{S_WAVE}, 11\ns_add_u32 s79, s79, s80")
    e(f"L_g3_mp:\nbuffer_load_dwordx4 v{vL16}, {WS}, s79 offen sc1 lds\nbuffer_load_dwordx4 v{vL16}, {WS}, s79 offen offset:1024 sc1 lds\ns_waitcnt vmcnt(0)\ns_barrier")
    for k in range(8): e(f"ds_read_b128 {vr(40+4*k,4)}, v{vL16} offset:{8192+k*1024}")
    e("s_waitcnt lgkmcnt(0)\nv_max3_i32 v14, v40, v41, v42")
    for k in range(43, 71, 2): e(f"v_max3_i32 v14, v14, v{k}, v{k+1}")
    e("v_max_i32 v14, v14, v71\nv_cmp_le_i32 vcc, s60, v14\ns_cbranch_vccnz L_g3_mslow\nL_g3_mok:")
    if OPT.get('tlg'): TLV[0] = 15; TL(8, 32)
    for mi in range(2):
        for tt in range(2):
            for sg in range(8):
                e(f"v_smfmac_f32_16x16x64_bf16 {vr(88+8*mi+4*tt,4)}, {vr(40+4*sg,4)}, {ar(128*mi+(tt*8+sg)*8,8)}, v{vIDX}")
                if (mi, tt, sg) == (1, 0, 3):
                    e("v_add_f32 v88, v88, v90\nv_add_f32 v89, v89, v91\nv_add_f32 v92, v92, v94\nv_add_f32 v93, v93, v95\nv_cvt_pk_bf16_f32 v88, v88, v92\nv_cvt_pk_bf16_f32 v89, v89, v93")
                    e(f"ds_write2_b32 v{vXW}, v88, v89 offset0:0 offset1:4")
    e(f"s_lshl_b32 s78, s{S_WAVE}, 9\nv_lshrrev_b32 v15, 1, v{vL16}\nv_add_u32 v14, s78, v15")
    e("v_add_f32 v96, v96, v98\nv_add_f32 v97, v97, v99\nv_add_f32 v100, v100, v102\nv_add_f32 v101, v101, v103\nv_cvt_pk_bf16_f32 v96, v96, v97\nv_cvt_pk_bf16_f32 v97, v100, v101")
    e(f"ds_write_b64 v14, v[96:97] offset:18432\ns_lshl_b32 s78, s{sEh}, 10\nv_add_u32 v15, s78, v15\nv_and_b32 v14, 0x1ff, v0\ns_waitcnt lgkmcnt(0)\ns_barrier")
    for j in range(4): e(f"ds_read_b128 {vr(88+4*j,4)}, v14 offset:{16384+j*512}")
    for jj in range(2): e(f"ds_read_b64 {vr(104+2*jj,2)}, v15 offset:{18432+jj*512}")
    for j in range(4):
        e(f"s_waitcnt lgkmcnt({5-j})\n{mm} v[116:119], {vr(88+4*j,4)}, {vr(24+4*j,4)}, {'0' if j == 0 else 'v[116:119]'}")
    e("v_mov_b32 v45, 0\nv_mov_b32 v46, 0")
    e("v_max3_f32 v124, v124, v116, v117")
    e("v_mov_b32 v125, v124\nv_permlane32_swap_b32 v124, v125\nv_max_f32 v124, v124, v125")
    e("v_mov_b32 v125, v124\nv_permlane16_swap_b32 v124, v125\nv_max_f32 v124, v124, v125")
    for r in range(10): e(f"v_sub_f32 v{108+r}, v{108+r}, v124")
    for r in range(10): e(f"v_exp_f32 v{108+r}, v{108+r}")
    for d in range(4): e(f"v_cvt_pk_bf16_f32 v{40+d}, v{108+2*d}, v{109+2*d}")
    e("v_cvt_pk_bf16_f32 v44, v116, v117\nv_cvt_pk_bf16_f32 v47, v116, v117")
    e("s_waitcnt lgkmcnt(0)")
    e(f"{mm} v[120:123], {ONES}, v[40:43], 0")
    for t in range(4): e(f"{mm} {vr(48+4*t,4)}, {vr(72+4*t,4)}, v[40:43], 0")
    e(f"{m16} v[120:123], v[20:21], v[44:45], v[120:123]")
    for t in range(4):
        o = vr(48 + 4 * t, 4)
        e(f"{m16} {o}, {vr(104+2*(t>>1),2)}, {'v[46:47]' if t&1 else 'v[44:45]'}, {o}")
    e("v_rcp_f32 v124, v120")
    for r in range(16): e(f"v_mul_f32 v{48+r}, v{48+r}, v124")
    e(f"s_lshl_b32 s78, s{sTq}, 12\ns_lshl_b32 s79, s{sEh}, 11\ns_add_u32 s78, s78, s79\nv_add_u32 v14, s78, v{vL16}")
    for jj in range(2):
        for r in range(4): e(f"v_cvt_pk_bf16_f32 v{64+4*jj+r}, v{48+8*jj+r}, v{52+8*jj+r}")
        e(f"ds_write_b128 v14, {vr(64+4*jj,4)} offset:{jj*1024}")
    e("s_waitcnt lgkmcnt(0)\ns_barrier")
    if OPT.get('tlg'): TLV[0] = 15; TL(9, 32)
    for q in range(8): e(f"ds_read_b128 {vr(24+4*q,4)}, v{vL16} offset:{q*1024}")
    e(f"s_lshl_b32 s80, s{sH}, 15\ns_lshl_b32 s81, s{S_WAVE}, 13\ns_add_u32 s80, s80, s81\ns_add_u32 s80, s80, s65\ns_add_u32 s81, s80, 4096")
    for tq in range(2):
        for j in range(4):
            e(f"s_waitcnt lgkmcnt({7-(tq*4+j)})")
            for t in range(8):
                a = vr(56 + (tq * 8 + t) * 4, 4)
                e(f"{mm} {a}, {vr(WO+(j*8+t)*4,4)}, {vr(24+(tq*4+j)*4,4)}, {'0' if j == 0 else a}")
    e(f"s_lshl_b32 s62, s{sSeg}, 7\ns_add_u32 s62, s62, {WS_FLAG+F_G3:#x}\ns_lshl_b32 s78, s{sH}, 2\ns_add_u32 s78, s78, s62\ns_cmp_eq_u32 s{S_WAVE}, 0\ns_cselect_b32 s78, s78, {OOB:#x}")
    e(f"s_mov_b32 s63, s83\ns_add_u32 s64, s65, s{sRo}\n{'s_add_u32 s65, s65, 0x700000' if OPT.get('apfull') else 's_xor_b32 s65, s65, 0x100000'}\ns_cmp_eq_u32 s{S_MIX}, 0\ns_cbranch_scc0 L_g3_stx")
    for fl in ("", "sc1"):
        if fl: e("L_g3_stx:")
        for tq in range(2):
            for r in range(4):
                q = 120 + 4 * (r & 1)
                for tp in range(4):
                    e(f"v_cvt_pk_bf16_f32 v{q+tp}, v{56+(tq*8+2*tp)*4+r}, v{56+(tq*8+2*tp+1)*4+r}")
                e(f"buffer_store_dwordx4 {vr(q,4)}, v{vL16}, {WS}, s{80+tq} offen offset:{r*1024} {fl}")
        e("v_mov_b32 v14, 1\ns_waitcnt vmcnt(0)\ns_barrier")
        if OPT.get('tlg'): TLV[0] = 15; TL(10, 32)
        e(f"buffer_store_dword v14, off, {WS}, s78 {fl}")
        if not fl: e("s_branch L_g3_ste")
    e("L_g3_ste:")
    if OPT.get('tl'):
        e(f"s_cmp_lt_u32 s{sSeg}, 7\ns_cbranch_scc0 L_tl4"); TLV[0] = 124; TL(6, 32); e("L_tl4:")
    e(f"s_add_u32 s{sSeg}, s{sSeg}, 7\ns_cmp_lt_u32 s{sSeg}, 64\ns_cbranch_scc1 L_g3")
    reduce(17)
    TL(7, 32); DTL(9, 14)
    if OPT.get('probe_num'):
        e(f"v_mov_b32 v14, 0\nglobal_load_dword v14, v14, s[{P_DBG}:{P_DBG+1}] offset:24 sc1\ns_waitcnt vmcnt(0)\nv_readfirstlane_b32 s78, v14\ns_bcnt1_i32_b32 s78, s78\ns_cmp_eq_u32 s78, 1\ns_cbranch_scc1 L_pn\ns_mov_b32 s78, 40\nL_pn1:\ns_sleep 64\ns_sub_u32 s78, s78, 1\ns_cmp_lg_u32 s78, 0\ns_cbranch_scc1 L_pn1\nL_pn:")
    if OPT.get('wb', 1): e(f"s_or_b32 s78, s{sH}, s{S_WAVE}\ns_cmp_eq_u32 s78, 0\ns_cbranch_scc0 L_g3_nwb\nbuffer_wbl2 sc1\nL_g3_nwb:")
    e("s_waitcnt vmcnt(0)\ns_branch L_end")
    e("L_g3_mslow:")
    for k in range(40, 72): e(f"v_cmp_eq_u32 vcc, s59, v{k}\ns_cbranch_vccnz L_g3_mre")
    e("s_branch L_g3_mok\nL_g3_mre:")
    fail_if_zero(9)
    e("s_barrier\ns_branch L_g3_mp")
```

```python
import sys, math, struct
from asmlib import Asm

NAME = "parallel_sum__memory_aug_recurrent_mem_tr__dense_activation_squared_relu__prompt"
OPT = dict(stamps=False, skip_chain=False, skip_g3=False, force_fallback=False, force_mixed=False,
           top1=1, gp2=99, nb2=3, dA=[16, 34, 68, 84], dB=[40, 38, 0, 0], nsw=[2, 2, 1, 1], dC=24, fdc=3, pkn=1, q0=22, qr=24, kp=0, ex=4, pfs=3,
           wb=0, thr=2, thrh=1, rk=0, fo=0, wo1=2, xq=(5, 5), xk=(4, 4), xp=(4, 4), pt='vqko')
for a in sys.argv[2:]:
    k, v = a.split('='); OPT[k] = eval(v)

WS_M = 0x0
WS_P = 0x100000
PRING = 0x42000
HS = 8192 + 128
WS_FLAG = 0x40000
F_KV, F_REST, F_BAR, F_G3 = 0, 1024, 4096, 8192
WS_STAMP = 0x50000
WS_MH = 0x400000
WS_K, WS_V, WS_Q = 0x1000000, 0x1002000, 0x3000000
RHS, RS_ = 0x4000, 19
SEGS = 1 << RS_
WS_FP = 0x5800000
WS_AP = 0x6000000
WS_SIZE = 0x10000000
OOB = 0x80000000
SENT = 0x7F817F81
INF = 0x7F800000
CSCALE = struct.unpack('<I', struct.pack('<f', (128 ** -0.5) * math.log2(math.e)))[0]
POLLMAX = 1 << 18
def fbits(x): return struct.unpack('<I', struct.pack('<f', x))[0]

e = Asm()
def srd(base, ptr, size):
    e(f"s_mov_b32 s{base}, s{ptr}\ns_mov_b32 s{base+1}, s{ptr+1}\ns_mov_b32 s{base+2}, {size:#x}\ns_mov_b32 s{base+3}, 0x20000")
def vr(a, n): return f"v[{a}:{a+n-1}]" if n > 1 else f"v{a}"
def ar(a, n): return f"a[{a}:{a+n-1}]" if n > 1 else f"a{a}"

P_X, P_MEM0, P_WQ, P_WK, P_WV, P_WO = 4, 6, 8, 10, 12, 14
P_W1, P_B1, P_W2, P_B2, P_OUT, P_DBG, P_WS = 20, 22, 24, 26, 28, 30, 32
S_WAVE, S_IDX = 34, 35
WS = "s[36:39]"
S_TMO = 100
S_ERR = 101
S_MIX = 18
S_GT, S_OK = 16, 17

def fail_if_zero(code):
    e(f"s_sub_u32 s{S_TMO}, s{S_TMO}, 1\ns_mov_b32 s{S_ERR}, {code}\ns_cbranch_scc1 L_fail")

e("s_cmp_ge_u32 s2, 256\ns_cbranch_scc1 L_end")
e("s_load_dwordx16 s[4:19], s[0:1], 0\ns_load_dwordx8 s[20:27], s[0:1], 64\ns_load_dwordx4 s[28:31], s[0:1], 96\ns_load_dwordx2 s[32:33], s[0:1], 112")
e("s_getreg_b32 s3, hwreg(HW_REG_XCC_ID, 0, 3)")
if OPT.get("tl"): e("s_memrealtime s[94:95]")
if OPT.get("dtl") or OPT.get("enc"): e("s_memrealtime s[98:99]\ns_waitcnt lgkmcnt(0)\ns_mov_b32 s93, s98")
e(f"v_lshrrev_b32 v1, 6, v0\nv_and_b32 v0, 63, v0\nv_readfirstlane_b32 s{S_WAVE}, v1")
e(f"s_mov_b32 s{S_TMO}, {POLLMAX}\ns_mov_b32 s{S_ERR}, 0")
e("s_waitcnt lgkmcnt(0)")
srd(36, P_WS, WS_SIZE)
e(f"v_lshlrev_b32 v2, 4, v0\nv_mov_b32 v4, {SENT:#x}\nv_mov_b32 v5, v4\nv_mov_b32 v6, v4\nv_mov_b32 v7, v4\ns_lshl_b32 s40, s2, 11\ns_lshl_b32 s41, s{S_WAVE}, 10\ns_add_u32 s40, s40, s41\ns_add_u32 s40, s40, {WS_MH:#x}")
e(f"s_cmp_lt_u32 s{S_WAVE}, 2\ns_cselect_b32 s40, s40, {OOB:#x}\nbuffer_store_dwordx4 v[4:7], v2, {WS}, s40 offen sc1")
e(f"v_mov_b32 v8, 0\nv_lshlrev_b32 v2, 2, v0\nv_and_b32 v2, 63, v2\ns_lshl_b32 s40, s2, 6\ns_add_u32 s40, s40, {WS_FLAG:#x}\ns_cmp_eq_u32 s{S_WAVE}, 2\ns_cselect_b32 s40, s40, {OOB:#x}\nbuffer_store_dword v8, v2, {WS}, s40 offen sc1")
C_OFF = [16 * (x & 3) + 4 + (x >> 2) + (8 if (x & 3) == 0 else 0) for x in range(8)]
DIE_OFF = [4 * (16 * (x & 3) + 8 + (x >> 2)) for x in range(8)]
assert len(set(C_OFF) | {o // 4 for o in DIE_OFF} | {2, 3, 4, 5}) == 20
S_LVL = 19
def pick(tab, idx, dst):
    pk = sum(v << (8 * x) for x, v in enumerate(tab))
    e(f"s_mov_b32 s40, {pk & 0xffffffff:#x}\ns_mov_b32 s41, {pk >> 32:#x}\ns_lshl_b32 s42, s{idx}, 3\ns_lshr_b64 s[40:41], s[40:41], s42\ns_and_b32 s{dst}, s40, 0xff")
e(f"s_sub_u32 s43, s3, s2\ns_and_b32 s43, s43, 7")
pick(C_OFF, 43, S_GT)
e(f"s_lshr_b32 s40, s2, 3\ns_mov_b32 s{S_LVL}, 0\ns_branch L_role_go")
e("L_role_ticket:")
e(f"s_waitcnt vmcnt(0) lgkmcnt(0)\ns_barrier\nv_mbcnt_lo_u32_b32 v0, -1, 0\nv_mbcnt_hi_u32_b32 v0, -1, v0\ns_mov_b32 s{S_LVL}, 1")
e(f"s_cmp_eq_u32 s{S_WAVE}, 0\ns_cbranch_scc0 L_role_wait\ns_mov_b64 exec, 1")
pick([o // 4 for o in DIE_OFF], 3, 40)
e(f"s_lshl_b32 s40, s40, 2\nv_mov_b32 v1, s40\nv_mov_b32 v2, 1\nglobal_atomic_add v4, v1, v2, s[{P_DBG}:{P_DBG+1}] sc0\nv_mov_b32 v1, 0")
e("s_waitcnt vmcnt(0)\nds_write_b32 v1, v4\ns_waitcnt lgkmcnt(0)\ns_mov_b64 exec, -1")
e("L_role_wait:")
e(f"s_barrier\nv_mov_b32 v1, 0\nds_read_b32 v4, v1\ns_waitcnt lgkmcnt(0)\nv_readfirstlane_b32 s40, v4\ns_barrier\ns_mov_b32 s{S_GT}, s40\ns_and_b32 s40, s40, 31")
e("L_role_go:")
e(f"s_mov_b32 s{S_OK}, 0\ns_mov_b32 s{S_MIX}, 0\ns_mov_b32 s{S_IDX}, s40\ns_cmp_eq_u32 s3, 0\ns_cbranch_scc1 L_chain0")
e(f"s_sub_u32 s41, s3, 1\ns_lshl_b32 s41, s41, 5\ns_add_u32 s{S_IDX}, s40, s41\ns_branch L_worker")
e("L_role_mixed:")
e(f"s_waitcnt vmcnt(0) lgkmcnt(0)\ns_barrier\nv_mbcnt_lo_u32_b32 v0, -1, 0\nv_mbcnt_hi_u32_b32 v0, -1, v0\ns_mov_b32 s{S_OK}, 1\ns_mov_b32 s{S_MIX}, 1")
for x in range(7):
    e(f"v_readlane_b32 s40, v1, {DIE_OFF[x]//4}\ns_cmp_gt_u32 s3, {x}\ns_cselect_b32 s40, s40, 0\ns_add_u32 s{S_GT}, s{S_GT}, s40")
if OPT['force_mixed']: e(f"s_mul_i32 s{S_GT}, s{S_GT}, 37\ns_and_b32 s{S_GT}, s{S_GT}, 255")
e(f"s_mov_b32 s{S_IDX}, s{S_GT}\ns_cmp_lt_u32 s{S_GT}, 32\ns_cbranch_scc1 L_chain1")
e(f"s_sub_u32 s{S_IDX}, s{S_GT}, 32\ns_branch L_worker")

def report(code, t):
    e(f"s_or_b32 s96, s{S_LVL}, s{S_WAVE}\ns_or_b32 s96, s96, s{S_OK}\ns_cmp_eq_u32 s96, 0\ns_cbranch_scc0 L_rp{code}x")
    e(f"s_mov_b64 exec, 1\ns_lshl_b32 s96, s{S_GT}, 2\nv_mov_b32 v{t}, s96\nv_mov_b32 v{t+1}, 1\nglobal_atomic_add v{t}, v{t+1}, s[{P_DBG}:{P_DBG+1}]\ns_mov_b64 exec, -1\nL_rp{code}x:")
def confirm_issue(dst, t):
    e(f"v_mbcnt_lo_u32_b32 v{t}, -1, 0\nv_mbcnt_hi_u32_b32 v{t}, -1, v{t}\nv_lshlrev_b32 v{t}, 2, v{t}\nglobal_load_dword {dst}, v{t}, s[{P_DBG}:{P_DBG+1}] sc1")
def confirm_check(code, r, t):
    msk = sum(1 << (o // 4) for o in DIE_OFF)
    e(f"s_cmp_eq_u32 s{S_OK}, 1\ns_cbranch_scc1 L_cf{code}_ok")
    e(f"L_cf{code}:\ns_mov_b32 s96, 0\ns_mov_b32 s98, 0")
    for x in range(8): e(f"v_readlane_b32 s97, v{r}, {DIE_OFF[x]//4}\ns_add_u32 s96, s96, s97\nv_readlane_b32 s97, v{r}, {C_OFF[x]}\ns_add_u32 s98, s98, s97")
    e(f"s_cmp_eq_u32 s{S_LVL}, 0\ns_cselect_b32 s96, s98, s96\ns_cmp_eq_u32 s96, 0x100\ns_cbranch_scc1 L_cf{code}_all")
    fail_if_zero(code)
    confirm_issue(f"v{r}", t)
    e(f"s_waitcnt vmcnt(0)\ns_branch L_cf{code}")
    e(f"L_cf{code}_all:\ns_cmp_eq_u32 s{S_LVL}, 0\ns_cbranch_scc0 L_cf{code}_t\nv_readlane_b32 s97, v{r}, s{S_GT}\ns_cmp_eq_u32 s97, {0x101 if OPT['force_mixed'] or OPT.get('force_ticket') else 0x100}\ns_cbranch_scc1 L_cf{code}_std\ns_branch L_role_ticket")
    e(f"L_cf{code}_t:\nv_cmp_eq_u32 vcc, {33 if OPT['force_mixed'] else 32}, v{r}\ns_and_b32 s96, vcc_lo, {msk & 0xffffffff:#x}\ns_and_b32 s97, vcc_hi, {msk >> 32:#x}")
    e(f"s_xor_b32 s96, s96, {msk & 0xffffffff:#x}\ns_xor_b32 s97, s97, {msk >> 32:#x}\ns_or_b32 s96, s96, s97\ns_cmp_eq_u32 s96, 0\ns_cbranch_scc1 L_cf{code}_std")
    e(f"v_mov_b32 v1, v{r}\ns_branch L_role_mixed\nL_cf{code}_std:")
    e(f"s_mov_b32 s{S_OK}, 1\nL_cf{code}_ok:")

def poll_ge(code, soff, val, tmp, sleep=2):
    e(f"L_pg{code}:")
    e(f"buffer_load_dword v{tmp}, off, {WS}, {soff} sc1\ns_waitcnt vmcnt(0)")
    e(f"v_cmp_le_u32 vcc, {val}, v{tmp}\ns_cbranch_vccnz L_pg{code}_ok")
    fail_if_zero(code)
    if sleep: e(f"s_sleep {sleep}")
    e(f"s_branch L_pg{code}\nL_pg{code}_ok:")

def TL(k, base):
    if not OPT.get('tl'): return
    e(f"s_memrealtime s[98:99]\ns_lshl_b32 s97, s{S_IDX}, 6\ns_add_u32 s97, s97, {WS_STAMP + 0x8000 + base*64 + 4*k:#x}\ns_waitcnt lgkmcnt(0)")
    e(f"v_mov_b32 v255, s98\nbuffer_store_dword v255, off, {WS}, s97".replace('v255', 'v%d' % TLV[0]))
TLV = [15]
DT = [0]
def DTL(k, v, op="umax"):
    if not OPT.get('dtl'): return
    DT[0] += 1
    e(f"s_cmp_eq_u32 s{S_WAVE}, 0\ns_cbranch_scc0 L_dt{DT[0]}\ns_memrealtime s[98:99]\ns_waitcnt lgkmcnt(0)\ns_sub_u32 s98, s98, s93\ns_mov_b64 exec, 1\nv_mov_b32 v{v}, s98\nv_mov_b32 v{v+1}, 0\nglobal_atomic_{op} v{v+1}, v{v}, s[{P_DBG}:{P_DBG+1}] offset:{4*k}\ns_mov_b64 exec, -1\nL_dt{DT[0]}:")
import worker, chain
worker.emit(globals())
chain.emit(globals(), 0)
chain.emit(globals(), 1)

e("L_fail:")
e(f"s_mov_b64 exec, 1\nv_mov_b32 v0, s{S_ERR}\nv_mov_b32 v1, 0\nglobal_store_dword v1, v0, s[{P_DBG}:{P_DBG+1}] offset:16")
e(f"v_mov_b32 v0, s{S_IDX}\nglobal_store_dword v1, v0, s[{P_DBG}:{P_DBG+1}] offset:20\ns_waitcnt vmcnt(0)")
e("L_end:")

body = e.finish(verbose=OPT.get('v', False))
ref = open(f"cdna_kernels/{NAME}.s.ref").read().split('\n')
head = [l for l in ref if l.startswith(';') and '@launch' not in l]
out = '\n'.join(head) + "\n; @launch grid=(256,1,1) block=(256,1,1) lds=163840\n"
out += f""".amdgcn_target "amdgcn-amd-amdhsa--gfx950"
.text
.globl {NAME}_kernel
.p2align 8
.type {NAME}_kernel,@function
{NAME}_kernel:
{body}
    s_endpgm
.section .rodata,"a"
.p2align 6
.amdhsa_kernel {NAME}_kernel
  .amdhsa_next_free_vgpr 512
  .amdhsa_next_free_sgpr 102
  .amdhsa_accum_offset 256
  .amdhsa_group_segment_fixed_size 0
  .amdhsa_kernarg_size 120
  .amdhsa_user_sgpr_count 2
  .amdhsa_user_sgpr_kernarg_segment_ptr 1
  .amdhsa_system_sgpr_workgroup_id_x 1
.end_amdhsa_kernel
"""
open(sys.argv[1], 'w').write(out)
```

```python
def emit(G, mode):
    globals().update(G)
    ST = "sc1" if mode else ""
    Ln = lambda s: f"L_c{mode}_{s}"
    W = "s[40:43]"
    WSTR = 36864
    L_M = 0; L_X = L_M + 8192; L_P = L_X + 4096 + 512; L_O = L_P + 1024; L_W = 16384
    assert L_O + 2048 <= L_W
    M = 0
    AQ0, AQ1, AK0, AK1, AV0, AV1 = 32, 36, 40, 44, 48, 52
    VW = 56; KT = 88; VT = 104; QF = 112
    JUNK = 128
    vIDX, vP8, vSP2, vVW, vXW, vQR, vKR, vPR, vOW, vL16, vRL, vMS, vSEL = range(131, 144)
    vW16 = 18
    WOB = 144
    sStep, sMc, sMn, sMp, sPc, sPp, sSK, sSV, sPF, sMH, sMHp, sFl, sKv = range(44, 57)
    sRd = list(range(57, 65))
    sSENT, sONE, sMLO = 66, 68, 70
    sC, sInf, sLlo, sLrg, sW1k, sLo, sHi, sPW = range(72, 80)
    sT = 80
    sPn, sDl, sRdR, sRdW, sRedo, sOOB, sFlC, sTag = sPW, 95, 65, 90, 91, 88, 89, 87
    WS_RDY = WS_M + 0x8000
    lds_slot = {}
    nb1, nb2 = OPT.get('nb1', 0), OPT.get('nb2', 0)
    vq = [('v', tt, sg) for sg in range(4) for tt in range(2)] + [('v', tt, sg) for tt in range(2) for sg in range(4, 8)]
    qk = lambda sg: [('q', 0, sg), ('q', 1, sg), ('k', 0, sg), ('k', 1, sg)]
    fr = qk(0) + qk(1) + vq[:nb1] + qk(2) + qk(3) + vq[nb1:nb1 + nb2] + [(mt, tt, sg) for mt in 'qk' for tt in range(2) for sg in range(4, 8)]
    vrest = vq[nb1 + nb2:]
    step_ = (len(fr) - 1 - 9) / 7.0
    order = [fr[g] for g in (0, 2, 4, 6)] + [fr[9 + int(round(k * step_))] for k in range(8)]
    order += [('o', 2, 1), ('o', 3, 1), ('o', 4, 1), ('o', 5, 1), ('o', 6, 1), ('o', 7, 1)]
    for i, f in enumerate(order): lds_slot[f] = i
    NQ = 12
    reg = {}
    n = 0
    for mt in 'qkv':
        for tt in range(2):
            for sg in range(8):
                if (mt, tt, sg) not in lds_slot:
                    reg[(mt, tt, sg)] = ('a', 8 * n) if n < 32 else ('v', 224 + 8 * (n - 32)); n += 1
    assert n == 36
    n = 0
    for t in range(8):
        for k in range(2):
            if ('o', t, k) not in lds_slot: reg[('o', t, k)] = ('v', WOB + 8 * n); n += 1
    assert n == 10
    rr = lambda f, o, n: (ar if reg[f][0] == 'a' else vr)(reg[f][1] + o, n)

    e(f"L_chain{mode}:")
    if OPT['skip_chain']:
        e("s_branch L_end"); return
    h = S_IDX; w = S_WAVE
    TLV[0] = 15
    TL(1, 0)
    if OPT.get('tl'): e(f"v_mov_b32 v15, s94\ns_sub_u32 s97, s97, 4\nbuffer_store_dword v15, off, {WS}, s97")
    e(f"v_lshrrev_b32 v1, 4, v0\nv_and_b32 v2, 15, v0")
    e(f"v_lshlrev_b32 v{vL16}, 4, v0")
    e(f"s_lshl_b32 s{sT}, s{w}, 11\nv_add_u32 v{vW16}, s{sT}, v{vL16}")
    e(f"s_lshl_b32 s{sT}, s{w}, 9\nv_lshlrev_b32 v{vP8}, 3, v0\nv_add_u32 v{vP8}, s{sT}, v{vP8}")
    e(f"s_mul_i32 s{sT}, s{w}, {WSTR}\ns_add_u32 s{sT}, s{sT}, {L_W}\nv_add_u32 v{vVW}, s{sT}, v{vL16}")
    e(f"v_mov_b32 v{vIDX}, 0x4444\nv_mov_b32 v3, 0xeeee\nv_and_b32 v4, 2, v2\nv_cmp_eq_u32 vcc, 0, v4\nv_cndmask_b32 v{vIDX}, v3, v{vIDX}, vcc")
    e(f"s_lshl_b32 s{sW1k}, s{w}, 10\nv_lshrrev_b32 v3, 2, v2\nv_lshlrev_b32 v3, 7, v3\nv_lshl_add_u32 v3, v1, 5, v3\nv_and_b32 v4, 3, v2\nv_lshl_add_u32 v3, v4, 2, v3")
    e(f"v_bfe_u32 v4, v2, 2, 1\nv_lshlrev_b32 v4, 6, v4\nv_xor_b32 v3, v3, v4\nv_add_u32 v3, s{sW1k}, v3\nv_add_u32 v{vXW}, {L_X}, v3")
    e(f"v_and_b32 v4, 7, v2\nv_lshlrev_b32 v4, 4, v4\nv_lshl_add_u32 v{vQR}, v1, 7, v4")
    e(f"v_lshrrev_b32 v3, 2, v2\nv_and_b32 v4, 1, v2\nv_lshl_add_u32 v3, v3, 1, v4\nv_lshlrev_b32 v3, 4, v3\nv_lshl_add_u32 v{vKR}, v1, 7, v3")
    e(f"v_and_b32 v4, 1, v1\nv_lshlrev_b32 v4, 6, v4\nv_xor_b32 v{vQR}, v{vQR}, v4\nv_xor_b32 v{vKR}, v{vKR}, v4")
    e(f"v_lshrrev_b32 v5, 3, v2\nv_lshl_add_u32 v{vPR}, v5, 9, v{vQR}")
    e(f"v_and_b32 v3, 6, v2\nv_lshlrev_b32 v3, 1, v3\nv_and_b32 v4, 1, v2\nv_add_u32 v3, v3, v4\nv_lshl_add_u32 v3, v1, 4, v3\nv_lshlrev_b32 v3, 4, v3\nv_lshl_add_u32 v3, v5, 3, v3")
    e(f"s_lshr_b32 s{sT}, s{w}, 1\ns_lshl_b32 s{sT}, s{sT}, 10\ns_and_b32 s{sT+1}, s{w}, 1\ns_lshl_b32 s{sT+1}, s{sT+1}, 5\ns_add_u32 s{sT}, s{sT}, s{sT+1}\nv_add_u32 v{vOW}, s{sT}, v3")
    e(f"s_lshl_b32 s{sT}, s{w}, 11\ns_lshl_b32 s{sT+1}, s{h}, 6\ns_add_u32 s{sT}, s{sT}, s{sT+1}")
    e(f"v_mul_u32_u24 v3, {HS}, v1\nv_lshl_add_u32 v3, v2, 2, v3\nv_add_u32 v{vRL}, s{sT}, v3")
    sWp, sGp, sHc = sT + 2, sT + 3, sT + 4
    e(f"s_lshr_b32 s{sWp}, s{h}, 3\ns_bfe_u32 s{sGp}, s{h}, 0x20001\ns_and_b32 s{sHc}, s{h}, 1")
    e(f"s_lshl_b32 s{sT}, s{sWp}, 9\ns_lshl_b32 s{sT+1}, s{sHc}, 8\ns_add_u32 s{sT}, s{sT}, s{sT+1}\ns_lshl_b32 s{sT+1}, s{sGp}, 6\ns_add_u32 s{sT}, s{sT}, s{sT+1}")
    e(f"v_and_b32 v3, 1, v2\nv_lshrrev_b32 v4, 1, v2\nv_lshrrev_b32 v6, 3, v2\nv_lshl_add_u32 v6, v6, 1, v3\nv_lshlrev_b32 v6, 4, v6\nv_and_b32 v8, 3, v4\nv_lshl_add_u32 v6, v8, 2, v6\nv_add_u32 v6, s{sT}, v6")
    e(f"v_mov_b32 v7, {OOB:#x}\nv_cmp_eq_u32 vcc, 0, v1\nv_cndmask_b32 v{vMS}, v7, v6, vcc")
    e(f"v_lshlrev_b32 v6, 10, v3\nv_lshl_add_u32 v6, v4, 4, v6")
    e(f"s_lshl_b32 s{sT}, s{sGp}, 11\ns_lshl_b32 s{sT+1}, s{sWp}, 8\ns_add_u32 s{sT}, s{sT}, s{sT+1}\ns_lshl_b32 s{sT+1}, s{sHc}, 7\ns_add_u32 s{sT}, s{sT}, s{sT+1}\ns_lshl_b32 s{sT+1}, s{w}, 2\ns_add_u32 s{sT}, s{sT}, s{sT+1}")
    srd(40, P_MEM0, 8192)
    e(f"buffer_load_dword v9, v6, {W}, s{sT} offen")
    e(f"v_mov_b32 v{vSEL}, 0\nv_mov_b32 v3, 0x3f80\nv_cmp_eq_u32 vcc, 0, v2\nv_cndmask_b32 v{vSEL}, v{vSEL}, v3, vcc\nv_mov_b32 v3, 0x3f800000\nv_cmp_eq_u32 vcc, 1, v2\nv_cndmask_b32 v{vSEL}, v{vSEL}, v3, vcc")
    e(f"s_mov_b32 s{sStep}, 0\ns_lshl_b32 s{sMc}, s{w}, 11\ns_add_u32 s{sMc}, s{sMc}, {WS_M}\ns_add_u32 s{sMn}, s{sMc}, 8192\ns_add_u32 s{sMp}, s{sMc}, 16384")
    e(f"s_mul_i32 s{sPc}, s{h}, {HS}\ns_add_u32 s{sPc}, s{sPc}, {WS_P:#x}\ns_add_u32 s{sPn}, s{sPc}, {PRING:#x}\ns_add_u32 s{sPp}, s{sPn}, {PRING:#x}")
    for i in range(8): e(f"s_mov_b32 s{sRd[i]}, {WS_P + i*4*HS:#x}")
    e(f"s_mul_i32 s{sT}, s{h}, {RHS:#x}\ns_lshr_b32 s{sT+1}, s{w}, 1\ns_lshl_b32 s{sT+1}, s{sT+1}, 12\ns_add_u32 s{sSK}, s{sT}, s{sT+1}\ns_and_b32 s{sT+1}, s{w}, 1\ns_lshl_b32 s{sT+1}, s{sT+1}, 9\ns_add_u32 s{sSK}, s{sSK}, s{sT+1}\ns_add_u32 s{sSK}, s{sSK}, {WS_K:#x}")
    e(f"s_lshl_b32 s{sT+1}, s{w}, 11\ns_add_u32 s{sSV}, s{sT}, s{sT+1}\ns_add_u32 s{sSV}, s{sSV}, {WS_V:#x}")
    e(f"s_lshl_b32 s{sT+1}, s{w}, 12\ns_add_u32 s{sPF}, s{sT}, s{sT+1}\ns_add_u32 s{sPF}, s{sPF}, {WS_K:#x}")
    e(f"s_add_u32 s{sMH}, s{sMc}, {WS_MH - WS_M:#x}\ns_lshl_b32 s{sRdR}, s{w}, 7\ns_add_u32 s{sRdR}, s{sRdR}, {WS_RDY:#x}\ns_lshl_b32 s{sRdW}, s{h}, 2\ns_add_u32 s{sRdW}, s{sRdW}, s{sRdR}")
    e(f"s_mov_b32 s{sSENT}, {SENT:#x}\ns_mov_b32 s{sSENT+1}, {SENT:#x}\ns_mov_b32 s{sONE}, 0x3f803f80\ns_mov_b32 s{sONE+1}, 0x3f803f80")
    e(f"s_mov_b32 s{sMLO}, 0x00ff00ff\ns_mov_b32 s{sMLO+1}, 0x00ff00ff\ns_mov_b32 s{sC}, {CSCALE:#x}\ns_mov_b32 s{sInf}, {INF:#x}")
    LLO, LHI = fbits(2.0 ** -60), fbits(2.0 ** 60)
    e(f"s_mov_b32 s{sLlo}, {LLO:#x}\ns_mov_b32 s{sLrg}, {(0 if OPT['force_fallback'] else LHI-LLO):#x}\ns_mov_b32 s{sLo}, 0x05040100\ns_mov_b32 s{sHi}, 0x07060302")
    vWA, vTS, vAD = 10, 11, 16
    e(f"v_lshlrev_b32 v3, 4, v2")
    e(f"v_lshrrev_b32 v4, 1, v1\nv_lshl_add_u32 v3, v4, 19, v3\nv_and_b32 v4, 1, v1\nv_lshl_add_u32 v3, v4, 17, v3")
    e(f"s_lshl_b32 s{sT}, s{w}, 14\ns_lshl_b32 s{sT+1}, s{h}, 8\ns_add_u32 s{sT}, s{sT}, s{sT+1}\nv_add_u32 v{vWA}, s{sT}, v3")
    e(f"s_lshl_b32 s{sT}, s{w}, 12\ns_add_u32 s{sT}, s{sT}, {L_M}\nv_add_u32 v{vTS}, s{sT}, v{vL16}")
    e(f"s_lshl_b32 s{sT+8}, s{w}, 3")
    RAW = [20, 144]
    TQ = [84, 88, 92]
    rounds = [(OPT.get('ro', 'vvqkqk')[i], (0, 1, 1, 1, 0, 0)[i] if OPT.get('ro', 'vvqkqk')[2] != OPT.get('ro', 'vvqkqk')[3] else i & 1) for i in range(6)]
    assert rounds[5][0] != 'q'
    ptr = {'q': P_WQ, 'k': P_WK, 'v': P_WV}
    def qkv_loads(ri):
        mt, par = rounds[ri]
        srd(40, ptr[mt], 0x400000)
        for j2 in range(8):
            for hb in range(2):
                row = 256 * par + 128 * (j2 >> 2) + 32 * (j2 & 1) + 8 * ((j2 & 3) >> 1) + hb
                e(f"s_mov_b32 s{sT}, {row*8192:#x}\nbuffer_load_dwordx4 {vr(RAW[ri&1]+(j2*2+hb)*4,4)}, v{vWA}, {W}, s{sT} offen")
    placed = set(); plan = []
    for ri, (mt, par) in enumerate(rounds):
        fs = [(mt, tt, sg) for tt in range(2) for sg in range(par, 8, 2)]
        for f in fs:
            if f in lds_slot: placed.add(lds_slot[f])
        free = [s for s in range(19, -1, -1) if s not in placed]
        loc = {}
        for f in fs:
            loc[f] = lds_slot[f] if f in lds_slot else free.pop(0)
        plan.append(loc)
    absslot = lambda wd, s: (8 + wd * 18 + s) if s < 18 else (wd * 2 + s - 18)
    vWO = 17
    e(f"v_lshrrev_b32 v3, 1, v1\nv_lshlrev_b32 v3, 5, v3\nv_and_b32 v4, 1, v1\nv_add_u32 v3, v3, v4\nv_lshlrev_b32 v3, 10, v3\nv_lshl_add_u32 v3, v2, 4, v3")
    e(f"s_lshl_b32 s{sT}, s{h}, 17\ns_lshl_b32 s{sT+1}, s{w}, 8\ns_add_u32 s{sT}, s{sT}, s{sT+1}\nv_add_u32 v{vWO}, s{sT}, v3")
    WRAW = [20, 52, 96]
    def wo_loads(gi):
        kap, hf = gi >> 1, gi & 1
        for jl in range(4):
            for hb in range(2):
                row = 64 * hf + 16 * (jl >> 1) + 8 * hb + 4 * kap + 2 * (jl & 1)
                e(f"s_mov_b32 s{sT}, {row*1024:#x}\nbuffer_load_dwordx4 {vr(WRAW[gi%3]+(jl*2+hb)*4,4)}, v{vWO}, {W}, s{sT} offen")
    def init_handoff():
        e(f"v_mov_b64 v[12:13], s[{sSENT}:{sSENT+1}]\nv_mov_b64 v[14:15], s[{sSENT}:{sSENT+1}]")
        for s in (sPc, sPn, sPp):
            for o in (0, 1024): e(f"buffer_store_dwordx4 v[12:15], v{vW16}, {WS}, s{s} offen offset:{o} {ST}")
        e(f"buffer_store_dword v12, v{vMS}, {WS}, s{sMn} offen {ST}\nbuffer_store_dword v12, v{vMS}, {WS}, s{sMp} offen {ST}")
        e(f"buffer_store_dword v9, v{vMS}, {WS}, s{sMc} offen {ST}\nbuffer_store_dword v9, v{vMS}, {WS}, s{sMH} offen sc1\ns_mov_b32 s{sMHp}, {OOB:#x}\nv_mov_b32 v8, 0\nbuffer_store_dword v8, off, {WS}, s{sRdW} {ST}")
    def arrive():
        e(f"s_lshl_b32 s{sT}, s{h}, 2\ns_add_u32 s{sT}, s{sT}, {WS_FLAG+F_BAR:#x}\ns_cmp_eq_u32 s{w}, 0\ns_cselect_b32 s{sT}, s{sT}, {OOB:#x}\nv_mov_b32 v4, 1\nbuffer_store_dword v4, off, {WS}, s{sT} {ST}")
    qkv_loads(0)
    tq = 0
    for ri, (mt, par) in enumerate(rounds):
        if ri == OPT.get('cr', 4): confirm_issue('v6', 8)
        HP = OPT.get('help')
        if HP and ri == HP[0]:
            e(f"s_and_b32 s{sT}, s{h}, 3\ns_cmp_eq_u32 s{sT}, 1\ns_cbranch_scc1 {Ln('nohelp')}\ns_lshr_b32 s{sT+1}, s{sT}, 1\ns_add_u32 s{sT+1}, s{sT+1}, s{sT}\ns_lshr_b32 s{sT+1}, s{sT+1}, 1")
            e(f"s_mul_i32 s{sT+1}, s{sT+1}, {44*1024}\ns_mul_i32 s{sT+2}, s{w}, {11*1024}\ns_add_u32 s{sT+1}, s{sT+1}, s{sT+2}\ns_andn2_b32 s{sT}, s{h}, 3\ns_or_b32 s{sT}, s{sT}, 1\ns_lshl_b32 s{sT}, s{sT}, 17\ns_add_u32 s{sT}, s{sT}, s{sT+1}")
            srd(40, P_WO, 0x400000)
            for k in range(11): e(f"buffer_load_dwordx3 {vr(JUNK,3)}, v{vL16}, {W}, s{sT} offen\ns_add_u32 s{sT}, s{sT}, 1024")
            e(f"{Ln('nohelp')}:")
        if ri + 1 < 6:
            qkv_loads(ri + 1); e("s_waitcnt vmcnt(16)")
        else:
            srd(40, P_WO, 0x400000); wo_loads(0); wo_loads(1); wo_loads(2); e("s_waitcnt vmcnt(24)")
        if OPT.get('tlw') and ri in (0, 1, 3, 5):
            TLV[0] = 15; TL(8 + (0, 1, 3, 5).index(ri), 0)
        if ri == OPT.get('cr', 4):
            confirm_check(40 + mode, 6, 8); init_handoff()
        if ri: e("s_waitcnt lgkmcnt(0)\ns_barrier")
        if ri == 1: report(40 + mode, 6)
        raw = RAW[ri & 1]
        for t in range(8):
            wd, tt = t >> 1, t & 1
            const = 0
            for wl in range(4):
                sg = 2 * wl + par
                const |= absslot(wd, plan[ri][(mt, tt, sg)]) << (8 * wl)
            e(f"s_lshr_b32 s{sT}, {const:#x}, s{sT+8}\ns_and_b32 s{sT}, s{sT}, 0xff\ns_lshl_b32 s{sT}, s{sT}, 11\nv_add_u32 v{vAD}, s{sT}, v{vL16}")
            for hf in range(2):
                q = TQ[tq % 3]; tq += 1
                for jl in range(4):
                    j2 = hf * 4 + jl
                    r0, r1 = raw + (j2 * 2) * 4 + (t >> 1), raw + (j2 * 2 + 1) * 4 + (t >> 1)
                    if mt == 'q':
                        tp_ = 96 + 2 * (jl & 1)
                        for k_, r_ in ((0, r0), (1, r1)):
                            e(f"v_and_b32 v{tp_+k_}, 0xffff0000, v{r_}" if t & 1 else f"v_lshlrev_b32 v{tp_+k_}, 16, v{r_}")
                        e(f"v_pk_mul_f32 v[{tp_}:{tp_+1}], v[{tp_}:{tp_+1}], s[{sC}:{sC+1}] op_sel_hi:[1,0]\nv_cvt_pk_bf16_f32 v{q+jl}, v{tp_}, v{tp_+1}")
                    else:
                        e(f"v_perm_b32 v{q+jl}, v{r1}, v{r0}, s{sHi if t&1 else sLo}")
                e(f"ds_write_b128 v{vAD}, {vr(q,4)} offset:{hf*1024}")
        e("s_waitcnt lgkmcnt(0)\ns_barrier")
        nrd = 0
        for f, s in plan[ri].items():
            if f in lds_slot: continue
            for hf in range(2):
                if s < 18: e(f"ds_read_b128 {rr(f,4*hf,4)}, v{vVW} offset:{s*2048+hf*1024}")
                else: e(f"ds_read_b128 {rr(f,4*hf,4)}, v{vTS} offset:{(s-18)*2048+hf*1024}")
                nrd += 1
                if nrd == 12: e("s_waitcnt lgkmcnt(4)")
    e("s_waitcnt lgkmcnt(0)\ns_barrier")
    arrive()
    for gi in range(4):
        kap, hf = gi >> 1, gi & 1
        if gi == 1: wo_loads(3)
        if gi == 2:
            e(f"s_mov_b32 s{sT}, {WS_FLAG+F_KV:#x}\nv_lshlrev_b32 v8, 2, v{vL16}\nbuffer_load_dword v8, v8, {WS}, s{sT} offen sc1")
            for k in range(4): e(f"buffer_load_dwordx3 {vr(JUNK,3)}, v{vL16}, {WS}, s{sPF} offen offset:{k*1024} sc1") if OPT.get('w0') else None
        e(f"s_waitcnt vmcnt({[16, 16, 9, 1][gi]})")
        raw = WRAW[gi % 3]
        for t in range(8):
            f = ('o', t, kap)
            q = reg[f][1] + 4 * hf if f in reg else TQ[t % 3]
            for jl in range(4):
                e(f"v_perm_b32 v{q+jl}, v{raw+(jl*2+1)*4+(t>>1)}, v{raw+(jl*2)*4+(t>>1)}, s{sHi if t&1 else sLo}")
            if f not in reg: e(f"ds_write_b128 v{vVW}, {vr(q,4)} offset:{lds_slot[f]*2048+hf*1024}")
    TL(2, 0); DTL(4, 14)
    if OPT.get('enc'): e('s_memrealtime s[98:99]\ns_waitcnt lgkmcnt(0)\ns_mov_b32 s86, s98')
    e(f"v_mov_b32 v3, 0\nv_lshlrev_b32 v4, 3, v0\nv_mov_b32 v6, 0\nv_mov_b32 v7, 0\nds_write_b64 v4, v[6:7] offset:{L_P-512}\nds_write_b64 v4, v[6:7] offset:{L_P+512}")
    e(f"v_and_b32 v3, 31, v0\nv_lshlrev_b32 v3, 2, v3\ns_mov_b32 s{sT}, {WS_FLAG+F_BAR:#x}")
    e(f"{Ln('bar')}:\nbuffer_load_dword v4, v3, {WS}, s{sT} offen sc1\ns_waitcnt vmcnt(0)\nv_cmp_ne_u32 vcc, 1, v4\ns_cbranch_vccz {Ln('bar_ok')}")
    fail_if_zero(10)
    e(f"s_branch {Ln('bar')}\n{Ln('bar_ok')}:")
    TL(3, 0)
    e(f"v_cmp_le_u32 vcc, 32, v8\ns_and_b32 s{sT}, vcc_lo, 0xffff\ns_ff0_i32_b32 s{sKv}, s{sT}")
    def kv_refresh(lab, code):
        e(f"{lab}:\ns_mov_b32 s{sT+2}, {WS_FLAG+F_KV:#x}\nv_lshlrev_b32 v{JUNK}, 2, v{vL16}\ns_waitcnt vmcnt(0)\nbuffer_load_dword v{JUNK}, v{JUNK}, {WS}, s{sT+2} offen sc1\ns_waitcnt vmcnt(0)")
        e(f"v_cmp_le_u32 vcc, 32, v{JUNK}\ns_and_b32 s{sT+2}, vcc_lo, 0xffff\ns_ff0_i32_b32 s{sKv}, s{sT+2}\ns_cmp_lt_u32 s{sT}, s{sKv}\ns_cbranch_scc1 {lab}_ok")
        fail_if_zero(code)
        e(f"s_branch {lab}\n{lab}_ok:")
    e(f"s_mov_b32 s{sTag}, 0\ns_mov_b32 s{sRedo}, 0\ns_mov_b32 s{sT}, 0\ns_mov_b32 s{sFlC}, {WS_FLAG+F_KV:#x}\ns_mov_b32 s{sOOB}, {OOB:#x}\ns_mov_b32 s{sFl}, s{sFlC}")
    e(f"s_cmp_lg_u32 s{sKv}, 0\ns_cbranch_scc1 {Ln('kv0')}_ok")
    kv_refresh(Ln('kv0'), 12)
    TL(4, 0); DTL(5, 14)
    if OPT.get('enc'): e('s_memrealtime s[98:99]\ns_waitcnt lgkmcnt(0)\ns_mov_b32 s92, s98')
    if OPT.get('dtl'): e('s_memtime s[92:93]\ns_waitcnt lgkmcnt(0)')
    if OPT.get('tl'): e("s_memtime s[92:93]\ns_waitcnt lgkmcnt(0)\ns_mov_b32 s94, 0")
    def kv_loads():
        r = []
        for j in range(4): r.append(f"buffer_load_dwordx4 {vr(KT+4*j,4)}, v{vKR}, {WS}, s{sSK} offen offset:{j*1024} sc1")
        for t in range(2): r.append(f"buffer_load_dwordx4 {vr(VT+4*t,4)}, v{vL16}, {WS}, s{sSV} offen offset:{t*1024} sc1")
        return r
    for x in kv_loads()[:4]: e(x)
    e(f"s_add_u32 s{sSK}, s{sSK}, {SEGS:#x}")
    if not OPT.get('vearly', 0):
        for x in kv_loads()[4:]: e(x)
        e(f"s_add_u32 s{sSV}, s{sSV}, {SEGS:#x}")
    warm = [f"buffer_load_dwordx3 {vr(JUNK,3)}, v{vL16}, {WS}, s{sPF} offen offset:{k*1024} sc1" for k in range(4)]
    e(f"s_add_u32 s{sPF}, s{sPF}, {SEGS:#x}")
    for x in warm: e(x)
    e(f"s_add_u32 s{sPF}, s{sPF}, {SEGS:#x}")
    FP_ = OPT.get('fprobe', 1)
    e(f"v_and_b32 v4, 31, v0\nv_lshlrev_b32 v{vSP2}, {2 if FP_ else 6}, v4")
    pcmp = lambda r: f"v_cmp_ne_u32 vcc, s{sStep}, v{r}" if FP_ else f"v_cmp_eq_u32 vcc, s{sSENT}, v{r}"
    X = OPT.get('x', ''); nc = 'nocomm' in X
    from asmlib import estimate
    mm = "v_mfma_f32_16x16x32_bf16"; m16 = "v_mfma_f32_16x16x16_bf16"
    cvt = lambda d, a, b: f"v_cvt_pk_bf16_f32 v{d}, v{a}, v{b}"
    add2 = lambda a: [f"v_add_f32 v{a}, v{a}, v{a+2}", f"v_add_f32 v{a+1}, v{a+1}, v{a+3}"]
    mul2 = lambda a: [f"v_mul_f32 v{a}, s{sC}, v{a}", f"v_mul_f32 v{a+1}, s{sC}, v{a+1}"]
    accof = {'q': (AQ0, AQ1), 'k': (AK0, AK1), 'v': (AV0, AV1)}
    ringslot = {f: i % 4 for i, f in enumerate(order[:12])}
    ringslot.update({f: (2, 3, 0, 1, 2, 3)[i] for i, f in enumerate(order[12:])})
    wtxt = lambda f, hf: f"ds_read_b128 {vr(VW+8*ringslot[f]+4*hf,4)}, v{vVW} offset:{lds_slot[f]*2048+hf*1024}"
    wreg = lambda f: vr(VW + 8 * ringslot[f], 8) if f in lds_slot else rr(f, 0, 8)
    stage = [wtxt(order[i], hf) for i in range(4) for hf in range(2)]
    zero_acc = [f"v_mov_b64 v[{AQ0+2*i}:{AQ0+2*i+1}], 0" for i in range(12)]
    SM = lambda f: f"v_smfmac_f32_16x16x64_bf16 {vr(accof[f[0]][f[1]],4)}, {vr(M+4*f[2],4)}, {wreg(f)}, v{vIDX}"
    STK, SMM, LA, OA = AQ0, AK1, AQ1, AK0
    PT = AQ1; KF = M; PM = AV0 + 2; RC = SMM + 2
    PLO, PHI, PAL, ONE4 = VW, VW + 4, VW + 8, VW + 12
    PRB, SENTQ = QF + 2, QF + 12
    LAND, SELQ, R = AQ0, QF, QF + 4
    mlo = f"s[{sMLO}:{sMLO+1}]"
    chainc = lambda a, j: '0' if j == 0 else vr(a, 4)
    pv_tok = [f"{mm} {vr(LA,4)}, {vr(ONE4,4)}, {vr(PAL,4)}, 0", f"{mm} {vr(OA,4)}, {vr(VT,4)}, {vr(PLO,4)}, 0",
              f"{mm} {vr(OA,4)}, {vr(VT+4,4)}, {vr(PHI,4)}, {vr(OA,4)}"]
    pv_mem = [f"{m16} {vr(LA,4)}, {vr(ONE4,2)}, {vr(PM,2)}, {vr(LA,4)}", f"{m16} {vr(OA,4)}, {vr(AV0,2)}, {vr(PM,2)}, {vr(OA,4)}"]
    zw = [f"v_mov_b64 v[{M+2*i}:{M+2*i+1}], 0" for i in range(16)]
    norm = [f"v_mul_f32 v{OA+r}, v{OA+r}, v{RC}" for r in range(4)] + [cvt(OA, OA, OA + 1), cvt(OA + 1, OA + 2, OA + 3)]
    ow = f"ds_write_b64 v{vOW}, {vr(OA,2)} offset:{L_O}"
    p2l = [f"buffer_load_dword v{LAND+i}, v{vRL}, {WS}, s{sRd[i]} offen sc1" for i in range(8)]
    shot = lambda r: [f"buffer_load_dword v{r}, v{vSP2}, {WS}, s{sRdR if FP_ else sMc} offen sc1", f"buffer_load_dwordx4 v{vL16}, {WS}, s{sMc} offen sc1 lds",
                      f"buffer_load_dwordx4 v{vL16}, {WS}, s{sMc} offen offset:1024 sc1 lds"]
    def pad(n):
        r = []
        while n > 0:
            k = min(n, 8); r.append(f"s_nop {k-1}"); n -= k
        return r
    dregs = list(range(4, 28, 2))
    NSW = OPT.get('nsw', [3, 3, 1, 1]); POST = OPT.get('post', [0, 0, 1, 1]); TOP1 = OPT.get('top1', 0); EX = OPT.get('ex', 5)
    e("s_waitcnt lgkmcnt(0)")
    for x in stage + zero_acc: e(x)
    e(f"s_lshl_b32 s{sT}, s{w}, 11\ns_add_u32 m0, s{sT}, {L_M}")
    e("s_waitcnt vmcnt(0)\ns_barrier")
    for k in range(1, 4): e(f"s_cmp_eq_u32 s{w}, {k}\ns_cbranch_scc1 {Ln('enter%d' % k)}")
    ta = {}
    for wv in range(4):
        Lw = lambda s: Ln(f"w{wv}_{s}")
        lds = []; vm = []; dn = []
        def WL(tag):
            k = max(i for i, t in enumerate(lds) if t == tag)
            return f"s_waitcnt lgkmcnt({min(len(lds) - 1 - k, 15)})"
        def WV(tag):
            k = max(i for i, t in enumerate(vm) if t == tag)
            return f"s_waitcnt vmcnt({len(vm) - 1 - k})"
        def DS(name):
            if OPT.get('one'):
                if name == 'wo_end':
                    if OPT['one'] == name: e("s_memtime s[6:7]")
                    e("s_waitcnt lgkmcnt(0)\ns_sub_u32 s6, s6, s4\ns_cmp_gt_u32 s{0}, 4\ns_cselect_b32 s6, s6, 0\ns_add_u32 s94, s94, s6\ns_memtime s[4:5]".format(sStep))
                elif OPT['one'] == name: e("s_memtime s[6:7]")
                return
            if not OPT.get('dst'): return
            e(f"{'s_memrealtime' if OPT.get('real') else 's_memtime'} s[{dregs[len(dn)]}:{dregs[len(dn)]+1}]"); dn.append(name)
        class Op:
            def __init__(s, txt, tag=None, wait=None, vwait=None): s.txt, s.tag, s.wait, s.vwait = txt, tag, wait, vwait
            def out(s):
                if s.wait is not None: return WL(s.wait)
                if s.vwait is not None: return WV(s.vwait)
                if s.txt.startswith('ds_'): lds.append(s.tag)
                if s.txt.startswith('buffer_'): vm.append(s.tag)
                return s.txt
        E = lambda x, tag=None: e(Op(x, tag).out())
        rd = lambda dst, a, off, tag: Op(f"ds_read_b128 {vr(dst,4)}, v{a} offset:{off}", tag)
        wt = lambda tag: Op("s_waitcnt lgkmcnt(0)", wait=tag)
        wtv = lambda tag: Op("s_waitcnt vmcnt(0)", vwait=tag)
        tacost = lambda t: (20 if 'store_dwordx4' in t else 16 if 'x4' in t or 'x2' in t or 'x3' in t else 6) if t.startswith('buffer_') else 0
        class Sched:
            def __init__(s, bb, book=False): s.bb = bb; s.g = [([], [], []) for _ in bb]; s.book = book
            def kind(s, x):
                t = x.txt
                return 2 if t.startswith('v_') and not t.startswith('v_cmp_') else (1 if t.startswith(('ds_', 'buffer_')) else 0)
            def over(s, g, extra=None):
                parts = [list(p) for p in s.g[g]]
                if extra: parts[s.kind(extra)].append(extra)
                ws = [x for x in parts[0] if x.wait is not None]
                parts[0] = ws[:1] + [x for x in parts[0] if x.wait is None]
                ls = [s.bb[g]] + [x.txt for p in parts for x in p] + [s.bb[g]]
                return estimate(ls)[-1] - 16
            def fix(s, g, *xs):
                for x in xs:
                    x = x if isinstance(x, Op) else Op(x)
                    s.g[g][s.kind(x)].append(x)
                    if s.book: ta[g] = ta.get(g, 0) + tacost(x.txt)
            def flex(s, lo, hi, x):
                x = x if isinstance(x, Op) else Op(x)
                c = tacost(x.txt)
                busy = lambda g: max(0, ta.get(g, 0) + c - 20) if c else 0
                crowd = lambda g: (4 if x.txt.startswith('ds_') and any(y.txt.startswith('ds_') for y in s.g[g][1]) else 0)
                best = min(range(lo, hi + 1), key=lambda g: (s.over(g, x) - s.over(g) + busy(g) + crowd(g), g))
                s.fix(best, x); return best
            def emit(s, names=None):
                for g, ins in enumerate(s.bb):
                    e(ins)
                    if names and (g in OPT.get('dst', []) or OPT.get('one')): DS(names % g)
                    ws = [x.out() for x in s.g[g][0] if x.wait is not None]
                    if ws: e(min(ws, key=lambda t: int(t[t.index('(')+1:-1])))
                    for p in s.g[g]:
                        for x in p:
                            if x.wait is None: e(x.out())
        kvl = kv_loads()
        if 'kv' in X: kvl = ['s_nop 0'] * 6
        if 'noK' in X: kvl[:4] = ['s_nop 0'] * 4
        if 'noV' in X: kvl[4:] = ['s_nop 0'] * 2
        if 'KVplain' in X: kvl = [x.replace(' sc1', '') for x in kvl]
        NS = NSW[wv]; PR0 = [PRB, PRB + 1, QF + 8, QF + 9][:NS]
        attop = wv == 0 or (wv == 1 and TOP1)
        e(f"{Ln('enter%d' % wv)}:")
        PRE = POST[wv] == 2
        if not POST[wv]:
            for r in PR0:
                for x in shot(r): e(x)
        if PRE:
            for x in shot(PRB + 1): e(x)
        e("s_waitcnt vmcnt(0)\n.p2align 6")
        e(f"{Lw('step')}:")
        loop0 = len(e.l)
        DS('top')
        probe_bad = lambda r, lab: [pcmp(r), f"s_cbranch_vccnz {Lw(lab)}" if not nc else "s_nop 0"]
        if not POST[wv]: vm += ['probe', 'dma0', 'dma'] + ['x'] * (3 * NS - 3)
        if PRE: vm += ['probe1', 'x', 'dma1']
        if attop:
            NR0 = [OPT.get('rw', 4), 8 - OPT.get('rw', 4)][wv] if OPT.get('fo', 1) and OPT.get('rk') == 8 else 0
            vm += ['x'] * NR0
            e(f"s_waitcnt vmcnt({3*NS-1+NR0}) lgkmcnt(0)")
            for x in probe_bad(PR0[0], 'spinA'): e(x)
            DS('hit'); e(f"s_waitcnt vmcnt({3*NS-3+NR0})\n{Lw('hit')}:"); DS('landed')
        else:
            e("s_waitcnt lgkmcnt(0)")
        e("s_barrier")
        DS('b1a')
        mrd = lambda sg: rd(M + 4 * sg, vL16, L_M + sg * 1024, ('m', sg))
        e(mrd(0).out()); e(mrd(1).out())
        PG = OPT.get('pg', -1)
        if POST[wv] and PG < 0:
            assert NS == 1
            for x, tg in zip(shot(PRB), ('probe', 'dma0', 'dma')): E(x, tg)
        e(WL(('m', 0)))
        gK1 = len(fr) - 1; gK0, gQ1, gQ0 = gK1 - 4, gK1 - 8, gK1 - 12
        gqw = gQ1 + 4; gSt = max(gqw + 2 * EX, gK1 + 1)
        gkw = gK1 + 5 + OPT.get('kp', 0); gSm = max(gkw + 2 * EX, gSt + 4)
        gpw = gSt + 8; gPv = max(gpw + 2 * EX - 1, gSm + 8)
        bb = [SM(f) for f in fr]; vs = list(vrest)
        def upto(g):
            while len(bb) < g: bb.append(SM(vs.pop(0)) if vs else 's_nop 0')
        upto(gSt); bb += [f"{mm} {vr(STK,4)}, {vr(KT+4*j,4)}, {vr(QF+4*j,4)}, {chainc(STK,j)}" for j in range(4)]
        upto(max(gSm, gPv - 4 - max(0, len(vs) - (gSm - len(bb))) if False else gSm))
        bb += [f"{mm} {vr(SMM,4)}, {vr(KF+4*j,4)}, {vr(QF+4*j,4)}, {chainc(SMM,j)}" for j in range(4)]
        gPv = max(gPv, len(bb) + len(vs))
        upto(gPv); bb += pv_tok + pv_mem
        gof = {f: bb.index(SM(f)) for f in fr + vrest}
        sc = Sched(bb, True)
        g2, g4 = gof[('q', 0, 2)], gof[('q', 0, 4)]
        b1b, b1c = g2 - 5, g4 - 5
        sc.fix(1, wt(('m', 1)))
        gmine = b1b if wv == 1 else b1c
        late2 = {}
        if POST[wv] and PG >= 0:
            for k_, (x, tg) in enumerate(zip(shot(PRB), ('probe', 'dma0', 'dma'))): sc.fix(PG + (k_ + 1) // 2, Op(x, tg))
        if PRE:
            class Mark(Op):
                def out(s_):
                    late2['p'] = WV('probe'); late2['d'] = WV('dma'); return s_.txt
            sc.fix(gmine - 1, wtv('probe1'), probe_bad(PRB + 1, 'second')[0], Mark(probe_bad(PRB + 1, 'second')[1])); sc.g[gmine - 1][0].append(Op(f"{Lw('hit')}:"))
            sc.fix(gmine, wtv('dma1'))
        elif not attop:
            sc.fix(gmine - 1, wtv('probe'), *probe_bad(PRB, 'spin1')); sc.g[gmine - 1][0].append(Op(f"{Lw('hit')}:"))
            sc.fix(gmine, wtv('dma'))
        if TOP1: sc.fix(0, mrd(2)); sc.fix(1, mrd(3))
        else: sc.fix(b1b, "s_barrier", mrd(2)); sc.fix(b1b + 1, mrd(3))
        sc.fix(g2 - 1, wt(('m', 2))); sc.fix(g2 + 3, wt(('m', 3)))
        sc.fix(b1c, "s_barrier", mrd(4)); sc.fix(b1c + 1, mrd(5)); sc.fix(b1c + 2, mrd(6)); sc.fix(b1c + 3, mrd(7))
        for k in range(4): sc.fix(g4 - 1 + k, wt(('m', 4 + k)))
        sc.fix(gQ0 + 2, add2(AQ0)[0]); sc.fix(gQ0 + 3, add2(AQ0)[1])
        sc.fix(gQ1 + 2, *add2(AQ1)); sc.fix(gQ1 + 3, cvt(AQ0, AQ0, AQ1), cvt(AQ0 + 1, AQ0 + 1, AQ1 + 1))
        sc.fix(gqw, Op(f"ds_write2_b32 v{vXW}, v{AQ0}, v{AQ0+1} offset0:0 offset1:4", 'qw'))
        gqb = gqw + EX
        sc.fix(gqb, wt('qw'), "s_barrier")
        for j in range(4): sc.fix(gqb + j, rd(QF + 4 * j, vQR, L_X + 1024 * j, ('qf', j))); sc.fix(gSt - 1 + j, wt(('qf', j)))
        sc.flex(gK0 + 2, gK1 + 1, add2(AK0)[0]); sc.flex(gK0 + 2, gK1 + 1, add2(AK0)[1])
        if OPT.get('kp', 0) == 0: sc.fix(gK1 + 2, add2(AK1)[0]); sc.fix(gK1 + 3, add2(AK1)[1], cvt(AK0, AK0, AK1)); sc.fix(gK1 + 4, cvt(AK0 + 1, AK0 + 1, AK1 + 1))
        else: sc.fix(gK1 + 2, add2(AK1)[0]); sc.fix(gK1 + 3, add2(AK1)[1]); sc.fix(gK1 + 4, cvt(AK0, AK0, AK1)); sc.fix(gK1 + 5, cvt(AK0 + 1, AK0 + 1, AK1 + 1))
        sc.fix(gkw, Op(f"ds_write2_b32 v{vXW}, v{AK0}, v{AK0+1} offset0:128 offset1:132", 'kw'))
        sc.fix(gkw + EX, wt('kw'), "s_barrier")
        for j in range(4):
            gj = max(gkw + EX + j, gof[('v', 1, j)])
            sc.fix(gj, rd(KF + 4 * j, vKR, L_X + 512 + 1024 * j, ('kf', j)))
            sc.fix(gSm - 1 + j, wt(('kf', j)))
        sc.fix(gSt + 5, f"v_exp_f32 v{PT}, v{STK}"); sc.fix(gSt + 6, f"v_exp_f32 v{PT+1}, v{STK+1}"); sc.fix(gSt + 7, cvt(PT, PT, PT + 1))
        sc.fix(gpw, Op(f"ds_write_b32 v{vQR}, v{PT} offset:{L_P+wv*4}", 'pw'))
        gpb = gpw + EX - 1
        sc.fix(gpb, wt('pw'), "s_barrier", rd(PAL, vQR, L_P, 'pal')); sc.fix(gpb + 1, rd(PLO, vPR, L_P, 'plo')); sc.fix(gpb + 2, rd(PHI, vPR, L_P - 512, 'phi'))
        sc.fix(gPv - 1, wt('pal')); sc.fix(gPv, wt('plo')); sc.fix(gPv + 1, wt('phi'))
        gV0 = max(gof[('v', 0, s)] for s in range(8))
        a = sc.flex(gV0 + 2, gPv - 2, add2(AV0)[0]); b = sc.flex(gV0 + 2, gPv - 2, add2(AV0)[1]); sc.flex(max(a, b) + 1, gPv - 1, cvt(AV0, AV0, AV0 + 1))
        sc.fix(gSm + 5, f"v_exp_f32 v{SMM+2}, v{SMM}"); sc.fix(gSm + 6, f"v_exp_f32 v{SMM+3}, v{SMM+1}"); sc.fix(gSm + 7, cvt(SMM + 2, SMM + 2, SMM + 3))
        sc.fix(gPv, f"v_cndmask_b32 v{PM}, 0, v{SMM+2}, {mlo}", f"v_cndmask_b32 v{PM+1}, v{SMM+2}, 0, {mlo}")
        sc.fix(gPv + 1, *add2(AV1)); sc.fix(gPv + 2, cvt(AV0 + 1, AV1, AV1 + 1), zw[0])
        sc.fix(gPv + 3, zw[1], zw[2]); sc.fix(gPv + 4, zw[3], zw[4])
        last = {k: gof[order[k]] for k in range(4)}; prev = 0
        for f in order[4:14]:
            use = gof.get(f, gPv + 4); lo = max(last[ringslot[f]], prev)
            a = sc.flex(lo, use - 5, Op(wtxt(f, 0), (f, 0))); prev = sc.flex(a, use - 4, Op(wtxt(f, 1), (f, 1)))
            if f in gof: sc.fix(use - 1, wt((f, 1)))
            last[ringslot[f]] = use
        sc.flex(last[1], gPv - 2, f"v_mov_b64 {vr(ONE4,2)}, s[{sONE}:{sONE+1}]"); sc.flex(last[1], gPv - 2, f"v_mov_b64 {vr(ONE4+2,2)}, s[{sONE}:{sONE+1}]")
        lo = (gmine + 1 if not attop and NS > 1 else OPT.get('kv0', 1))
        VE = OPT.get('vearly', 0)
        if VE:
            for j in (4, 5): lo = sc.flex(lo, max(lo, 4 + j), Op(kvl[j], ('kv', j))) + 1
            if 'kv' not in X and 'noV' not in X: sc.fix(gPv - 2, wtv(('kv', 5)))
        q0 = max(lo, OPT.get('q0', 1))
        lo = gSt + 1
        for j in range(4): lo = sc.flex(max(lo, gSt + j), gPv - 4 + j, kvl[j]) + 1
        RP = 0
        RK = OPT.get('rk', 1)
        SQ = QF + 12 - (4 if RK == 4 else 0)
        if RK == 0:
            a = sc.flex(0, 8, f"v_mov_b32 v{SQ}, s{sSENT}")
        elif RK != 8: a = sc.flex(0, q0, f"v_mov_b64 {vr(SQ,2)}, s[{sSENT}:{sSENT+1}]")
        if RK == 4:
            a = max(a, sc.flex(0, q0, f"v_mov_b64 {vr(SQ+2,2)}, s[{sSENT}:{sSENT+1}]")); sc.flex(0, 4, f"s_add_u32 s{sT+3}, s{sPn}, {wv*2048}")
            rs = [f"buffer_store_dwordx4 {vr(SQ,4)}, v{vL16}, {WS}, s{sT+3} offen offset:{o} {ST}" for o in (0, 1024)]
        elif RK == 8:
            SQ = M + 4
            hrs = [f"s_add_u32 s{sT+3}, s{sPp}, {wv*(1024*OPT.get('rw', 4) if OPT.get('fo', 1) else 2048)}", f"s_add_u32 s{sT+5}, s{sT+3}, 4096", f"v_mov_b64 {vr(SQ,2)}, s[{sSENT}:{sSENT+1}]", f"v_mov_b64 {vr(SQ+2,2)}, s[{sSENT}:{sSENT+1}]"]
            hst = [f"buffer_store_dwordx4 {vr(SQ,4)}, v{vL16}, {WS}, s{sT+3} offen offset:{o} {ST}" for o in (0, 1024)] + [f"buffer_store_dword v{SQ}, v{vMS}, {WS}, s{sMp} offen {ST}"]
            rs = []
            if OPT.get('r2') is not None:
                n2_ = OPT['r2']
                hrs[0] = f"s_add_u32 s{sT+3}, s{sPp}, {n2_*1024 if wv == 3 else 0}"
                hst = [f"buffer_store_dwordx4 {vr(SQ,4)}, v{vL16}, {WS}, s{sT+3+2*(o>>2)} offen offset:{(o&3)*1024} {ST}" for o in range([0, 0, n2_, 8 - n2_][wv])]
                a = sc.flex(0, 8, f"v_mov_b32 v{QF+12}, s{sSENT}"); sc.flex(a + 1, 24, f"buffer_store_dword v{QF+12}, v{vMS}, {WS}, s{sMp} offen {ST}")
            if OPT.get('fo', 1):
                hst = [f"buffer_store_dwordx4 {vr(SQ,4)}, v{vL16}, {WS}, s{sT+3+2*(o>>2)} offen offset:{(o&3)*1024} {ST}" for o in range([OPT.get('rw', 4), 8 - OPT.get('rw', 4), 0, 0][wv])]
                a = sc.flex(0, 8, f"v_mov_b32 v{QF+12}, s{sSENT}"); sc.flex(max(a + 1, PG + 2), 24, f"buffer_store_dword v{QF+12}, v{vMS}, {WS}, s{sMp} offen {ST}")
        elif RK == 0: rs = []
        else:
            sc.flex(0, 4, f"s_add_u32 s{sT+3}, s{sPn}, 4096")
            rs = [f"buffer_store_dword{'x2' if RK == 2 else ''} {vr(SQ,RK)}, v{vP8}, {WS}, s{sPn if tp < 2 else sT+3} offen offset:{(tp&1)*2048+o} {ST}" for tp in range(4) for o in ((0,) if RK == 2 else (0, 4))]
        if RK != 8: rs.append(f"buffer_store_dword v{SQ}, v{vMS}, {WS}, s{sMp} offen {ST}")
        for x in rs: sc.flex(max(a + 1, OPT.get('qr', 18)), gqb - 1, x)
        if 'pub' not in X: sc.flex(q0, q0 + 6, f"buffer_store_dword v{R}, v{vMS}, {WS}, s{sMHp} offen sc1")
        if 'pf' not in X:
            lo = max(OPT.get('qp', 0), PG + 2 if PG >= 0 else 0)
            for k in range(4): lo = sc.flex(lo, lo + 5, warm[k]) + OPT.get('pfs', 1)
            sc.flex(0, lo - 1, f"v_lshlrev_b32 v{QF+14}, 2, v{vL16}")
            sc.flex(lo, lo + 5, f"buffer_load_dword v{JUNK}, v{QF+14}, {WS}, s{sFl} offen sc1")
        if OPT.get('lat'):
            key = {'pf': f"s{sPF} offen offset:3072", 'K': f"s{sSK} offen offset:3072", 'V': f"s{sSV} offen offset:1024"}[OPT['lat']]
            for g in range(len(bb)):
                for k, x in enumerate(sc.g[g][1]):
                    if key in x.txt:
                        sc.g[g][1].insert(k, Op("s_waitcnt vmcnt(0) lgkmcnt(0)\ns_memtime s[4:5]\ns_waitcnt lgkmcnt(0)"))
                        sc.g[g][1].insert(k + 2, Op("s_waitcnt vmcnt(0)\ns_memtime s[6:7]\ns_waitcnt lgkmcnt(0)\ns_sub_u32 s6, s6, s4\n" + ("s_max_u32 s94, s94, s6" if OPT.get('latmax') else "s_add_u32 s94, s94, s6")))
                        break
        sc.emit('g%d')
        DS('pv_end'); e(f"v_rcp_f32 v{RC}, v{LA}"); DS('rcp'); e(zw[5]); e(zw[6])
        for x in norm: e(x)
        DS('ow'); E(ow, 'ow')
        e(f"v_subrev_u32 v{RC+1}, s{sLlo}, v{LA}\nv_cmp_lt_u32 vcc, s{sLrg}, v{RC+1}")
        e(zw[7]); e(zw[8])
        if not nc: e(f"s_cbranch_vccnz {Lw('fb')}")
        e(f"{Lw('fbret')}:")
        if not VE: e(kvl[4]); e(kvl[5])
        if RP: e(rs[0]); e(rs[2]); e(zw[9])
        else:
            for x in zw[9:12]: e(x)
        e("s_waitcnt lgkmcnt(0)"); DS('owdone'); e("s_barrier"); DS('b4')
        E(f"ds_read_b128 {vr(QF,4)}, v{vL16} offset:{L_O}", 'o0'); E(f"ds_read_b128 {vr(QF+4,4)}, v{vL16} offset:{L_O+1024}", 'o1')
        DS('o_rd')
        if RP: e(rs[1]); e(zw[10]); e(zw[11])
        else:
            for x in zw[12:16]: e(x)
        DS('wo_pre')
        wa = lambda t: add2(M + 4 * t)
        wc = lambda d: cvt(QF + 8 + d, M + 8 * (d >> 1) + (d & 1), M + 8 * (d >> 1) + 4 + (d & 1))
        tg = lambda tp: [f"v_bfi_b32 v{QF+8+2*tp+k}, 1, s{sTag}, v{QF+8+2*tp+k}" for k in range(2)] if RK == 0 else []
        pst = lambda tp: f"buffer_store_dwordx2 {vr(QF+8+2*tp,2)}, v{vP8}, {WS}, s{sPc if tp < 2 else sT+4} offen offset:{(tp&1)*2048} {ST}"
        wo = [f"v_smfmac_f32_16x16x64_bf16 {vr(M+4*(u>>1),4)}, {vr(QF+4*(u&1),4)}, {wreg(('o',u>>1,u&1))}, v{vIDX}" for u in range(16)]
        so = Sched(wo)
        e(WL('o0')); DS('o_w')
        so.fix(0, wt('o1')); so.fix(1, f"s_add_u32 s{sT+4}, s{sPc}, 4096")
        for f, g in ((order[16], 5), (order[17], 7)):
            so.fix(g + (g == 5) * 2 + (g == 7), Op(wtxt(f, 0), (f, 0))); so.fix(g + (g == 5) * 3 + (g == 7) * 2, Op(wtxt(f, 1), (f, 1)))
        for k in range(4): so.fix(k, Op(wtxt(order[14 + k // 2], k & 1), (order[14 + k // 2], k & 1)))
        for f in order[14:18]: so.fix(2 * f[1], wt((f, 1)))
        if RP:
            so.fix(0, zw[12]); so.fix(1, zw[13]); so.fix(2, zw[14]); so.fix(10 if OPT.get('wo1') else 4, zw[15])
        if OPT.get('wo1', 0) == 0:
            so.fix(3, *wa(0)); so.fix(5, *(wa(1) + [wc(0), wc(1)] + tg(0))); so.fix(6, pst(0))
            so.fix(7, wa(2)[0]); so.fix(8, wa(2)[1]); so.fix(9, *wa(3)); so.fix(10, wc(2), wc(3), *tg(1)); so.fix(11, pst(1))
            so.fix(12, wa(4)[0]); so.fix(13, wa(4)[1]); so.fix(14, wa(5)[0])
            tail = [wa(5)[1], wc(4), wc(5)] + tg(2) + [pst(2)] + wa(6) + wa(7) + [wc(6), wc(7)] + tg(3) + [pst(3)]
        else:
            so.fix(3, wa(0)[0]); so.fix(4, wa(0)[1]); so.fix(5, wa(1)[0]); so.fix(6, wa(1)[1]); so.fix(7, wc(0), wc(1), *(tg(0) + wa(2)))
            so.fix(8, pst(0), *(wa(3) + [wc(2), wc(3)] + tg(1))); so.fix(9, pst(1))
            so.fix(11, wa(4)[0]); so.fix(12, wa(4)[1]); so.fix(13, wa(5)[0]); so.fix(14, wa(5)[1])
            tail = [wc(4), wc(5)] + tg(2) + [pst(2)] + wa(6) + wa(7) + [wc(6), wc(7)] + tg(3) + [pst(3)]
        gp2 = OPT.get('gp2', 13)
        assert gp2 > 11
        early = wv == 0 and gp2 < 50
        if early:
            for k in range(8):
                if gp2 + k // 2 < 16: so.fix(gp2 + k // 2, p2l[k])
        so.emit('u%d' if OPT.get('one') else None)
        if early:
            for k in range(8):
                if gp2 + k // 2 >= 16: e(p2l[k])
        FO = OPT.get('fo', 1)
        for x in tail:
            if not (FO and x in (pst(2), pst(3))): e(x)
        DS('wo_end')
        sel = [f"v_mov_b32 v{SELQ+d}, v{vSEL}" for d in range(4)]
        rot = [f"s_mov_b32 s{sT}, s{sMp}", f"s_mov_b32 s{sMp}, s{sMc}", f"s_mov_b32 s{sMc}, s{sMn}", f"s_mov_b32 s{sMn}, s{sT}",
               f"s_add_u32 s{sMH}, s{sMH}, 8192", f"s_mov_b32 s{sMHp}, s{sMH}", f"s_add_u32 s{sStep}, s{sStep}, 1"]
        free = zero_acc[4:] + stage + [f"s_sub_u32 s{sDl}, s{sPn}, s{sPc}", f"s_mov_b32 s{sT+2}, s{sPp}",
                f"s_mov_b32 s{sPp}, s{sPc}", f"s_mov_b32 s{sPc}, s{sPn}", f"s_mov_b32 s{sPn}, s{sPp if RK == 0 else sT+2}",
                f"s_add_u32 s{sPF}, s{sPF}, {SEGS:#x}", f"s_mov_b32 s{sRedo}, 0",
                f"s_add_u32 s{sSK}, s{sSK}, {0 if 'KVfix' in X else SEGS}", f"s_add_u32 s{sSV}, s{sSV}, {0 if 'KVfix' in X else SEGS}"]
        kvn = [f"v_cmp_le_u32 vcc, 32, v{JUNK}", f"s_and_b32 s{sT}, vcc_lo, 0xffff", f"s_ff0_i32_b32 s{sT}, s{sT}", f"s_max_u32 s{sKv}, s{sKv}, s{sT}",
               f"s_add_u32 s{sT}, s{sStep}, {OPT.get('la', 4)}", f"s_lshr_b32 s{sT}, s{sT}, 2", f"s_min_u32 s{sT}, s{sT}, 15", f"s_cmp_lt_u32 s{sT}, s{sKv}",
               f"s_cselect_b32 s{sFl}, s{sOOB}, s{sFlC}", f"s_add_u32 s{sT}, s{sStep}, 2", f"s_lshr_b32 s{sT}, s{sT}, 2", f"s_min_u32 s{sT}, s{sT}, 15", f"s_cmp_lt_u32 s{sT}, s{sKv}", f"s_cbranch_scc0 {Lw('kvwait')}\n{Lw('kvok')}:"]
        dA = OPT.get('dA', [0, 0, 12, 34])[wv]; dB = OPT.get('dB', [30, 36, 36, 36])[wv]; dC = OPT.get('dC', 16)
        gaps = [0 if POST[wv] == 1 else dB] + [dC] * (len(PR0) - 1)
        late = zero_acc[:4] + kvn + [f"v_add_u32 v{vRL}, s{sDl}, v{vRL}", f"s_bfe_i32 s{sTag}, s{sStep}, 0x10001"]
        nA = min(dA, len(free)); partA = free[:nA]; rest = free[nA:]
        want = max(0, sum(gaps) - len(late)); keep = rest[max(0, len(rest) - want):] if want else []
        mid = rest[:len(rest) - len(keep)]
        after = late[:4] + keep + late[4:]
        if RK == 8:
            for x in hrs: e(x)
        if FO and wv >= 2:
            e("s_barrier"); e(pst(2)); e(pst(3))
        for x in partA + pad(dA - nA - (4 if RK == 8 else 0)): e(x)
        DS('p2top')
        if not early:
            for x in p2l: e(x)
        if FO and wv < 2:
            e("s_barrier"); e(pst(2)); e(pst(3))
        if RK == 8 and not FO:
            for x in hst: e(x)
        for x in rot + sel + [f"v_mov_b32 v{M+2}, s{sStep}"] + mid: e(x)
        yo = (2 if wv < 2 else 0) if FO else (2 if early else 0) + (len(hst) if RK == 8 else 0)
        e(f"s_waitcnt vmcnt({4+yo})")
        e(f"{Lw('p2w')}:"); DS('p2w')
        if RK == 0:
            bo = lambda d, x, y, z, t: f"v_bitop3_b32 v{d}, {x}, {y}, {z} bitop3:{t:#x}"
            e(f"{mm} {vr(R,4)}, {vr(SELQ,4)}, {vr(LAND,4)}, 0\n{bo(M, f'v{LAND}', f'v{LAND+1}', f's{sTag}', 0x7e)}\n{bo(M+1, f'v{LAND+2}', f'v{LAND+3}', f's{sTag}', 0x7e)}\ns_waitcnt vmcnt({yo})")
            e(f"{mm} {vr(R,4)}, {vr(SELQ,4)}, {vr(LAND+4,4)}, {vr(R,4)}\n{bo(M+3, f'v{LAND+4}', f'v{LAND+5}', f's{sTag}', 0x7e)}\n{bo(M+4, f'v{LAND+6}', f'v{LAND+7}', f's{sTag}', 0x7e)}")
            e(f"v_or3_b32 v{M}, v{M}, v{M+1}, v{M+3}\n{bo(M, f'v{M}', f'v{M+4}', '1', 0xa8)}\nv_cmp_ne_u32 vcc, 0, v{M}")
            if not nc: e(f"s_cbranch_vccnz {Lw('p2retry')}")
        else:
            e(f"{mm} {vr(R,4)}, {vr(SELQ,4)}, {vr(LAND,4)}, 0\nv_max3_i32 v{M}, v{LAND}, v{LAND+1}, v{LAND+2}\ns_waitcnt vmcnt({yo})")
            e(f"{mm} {vr(R,4)}, {vr(SELQ,4)}, {vr(LAND+4,4)}, {vr(R,4)}\nv_max3_i32 v{M+1}, v{LAND+3}, v{LAND+4}, v{LAND+5}\nv_max3_i32 v{M}, v{M}, v{LAND+6}, v{LAND+7}\nv_max_i32 v{M}, v{M}, v{M+1}")
            e(f"v_cmp_le_i32 vcc, s{sInf}, v{M}")
            if not nc: e(f"s_cbranch_vccnz {Lw('p2slow')}")
        e(f"{Lw('p2ok')}:"); DS('p2ok')
        e(cvt(R, R, R + 1))
        e(f"buffer_store_dword v{R}, v{vMS}, {WS}, s{sMc} offen {ST}")
        DS('mstore')
        e(f"s_cmp_eq_u32 s{sStep}, 63\ns_cbranch_scc1 {Ln('fin')}")
        if FP_:
            fd = OPT.get('fd', 0)
            after.insert(fd, f"buffer_store_dword v{M+2}, off, {WS}, s{sRdW} {ST}")
        for k, r in enumerate(PR0):
            part = after[:gaps[k]] if k < len(PR0) - 1 else after
            after = after[len(part):]
            for x in part + ([] if POST[wv] == 1 else pad(gaps[k] - len(part))): e(x)
            if k == 0: DS('shot1')
            if POST[wv] != 1:
                for x in shot(PRB + 1 if PRE else r): e(x)
        NR = len(hst) if (FO and RK == 8) else 0
        for x in (hst if NR else []): e(x)
        if OPT.get('est') == wv and mode == 0:
            ls = e.l[loop0:]
            for tt, x in zip(estimate(ls), ls): print(tt, x)
        DS('end') if OPT.get('one') else None
        if OPT.get('prof') and wv == 3:
            e(f"{'s_memtime' if OPT['prof'] == 2 else 's_memrealtime'} s[98:99]\ns_lshl_b32 s97, s{h}, 8\ns_lshl_b32 s96, s{sStep}, 2\ns_add_u32 s97, s97, s96\ns_add_u32 s97, s97, {WS_STAMP + 0x10000:#x}\ns_waitcnt lgkmcnt(0)\nv_mov_b32 v{M}, s98\nbuffer_store_dword v{M}, off, {WS}, s97")
        if OPT.get('dst'):
            DS('end')
            e(f"s_cmp_eq_u32 s{sStep}, 40\ns_cbranch_scc0 {Lw('step')}\ns_waitcnt lgkmcnt(0)")
            e(f"s_lshl_b32 s{sT}, s{h}, 2\ns_add_u32 s{sT}, s{sT}, s{w}\ns_lshl_b32 s{sT}, s{sT}, 7\ns_add_u32 s{sT}, s{sT}, {WS_STAMP:#x}")
            e("s_waitcnt vmcnt(0)")
            for k in range(len(dn)): e(f"v_mov_b32 v{M}, s{dregs[k]}\nbuffer_store_dword v{M}, off, {WS}, s{sT} offset:{4*k}")
            e("s_waitcnt vmcnt(0)")
            if mode == 0: open('dst_names.txt', 'w').write(' '.join(dn))
        e(f"s_branch {Lw('step')}")
        cnt = lambda inc: e(f"s_add_u32 s94, s94, {inc:#x}") if OPT.get('tl') and not OPT.get('one') and not OPT.get('lat') else None
        if PRE:
            e(f"{Lw('second')}:"); cnt(1)
            e(f"{late2['p']}\n{pcmp(PRB)}\ns_cbranch_vccnz {Lw('spin1')}\n{late2['d']}\ns_branch {Lw('hit')}")
        if attop:
            e(f"{Lw('spinA')}:")
            for k in range(NS):
                cnt(1)
                for x in shot(PR0[k]): e(x)
                if k < NS - 1: e(f"s_waitcnt vmcnt({3*NS-1+NR0})\n{pcmp(PR0[k+1])}\ns_cbranch_vccz {Lw('spunA')}")
            e(f"s_branch {Lw('spin0')}\n{Lw('spunA')}:\ns_waitcnt vmcnt({3*NS-3+NR0})\ns_branch {Lw('hit')}")
        e(f"{Lw('spin0')}:")
        e(f"s_waitcnt vmcnt({3*NS-1})\n{pcmp(PR0[0])}\ns_cbranch_vccz {Lw('spun')}")
        e(f"{Lw('spin1')}:")
        for k in range(NS):
            cnt(1)
            for x in shot(PR0[k]): e(x)
            if k < NS - 1: e(f"s_waitcnt vmcnt({3*NS-1})\n{pcmp(PR0[k+1])}\ns_cbranch_vccz {Lw('spun')}")
        fail_if_zero(12)
        e(f"s_branch {Lw('spin0')}")
        e(f"{Lw('spun')}:\ns_waitcnt vmcnt({3*NS-3})\ns_branch {Lw('hit')}")
        e(f"{Lw('redo')}:")
        cnt(0x400)
        e(f"s_mov_b32 s{sRedo}, 1\ns_mov_b32 s{sMHp}, {OOB:#x}\ns_sub_u32 s{sSK}, s{sSK}, {SEGS:#x}")
        for x in kv_loads()[:4]: e(x)
        e(f"s_add_u32 s{sSK}, s{sSK}, {SEGS:#x}")
        e(f"{Lw('redo1')}:\ns_waitcnt vmcnt(0) lgkmcnt(0)\ns_barrier")
        fail_if_zero(13)
        for x in shot(PRB)[1:]: e(x)
        e("s_waitcnt vmcnt(0)\ns_barrier")
        for k in range(8): e(f"ds_read_b128 {vr(M+4*k,4)}, v{vL16} offset:{L_M+k*1024}")
        e("s_waitcnt lgkmcnt(0)")
        for i in range(32): e(f"v_cmp_eq_u32 vcc, s{sSENT}, v{M+i}\ns_cbranch_vccnz {Lw('redo1')}")
        for x in stage + zero_acc + [f"v_mov_b32 v{r}, s{sStep}" for r in PR0 + [PRB + 1]]: e(x)
        e(f"s_branch {Lw('step')}")
        e(f"{Lw('p2slow')}:")
        for i in range(8): e(f"v_cmp_eq_u32 vcc, s{sSENT}, v{LAND+i}\ns_cbranch_vccnz {Lw('p2retry')}")
        e(f"s_branch {Lw('p2ok')}")
        e(f"{Lw('p2retry')}:")
        cnt(0x100000)
        fail_if_zero(14)
        for x in p2l: e(x)
        e(f"s_waitcnt vmcnt(0)\ns_branch {Lw('p2w')}")
        kv_refresh(Lw('kvwait'), 15)
        e(f"s_branch {Lw('kvok')}")
        e(f"{Lw('fb')}:")
        F = M
        e(f"s_cmp_eq_u32 s{sRedo}, 0\ns_cbranch_scc0 {Lw('fb1')}\nv_cmp_u_f32 vcc, v{LA}, v{LA}\ns_cbranch_vccnz {Lw('redo')}")
        e(f"{Lw('fb1')}:\ns_waitcnt vmcnt(0)\ns_barrier")
        e(f"ds_write_b64 v{vL16}, {vr(STK,2)} offset:{L_M+(wv>>1)*1024+(wv&1)*8}")
        e("s_waitcnt lgkmcnt(0)\ns_barrier")
        e(f"ds_read_b128 {vr(F,4)}, v{vL16} offset:{L_M}\nds_read_b128 {vr(F+4,4)}, v{vL16} offset:{L_M+1024}\nv_mov_b32 v{F+8}, v{SMM}\nv_mov_b32 v{F+9}, v{SMM+1}\ns_waitcnt lgkmcnt(0)")
        e(f"v_max3_f32 v{F+10}, v{F}, v{F+1}, v{F+2}\nv_max3_f32 v{F+11}, v{F+3}, v{F+4}, v{F+5}\nv_max3_f32 v{F+10}, v{F+10}, v{F+6}, v{F+7}\nv_max3_f32 v{F+11}, v{F+11}, v{F+8}, v{F+9}\nv_max_f32 v{F+10}, v{F+10}, v{F+11}")
        e(f"v_mov_b32 v{F+11}, v{F+10}\nv_permlane32_swap_b32 v{F+10}, v{F+11}\nv_max_f32 v{F+10}, v{F+10}, v{F+11}")
        e(f"v_mov_b32 v{F+11}, v{F+10}\nv_permlane16_swap_b32 v{F+10}, v{F+11}\nv_max_f32 v{F+10}, v{F+10}, v{F+11}")
        for r in range(10): e(f"v_sub_f32 v{F+r}, v{F+r}, v{F+10}")
        for r in range(10): e(f"v_exp_f32 v{F+r}, v{F+r}")
        for dd in range(4): e(cvt(PAL + dd, F + 2 * dd, F + 2 * dd + 1))
        e(cvt(F + 8, F + 8, F + 9))
        for dd in range(4): e(f"v_cndmask_b32 v{PLO+dd}, 0, v{PAL+dd}, {mlo}\nv_cndmask_b32 v{PHI+dd}, v{PAL+dd}, 0, {mlo}")
        e(f"v_cndmask_b32 v{PM}, 0, v{F+8}, {mlo}\nv_cndmask_b32 v{PM+1}, v{F+8}, 0, {mlo}")
        for x in pv_tok + pv_mem: e(x)
        for x in zw[:7]: e(x)
        e(f"v_rcp_f32 v{RC}, v{LA}")
        for x in norm: e(x)
        e(ow)
        e(f"s_branch {Lw('fbret')}")
    e(f"{Ln('fin')}:")
    e(f"buffer_store_dword v{R}, v{vMS}, {WS}, s{sMH} offen sc1")
    if OPT.get('wb', 1): e(f"s_or_b32 s{sT}, s{h}, s{w}\ns_cmp_eq_u32 s{sT}, 0\ns_cbranch_scc0 {Ln('nwb')}\ns_waitcnt vmcnt(0)\nbuffer_wbl2 sc1\n{Ln('nwb')}:")
    TL(5, 0); DTL(6, 14)
    if OPT.get('enc'):
        a_, b_, k_ = {1: (92, 93, 4), 2: (98, 92, 1), 3: (86, 93, 4)}[OPT['enc']]
        e(f"s_memrealtime s[98:99]\ns_waitcnt lgkmcnt(0)\ns_sub_u32 s96, s{a_}, s{b_}\ns_mul_i32 s96, s96, {k_}\ns_mov_b32 s97, s98\n{Ln('enc')}:\ns_memrealtime s[98:99]\ns_waitcnt lgkmcnt(0)\ns_sub_u32 s98, s98, s97\ns_cmp_lt_u32 s98, s96\ns_cbranch_scc1 {Ln('enc')}")
    if OPT.get('dtl'): e(f's_memtime s[98:99]\ns_waitcnt lgkmcnt(0)\ns_sub_u32 s98, s98, s92\ns_mov_b64 exec, 1\nv_mov_b32 v14, s98\nv_mov_b32 v15, 0\nglobal_store_dword v15, v14, s[{P_DBG}:{P_DBG+1}] offset:28\ns_mov_b64 exec, -1')
    if OPT.get('tl'): e(f"s_memtime s[98:99]\ns_waitcnt lgkmcnt(0)\ns_sub_u32 s98, s98, s92\nv_mov_b32 v15, s98\nbuffer_store_dword v15, off, {WS}, s97 offset:4\ns_lshl_b32 s96, s{w}, 2\ns_add_u32 s97, s97, s96\nv_mov_b32 v15, s94\nbuffer_store_dword v15, off, {WS}, s97 offset:{28 if OPT.get('tlw') else 12}")
    e("s_waitcnt vmcnt(0)\ns_branch L_end")
```

```python
def emit(G):
    globals().update(G)
    X, W, AUX = "s[40:43]", "s[44:47]", "s[48:51]"
    sRound, sTile, sPass, sType, sRS, sNB, sCnt, sBlk, sBlkN = 52, 53, 54, 55, 56, 57, 58, 59, 60
    s2RS = {1: 61, 2: 62, 3: 63}; sRow = list(range(64, 72)); sB, sT0, sT1, s128, sLo, sHi = 72, 73, 74, 75, 76, 77
    vL16, vA0, vA1, vW, vXo, vG, vC = 1, 2, 3, 4, 5, 6, 7
    RING = [160, 192, 224, 128]
    XN, WF = 16, 80
    acc = lambda t, T: (t * 8 + T) * 4

    e("L_worker:")
    TL(1, 32)
    if OPT.get('tl'): e(f"v_mov_b32 v15, s94\ns_sub_u32 s97, s97, 4\nbuffer_store_dword v15, off, {WS}, s97")
    srd(40, P_X, 2048 * 1024)
    e(f"v_lshlrev_b32 v{vL16}, 4, v0\nv_lshrrev_b32 v{vG}, 4, v0\nv_and_b32 v{vC}, 15, v0")
    e(f"v_lshlrev_b32 v{vXo}, 10, v{vC}\nv_lshl_add_u32 v{vXo}, v{vG}, 6, v{vXo}")
    e(f"v_lshrrev_b32 v8, 2, v{vC}\nv_and_b32 v9, 1, v{vC}\nv_lshl_add_u32 v8, v8, 1, v9\nv_lshlrev_b32 v8, 4, v8\nv_lshl_add_u32 v8, v{vG}, 7, v8\nv_bfe_u32 v9, v{vC}, 1, 1\nv_lshl_add_u32 v0, v9, 9, v8\nv_and_b32 v9, 1, v{vG}\nv_lshlrev_b32 v9, 6, v9\nv_xor_b32 v0, v0, v9")
    e(f"s_mov_b32 s{sLo}, 0x05040100\ns_mov_b32 s{sHi}, 0x07060302")
    e(f"s_mov_b32 s{sRound}, 0")
    if OPT.get('rounds') == 0: e("s_waitcnt vmcnt(0)\ns_branch L_end")
    sPg, sU, sPi, sHalf, sSkip = 87, 88, 89, 90, 91
    e(f"s_mul_i32 s{sPg}, s{S_IDX}, 1171\ns_lshr_b32 s{sPg}, s{sPg}, 16\ns_mul_i32 s79, s{sPg}, 56\ns_sub_u32 s79, s{S_IDX}, s79\ns_lshr_b32 s{sU}, s79, 2\ns_and_b32 s{sPi}, s79, 3")
    e(f"s_lshl_b32 s{sPass}, s{sPg}, 2\ns_add_u32 s{sPass}, s{sPass}, s{sPi}\ns_mov_b32 s{sSkip}, 0")
    e(f"s_sub_u32 s{sTile}, s{sU}, 2\ns_mov_b32 s{sHalf}, 0\ns_cmp_lt_u32 s{sU}, 4\ns_cbranch_scc0 L_dec2")
    e(f"s_lshr_b32 s{sTile}, s{sU}, 1\ns_and_b32 s{sHalf}, s{sU}, 1\ns_add_u32 s{sHalf}, s{sHalf}, 1\ns_branch L_dec2")
    e("L_task:")
    if OPT.get('rb'): e("s_waitcnt vmcnt(0)")
    e(f"s_mov_b32 s{sHalf}, 0\ns_cmp_eq_u32 s{sRound}, 1\ns_cbranch_scc0 L_dec1")
    e(f"s_cmp_lt_u32 s{sU}, 4\ns_cbranch_scc0 L_dec1\ns_add_u32 s{sTile}, s{sU}, 12\ns_branch L_dec2")
    e("L_dec1:")
    e(f"s_mov_b32 s{sRound}, 2\ns_mov_b32 s{sSkip}, 1\ns_mov_b32 s79, s{sPi}\ns_cmp_lt_u32 s{sPi}, 3\ns_cbranch_scc0 L_dec1a")
    e(f"s_lshr_b32 s80, s{sU}, 2\ns_or_b32 s80, s80, s{sPi}\ns_cmp_eq_u32 s80, 0\ns_cbranch_scc1 L_g1_end\ns_branch L_dec1b")
    e(f"L_dec1a:\ns_mov_b32 s{sSkip}, 0\ns_sub_u32 s79, s{sU}, 4\ns_cmp_lt_u32 s79, 10\ns_cbranch_scc0 L_g1_end")
    e(f"s_cmp_lt_u32 s79, 6\ns_cbranch_scc1 L_dec1c\ns_add_u32 s{sTile}, s79, 6\ns_mov_b32 s79, 0\ns_branch L_dec1b")
    e(f"L_dec1c:\ns_cmp_ge_u32 s79, 3\ns_cselect_b32 s{sTile}, 1, 0\ns_cselect_b32 s80, 3, 0\ns_sub_u32 s79, s79, s80")
    e("L_dec1b:")
    e(f"s_lshl_b32 s80, s{sPg}, 1\ns_add_u32 s80, s80, s79\ns_add_u32 s{sPass}, s80, 15\ns_add_u32 s80, s{sPg}, 24\ns_cmp_eq_u32 s79, 0\ns_cselect_b32 s{sPass}, s80, s{sPass}")
    e("L_dec2:")
    e(f"s_and_b32 s78, s{sPass}, 7\ns_lshl_b32 s78, s78, 2\ns_add_u32 s78, s78, s{S_WAVE}\ns_lshl_b32 s79, s78, 8")
    e(f"s_mov_b32 s{sRS}, 8192\ns_mov_b32 s46, 0x400000\ns_mov_b32 s47, 0x20000\ns_mov_b32 s{sNB}, 4")
    e(f"s_mov_b32 s{sType}, 0\ns_mov_b32 s44, s{P_WK}\ns_mov_b32 s45, s{P_WK+1}\ns_cmp_lt_u32 s{sPass}, 8\ns_cbranch_scc1 L_dec3")
    e(f"s_mov_b32 s{sType}, 1\ns_mov_b32 s44, s{P_WV}\ns_mov_b32 s45, s{P_WV+1}\ns_cmp_lt_u32 s{sPass}, 16\ns_cbranch_scc1 L_dec3")
    e(f"s_mov_b32 s{sType}, 4\ns_mov_b32 s44, s{P_WQ}\ns_mov_b32 s45, s{P_WQ+1}\ns_cmp_lt_u32 s{sPass}, 24\ns_cbranch_scc1 L_dec3")
    e(f"s_mov_b32 s{sType}, 2\ns_mov_b32 s44, s{P_W1}\ns_mov_b32 s45, s{P_W1+1}\ns_mov_b32 s{sRS}, 3584\ns_mov_b32 s46, {512*3584}")
    e("L_dec3:")
    def wcalc(pi=False):
        if pi: e(f"v_and_b32 v8, 3, v{vC}\nv_lshrrev_b32 v9, 2, v{vC}\nv_lshl_add_u32 v8, v8, 2, v9\nv_lshlrev_b32 v8, 4, v8")
        else: e(f"v_lshlrev_b32 v8, 4, v{vC}")
        e(f"s_lshl_b32 s80, s{sRS}, 5\nv_mul_lo_u32 v9, s80, v{vG}\nv_add3_u32 v{vW}, v8, v9, s79")
        for i in range(8): e(f"s_mul_i32 s{sRow[i]}, s{sRS}, {8*(i>>1)+(i&1)}")
        for k in (1, 2, 3): e(f"s_mul_i32 s{s2RS[k]}, s{sRS}, {2*k}")
        e(f"s_lshl_b32 s{s128}, s{sRS}, 7")
    def wissue():
        for n in range(3):
            for i in range(8):
                if n: e(f"s_add_u32 s{sT0}, s{s2RS[n]}, s{sRow[i]}")
                so = f"s{sT0}" if n else f"s{sRow[i]}"
                e(f"buffer_load_dwordx4 {vr(RING[n]+4*i,4)}, v{vW}, {W}, {so} offen")
    def wsetup(pi=False): wcalc(pi); wissue()
    e(f"s_cmp_eq_u32 s{sSkip}, 1\ns_cbranch_scc0 L_ln")
    wsetup()
    e("s_branch L_gemm")
    e("L_ln:")
    e(f"s_cmp_eq_u32 s{sHalf}, 0\ns_cselect_b32 s82, 15, 14\ns_lshl_b32 s82, s{S_WAVE}, s82\ns_lshr_b32 s81, s{sHalf}, 1\ns_lshl_b32 s81, s81, 16")
    e(f"s_lshl_b32 s80, s{sTile}, 17\ns_add_u32 s80, s80, s81\ns_add_u32 s80, s80, s82\nv_add_u32 v{vA0}, s82, v{vL16}")
    for r in range(16): e(f"v_xor_b32 v{16+r}, {r*16}, v{vL16}")
    e("s_barrier")
    for u in range(2):
        if u: e(f"s_cmp_eq_u32 s{sHalf}, 0\ns_cbranch_scc0 L_ln_x")
        for r in range(16):
            if (r & 3) == 0: e(f"s_add_u32 m0, s82, {u*16384+r*1024}\ns_add_u32 s81, s80, {u*16384+r*1024}")
            e(f"buffer_load_dwordx4 v{16+r}, {X}, s81 offen offset:{(r&3)*1024} lds")
    PT = OPT.get('pt', '')
    if PT:
        nk = 4096 // 160 + 1
        e(f"s_cmp_eq_u32 s{sRound}, 0\ns_cbranch_scc0 L_ln_x\ns_mul_i32 s81, s{sPg}, 10\ns_add_u32 s81, s81, s{sU}\ns_sub_u32 s81, s81, 4\ns_lshl_b32 s81, s81, 2\ns_add_u32 s81, s81, s{sPi}")
        e(f"s_mul_i32 s81, s81, {28*1024}\ns_mul_i32 s83, s{S_WAVE}, {7*1024}\ns_add_u32 s81, s81, s83")
        for mt in PT:
            srd(48, {'q': P_WQ, 'k': P_WK, 'v': P_WV, 'o': P_WO}[mt], 0x400000)
            e("s_add_u32 s83, s81, 4096")
            for k in range(7): e(f"buffer_load_dwordx4 v[252:255], v{vL16}, {AUX}, s{81 if k < 4 else 83} offen offset:{(k&3)*1024}")
    e('L_ln_x:')
    wcalc()
    e("v_mov_b32 v8, 0x3f803f80")
    for i in range(4): e(f"v_accvgpr_write_b32 a{i}, v8")
    e(f"v_lshlrev_b32 v12, 10, v{vC}\nv_add_u32 v12, s82, v12\nv_lshlrev_b32 v13, 2, v{vG}\nv_xor_b32 v13, v13, v{vC}")
    AX = 156
    for r in range(4): e(f"v_xor_b32 v14, {r}, v13\nv_lshl_add_u32 v{AX+r}, v14, 4, v12")
    for u in range(2):
        RB = 16 + 64 * u
        if u: e(f"s_cmp_eq_u32 s{sHalf}, 0\ns_cbranch_scc0 L_ln_end")
        if u == 0: e(f"s_waitcnt vmcnt({16+7*len(PT)})\ns_cmp_eq_u32 s{sHalf}, 0\ns_cbranch_scc0 L_ln_w0\ns_cmp_eq_u32 s{sRound}, 0\ns_cbranch_scc1 L_ln_w\ns_waitcnt vmcnt(16)\ns_branch L_ln_w\nL_ln_w0:\ns_waitcnt vmcnt(0)\nL_ln_w:")
        else: e("s_waitcnt vmcnt(24)")
        for q in range(16): e(f"ds_read_b128 {vr(RB+4*q,4)}, v{AX+(q&3)} offset:{u*16384+(q>>2)*256}")
        if u == 0:
            e("s_barrier"); report(42, 8)
        if OPT.get('tl2') and u == 0:
            e(f"s_cmp_eq_u32 s{sRound}, 0\ns_cbranch_scc0 L_tla"); TLV[0] = 15; TL(8, 32); e("s_waitcnt vmcnt(0)\nL_tla:")
        for q in range(16):
            e(f"s_waitcnt lgkmcnt({15-q})\nv_mfma_f32_16x16x32_bf16 v[8:11], a[0:3], {vr(RB+4*q,4)}, {'0' if q == 0 else 'v[8:11]'}")
            for d in range(4):
                r = RB + 4 * q + d
                e(f"v_dot2_f32_bf16 v{12+d}, v{r}, v{r}, {'0' if q == 0 else 'v%d' % (12+d)}")
        if u == 0: wissue()
        e("v_add_f32 v12, v12, v13\nv_add_f32 v14, v14, v15\nv_add_f32 v12, v12, v14")
        e("v_mov_b32 v13, v12\nv_permlane32_swap_b32 v12, v13\nv_add_f32 v12, v12, v13")
        e("v_mov_b32 v13, v12\nv_permlane16_swap_b32 v12, v13\nv_add_f32 v12, v12, v13")
        e(f"v_mul_f32 v8, {fbits(1/512):#x}, v8\nv_mul_f32 v12, {fbits(1/512):#x}, v12")
        e(f"v_fma_f32 v12, -v8, v8, v12\nv_max_f32 v12, 0, v12\nv_add_f32 v12, {fbits(1e-5):#x}, v12\nv_rsq_f32 v144, v12")
        e("v_mul_f32 v146, -v8, v144".replace("v_mul_f32 v146, -v8, v144", "v_mul_f32_e64 v146, -v8, v144"))
        if OPT.get('tl2') and u == 0:
            e(f"s_cmp_eq_u32 s{sRound}, 0\ns_cbranch_scc0 L_tlb"); TL(9, 32); e("L_tlb:")
        k = 0
        for wp in range(4):
            for tp in range(4):
                oq = 152 if (wp * 4 + tp) & 1 else 12
                for r in range(4):
                    src = RB + (wp * 4 + r) * 4 + tp
                    t = 148 + 2 * (k & 1); k += 1
                    e(f"v_lshlrev_b32 v{t}, 16, v{src}\nv_and_b32 v{t+1}, 0xffff0000, v{src}")
                    e(f"v_pk_fma_f32 v[{t}:{t+1}], v[{t}:{t+1}], v[144:145], v[146:147] op_sel_hi:[1,0,0]")
                    e(f"v_cvt_pk_bf16_f32 v{oq+r}, v{t}, v{t+1}")
                e(f"ds_write_b128 v{vA0}, {vr(oq,4)} offset:{u*16384+(wp*4+tp)*1024}")
    e("L_ln_end:")
    e("L_gemm:")
    if OPT.get('tl'):
        e(f"s_cmp_eq_u32 s{sRound}, 0\ns_cbranch_scc0 L_tl1"); TL(2, 32); e("L_tl1:")
    for i in range(256): e(f"v_accvgpr_write_b32 a{i}, 0")
    e(f"v_mov_b32 v{vA0}, v{vL16}\nv_add_u32 v{vA1}, 0x10000, v{vL16}\nv_lshrrev_b32 v15, 2, v{vL16}\nv_mov_b32 v14, 0\ns_or_b32 s92, s{S_WAVE}, s{S_OK}\ns_cmp_eq_u32 s92, 0\ns_cselect_b32 s92, s{sNB}, 0")
    e(f"s_mov_b32 s{sBlk}, 0\ns_mov_b32 s{sCnt}, 1")
    e("s_waitcnt lgkmcnt(0)\ns_barrier")
    e(f"s_cmp_eq_u32 s{sPass}, 27\ns_cselect_b32 s80, s{S_WAVE}, 0\ns_cmp_eq_u32 s{sType}, 2\ns_cselect_b32 s80, s80, 0\ns_cmp_ge_u32 s80, 2\ns_cbranch_scc1 L_epi")
    def xnread(T, jloc, base=16):
        return f"ds_read_b128 {vr(base+4*T,4)}, v{vA0 if T < 4 else vA1} offset:{(T&3)*16384+jloc*1024}"
    def perm(ring, t, rp, msk=1):
        return f"v_perm_b32 v{WF+4*(t&msk)+rp}, v{ring+4*(2*rp+1)+(t>>1)}, v{ring+4*(2*rp)+(t>>1)}, s{sHi if t&1 else sLo}"
    if OPT.get('tl2'):
        e(f"s_cmp_eq_u32 s{sRound}, 0\ns_cbranch_scc0 L_tlc"); TL(10, 32); e("s_waitcnt vmcnt(0)\nL_tlc:")
    if OPT.get('clk'): e("s_memtime s[84:85]\ns_memrealtime s[94:95]\ns_waitcnt lgkmcnt(0)")
    for T in range(8): e(xnread(T, 0))
    e("s_waitcnt vmcnt(16)")
    for rp in range(4): e(perm(RING[0], 0, rp)); e(perm(RING[0], 1, rp))
    e("s_waitcnt lgkmcnt(0)")
    e(f"s_cmp_eq_u32 s{sHalf}, 0\ns_cbranch_scc0 L_halfsel\ns_cmp_eq_u32 s{sType}, 1\ns_cbranch_scc1 L_loopB8\ns_branch L_loopA8")
    e(f"L_halfsel:\ns_cmp_eq_u32 s{sType}, 1\ns_cbranch_scc1 L_loopB4")
    for ori, NT in (("A", 4), ("B", 4), ("A", 8), ("B", 8)):
        e(f"L_loop{ori}{NT}:")
        if OPT.get('tl3') is not None:
            e(f"s_cmp_eq_u32 s{sRound}, {OPT['tl3']}\ns_cbranch_scc0 L_tle{ori}{NT}\ns_memrealtime s[98:99]\ns_lshl_b32 s97, s{S_IDX}, 6\ns_lshl_b32 s96, s{sCnt}, 2\ns_add_u32 s97, s97, s96\ns_add_u32 s97, s97, {WS_STAMP + 0x8000 + 32*64 + 28:#x}\ns_waitcnt lgkmcnt(0)\nv_mov_b32 v15, s98\nbuffer_store_dword v15, off, {WS}, s97\nL_tle{ori}{NT}:")
        e(f"s_add_u32 s{sBlkN}, s{sBlk}, s{s128}\ns_cmp_lt_u32 s{sCnt}, s{sNB}\ns_cselect_b32 s{sBlkN}, s{sBlkN}, {OOB:#x}")
        for tp in range(4):
            ring = RING[tp]; nring = RING[(tp + 1) & 3]; lring = RING[(tp + 3) & 3]
            tpp = (tp + 3) & 3
            base = sBlk if tp == 0 else sBlkN
            xc, xn_ = XN + (32 if tp & 1 else 0), XN + (0 if tp & 1 else 32)
            if tpp: e(f"s_add_u32 s{sB}, s{base}, s{s2RS[tpp]}")
            else: e(f"s_mov_b32 s{sB}, s{base}")
            for t in range(8):
                for T in range(NT):
                    a = ar(acc(t, T), 4); w = vr(WF + 4 * (t & (1 if NT == 8 else 3)), 4); x = vr(xc + 4 * T, 4)
                    e(f"v_mfma_f32_16x16x32_bf16 {a}, {w if ori == 'A' else x}, {x if ori == 'A' else w}, {a}")
                    li = None
                    if NT == 8 and 1 <= t <= 4 and T in (0, 6): li = (t - 1) * 2 + (T == 6)
                    if NT == 4 and t < 4 and T in (0, 2): li = 2 * t + (T == 2)
                    if li is not None:
                        e(f"s_add_u32 s{sT0}, s{sB}, s{sRow[li]}")
                        e(f"buffer_load_dwordx4 {vr(lring+4*li,4)}, v{vW}, {W}, s{sT0} offen")
                    if tp == 1 and t == 5 and T == 0:
                        e(f"s_cmp_eq_u32 s{sCnt}, s92\ns_cbranch_scc0 L_nc{ori}{NT}\nglobal_load_dword v14, v15, s[{P_DBG}:{P_DBG+1}] sc1\nL_nc{ori}{NT}:")
                    if t == (7 if NT == 8 else 6) and T == 0: e("s_waitcnt vmcnt(16)")
                    if NT == 8 and T == 7 and t < 7: e(xnread(t, tp + 1, xn_))
                    if NT == 8 and T == 1 and t == 6: e(xnread(7, tp + 1, xn_))
                    if NT == 4 and T == 1 and t < 4: e(xnread(t, tp + 1, xn_))
                    if t == 7 and T == NT - 1: e("s_waitcnt lgkmcnt(0)")
                    if NT == 8 and 2 <= T < 6: e(perm(ring, t + 1, T - 2) if t < 7 else perm(nring, 0, T - 2))
                    if NT == 4: e(perm(ring, t + 2, T, 3) if t < 6 else perm(nring, t - 6, T, 3))
        e(f"v_add_u32 v{vA0}, 0x1000, v{vA0}\nv_add_u32 v{vA1}, 0x1000, v{vA1}")
        e(f"s_mov_b32 s{sBlk}, s{sBlkN}\ns_add_u32 s{sCnt}, s{sCnt}, 1\ns_cmp_le_u32 s{sCnt}, s{sNB}\ns_cbranch_scc1 L_loop{ori}{NT}")
        if (ori, NT) != ("B", 8): e("s_branch L_epi")
    e("L_epi:")
    if OPT.get('tl'):
        e(f"s_cmp_eq_u32 s{sRound}, 0\ns_cbranch_scc0 L_tl2"); TL(3, 32); e("L_tl2:")
    e("s_waitcnt vmcnt(0) lgkmcnt(0)\ns_nop 7")
    e(f"s_cmp_eq_u32 s{S_OK}, 1\ns_cbranch_scc1 L_cf42_ok\nv_add_u32 v15, 0x20000, v15\ns_cmp_eq_u32 s{S_WAVE}, 0\ns_cbranch_scc0 L_cfb\nds_write_b32 v15, v14\ns_waitcnt lgkmcnt(0)\nL_cfb:\ns_barrier\nds_read_b32 v14, v15\ns_waitcnt lgkmcnt(0)")
    confirm_check(42, 14, 10)
    if OPT.get('clk'):
        e(f"s_cmp_eq_u32 s{sRound}, 0\ns_cbranch_scc0 L_clk\ns_memtime s[96:97]\ns_memrealtime s[98:99]\ns_waitcnt lgkmcnt(0)\ns_sub_u32 s96, s96, s84\ns_sub_u32 s98, s98, s94")
        e(f"s_lshl_b32 s97, s{S_IDX}, 6\ns_add_u32 s97, s97, {WS_STAMP + 0x8000 + 32*64 + 32:#x}\nv_mov_b32 v15, s96\nbuffer_store_dword v15, off, {WS}, s97\nv_mov_b32 v15, s98\nbuffer_store_dword v15, off, {WS}, s97 offset:4\nv_mov_b32 v15, s{sHalf}\nbuffer_store_dword v15, off, {WS}, s97 offset:8\nL_clk:")
    cnt = [0]
    def thr(first_half=False):
        if OPT.get('thr') is not None and not (first_half and OPT.get('thrh')): e(f"s_waitcnt vmcnt({OPT['thr']})")
    def pack(pairs, scale=None):
        k = cnt[0]; cnt[0] += 1
        tb = 64 + 8 * (k & 1); q = 80 + 4 * (k & 3)
        for r, (a, b) in enumerate(pairs):
            e(f"v_accvgpr_read_b32 v{tb+2*r}, a{a}\nv_accvgpr_read_b32 v{tb+2*r+1}, a{b}")
        for r in range(4):
            if scale: e(f"v_pk_mul_f32 v[{tb+2*r}:{tb+2*r+1}], v[{tb+2*r}:{tb+2*r+1}], {scale}")
        for r in range(4): e(f"v_cvt_pk_bf16_f32 v{q+r}, v{tb+2*r}, v{tb+2*r+1}")
        return q
    e(f"s_lshl_b32 s82, s{sTile}, {RS_+2}\ns_mul_i32 s83, s78, {RHS:#x}\ns_add_u32 s82, s82, s83\ns_lshr_b32 s83, s{sHalf}, 1\ns_lshl_b32 s83, s83, {RS_+1}\ns_add_u32 s82, s82, s83")
    e(f"s_cmp_eq_u32 s{sType}, 1\ns_cbranch_scc1 L_epiV\ns_cmp_eq_u32 s{sType}, 2\ns_cbranch_scc1 L_epiF1")
    e(f"s_cmp_eq_u32 s{sType}, 3\ns_cbranch_scc1 L_epiF2\ns_cmp_eq_u32 s{sType}, 4\ns_cbranch_scc1 L_epiQ")
    for nm, base, fl in (("K", WS_K, F_KV), ("Q", WS_Q, F_REST)):
        e(f"L_epi{nm}:")
        if nm == "Q": e(f"s_mov_b32 s84, {CSCALE:#x}\ns_mov_b32 s85, {CSCALE:#x}\ns_lshr_b32 s82, s82, 1")
        for T in range(8):
            if T == 4 and nm == "K": e(f"s_cmp_eq_u32 s{sHalf}, 0\ns_cbranch_scc0 L_kvdone")
            e(f"s_add_u32 s83, s82, {base + (T>>1)*(SEGS if nm == 'K' else SEGS//2) + (T&1)*4096:#x}")
            for j in range(4):
                q = pack([(acc(2*j, T)+r, acc(2*j+1, T)+r) for r in range(4)], "s[84:85]" if nm == "Q" else None)
                e(f"buffer_store_dwordx4 {vr(q,4)}, v{vL16 if nm == 'Q' else 0}, {WS}, s83 offen offset:{j*1024} sc1"); thr(T < 4 and nm == "K")
        e(f"s_mov_b32 s83, {WS_FLAG+fl:#x}\ns_branch L_done")
    e("L_epiV:")
    for sg in range(4):
        if sg == 2: e(f"s_cmp_eq_u32 s{sHalf}, 0\ns_cbranch_scc0 L_kvdone")
        for t in range(8):
            if (t & 3) == 0: e(f"s_add_u32 s83, s82, {WS_V + sg*SEGS + (t>>2)*4096:#x}")
            a0, a1 = acc(t, 2*sg), acc(t, 2*sg+1)
            q = pack([(a0, a0+1), (a0+2, a0+3), (a1, a1+1), (a1+2, a1+3)])
            e(f"buffer_store_dwordx4 {vr(q,4)}, v{vL16}, {WS}, s83 offen offset:{(t&3)*1024} sc1"); thr(sg < 2)
    e(f"L_kvdone:\ns_mov_b32 s83, {WS_FLAG+F_KV:#x}\ns_branch L_done")
    e("L_epiF2:")
    e(f"s_sub_u32 s83, s{sPass}, 24\ns_lshl_b32 s83, s83, 21\ns_lshl_b32 s84, s{sTile}, 17\ns_add_u32 s83, s83, s84\ns_lshl_b32 s84, s{S_WAVE}, 12\ns_add_u32 s82, s83, s84")
    for T in range(8):
        e(f"s_add_u32 s83, s82, {WS_FP + T*16384:#x}")
        for r in range(4):
            q = pack([(acc(2*tp, T)+r, acc(2*tp+1, T)+r) for tp in range(4)])
            e(f"buffer_store_dwordx4 {vr(q,4)}, v{vL16}, {WS}, s83 offen offset:{r*1024} sc1"); thr()
    e(f"s_mov_b32 s83, {WS_FLAG+F_REST:#x}\ns_branch L_done")
    e("L_epiF1:")
    srd(48, P_B1, 3584)
    e(f"v_lshlrev_b32 v8, 6, v{vG}")
    for r in range(4): e(f"buffer_load_dwordx4 {vr(16+4*r,4)}, v8, {AUX}, s79 offen offset:{r*16}")
    e(f"s_sub_u32 s83, s{sPass}, 24\ns_lshl_b32 s83, s83, 19\ns_lshl_b32 s79, s{S_WAVE}, 8\ns_add_u32 s79, s79, s83")
    e(f"s_mov_b32 s{sType}, 3\ns_mov_b32 s44, s{P_W2}\ns_mov_b32 s45, s{P_W2+1}\ns_mov_b32 s46, {1792*1024}\ns_mov_b32 s47, 0x20000\ns_mov_b32 s{sRS}, 1024")
    e(f"s_cmp_eq_u32 s{sPass}, 27\ns_cselect_b32 s{sNB}, 2, 4")
    wsetup()
    e("s_waitcnt vmcnt(24)")
    for r in range(4):
        for d in range(4):
            e(f"v_lshlrev_b32 v{32+r*8+2*d}, 16, v{16+4*r+d}\nv_and_b32 v{33+r*8+2*d}, 0xffff0000, v{16+4*r+d}")
    e(f"s_lshl_b32 s80, s{S_WAVE}, 12\nv_add_u32 v{vA0}, s80, v{vL16}\nv_add_u32 v{vA1}, 0x10000, v{vA0}")
    e("s_barrier")
    k = 0
    for T in range(8):
        for tp in range(4):
            tb = 64 + 16 * (k & 1); q = 96 + 4 * (k & 1); k += 1
            for r in range(4):
                e(f"v_accvgpr_read_b32 v{tb+2*r}, a{acc(2*tp,T)+r}\nv_accvgpr_read_b32 v{tb+2*r+1}, a{acc(2*tp+1,T)+r}")
            for r in range(4):
                b = 32 + r * 8 + 2 * tp
                e(f"v_pk_add_f32 v[{tb+2*r}:{tb+2*r+1}], v[{tb+2*r}:{tb+2*r+1}], v[{b}:{b+1}]")
            for r in range(8): e(f"v_max_f32 v{tb+r}, 0, v{tb+r}")
            for r in range(4): e(f"v_pk_mul_f32 v[{tb+2*r}:{tb+2*r+1}], v[{tb+2*r}:{tb+2*r+1}], v[{tb+2*r}:{tb+2*r+1}]")
            for r in range(4): e(f"v_cvt_pk_bf16_f32 v{q+r}, v{tb+2*r}, v{tb+2*r+1}")
            e(f"ds_write_b128 v{vA0 if T < 4 else vA1}, {vr(q,4)} offset:{(T&3)*16384+tp*1024}")
    e("s_branch L_gemm")
    e("L_done:")
    e(f"s_lshl_b32 s84, s{sTile}, 6\ns_add_u32 s83, s83, s84")
    if OPT.get('tl2'):
        e(f"s_cmp_eq_u32 s{sRound}, 0\ns_cbranch_scc0 L_tld"); TL(11, 32); e("L_tld:")
    e("s_waitcnt vmcnt(0)\ns_barrier")
    if OPT.get('rb'):
        e(f"s_cmp_gt_u32 s{sType}, 1\ns_cbranch_scc1 L_rb_end\ns_lshl_b32 s85, s{sType}, 13\ns_add_u32 s85, s85, s82\ns_add_u32 s85, s85, {WS_K:#x}")
        for sg in range(4):
            for k in range(8):
                if k == 4: e("s_add_u32 s85, s85, 4096")
                e(f"buffer_load_dwordx4 {vr(64+4*k,4)}, v{vL16}, {WS}, s85 offen offset:{(k&3)*1024} sc1")
            e(f"s_add_u32 s85, s85, {SEGS-4096}")
        e("L_rb_end:")
    e(f"s_cmp_eq_u32 s{S_WAVE}, 0\ns_cbranch_scc0 L_done2")
    e(f"s_cmp_eq_u32 s{sHalf}, 0\ns_cselect_b32 s84, 2, 1\ns_mov_b64 exec, 1\nv_mov_b32 v8, s84\nbuffer_atomic_add v8, off, {WS}, s83\ns_mov_b64 exec, -1")
    e("L_done2:")
    if OPT.get('tl'):
        e(f"s_cmp_eq_u32 s{sRound}, 0\ns_cbranch_scc0 L_tl3"); TL(4, 32); e("L_tl3:")
    e(f"s_add_u32 s{sRound}, s{sRound}, 1\ns_cmp_lt_u32 s{sRound}, {OPT.get('rounds', 3)}\ns_cbranch_scc1 L_task\nL_g1_end:")
    if OPT['skip_g3']:
        e("s_waitcnt vmcnt(0)\ns_branch L_end")
        return
    sH, sSeg, sSH, sTq, sEh = 52, 53, 54, 55, 56
    TL(5, 32); DTL(10, 14)
    OUT, B2 = "s[44:47]", "s[48:51]"
    WO = 128
    e(f"s_and_b32 s{sH}, s{S_IDX}, 31\ns_lshr_b32 s{sSeg}, s{S_IDX}, 5\ns_and_b32 s{sTq}, s{S_WAVE}, 1\ns_lshr_b32 s{sEh}, s{S_WAVE}, 1")
    e(f"v_lshlrev_b32 v8, 4, v{vC}\nv_lshrrev_b32 v9, 1, v{vG}\nv_lshl_add_u32 v8, v9, 19, v8\nv_and_b32 v9, 1, v{vG}\nv_lshl_add_u32 v8, v9, 17, v8")
    e(f"s_lshl_b32 s78, s{S_WAVE}, 14\ns_lshl_b32 s79, s{sH}, 8\ns_add_u32 s78, s78, s79\nv_add_u32 v8, s78, v8")
    e(f"s_lshl_b32 s78, s{S_WAVE}, 12\nv_add_u32 v9, s78, v{vL16}\nv_add_u32 v10, 0x10000, v9\ns_lshl_b32 s78, s{S_WAVE}, 15\nv_add_u32 v11, s78, v{vL16}")
    for mi, ptr in enumerate((P_WK, P_WV)):
        srd(44, ptr, 0x400000)
        for par in range(2):
            for j2 in range(8):
                for hb in range(2):
                    row = 256 * par + 128 * (j2 >> 2) + 32 * (j2 & 1) + 8 * ((j2 & 3) >> 1) + hb
                    e(f"s_mov_b32 s78, {row*8192:#x}\nbuffer_load_dwordx4 {vr(24+64*par+(j2*2+hb)*4,4)}, v8, s[44:47], s78 offen")
        e("s_waitcnt lgkmcnt(0)\ns_barrier")
        k = 0
        for par in range(2):
            e(f"s_waitcnt vmcnt({16*(1-par)})")
            raw = 24 + 64 * par
            for t in range(8):
                for hf in range(2):
                    q = 160 + 4 * (k % 3); k += 1
                    for jl in range(4):
                        j2 = hf * 4 + jl
                        e(f"v_perm_b32 v{q+jl}, v{raw+(j2*2+1)*4+(t>>1)}, v{raw+(j2*2)*4+(t>>1)}, s{sHi if t&1 else sLo}")
                    e(f"ds_write_b128 v{9 if t < 4 else 10}, {vr(q,4)} offset:{(t&3)*16384+par*2048+hf*1024}")
        e("s_waitcnt lgkmcnt(0)\ns_barrier")
        for f in range(32): e(f"ds_read_b128 {ar(128*mi+4*f,4)}, v11 offset:{f*1024}")
    srd(44, P_WO, 0x400000)
    e(f"v_lshlrev_b32 v8, 4, v{vC}\nv_lshl_add_u32 v8, v{vG}, 15, v8")
    e(f"s_lshl_b32 s78, s{sH}, 17\ns_lshl_b32 s79, s{S_WAVE}, 8\ns_add_u32 s78, s78, s79")
    for half in range(2):
        for jj in range(2):
            for i in range(8):
                row = 8 * (i >> 1) + (i & 1) + 2 * (2 * half + jj)
                e(f"s_add_u32 s79, s78, {row*1024}\nbuffer_load_dwordx4 {vr(24+32*jj+4*i,4)}, v8, s[44:47], s79 offen")
        for jj in range(2):
            e(f"s_waitcnt vmcnt({8*(1-jj)})")
            for t in range(8):
                for rp in range(4):
                    rb = 24 + 32 * jj
                    e(f"v_perm_b32 v{WO+((2*half+jj)*8+t)*4+rp}, v{rb+4*(2*rp+1)+(t>>1)}, v{rb+4*(2*rp)+(t>>1)}, s{sHi if t&1 else sLo}")
    srd(44, P_OUT, 2048 * 1024)
    srd(48, P_B2, 1024)
    sRo, sCo = 57, 58
    e(f"s_lshr_b32 s78, s{sH}, 2\ns_lshl_b32 s78, s78, 2\ns_add_u32 s78, s78, s{S_WAVE}\ns_lshl_b32 s78, s78, 10\ns_and_b32 s79, s{sH}, 3\ns_lshl_b32 s{sRo}, s79, 8\ns_add_u32 s{sRo}, s{sRo}, s78")
    e(f"s_lshr_b32 s78, s{sH}, 3\ns_lshl_b32 s{sCo}, s78, 8\ns_lshl_b32 s79, s79, 6\ns_add_u32 s{sCo}, s{sCo}, s79\ns_lshl_b32 s79, s{S_WAVE}, 4\ns_add_u32 s{sCo}, s{sCo}, s79")
    e(f"v_lshlrev_b32 v11, 4, v{vC}\nv_lshl_add_u32 v9, v{vG}, 15, v11\nv_lshl_add_u32 v10, v{vG}, 21, v11\nv_lshlrev_b32 v11, 10, v{vC}\nv_lshl_add_u32 v12, v{vG}, 3, v11")
    e(f"v_mov_b32 v13, {OOB:#x}\nv_cmp_eq_u32 vcc, 0, v{vG}\nv_cndmask_b32 v11, v13, v11, vcc\nv_cndmask_b32 v8, v13, 0, vcc\nv_cmp_gt_u32 vcc, 2, v{vG}\nv_cndmask_b32 v12, v13, v12, vcc")
    e(f"s_lshl_b32 s78, s{sTq}, 4\nv_lshlrev_b32 v13, 2, v{vG}\nv_sub_u32 v13, v{vC}, v13\nv_add_u32 v13, s78, v13")
    for d in range(4):
        e(f"v_mov_b32 v{16+d}, 0\nv_mov_b32 v14, 0x3f80\nv_cmp_eq_u32 vcc, {2*d}, v{vC}\nv_cndmask_b32 v{16+d}, v{16+d}, v14, vcc")
        e(f"v_mov_b32 v14, 0x3f800000\nv_cmp_eq_u32 vcc, {2*d+1}, v{vC}\nv_cndmask_b32 v{16+d}, v{16+d}, v14, vcc\nv_mov_b32 v{20+d}, 0x3f803f80")
    e(f"v_lshrrev_b32 v14, 2, v{vC}\nv_lshlrev_b32 v14, 7, v14\nv_lshl_add_u32 v14, v{vG}, 5, v14\nv_and_b32 v15, 3, v{vC}\nv_lshl_add_u32 v14, v15, 2, v14\nv_bfe_u32 v15, v{vC}, 2, 1\nv_lshlrev_b32 v15, 6, v15\nv_xor_b32 v14, v14, v15")
    e(f"v_and_b32 v15, 2, v{vC}\nv_mov_b32 v{vG}, 0x4444\nv_mov_b32 v{vC}, 0xeeee\nv_cmp_eq_u32 vcc, 0, v15\nv_cndmask_b32 v{vG}, v{vC}, v{vG}, vcc")
    e(f"s_lshl_b32 s78, s{S_WAVE}, 9\ns_add_u32 s78, s78, 16384\nv_add_u32 v{vC}, s78, v14\ns_lshl_b32 s78, s{S_WAVE}, 11\ns_add_u32 m0, s78, 8192")
    vIDX, vXW = vG, vC
    e(f"s_mov_b32 s59, {SENT:#x}\ns_mov_b32 s60, {INF:#x}\ns_mov_b32 s61, 0\ns_mov_b32 s62, {OOB:#x}\ns_lshl_b32 s65, s{sSeg}, {20 if OPT.get('apfull') else 21}\ns_add_u32 s65, s65, {WS_AP:#x}\ns_waitcnt lgkmcnt(0)\ns_barrier")
    SEL, ONES = "v[16:19]", "v[20:23]"
    mm = "v_mfma_f32_16x16x32_bf16"; m16 = "v_mfma_f32_16x16x16_bf16"
    e("L_g3:")
    e(f"s_lshl_b32 s{sSH}, s{sSeg}, 5\ns_add_u32 s{sSH}, s{sSH}, s{sH}")
    e(f"s_lshr_b32 s78, s{sSeg}, 2\nL_g3_rdy:\ns_bitcmp1_b32 s61, s78\ns_cbranch_scc1 L_g3_rdyok")
    e(f"s_mov_b32 s79, {WS_FLAG+F_KV:#x}\nv_lshlrev_b32 v14, 2, v{vL16}\nbuffer_load_dword v14, v14, {WS}, s79 offen sc1\ns_waitcnt vmcnt(0)")
    e("v_cmp_le_u32 vcc, 24, v14\ns_lshr_b32 s61, vcc_lo, 16\nv_cmp_le_u32 vcc, 32, v14\ns_and_b32 s61, s61, vcc_lo")
    fail_if_zero(4)
    e("s_sleep 16\ns_branch L_g3_rdy\nL_g3_rdyok:")
    e(f"s_mul_i32 s86, s{sH}, {RHS:#x}\ns_lshl_b32 s80, s{sSeg}, {RS_}\ns_add_u32 s86, s86, s80")
    e(f"s_mov_b32 s80, s86\ns_lshl_b32 s81, s{sTq}, 12\ns_lshr_b32 s82, s80, 1\ns_add_u32 s81, s81, s82\ns_add_u32 s81, s81, {WS_Q:#x}")
    for j in range(4): e(f"buffer_load_dwordx4 {vr(24+4*j,4)}, v{vL16}, {WS}, s81 offen offset:{j*1024} sc1")
    e(f"s_add_u32 s81, s80, {WS_K:#x}\ns_add_u32 s82, s80, {WS_K+4096:#x}")
    for kt in range(2):
        for j in range(4): e(f"buffer_load_dwordx4 {vr(40+16*kt+4*j,4)}, v0, {WS}, s{81+kt} offen offset:{j*1024} sc1")
    e(f"s_lshl_b32 s81, s{sEh}, 12\ns_add_u32 s81, s81, s80\ns_add_u32 s81, s81, {WS_V:#x}")
    for t in range(4): e(f"buffer_load_dwordx4 {vr(72+4*t,4)}, v{vL16}, {WS}, s81 offen offset:{t*1024} sc1")
    e(f"s_bfe_u32 s84, s{sH}, 0x10002\ns_lshl_b32 s83, s{sSeg}, 1\ns_add_u32 s83, s83, s84\ns_lshl_b32 s83, s83, 14")
    e(f"s_lshr_b32 s84, s{sH}, 3\ns_lshl_b32 s84, s84, 2\ns_add_u32 s84, s84, s{S_WAVE}\ns_lshl_b32 s84, s84, 10\ns_and_b32 s85, s{sH}, 3\ns_lshl_b32 s85, s85, 8\ns_add_u32 s85, s85, s84")
    e(f"s_add_u32 s85, s85, s83\ns_add_u32 s85, s85, {WS_FP:#x}\ns_add_u32 s83, s83, s{sCo}")
    e(f"buffer_load_dwordx4 v[88:91], v11, {X}, s83 offen\nbuffer_load_dwordx4 v[92:95], v8, {B2}, s{sCo} offen\nbuffer_load_dwordx4 v[96:99], v10, {WS}, s85 offen sc1")
    def reduce(code):
        e(f"L_rp{code}:\nv_lshrrev_b32 v14, 2, v{vL16}\nbuffer_load_dword v14, v14, {WS}, s62 offen sc1\ns_waitcnt vmcnt(0)\nv_cmp_eq_u32 vcc, 1, v14\ns_cmp_eq_u32 vcc_lo, -1\ns_cbranch_scc1 L_rp{code}_ok")
        fail_if_zero(code)
        e(f"s_branch L_rp{code}\nL_rp{code}_ok:")
        if OPT.get('tlg') and code == 17: TLV[0] = 15; TL(11, 32)
        for hf in range(2):
            for i in range(4): e(f"buffer_load_dwordx4 {vr(100+4*i,4)}, v9, {WS}, s64 offen sc1\ns_add_u32 s64, s64, 0x20000")
            for i in range(4): e(f"s_waitcnt vmcnt({3-i})\n{mm} v[2:5], {SEL}, {vr(100+4*i,4)}, v[2:5]")
        e("v_cvt_pk_bf16_f32 v14, v2, v3\nv_cvt_pk_bf16_f32 v15, v4, v5")
        e(f"buffer_store_dwordx2 v[14:15], v12, {OUT}, s63 offen")
    e(f"s_cmp_eq_u32 s62, {OOB:#x}\ns_cbranch_scc1 L_g3_first")
    reduce(7)
    if OPT.get('wb', 1):
        e(f"s_cmp_lt_u32 s{sSeg}, 57\ns_cbranch_scc1 L_g3_first\ns_or_b32 s78, s{sH}, s{S_WAVE}\ns_cmp_eq_u32 s78, 0\ns_cbranch_scc0 L_g3_first\nbuffer_wbl2 sc1")
    e("L_g3_first:")
    e("s_waitcnt vmcnt(7)")
    for kt in range(2):
        for j in range(4):
            s = vr(108 + 4 * kt, 4)
            e(f"{mm} {s}, {vr(40+16*kt+4*j,4)}, {vr(24+4*j,4)}, {'0' if j == 0 else s}")
    e("s_waitcnt vmcnt(0)")
    e(f"{mm} v[2:5], {SEL}, v[88:91], 0\n{mm} v[2:5], {SEL}, v[92:95], v[2:5]\n{mm} v[2:5], {SEL}, v[96:99], v[2:5]")
    e(f"v_mov_b32 v15, {fbits(-3.0e38):#x}")
    for kt in range(2):
        for r in range(4):
            e(f"v_cmp_le_i32 vcc, {16*kt+r}, v13\nv_cndmask_b32 v{108+4*kt+r}, v15, v{108+4*kt+r}, vcc")
    e("v_max3_f32 v124, v108, v109, v110\nv_max3_f32 v125, v111, v112, v113\nv_max3_f32 v124, v124, v114, v115\nv_max_f32 v124, v124, v125")
    for i in range(8): e(f"v_mov_b64 v[{88+2*i}:{89+2*i}], 0")
    e(f"s_lshl_b32 s80, s{sSeg}, 13\ns_add_u32 s80, s80, {WS_MH:#x}\ns_sub_u32 s79, s80, 8192\ns_cmp_eq_u32 s{sSeg}, 0\ns_cbranch_scc1 L_g3_m")
    e(f"L_g3_pre:\nbuffer_load_dword v14, off, {WS}, s79 sc1\ns_waitcnt vmcnt(0)\nv_cmp_eq_u32 vcc, s59, v14\ns_cbranch_vccz L_g3_m")
    fail_if_zero(6)
    e("s_sleep 4\ns_branch L_g3_pre")
    e(f"L_g3_m:\ns_lshl_b32 s79, s{S_WAVE}, 11\ns_add_u32 s79, s79, s80")
    e(f"L_g3_mp:\nbuffer_load_dwordx4 v{vL16}, {WS}, s79 offen sc1 lds\nbuffer_load_dwordx4 v{vL16}, {WS}, s79 offen offset:1024 sc1 lds\ns_waitcnt vmcnt(0)\ns_barrier")
    for k in range(8): e(f"ds_read_b128 {vr(40+4*k,4)}, v{vL16} offset:{8192+k*1024}")
    e("s_waitcnt lgkmcnt(0)\nv_max3_i32 v14, v40, v41, v42")
    for k in range(43, 71, 2): e(f"v_max3_i32 v14, v14, v{k}, v{k+1}")
    e("v_max_i32 v14, v14, v71\nv_cmp_le_i32 vcc, s60, v14\ns_cbranch_vccnz L_g3_mslow\nL_g3_mok:")
    if OPT.get('tlg'): TLV[0] = 15; TL(8, 32)
    for mi in range(2):
        for tt in range(2):
            for sg in range(8):
                e(f"v_smfmac_f32_16x16x64_bf16 {vr(88+8*mi+4*tt,4)}, {vr(40+4*sg,4)}, {ar(128*mi+(tt*8+sg)*8,8)}, v{vIDX}")
                if (mi, tt, sg) == (1, 0, 3):
                    e("v_add_f32 v88, v88, v90\nv_add_f32 v89, v89, v91\nv_add_f32 v92, v92, v94\nv_add_f32 v93, v93, v95\nv_cvt_pk_bf16_f32 v88, v88, v92\nv_cvt_pk_bf16_f32 v89, v89, v93")
                    e(f"ds_write2_b32 v{vXW}, v88, v89 offset0:0 offset1:4")
    e(f"s_lshl_b32 s78, s{S_WAVE}, 9\nv_lshrrev_b32 v15, 1, v{vL16}\nv_add_u32 v14, s78, v15")
    e("v_add_f32 v96, v96, v98\nv_add_f32 v97, v97, v99\nv_add_f32 v100, v100, v102\nv_add_f32 v101, v101, v103\nv_cvt_pk_bf16_f32 v96, v96, v97\nv_cvt_pk_bf16_f32 v97, v100, v101")
    e(f"ds_write_b64 v14, v[96:97] offset:18432\ns_lshl_b32 s78, s{sEh}, 10\nv_add_u32 v15, s78, v15\nv_and_b32 v14, 0x1ff, v0\ns_waitcnt lgkmcnt(0)\ns_barrier")
    for j in range(4): e(f"ds_read_b128 {vr(88+4*j,4)}, v14 offset:{16384+j*512}")
    for jj in range(2): e(f"ds_read_b64 {vr(104+2*jj,2)}, v15 offset:{18432+jj*512}")
    for j in range(4):
        e(f"s_waitcnt lgkmcnt({5-j})\n{mm} v[116:119], {vr(88+4*j,4)}, {vr(24+4*j,4)}, {'0' if j == 0 else 'v[116:119]'}")
    e("v_mov_b32 v45, 0\nv_mov_b32 v46, 0")
    e("v_max3_f32 v124, v124, v116, v117")
    e("v_mov_b32 v125, v124\nv_permlane32_swap_b32 v124, v125\nv_max_f32 v124, v124, v125")
    e("v_mov_b32 v125, v124\nv_permlane16_swap_b32 v124, v125\nv_max_f32 v124, v124, v125")
    for r in range(10): e(f"v_sub_f32 v{108+r}, v{108+r}, v124")
    for r in range(10): e(f"v_exp_f32 v{108+r}, v{108+r}")
    for d in range(4): e(f"v_cvt_pk_bf16_f32 v{40+d}, v{108+2*d}, v{109+2*d}")
    e("v_cvt_pk_bf16_f32 v44, v116, v117\nv_cvt_pk_bf16_f32 v47, v116, v117")
    e("s_waitcnt lgkmcnt(0)")
    e(f"{mm} v[120:123], {ONES}, v[40:43], 0")
    for t in range(4): e(f"{mm} {vr(48+4*t,4)}, {vr(72+4*t,4)}, v[40:43], 0")
    e(f"{m16} v[120:123], v[20:21], v[44:45], v[120:123]")
    for t in range(4):
        o = vr(48 + 4 * t, 4)
        e(f"{m16} {o}, {vr(104+2*(t>>1),2)}, {'v[46:47]' if t&1 else 'v[44:45]'}, {o}")
    e("v_rcp_f32 v124, v120")
    for r in range(16): e(f"v_mul_f32 v{48+r}, v{48+r}, v124")
    e(f"s_lshl_b32 s78, s{sTq}, 12\ns_lshl_b32 s79, s{sEh}, 11\ns_add_u32 s78, s78, s79\nv_add_u32 v14, s78, v{vL16}")
    for jj in range(2):
        for r in range(4): e(f"v_cvt_pk_bf16_f32 v{64+4*jj+r}, v{48+8*jj+r}, v{52+8*jj+r}")
        e(f"ds_write_b128 v14, {vr(64+4*jj,4)} offset:{jj*1024}")
    e("s_waitcnt lgkmcnt(0)\ns_barrier")
    if OPT.get('tlg'): TLV[0] = 15; TL(9, 32)
    for q in range(8): e(f"ds_read_b128 {vr(24+4*q,4)}, v{vL16} offset:{q*1024}")
    e(f"s_lshl_b32 s80, s{sH}, 15\ns_lshl_b32 s81, s{S_WAVE}, 13\ns_add_u32 s80, s80, s81\ns_add_u32 s80, s80, s65\ns_add_u32 s81, s80, 4096")
    for tq in range(2):
        for j in range(4):
            e(f"s_waitcnt lgkmcnt({7-(tq*4+j)})")
            for t in range(8):
                a = vr(56 + (tq * 8 + t) * 4, 4)
                e(f"{mm} {a}, {vr(WO+(j*8+t)*4,4)}, {vr(24+(tq*4+j)*4,4)}, {'0' if j == 0 else a}")
    e(f"s_lshl_b32 s62, s{sSeg}, 7\ns_add_u32 s62, s62, {WS_FLAG+F_G3:#x}\ns_lshl_b32 s78, s{sH}, 2\ns_add_u32 s78, s78, s62\ns_cmp_eq_u32 s{S_WAVE}, 0\ns_cselect_b32 s78, s78, {OOB:#x}")
    e(f"s_mov_b32 s63, s83\ns_add_u32 s64, s65, s{sRo}\n{'s_add_u32 s65, s65, 0x700000' if OPT.get('apfull') else 's_xor_b32 s65, s65, 0x100000'}\ns_cmp_eq_u32 s{S_MIX}, 0\ns_cbranch_scc0 L_g3_stx")
    for fl in ("", "sc1"):
        if fl: e("L_g3_stx:")
        for tq in range(2):
            for r in range(4):
                q = 120 + 4 * (r & 1)
                for tp in range(4):
                    e(f"v_cvt_pk_bf16_f32 v{q+tp}, v{56+(tq*8+2*tp)*4+r}, v{56+(tq*8+2*tp+1)*4+r}")
                e(f"buffer_store_dwordx4 {vr(q,4)}, v{vL16}, {WS}, s{80+tq} offen offset:{r*1024} {fl}")
        e("v_mov_b32 v14, 1\ns_waitcnt vmcnt(0)\ns_barrier")
        if OPT.get('tlg'): TLV[0] = 15; TL(10, 32)
        e(f"buffer_store_dword v14, off, {WS}, s78 {fl}")
        if not fl: e("s_branch L_g3_ste")
    e("L_g3_ste:")
    if OPT.get('tl'):
        e(f"s_cmp_lt_u32 s{sSeg}, 7\ns_cbranch_scc0 L_tl4"); TLV[0] = 124; TL(6, 32); e("L_tl4:")
    e(f"s_add_u32 s{sSeg}, s{sSeg}, 7\ns_cmp_lt_u32 s{sSeg}, 64\ns_cbranch_scc1 L_g3")
    reduce(17)
    TL(7, 32); DTL(9, 14)
    if OPT.get('probe_num'):
        e(f"v_mov_b32 v14, 0\nglobal_load_dword v14, v14, s[{P_DBG}:{P_DBG+1}] offset:24 sc1\ns_waitcnt vmcnt(0)\nv_readfirstlane_b32 s78, v14\ns_bcnt1_i32_b32 s78, s78\ns_cmp_eq_u32 s78, 1\ns_cbranch_scc1 L_pn\ns_mov_b32 s78, 40\nL_pn1:\ns_sleep 64\ns_sub_u32 s78, s78, 1\ns_cmp_lg_u32 s78, 0\ns_cbranch_scc1 L_pn1\nL_pn:")
    if OPT.get('wb', 1): e(f"s_or_b32 s78, s{sH}, s{S_WAVE}\ns_cmp_eq_u32 s78, 0\ns_cbranch_scc0 L_g3_nwb\nbuffer_wbl2 sc1\nL_g3_nwb:")
    e("s_waitcnt vmcnt(0)\ns_branch L_end")
    e("L_g3_mslow:")
    for k in range(40, 72): e(f"v_cmp_eq_u32 vcc, s59, v{k}\ns_cbranch_vccnz L_g3_mre")
    e("s_branch L_g3_mok\nL_g3_mre:")
    fail_if_zero(9)
    e("s_barrier\ns_branch L_g3_mp")
```

```python
def emit(G, mode):
    globals().update(G)
    ST = "sc1" if mode else ""
    Ln = lambda s: f"L_c{mode}_{s}"
    W = "s[40:43]"
    WSTR = 36864
    L_M = 0; L_X = L_M + 8192; L_P = L_X + 4096 + 512; L_O = L_P + 1024; L_W = 16384
    assert L_O + 2048 <= L_W
    M = 0
    AQ0, AQ1, AK0, AK1, AV0, AV1 = 32, 36, 40, 44, 48, 52
    VW = 56; KT = 88; VT = 104; QF = 112
    JUNK = 128
    vIDX, vP8, vSP2, vVW, vXW, vQR, vKR, vPR, vOW, vL16, vRL, vMS, vSEL = range(131, 144)
    vW16 = 18
    WOB = 144
    sStep, sMc, sMn, sMp, sPc, sPp, sSK, sSV, sPF, sMH, sMHp, sFl, sKv = range(44, 57)
    sRd = list(range(57, 65))
    sSENT, sONE, sMLO = 66, 68, 70
    sC, sInf, sLlo, sLrg, sW1k, sLo, sHi, sPW = range(72, 80)
    sT = 80
    sPn, sDl, sRdR, sRdW, sRedo, sOOB, sFlC, sTag = sPW, 95, 65, 90, 91, 88, 89, 87
    WS_RDY = WS_M + 0x8000
    lds_slot = {}
    nb1, nb2 = OPT.get('nb1', 0), OPT.get('nb2', 0)
    vq = [('v', tt, sg) for sg in range(4) for tt in range(2)] + [('v', tt, sg) for tt in range(2) for sg in range(4, 8)]
    qk = lambda sg: [('q', 0, sg), ('q', 1, sg), ('k', 0, sg), ('k', 1, sg)]
    fr = qk(0) + qk(1) + vq[:nb1] + qk(2) + qk(3) + vq[nb1:nb1 + nb2] + [(mt, tt, sg) for mt in 'qk' for tt in range(2) for sg in range(4, 8)]
    vrest = vq[nb1 + nb2:]
    step_ = (len(fr) - 1 - 9) / 7.0
    order = [fr[g] for g in (0, 2, 4, 6)] + [fr[9 + int(round(k * step_))] for k in range(8)]
    order += [('o', 1, 1), ('o', 1, 3), ('o', 2, 1), ('o', 2, 3), ('o', 3, 1), ('o', 3, 3)]
    for i, f in enumerate(order): lds_slot[f] = i
    NQ = 12
    reg = {}
    n = 0
    for mt in 'qkv':
        for tt in range(2):
            for sg in range(8):
                if (mt, tt, sg) not in lds_slot:
                    reg[(mt, tt, sg)] = ('a', 8 * n) if n < 32 else ('v', 224 + 8 * (n - 32)); n += 1
    assert n == 36
    n = 0
    for t in range(4):
        for k in range(4):
            if ('o', t, k) not in lds_slot: reg[('o', t, k)] = ('v', WOB + 8 * n); n += 1
    assert n == 10
    rr = lambda f, o, n: (ar if reg[f][0] == 'a' else vr)(reg[f][1] + o, n)

    e(f"L_chain{mode}:")
    if OPT['skip_chain']:
        e("s_branch L_end"); return
    h = S_IDX; w = S_WAVE
    TLV[0] = 15
    TL(1, 0)
    if OPT.get('tl'): e(f"v_mov_b32 v15, s94\ns_sub_u32 s97, s97, 4\nbuffer_store_dword v15, off, {WS}, s97")
    e(f"v_lshrrev_b32 v1, 4, v0\nv_and_b32 v2, 15, v0")
    e(f"v_lshlrev_b32 v{vL16}, 4, v0")
    e(f"s_lshl_b32 s{sT}, s{w}, 11\nv_add_u32 v{vW16}, s{sT}, v{vL16}")
    e(f"s_lshl_b32 s{sT}, s{w}, 9\nv_lshlrev_b32 v{vP8}, 3, v0\nv_add_u32 v{vP8}, s{sT}, v{vP8}")
    e(f"s_mul_i32 s{sT}, s{w}, {WSTR}\ns_add_u32 s{sT}, s{sT}, {L_W}\nv_add_u32 v{vVW}, s{sT}, v{vL16}")
    e(f"v_mov_b32 v{vIDX}, 0x4444\nv_mov_b32 v3, 0xeeee\nv_and_b32 v4, 2, v2\nv_cmp_eq_u32 vcc, 0, v4\nv_cndmask_b32 v{vIDX}, v3, v{vIDX}, vcc")
    e(f"s_lshl_b32 s{sW1k}, s{w}, 10\nv_lshrrev_b32 v3, 2, v2\nv_lshlrev_b32 v3, 7, v3\nv_lshl_add_u32 v3, v1, 5, v3\nv_and_b32 v4, 3, v2\nv_lshl_add_u32 v3, v4, 2, v3")
    e(f"v_bfe_u32 v4, v2, 2, 1\nv_lshlrev_b32 v4, 6, v4\nv_xor_b32 v3, v3, v4\nv_add_u32 v3, s{sW1k}, v3\nv_add_u32 v{vXW}, {L_X}, v3")
    e(f"v_and_b32 v4, 7, v2\nv_lshlrev_b32 v4, 4, v4\nv_lshl_add_u32 v{vQR}, v1, 7, v4")
    e(f"v_lshrrev_b32 v3, 2, v2\nv_and_b32 v4, 1, v2\nv_lshl_add_u32 v3, v3, 1, v4\nv_lshlrev_b32 v3, 4, v3\nv_lshl_add_u32 v{vKR}, v1, 7, v3")
    e(f"v_and_b32 v4, 1, v1\nv_lshlrev_b32 v4, 6, v4\nv_xor_b32 v{vQR}, v{vQR}, v4\nv_xor_b32 v{vKR}, v{vKR}, v4")
    e(f"v_lshrrev_b32 v5, 3, v2\nv_lshl_add_u32 v{vPR}, v5, 9, v{vQR}")
    e(f"v_lshl_add_u32 v{vOW}, v5, 3, v{vQR}")
    e(f"s_lshl_b32 s{sT}, s{w}, 11\ns_lshl_b32 s{sT+1}, s{h}, 6\ns_add_u32 s{sT}, s{sT}, s{sT+1}")
    e(f"v_mul_u32_u24 v3, {HS}, v1\nv_lshl_add_u32 v3, v2, 2, v3\nv_add_u32 v{vRL}, s{sT}, v3")
    sWp, sGp, sHc = sT + 2, sT + 3, sT + 4
    e(f"s_lshr_b32 s{sWp}, s{h}, 3\ns_bfe_u32 s{sGp}, s{h}, 0x20001\ns_and_b32 s{sHc}, s{h}, 1")
    e(f"s_lshl_b32 s{sT}, s{sWp}, 9\ns_lshl_b32 s{sT+1}, s{sHc}, 8\ns_add_u32 s{sT}, s{sT}, s{sT+1}\ns_lshl_b32 s{sT+1}, s{sGp}, 6\ns_add_u32 s{sT}, s{sT}, s{sT+1}")
    e(f"v_and_b32 v3, 1, v2\nv_lshrrev_b32 v4, 1, v2\nv_lshrrev_b32 v6, 3, v2\nv_lshl_add_u32 v6, v6, 1, v3\nv_lshlrev_b32 v6, 4, v6\nv_and_b32 v8, 3, v4\nv_lshl_add_u32 v6, v8, 2, v6\nv_add_u32 v6, s{sT}, v6")
    e(f"v_mov_b32 v7, {OOB:#x}\nv_cmp_eq_u32 vcc, 0, v1\nv_cndmask_b32 v{vMS}, v7, v6, vcc")
    e(f"v_lshlrev_b32 v6, 10, v3\nv_lshl_add_u32 v6, v4, 4, v6")
    e(f"s_lshl_b32 s{sT}, s{sGp}, 11\ns_lshl_b32 s{sT+1}, s{sWp}, 8\ns_add_u32 s{sT}, s{sT}, s{sT+1}\ns_lshl_b32 s{sT+1}, s{sHc}, 7\ns_add_u32 s{sT}, s{sT}, s{sT+1}\ns_lshl_b32 s{sT+1}, s{w}, 2\ns_add_u32 s{sT}, s{sT}, s{sT+1}")
    srd(40, P_MEM0, 8192)
    e(f"buffer_load_dword v9, v6, {W}, s{sT} offen")
    e(f"v_mov_b32 v{vSEL}, 0\nv_mov_b32 v3, 0x3f80\nv_cmp_eq_u32 vcc, 0, v2\nv_cndmask_b32 v{vSEL}, v{vSEL}, v3, vcc\nv_mov_b32 v3, 0x3f800000\nv_cmp_eq_u32 vcc, 1, v2\nv_cndmask_b32 v{vSEL}, v{vSEL}, v3, vcc")
    e(f"s_mov_b32 s{sStep}, 0\ns_lshl_b32 s{sMc}, s{w}, 11\ns_add_u32 s{sMc}, s{sMc}, {WS_M}\ns_add_u32 s{sMn}, s{sMc}, 8192\ns_add_u32 s{sMp}, s{sMc}, 16384")
    e(f"s_mul_i32 s{sPc}, s{h}, {HS}\ns_add_u32 s{sPc}, s{sPc}, {WS_P:#x}\ns_add_u32 s{sPn}, s{sPc}, {PRING:#x}\ns_add_u32 s{sPp}, s{sPn}, {PRING:#x}")
    for i in range(8): e(f"s_mov_b32 s{sRd[i]}, {WS_P + i*4*HS:#x}")
    e(f"s_mul_i32 s{sT}, s{h}, {RHS:#x}\ns_lshr_b32 s{sT+1}, s{w}, 1\ns_lshl_b32 s{sT+1}, s{sT+1}, 12\ns_add_u32 s{sSK}, s{sT}, s{sT+1}\ns_and_b32 s{sT+1}, s{w}, 1\ns_lshl_b32 s{sT+1}, s{sT+1}, 9\ns_add_u32 s{sSK}, s{sSK}, s{sT+1}\ns_add_u32 s{sSK}, s{sSK}, {WS_K:#x}")
    e(f"s_lshl_b32 s{sT+1}, s{w}, 11\ns_add_u32 s{sSV}, s{sT}, s{sT+1}\ns_add_u32 s{sSV}, s{sSV}, {WS_V:#x}")
    e(f"s_lshl_b32 s{sT+1}, s{w}, 12\ns_add_u32 s{sPF}, s{sT}, s{sT+1}\ns_add_u32 s{sPF}, s{sPF}, {WS_K:#x}")
    e(f"s_add_u32 s{sMH}, s{sMc}, {WS_MH - WS_M:#x}\ns_lshl_b32 s{sRdR}, s{w}, 7\ns_add_u32 s{sRdR}, s{sRdR}, {WS_RDY:#x}\ns_lshl_b32 s{sRdW}, s{h}, 2\ns_add_u32 s{sRdW}, s{sRdW}, s{sRdR}")
    e(f"s_mov_b32 s{sSENT}, {SENT:#x}\ns_mov_b32 s{sSENT+1}, {SENT:#x}\ns_mov_b32 s{sONE}, 0x3f803f80\ns_mov_b32 s{sONE+1}, 0x3f803f80")
    e(f"s_mov_b32 s{sMLO}, 0x00ff00ff\ns_mov_b32 s{sMLO+1}, 0x00ff00ff\ns_mov_b32 s{sC}, {CSCALE:#x}\ns_mov_b32 s{sInf}, {INF:#x}")
    LLO, LHI = fbits(2.0 ** -60), fbits(2.0 ** 60)
    e(f"s_mov_b32 s{sLlo}, {LLO:#x}\ns_mov_b32 s{sLrg}, {(0 if OPT['force_fallback'] else LHI-LLO):#x}\ns_mov_b32 s{sLo}, 0x05040100\ns_mov_b32 s{sHi}, 0x07060302")
    vWA, vTS, vAD = 10, 11, 16
    e(f"v_lshlrev_b32 v3, 4, v2")
    e(f"v_lshrrev_b32 v4, 1, v1\nv_lshl_add_u32 v3, v4, 19, v3\nv_and_b32 v4, 1, v1\nv_lshl_add_u32 v3, v4, 17, v3")
    e(f"s_lshl_b32 s{sT}, s{w}, 14\ns_lshl_b32 s{sT+1}, s{h}, 8\ns_add_u32 s{sT}, s{sT}, s{sT+1}\nv_add_u32 v{vWA}, s{sT}, v3")
    e(f"s_lshl_b32 s{sT}, s{w}, 12\ns_add_u32 s{sT}, s{sT}, {L_M}\nv_add_u32 v{vTS}, s{sT}, v{vL16}")
    e(f"s_lshl_b32 s{sT+8}, s{w}, 3")
    RAW = [20, 144]
    TQ = [84, 88, 92]
    rounds = [(OPT.get('ro', 'vvqkqk')[i], (0, 1, 1, 1, 0, 0)[i] if OPT.get('ro', 'vvqkqk')[2] != OPT.get('ro', 'vvqkqk')[3] else i & 1) for i in range(6)]
    assert rounds[5][0] != 'q'
    ptr = {'q': P_WQ, 'k': P_WK, 'v': P_WV}
    def qkv_loads(ri):
        mt, par = rounds[ri]
        srd(40, ptr[mt], 0x400000)
        for j2 in range(8):
            for hb in range(2):
                row = 256 * par + 128 * (j2 >> 2) + 32 * (j2 & 1) + 8 * ((j2 & 3) >> 1) + hb
                e(f"s_mov_b32 s{sT}, {row*8192:#x}\nbuffer_load_dwordx4 {vr(RAW[ri&1]+(j2*2+hb)*4,4)}, v{vWA}, {W}, s{sT} offen")
    placed = set(); plan = []
    for ri, (mt, par) in enumerate(rounds):
        fs = [(mt, tt, sg) for tt in range(2) for sg in range(par, 8, 2)]
        for f in fs:
            if f in lds_slot: placed.add(lds_slot[f])
        free = [s for s in range(19, -1, -1) if s not in placed]
        loc = {}
        for f in fs:
            loc[f] = lds_slot[f] if f in lds_slot else free.pop(0)
        plan.append(loc)
    absslot = lambda wd, s: (8 + wd * 18 + s) if s < 18 else (wd * 2 + s - 18)
    vWO = 17
    e(f"v_lshrrev_b32 v3, 1, v1\nv_lshlrev_b32 v3, 5, v3\nv_and_b32 v4, 1, v1\nv_add_u32 v3, v3, v4\nv_lshlrev_b32 v3, 10, v3\nv_lshl_add_u32 v3, v2, 4, v3")
    e(f"s_lshl_b32 s{sT}, s{h}, 17\ns_lshl_b32 s{sT+1}, s{w}, 8\ns_add_u32 s{sT}, s{sT}, s{sT+1}\nv_add_u32 v{vWO}, s{sT}, v3")
    WRAW = [20, 52, 96]
    def wo_loads(gi):
        for jl in range(4):
            for hb in range(2):
                row = 64 * (jl >> 1) + 16 * (jl & 1) + 8 * hb + 2 * gi
                e(f"s_mov_b32 s{sT}, {row*1024:#x}\nbuffer_load_dwordx4 {vr(WRAW[gi%3]+(jl*2+hb)*4,4)}, v{vWO}, {W}, s{sT} offen")
    def init_handoff():
        e(f"v_mov_b64 v[12:13], s[{sSENT}:{sSENT+1}]\nv_mov_b64 v[14:15], s[{sSENT}:{sSENT+1}]")
        for s in (sPc, sPn, sPp):
            for o in (0, 1024): e(f"buffer_store_dwordx4 v[12:15], v{vW16}, {WS}, s{s} offen offset:{o} {ST}")
        e(f"buffer_store_dword v12, v{vMS}, {WS}, s{sMn} offen {ST}\nbuffer_store_dword v12, v{vMS}, {WS}, s{sMp} offen {ST}")
        e(f"buffer_store_dword v9, v{vMS}, {WS}, s{sMc} offen {ST}\nbuffer_store_dword v9, v{vMS}, {WS}, s{sMH} offen sc1\ns_mov_b32 s{sMHp}, {OOB:#x}\nv_mov_b32 v8, 0\nbuffer_store_dword v8, off, {WS}, s{sRdW} {ST}")
    def arrive():
        e(f"s_lshl_b32 s{sT}, s{h}, 2\ns_add_u32 s{sT}, s{sT}, {WS_FLAG+F_BAR:#x}\ns_cmp_eq_u32 s{w}, 0\ns_cselect_b32 s{sT}, s{sT}, {OOB:#x}\nv_mov_b32 v4, 1\nbuffer_store_dword v4, off, {WS}, s{sT} {ST}")
    qkv_loads(0)
    tq = 0
    for ri, (mt, par) in enumerate(rounds):
        if ri == OPT.get('cr', 4): confirm_issue('v6', 8)
        HP = OPT.get('help')
        if HP and ri == HP[0]:
            e(f"s_and_b32 s{sT}, s{h}, 3\ns_cmp_eq_u32 s{sT}, 1\ns_cbranch_scc1 {Ln('nohelp')}\ns_lshr_b32 s{sT+1}, s{sT}, 1\ns_add_u32 s{sT+1}, s{sT+1}, s{sT}\ns_lshr_b32 s{sT+1}, s{sT+1}, 1")
            e(f"s_mul_i32 s{sT+1}, s{sT+1}, {44*1024}\ns_mul_i32 s{sT+2}, s{w}, {11*1024}\ns_add_u32 s{sT+1}, s{sT+1}, s{sT+2}\ns_andn2_b32 s{sT}, s{h}, 3\ns_or_b32 s{sT}, s{sT}, 1\ns_lshl_b32 s{sT}, s{sT}, 17\ns_add_u32 s{sT}, s{sT}, s{sT+1}")
            srd(40, P_WO, 0x400000)
            for k in range(11): e(f"buffer_load_dwordx3 {vr(JUNK,3)}, v{vL16}, {W}, s{sT} offen\ns_add_u32 s{sT}, s{sT}, 1024")
            e(f"{Ln('nohelp')}:")
        if ri + 1 < 6:
            qkv_loads(ri + 1); e("s_waitcnt vmcnt(16)")
        else:
            srd(40, P_WO, 0x400000); wo_loads(0); wo_loads(1); wo_loads(2); e("s_waitcnt vmcnt(24)")
        if OPT.get('tlw') and ri in (0, 1, 3, 5):
            TLV[0] = 15; TL(8 + (0, 1, 3, 5).index(ri), 0)
        if ri == OPT.get('cr', 4):
            confirm_check(40 + mode, 6, 8); init_handoff()
        if ri: e("s_waitcnt lgkmcnt(0)\ns_barrier")
        if ri == 1: report(40 + mode, 6)
        raw = RAW[ri & 1]
        for t in range(8):
            wd, tt = t >> 1, t & 1
            const = 0
            for wl in range(4):
                sg = 2 * wl + par
                const |= absslot(wd, plan[ri][(mt, tt, sg)]) << (8 * wl)
            e(f"s_lshr_b32 s{sT}, {const:#x}, s{sT+8}\ns_and_b32 s{sT}, s{sT}, 0xff\ns_lshl_b32 s{sT}, s{sT}, 11\nv_add_u32 v{vAD}, s{sT}, v{vL16}")
            for hf in range(2):
                q = TQ[tq % 3]; tq += 1
                for jl in range(4):
                    j2 = hf * 4 + jl
                    r0, r1 = raw + (j2 * 2) * 4 + (t >> 1), raw + (j2 * 2 + 1) * 4 + (t >> 1)
                    if mt == 'q':
                        tp_ = 96 + 2 * (jl & 1)
                        for k_, r_ in ((0, r0), (1, r1)):
                            e(f"v_and_b32 v{tp_+k_}, 0xffff0000, v{r_}" if t & 1 else f"v_lshlrev_b32 v{tp_+k_}, 16, v{r_}")
                        e(f"v_pk_mul_f32 v[{tp_}:{tp_+1}], v[{tp_}:{tp_+1}], s[{sC}:{sC+1}] op_sel_hi:[1,0]\nv_cvt_pk_bf16_f32 v{q+jl}, v{tp_}, v{tp_+1}")
                    else:
                        e(f"v_perm_b32 v{q+jl}, v{r1}, v{r0}, s{sHi if t&1 else sLo}")
                e(f"ds_write_b128 v{vAD}, {vr(q,4)} offset:{hf*1024}")
        e("s_waitcnt lgkmcnt(0)\ns_barrier")
        nrd = 0
        for f, s in plan[ri].items():
            if f in lds_slot: continue
            for hf in range(2):
                if s < 18: e(f"ds_read_b128 {rr(f,4*hf,4)}, v{vVW} offset:{s*2048+hf*1024}")
                else: e(f"ds_read_b128 {rr(f,4*hf,4)}, v{vTS} offset:{(s-18)*2048+hf*1024}")
                nrd += 1
                if nrd == 12: e("s_waitcnt lgkmcnt(4)")
    e("s_waitcnt lgkmcnt(0)\ns_barrier")
    arrive()
    for gi in range(4):
        if gi == 1: wo_loads(3)
        if gi == 2:
            e(f"s_mov_b32 s{sT}, {WS_FLAG+F_KV:#x}\nv_lshlrev_b32 v8, 2, v{vL16}\nbuffer_load_dword v8, v8, {WS}, s{sT} offen sc1")
            e(f"s_add_u32 s{sT}, s{sPF}, {SEGS:#x}")
            for k in range(8): e(f"buffer_load_dwordx3 {vr(JUNK,3)}, v{vL16}, {WS}, s{sPF if k < 4 else sT} offen offset:{(k&3)*1024} sc1")
        e(f"s_waitcnt vmcnt({[16, 16, 17, 9][gi]})")
        raw = WRAW[gi % 3]
        for tp in range(4):
            f = ('o', tp, gi)
            for hf in range(2):
                q = reg[f][1] + 4 * hf if f in reg else TQ[(2 * tp + hf) % 3]
                for j in range(4):
                    jl = 2 * hf + (j >> 1)
                    e(f"v_perm_b32 v{q+j}, v{raw+(jl*2+1)*4+tp}, v{raw+(jl*2)*4+tp}, s{sHi if j&1 else sLo}")
                if f not in reg: e(f"ds_write_b128 v{vVW}, {vr(q,4)} offset:{lds_slot[f]*2048+hf*1024}")
    TL(2, 0); DTL(4, 14)
    if OPT.get('enc'): e('s_memrealtime s[98:99]\ns_waitcnt lgkmcnt(0)\ns_mov_b32 s86, s98')
    e(f"v_mov_b32 v3, 0\nv_lshlrev_b32 v4, 3, v0\nv_mov_b32 v6, 0\nv_mov_b32 v7, 0\nds_write_b64 v4, v[6:7] offset:{L_P-512}\nds_write_b64 v4, v[6:7] offset:{L_P+512}")
    e(f"v_and_b32 v3, 31, v0\nv_lshlrev_b32 v3, 2, v3\ns_mov_b32 s{sT}, {WS_FLAG+F_BAR:#x}")
    e(f"{Ln('bar')}:\nbuffer_load_dword v4, v3, {WS}, s{sT} offen sc1\ns_waitcnt vmcnt(0)\nv_cmp_ne_u32 vcc, 1, v4\ns_cbranch_vccz {Ln('bar_ok')}")
    fail_if_zero(10)
    e(f"s_branch {Ln('bar')}\n{Ln('bar_ok')}:")
    TL(3, 0)
    e(f"v_cmp_le_u32 vcc, 32, v8\ns_and_b32 s{sT}, vcc_lo, 0xffff\ns_ff0_i32_b32 s{sKv}, s{sT}")
    def kv_refresh(lab, code):
        e(f"{lab}:\ns_mov_b32 s{sT+2}, {WS_FLAG+F_KV:#x}\nv_lshlrev_b32 v{JUNK}, 2, v{vL16}\ns_waitcnt vmcnt(0)\nbuffer_load_dword v{JUNK}, v{JUNK}, {WS}, s{sT+2} offen sc1\ns_waitcnt vmcnt(0)")
        e(f"v_cmp_le_u32 vcc, 32, v{JUNK}\ns_and_b32 s{sT+2}, vcc_lo, 0xffff\ns_ff0_i32_b32 s{sKv}, s{sT+2}\ns_cmp_lt_u32 s{sT}, s{sKv}\ns_cbranch_scc1 {lab}_ok")
        fail_if_zero(code)
        e(f"s_branch {lab}\n{lab}_ok:")
    e(f"s_mov_b32 s{sTag}, 0\ns_mov_b32 s{sRedo}, 0\ns_mov_b32 s{sT}, 0\ns_mov_b32 s{sFlC}, {WS_FLAG+F_KV:#x}\ns_mov_b32 s{sOOB}, {OOB:#x}\ns_mov_b32 s{sFl}, s{sFlC}")
    e(f"s_cmp_lg_u32 s{sKv}, 0\ns_cbranch_scc1 {Ln('kv0')}_ok")
    kv_refresh(Ln('kv0'), 12)
    TL(4, 0); DTL(5, 14)
    if OPT.get('enc'): e('s_memrealtime s[98:99]\ns_waitcnt lgkmcnt(0)\ns_mov_b32 s92, s98')
    if OPT.get('dtl'): e('s_memtime s[92:93]\ns_waitcnt lgkmcnt(0)')
    if OPT.get('tl'): e("s_memtime s[92:93]\ns_waitcnt lgkmcnt(0)\ns_mov_b32 s94, 0")
    e(f"s_cmp_lt_u32 s{sKv}, 2\ns_cselect_b32 s{sFl}, s{sFlC}, s{sOOB}")
    def kv_loads():
        r = []
        for j in range(4): r.append(f"buffer_load_dwordx4 {vr(KT+4*j,4)}, v{vKR}, {WS}, s{sSK} offen offset:{j*1024} sc1")
        for t in range(2): r.append(f"buffer_load_dwordx4 {vr(VT+4*t,4)}, v{vL16}, {WS}, s{sSV} offen offset:{t*1024} sc1")
        return r
    for x in kv_loads()[:4]: e(x)
    e(f"s_add_u32 s{sSK}, s{sSK}, {SEGS:#x}")
    if not OPT.get('vearly', 0):
        for x in kv_loads()[4:]: e(x)
        e(f"s_add_u32 s{sSV}, s{sSV}, {SEGS:#x}")
    warm = [f"buffer_load_dwordx3 {vr(JUNK,3)}, v{vL16}, {WS}, s{sPF} offen offset:{k*1024} sc1" for k in range(4)]
    e(f"s_add_u32 s{sPF}, s{sPF}, {SEGS:#x}")
    for x in warm: e(x)
    e(f"s_add_u32 s{sPF}, s{sPF}, {SEGS:#x}")
    FP_ = OPT.get('fprobe', 1)
    e(f"v_and_b32 v4, 31, v0\nv_lshlrev_b32 v{vSP2}, {2 if FP_ else 6}, v4")
    pcmp = lambda r: f"v_cmp_ne_u32 vcc, s{sStep}, v{r}" if FP_ else f"v_cmp_eq_u32 vcc, s{sSENT}, v{r}"
    X = OPT.get('x', ''); nc = 'nocomm' in X
    from asmlib import estimate
    mm = "v_mfma_f32_16x16x32_bf16"; m16 = "v_mfma_f32_16x16x16_bf16"
    cvt = lambda d, a, b: f"v_cvt_pk_bf16_f32 v{d}, v{a}, v{b}"
    add2 = lambda a: [f"v_add_f32 v{a}, v{a}, v{a+2}", f"v_add_f32 v{a+1}, v{a+1}, v{a+3}"]
    mul2 = lambda a: [f"v_mul_f32 v{a}, s{sC}, v{a}", f"v_mul_f32 v{a+1}, s{sC}, v{a+1}"]
    accof = {'q': (AQ0, AQ1), 'k': (AK0, AK1), 'v': (AV0, AV1)}
    ringslot = {f: i % 4 for i, f in enumerate(order[:12])}
    ringslot.update({f: (2, 3, 0, 1, 2, 3)[i] for i, f in enumerate(order[12:])})
    wtxt = lambda f, hf: f"ds_read_b128 {vr(VW+8*ringslot[f]+4*hf,4)}, v{vVW} offset:{lds_slot[f]*2048+hf*1024}"
    wreg = lambda f: vr(VW + 8 * ringslot[f], 8) if f in lds_slot else rr(f, 0, 8)
    stage = [wtxt(order[i], hf) for i in range(4) for hf in range(2)]
    zero_acc = [f"v_mov_b64 v[{AQ0+2*i}:{AQ0+2*i+1}], 0" for i in range(12)]
    SM = lambda f: f"v_smfmac_f32_16x16x64_bf16 {vr(accof[f[0]][f[1]],4)}, {vr(M+4*f[2],4)}, {wreg(f)}, v{vIDX}"
    STK, SMM, LA, OA = AQ0, AK1, AQ1, AK0
    PT = AQ1; KF = M; PM = AV0 + 2; RC = SMM + 2
    PLO, PHI, PAL, ONE4 = VW, VW + 4, VW + 8, VW + 12
    PRB, SENTQ = QF + 2, QF + 12
    LAND, SELQ, R = AQ0, QF, QF + 4
    mlo = f"s[{sMLO}:{sMLO+1}]"
    chainc = lambda a, j: '0' if j == 0 else vr(a, 4)
    pv_tok = [f"{mm} {vr(LA,4)}, {vr(ONE4,4)}, {vr(PAL,4)}, 0", f"{mm} {vr(OA,4)}, {vr(VT,4)}, {vr(PLO,4)}, 0",
              f"{mm} {vr(OA,4)}, {vr(VT+4,4)}, {vr(PHI,4)}, {vr(OA,4)}"]
    pv_mem = [f"{m16} {vr(LA,4)}, {vr(ONE4,2)}, {vr(PM,2)}, {vr(LA,4)}", f"{m16} {vr(OA,4)}, {vr(AV0,2)}, {vr(PM,2)}, {vr(OA,4)}"]
    zw = [f"v_mov_b64 v[{M+2*i}:{M+2*i+1}], 0" for i in range(8)]
    norm = ([f"v_pk_mul_f32 {vr(OA+r,2)}, {vr(OA+r,2)}, {vr(RC,2)} op_sel_hi:[1,0]" for r in (0, 2)] if OPT.get('pkn', 0) else [f"v_mul_f32 v{OA+r}, v{OA+r}, v{RC}" for r in range(4)]) + [cvt(OA, OA, OA + 1), cvt(OA + 1, OA + 2, OA + 3)]
    p2l = [f"buffer_load_dword v{LAND+i}, v{vRL}, {WS}, s{sRd[i]} offen sc1" for i in range(8)]
    shot = lambda r: [f"buffer_load_dword v{r}, v{vSP2}, {WS}, s{sRdR if FP_ else sMc} offen sc1", f"buffer_load_dwordx4 v{vL16}, {WS}, s{sMc} offen sc1 lds",
                      f"buffer_load_dwordx4 v{vL16}, {WS}, s{sMc} offen offset:1024 sc1 lds"]
    def pad(n):
        r = []
        while n > 0:
            k = min(n, 8); r.append(f"s_nop {k-1}"); n -= k
        return r
    dregs = list(range(4, 28, 2))
    NSW = OPT.get('nsw', [3, 3, 1, 1]); POST = OPT.get('post', [0, 0, 1, 1]); TOP1 = OPT.get('top1', 0); EX = OPT.get('ex', 5)
    e("s_waitcnt lgkmcnt(0)")
    for x in stage + zero_acc: e(x)
    e(f"s_lshl_b32 s{sT}, s{w}, 11\ns_add_u32 m0, s{sT}, {L_M}")
    e("s_waitcnt vmcnt(0)\ns_barrier")
    for k in range(1, 4): e(f"s_cmp_eq_u32 s{w}, {k}\ns_cbranch_scc1 {Ln('enter%d' % k)}")
    ta = {}
    for wv in range(4):
        Lw = lambda s: Ln(f"w{wv}_{s}")
        lds = []; vm = []; dn = []
        def WL(tag):
            k = max(i for i, t in enumerate(lds) if t == tag)
            return f"s_waitcnt lgkmcnt({min(len(lds) - 1 - k, 15)})"
        def WV(tag):
            k = max(i for i, t in enumerate(vm) if t == tag)
            return f"s_waitcnt vmcnt({len(vm) - 1 - k})"
        def DS(name):
            if OPT.get('one'):
                if name == 'wo_end':
                    if OPT['one'] == name: e("s_memtime s[6:7]")
                    e("s_waitcnt lgkmcnt(0)\ns_sub_u32 s6, s6, s4\ns_cmp_gt_u32 s{0}, 4\ns_cselect_b32 s6, s6, 0\ns_add_u32 s94, s94, s6\ns_memtime s[4:5]".format(sStep))
                elif OPT['one'] == name: e("s_memtime s[6:7]")
                return
            if not OPT.get('dst'): return
            e(f"{'s_memrealtime' if OPT.get('real') else 's_memtime'} s[{dregs[len(dn)]}:{dregs[len(dn)]+1}]"); dn.append(name)
        class Op:
            def __init__(s, txt, tag=None, wait=None, vwait=None): s.txt, s.tag, s.wait, s.vwait = txt, tag, wait, vwait
            def out(s):
                if s.wait is not None: return WL(s.wait)
                if s.vwait is not None: return WV(s.vwait)
                if s.txt.startswith('ds_'): lds.append(s.tag)
                if s.txt.startswith('buffer_'): vm.append(s.tag)
                return s.txt
        E = lambda x, tag=None: e(Op(x, tag).out())
        rd = lambda dst, a, off, tag: Op(f"ds_read_b128 {vr(dst,4)}, v{a} offset:{off}", tag)
        wt = lambda tag: Op("s_waitcnt lgkmcnt(0)", wait=tag)
        wtv = lambda tag: Op("s_waitcnt vmcnt(0)", vwait=tag)
        tacost = lambda t: (20 if 'store_dwordx4' in t else 16 if 'x4' in t or 'x2' in t or 'x3' in t else 6) if t.startswith('buffer_') else 0
        class Sched:
            def __init__(s, bb, book=False): s.bb = bb; s.g = [([], [], []) for _ in bb]; s.book = book
            def kind(s, x):
                t = x.txt
                return 2 if t.startswith('v_') and not t.startswith('v_cmp_') else (1 if t.startswith(('ds_', 'buffer_')) else 0)
            def over(s, g, extra=None):
                parts = [list(p) for p in s.g[g]]
                if extra: parts[s.kind(extra)].append(extra)
                ws = [x for x in parts[0] if x.wait is not None]
                parts[0] = ws[:1] + [x for x in parts[0] if x.wait is None]
                ls = [s.bb[g]] + [x.txt for p in parts for x in p] + [s.bb[g]]
                return estimate(ls)[-1] - 16
            def fix(s, g, *xs):
                for x in xs:
                    x = x if isinstance(x, Op) else Op(x)
                    s.g[g][s.kind(x)].append(x)
                    if s.book: ta[g] = ta.get(g, 0) + tacost(x.txt)
            def flex(s, lo, hi, x):
                x = x if isinstance(x, Op) else Op(x)
                c = tacost(x.txt)
                busy = lambda g: max(0, ta.get(g, 0) + c - 20) if c else 0
                crowd = lambda g: (4 if x.txt.startswith('ds_') and any(y.txt.startswith('ds_') for y in s.g[g][1]) else 0)
                best = min(range(lo, hi + 1), key=lambda g: (s.over(g, x) - s.over(g) + busy(g) + crowd(g), g))
                s.fix(best, x); return best
            def emit(s, names=None):
                for g, ins in enumerate(s.bb):
                    e(ins)
                    if names and (g in OPT.get('dst', []) or OPT.get('one')): DS(names % g)
                    ws = [x.out() for x in s.g[g][0] if x.wait is not None]
                    if ws: e(min(ws, key=lambda t: int(t[t.index('(')+1:-1])))
                    for p in s.g[g]:
                        for x in p:
                            if x.wait is None: e(x.out())
        kvl = kv_loads()
        ow = f"ds_write_b64 v{vOW}, {vr(OA,2)} offset:{L_O+wv*512}"
        if 'kv' in X: kvl = ['s_nop 0'] * 6
        if 'noK' in X: kvl[:4] = ['s_nop 0'] * 4
        if 'noV' in X: kvl[4:] = ['s_nop 0'] * 2
        if 'KVplain' in X: kvl = [x.replace(' sc1', '') for x in kvl]
        NS = NSW[wv]; PR0 = [PRB, PRB + 1, QF + 8, QF + 9][:NS]
        attop = wv == 0 or (wv == 1 and TOP1)
        e(f"{Ln('enter%d' % wv)}:")
        PRE = POST[wv] == 2
        if not POST[wv]:
            for r in PR0:
                for x in shot(r): e(x)
        if PRE:
            for x in shot(PRB + 1): e(x)
        e("s_waitcnt vmcnt(0)\n.p2align 6")
        e(f"{Lw('step')}:")
        loop0 = len(e.l)
        DS('top')
        probe_bad = lambda r, lab: [pcmp(r), f"s_cbranch_vccnz {Lw(lab)}" if not nc else "s_nop 0"]
        if not POST[wv]: vm += ['probe', 'dma0', 'dma'] + ['x'] * (3 * NS - 3)
        if PRE: vm += ['probe1', 'x', 'dma1']
        if attop:
            NR0 = [OPT.get('rw', 4), 8 - OPT.get('rw', 4)][wv] if OPT.get('fo', 1) and OPT.get('rk') == 8 else 0
            vm += ['x'] * NR0
            e(f"s_waitcnt vmcnt({3*NS-1+NR0}) lgkmcnt(0)")
            for x in probe_bad(PR0[0], 'spinA'): e(x)
            DS('hit'); e(f"s_waitcnt vmcnt({3*NS-3+NR0})\n{Lw('hit')}:"); DS('landed')
        else:
            e("s_waitcnt lgkmcnt(0)")
        e("s_barrier")
        DS('b1a')
        mrd = lambda sg: rd(M + 4 * sg, vL16, L_M + sg * 1024, ('m', sg))
        e(mrd(0).out()); e(mrd(1).out())
        PG = OPT.get('pg', -1)
        if POST[wv] and PG < 0:
            assert NS == 1
            for x, tg in zip(shot(PRB), ('probe', 'dma0', 'dma')): E(x, tg)
        e(WL(('m', 0)))
        gK1 = len(fr) - 1; gK0, gQ1, gQ0 = gK1 - 4, gK1 - 8, gK1 - 12
        XQ, XK, XP = OPT.get('xq', (EX, EX)), OPT.get('xk', (EX, EX)), OPT.get('xp', (EX - 1, EX))
        gqw = gQ1 + 4; gSt = max(gqw + sum(XQ), gK1 + 1)
        gkw = gK1 + 5 + OPT.get('kp', 0); gSm = max(gkw + sum(XK), gSt + 4)
        gpw = gSt + 8; gPv = max(gpw + sum(XP), gSm + 8)
        bb = [SM(f) for f in fr]; vs = list(vrest)
        def upto(g):
            while len(bb) < g: bb.append(SM(vs.pop(0)) if vs else 's_nop 0')
        upto(gSt); bb += [f"{mm} {vr(STK,4)}, {vr(KT+4*j,4)}, {vr(QF+4*j,4)}, {chainc(STK,j)}" for j in range(4)]
        upto(max(gSm, gPv - 4 - max(0, len(vs) - (gSm - len(bb))) if False else gSm))
        bb += [f"{mm} {vr(SMM,4)}, {vr(KF+4*j,4)}, {vr(QF+4*j,4)}, {chainc(SMM,j)}" for j in range(4)]
        gPv = max(gPv, len(bb) + len(vs))
        upto(gPv); bb += pv_tok + pv_mem
        gof = {f: bb.index(SM(f)) for f in fr + vrest}
        sc = Sched(bb, True)
        g2, g4 = gof[('q', 0, 2)], gof[('q', 0, 4)]
        b1b, b1c = g2 - 5, g4 - 5
        sc.fix(1, wt(('m', 1)))
        gmine = b1b if wv == 1 else b1c
        late2 = {}
        if POST[wv] and PG >= 0:
            for k_, (x, tg) in enumerate(zip(shot(PRB), ('probe', 'dma0', 'dma'))): sc.fix(PG + (k_ + 1) // 2, Op(x, tg))
        if PRE:
            class Mark(Op):
                def out(s_):
                    late2['p'] = WV('probe'); late2['d'] = WV('dma'); return s_.txt
            sc.fix(gmine - 1, wtv('probe1'), probe_bad(PRB + 1, 'second')[0], Mark(probe_bad(PRB + 1, 'second')[1])); sc.g[gmine - 1][0].append(Op(f"{Lw('hit')}:"))
            sc.fix(gmine, wtv('dma1'))
        elif not attop:
            sc.fix(gmine - 1, wtv('probe'), *probe_bad(PRB, 'spin1')); sc.g[gmine - 1][0].append(Op(f"{Lw('hit')}:"))
            sc.fix(gmine, wtv('dma'))
        if TOP1: sc.fix(0, mrd(2)); sc.fix(1, mrd(3))
        else: sc.fix(b1b, "s_barrier", mrd(2)); sc.fix(b1b + 1, mrd(3))
        sc.fix(g2 - 1, wt(('m', 2))); sc.fix(g2 + 3, wt(('m', 3)))
        sc.fix(b1c, "s_barrier", mrd(4)); sc.fix(b1c + 1, mrd(5)); sc.fix(b1c + 2, mrd(6)); sc.fix(b1c + 3, mrd(7))
        for k in range(4): sc.fix(g4 - 1 + k, wt(('m', 4 + k)))
        sc.fix(gQ0 + 2, add2(AQ0)[0]); sc.fix(gQ0 + 3, add2(AQ0)[1])
        sc.fix(gQ1 + 2, *add2(AQ1)); sc.fix(gQ1 + 3, cvt(AQ0, AQ0, AQ1), cvt(AQ0 + 1, AQ0 + 1, AQ1 + 1))
        sc.fix(gqw, Op(f"ds_write2_b32 v{vXW}, v{AQ0}, v{AQ0+1} offset0:0 offset1:4", 'qw'))
        gqb = gqw + XQ[0]
        sc.fix(gqb, wt('qw'), "s_barrier")
        for j in range(4): sc.fix(gqb + j, rd(QF + 4 * j, vQR, L_X + 1024 * j, ('qf', j))); sc.fix(gSt - 1 + j, wt(('qf', j)))
        sc.flex(gK0 + 2, gK1 + 1, add2(AK0)[0]); sc.flex(gK0 + 2, gK1 + 1, add2(AK0)[1])
        if OPT.get('kp', 0) == 0: sc.fix(gK1 + 2, add2(AK1)[0]); sc.fix(gK1 + 3, add2(AK1)[1], cvt(AK0, AK0, AK1)); sc.fix(gK1 + 4, cvt(AK0 + 1, AK0 + 1, AK1 + 1))
        else: sc.fix(gK1 + 2, add2(AK1)[0]); sc.fix(gK1 + 3, add2(AK1)[1]); sc.fix(gK1 + 4, cvt(AK0, AK0, AK1)); sc.fix(gK1 + 5, cvt(AK0 + 1, AK0 + 1, AK1 + 1))
        sc.fix(gkw, Op(f"ds_write2_b32 v{vXW}, v{AK0}, v{AK0+1} offset0:128 offset1:132", 'kw'))
        sc.fix(gkw + XK[0], wt('kw'), "s_barrier")
        for j in range(4):
            gj = max(gkw + XK[0] + j, gof[('v', 1, j)])
            sc.fix(gj, rd(KF + 4 * j, vKR, L_X + 512 + 1024 * j, ('kf', j)))
            sc.fix(gSm - 1 + j, wt(('kf', j)))
        sc.fix(gSt + 5, f"v_exp_f32 v{PT}, v{STK}"); sc.fix(gSt + 6, f"v_exp_f32 v{PT+1}, v{STK+1}"); sc.fix(gSt + 7, cvt(PT, PT, PT + 1))
        sc.fix(gpw, Op(f"ds_write_b32 v{vQR}, v{PT} offset:{L_P+wv*4}", 'pw'))
        gpb = gpw + XP[0]
        sc.fix(gpb, wt('pw'), "s_barrier", rd(PAL, vQR, L_P, 'pal')); sc.fix(gpb + 1, rd(PLO, vPR, L_P, 'plo')); sc.fix(gpb + 2, rd(PHI, vPR, L_P - 512, 'phi'))
        sc.fix(gPv - 1, wt('pal')); sc.fix(gPv, wt('plo')); sc.fix(gPv + 1, wt('phi'))
        gV0 = max(gof[('v', 0, s)] for s in range(8))
        a = sc.flex(gV0 + 2, gPv - 2, add2(AV0)[0]); b = sc.flex(gV0 + 2, gPv - 2, add2(AV0)[1]); sc.flex(max(a, b) + 1, gPv - 1, cvt(AV0, AV0, AV0 + 1))
        sc.fix(gSm + 5, f"v_exp_f32 v{SMM+2}, v{SMM}"); sc.fix(gSm + 6, f"v_exp_f32 v{SMM+3}, v{SMM+1}"); sc.fix(gSm + 7, cvt(SMM + 2, SMM + 2, SMM + 3))
        sc.fix(gPv, f"v_cndmask_b32 v{PM}, 0, v{SMM+2}, {mlo}", f"v_cndmask_b32 v{PM+1}, v{SMM+2}, 0, {mlo}")
        sc.fix(gPv + 1, *add2(AV1)); sc.fix(gPv + 2, cvt(AV0 + 1, AV1, AV1 + 1))
        zl = [x for k, x in enumerate(zw)]
        for k in range(5): sc.flex(gSm + k // 2 + 1, gPv + 4, zw[k])
        last = {k: gof[order[k]] for k in range(4)}; prev = 0
        for f in order[4:14]:
            use = gof.get(f, gPv + 4); lo = max(last[ringslot[f]], prev)
            a = sc.flex(lo, use - 5, Op(wtxt(f, 0), (f, 0))); prev = sc.flex(a, use - 4, Op(wtxt(f, 1), (f, 1)))
            if f in gof: sc.fix(use - 1, wt((f, 1)))
            last[ringslot[f]] = use
        sc.flex(last[1], gPv - 2, f"v_mov_b64 {vr(ONE4,2)}, s[{sONE}:{sONE+1}]"); sc.flex(last[1], gPv - 2, f"v_mov_b64 {vr(ONE4+2,2)}, s[{sONE}:{sONE+1}]")
        lo = (gmine + 1 if not attop and NS > 1 else OPT.get('kv0', 1))
        VE = OPT.get('vearly', 0)
        if VE:
            for j in (4, 5): lo = sc.flex(lo, max(lo, 4 + j), Op(kvl[j], ('kv', j))) + 1
            if 'kv' not in X and 'noV' not in X: sc.fix(gPv - 2, wtv(('kv', 5)))
        q0 = max(lo, OPT.get('q0', 1))
        lo = gSt + 1
        for j in range(4): lo = sc.flex(max(lo, gSt + j), gPv - 4 + j, kvl[j]) + 1
        RP = 0
        RK = OPT.get('rk', 1)
        SQ = QF + 12 - (4 if RK == 4 else 0)
        if RK == 0:
            a = sc.flex(0, 8, f"v_mov_b32 v{SQ}, s{sSENT}")
        elif RK != 8: a = sc.flex(0, q0, f"v_mov_b64 {vr(SQ,2)}, s[{sSENT}:{sSENT+1}]")
        if RK == 4:
            a = max(a, sc.flex(0, q0, f"v_mov_b64 {vr(SQ+2,2)}, s[{sSENT}:{sSENT+1}]")); sc.flex(0, 4, f"s_add_u32 s{sT+3}, s{sPn}, {wv*2048}")
            rs = [f"buffer_store_dwordx4 {vr(SQ,4)}, v{vL16}, {WS}, s{sT+3} offen offset:{o} {ST}" for o in (0, 1024)]
        elif RK == 8:
            SQ = M + 4
            hrs = [f"s_add_u32 s{sT+3}, s{sPp}, {wv*(1024*OPT.get('rw', 4) if OPT.get('fo', 1) else 2048)}", f"s_add_u32 s{sT+5}, s{sT+3}, 4096", f"v_mov_b64 {vr(SQ,2)}, s[{sSENT}:{sSENT+1}]", f"v_mov_b64 {vr(SQ+2,2)}, s[{sSENT}:{sSENT+1}]"]
            hst = [f"buffer_store_dwordx4 {vr(SQ,4)}, v{vL16}, {WS}, s{sT+3} offen offset:{o} {ST}" for o in (0, 1024)] + [f"buffer_store_dword v{SQ}, v{vMS}, {WS}, s{sMp} offen {ST}"]
            rs = []
            if OPT.get('r2') is not None:
                n2_ = OPT['r2']
                hrs[0] = f"s_add_u32 s{sT+3}, s{sPp}, {n2_*1024 if wv == 3 else 0}"
                hst = [f"buffer_store_dwordx4 {vr(SQ,4)}, v{vL16}, {WS}, s{sT+3+2*(o>>2)} offen offset:{(o&3)*1024} {ST}" for o in range([0, 0, n2_, 8 - n2_][wv])]
                a = sc.flex(0, 8, f"v_mov_b32 v{QF+12}, s{sSENT}"); sc.flex(a + 1, 24, f"buffer_store_dword v{QF+12}, v{vMS}, {WS}, s{sMp} offen {ST}")
            if OPT.get('fo', 1):
                hst = [f"buffer_store_dwordx4 {vr(SQ,4)}, v{vL16}, {WS}, s{sT+3+2*(o>>2)} offen offset:{(o&3)*1024} {ST}" for o in range([OPT.get('rw', 4), 8 - OPT.get('rw', 4), 0, 0][wv])]
                a = sc.flex(0, 8, f"v_mov_b32 v{QF+12}, s{sSENT}"); sc.flex(max(a + 1, PG + 2), 24, f"buffer_store_dword v{QF+12}, v{vMS}, {WS}, s{sMp} offen {ST}")
        elif RK == 0: rs = []
        else:
            sc.flex(0, 4, f"s_add_u32 s{sT+3}, s{sPn}, 4096")
            rs = [f"buffer_store_dword{'x2' if RK == 2 else ''} {vr(SQ,RK)}, v{vP8}, {WS}, s{sPn if tp < 2 else sT+3} offen offset:{(tp&1)*2048+o} {ST}" for tp in range(4) for o in ((0,) if RK == 2 else (0, 4))]
        if RK != 8: rs.append(f"buffer_store_dword v{SQ}, v{vMS}, {WS}, s{sMp} offen {ST}")
        for x in rs: sc.flex(max(a + 1, OPT.get('qr', 18), 0 if TOP1 else b1b + 1), gqb - 1, x)
        if 'pub' not in X: sc.flex(min(q0, gqb - 5), gqb - 1, f"buffer_store_dword v{R}, v{vMS}, {WS}, s{sMHp} offen sc1")
        if 'pf' not in X:
            lo = max(OPT.get('qp', 0), PG + 2 if PG >= 0 else 0, 0 if TOP1 else b1b + 1)
            for k in range(4): lo = sc.flex(lo, lo + 5, warm[k]) + OPT.get('pfs', 1)
            sc.flex(0, lo - 1, f"v_lshlrev_b32 v{QF+14}, 2, v{vL16}")
            sc.flex(lo, lo + 5, f"buffer_load_dword v{JUNK}, v{QF+14}, {WS}, s{sFl} offen sc1")
        if OPT.get('lat'):
            key = {'pf': f"s{sPF} offen offset:3072", 'K': f"s{sSK} offen offset:3072", 'V': f"s{sSV} offen offset:1024"}[OPT['lat']]
            for g in range(len(bb)):
                for k, x in enumerate(sc.g[g][1]):
                    if key in x.txt:
                        sc.g[g][1].insert(k, Op("s_waitcnt vmcnt(0) lgkmcnt(0)\ns_memtime s[4:5]\ns_waitcnt lgkmcnt(0)"))
                        sc.g[g][1].insert(k + 2, Op("s_waitcnt vmcnt(0)\ns_memtime s[6:7]\ns_waitcnt lgkmcnt(0)\ns_sub_u32 s6, s6, s4\n" + ("s_max_u32 s94, s94, s6" if OPT.get('latmax') else "s_add_u32 s94, s94, s6")))
                        break
        sc.emit('g%d')
        DS('pv_end'); e(f"v_rcp_f32 v{RC}, v{LA}"); e(zw[5]); e(zw[6])
        for x in norm: e(x)
        DS('ow'); E(ow, 'ow')
        e(f"v_subrev_u32 v{RC+1}, s{sLlo}, v{LA}\nv_cmp_lt_u32 vcc, s{sLrg}, v{RC+1}")
        e(zw[7])
        if not nc: e(f"s_cbranch_vccnz {Lw('fb')}")
        e(f"{Lw('fbret')}:")
        if not VE: e(kvl[4]); e(kvl[5])
        e("s_waitcnt lgkmcnt(0)"); DS('owdone'); e("s_barrier"); DS('b4')
        ord_ = lambda k: Op(f"ds_read_b128 {vr(QF+4*k,4)}, v{vKR} offset:{L_O+k*512}", ('of', k))
        for k in range(4): e(ord_(k).out())
        OB = M + 16
        wc = lambda tp: [cvt(OB + 2 * tp + k, M + 4 * tp + k, M + 4 * tp + 2 + k) for k in range(2)] + [f"v_bfi_b32 v{OB+2*tp+k}, 1, s{sTag}, v{OB+2*tp+k}" for k in range(2)]
        pst = lambda tp: f"buffer_store_dwordx2 {vr(OB+2*tp,2)}, v{vP8}, {WS}, s{sPc if tp < 2 else sT+4} offen offset:{(tp&1)*2048} {ST}"
        wo = [f"v_smfmac_f32_16x16x64_bf16 {vr(M+4*(u>>2),4)}, {vr(QF+4*(u&3),4)}, {wreg(('o',u>>2,u&3))}, v{vIDX}" for u in range(16)]
        so = Sched(wo)
        e(WL(('of', 0))); DS('o_w')
        for k in range(1, 4): so.fix(k - 1, wt(('of', k)))
        so.fix(3, f"s_add_u32 s{sT+4}, s{sPc}, 4096")
        for k in range(4): so.fix(k + 1, Op(wtxt(order[14 + k // 2], k & 1), (order[14 + k // 2], k & 1)))
        so.fix(5, Op(wtxt(order[16], 0), (order[16], 0))); so.fix(6, Op(wtxt(order[16], 1), (order[16], 1)))
        so.fix(7, Op(wtxt(order[17], 0), (order[17], 0))); so.fix(8, Op(wtxt(order[17], 1), (order[17], 1)))
        for f in order[14:18]: so.fix(4 * f[1] + f[2] - 1, wt((f, 1)))
        W1 = OPT.get('wo1', 1)
        if W1 == 0:
            for tp in range(3):
                for k in range(4): so.fix(4 * tp + 5 + k, wc(tp)[k])
            so.fix(9, pst(0)); so.fix(13, pst(1))
            tail = [pst(2)] + wc(3) + [pst(3)]
            so.g[15][2].append(Op(wc(2)[3])); so.g[15][2].sort(key=lambda x: 0)
        else:
            so.fix(5, *wc(0)[:2]); so.fix(6, *wc(0)[2:]); so.fix(7, pst(0))
            so.fix(9, *wc(1)[:(4 if W1 == 2 else 2)])
            if W1 == 2: so.fix(10, pst(1))
            else: so.fix(10, *wc(1)[2:]); so.fix(11, pst(1))
            so.fix(13, wc(2)[0]); so.fix(14, wc(2)[1]); so.fix(15, *wc(2)[2:])
            tail = [pst(2)] + wc(3) + [pst(3)]
        gp2 = OPT.get('gp2', 13)
        assert gp2 > 11
        early = wv == 0 and gp2 < 50
        if early:
            for k in range(8):
                if gp2 + k // 2 < 16: so.fix(gp2 + k // 2, p2l[k])
        so.emit('u%d' if OPT.get('one') else None)
        if early:
            for k in range(8):
                if gp2 + k // 2 >= 16: e(p2l[k])
        FO = OPT.get('fo', 1)
        for x in tail:
            if not (FO and x in (pst(2), pst(3))): e(x)
        DS('wo_end')
        sel = [f"v_mov_b32 v{SELQ+d}, v{vSEL}" for d in range(4)]
        rot = [f"s_mov_b32 s{sT}, s{sMp}", f"s_mov_b32 s{sMp}, s{sMc}", f"s_mov_b32 s{sMc}, s{sMn}", f"s_mov_b32 s{sMn}, s{sT}",
               f"s_add_u32 s{sMH}, s{sMH}, 8192", f"s_mov_b32 s{sMHp}, s{sMH}", f"s_add_u32 s{sStep}, s{sStep}, 1"]
        free = zero_acc[4:] + stage + [f"s_sub_u32 s{sDl}, s{sPn}, s{sPc}", f"s_mov_b32 s{sT+2}, s{sPp}",
                f"s_mov_b32 s{sPp}, s{sPc}", f"s_mov_b32 s{sPc}, s{sPn}", f"s_mov_b32 s{sPn}, s{sPp if RK == 0 else sT+2}",
                f"s_add_u32 s{sPF}, s{sPF}, {SEGS:#x}", f"s_mov_b32 s{sRedo}, 0",
                f"s_add_u32 s{sSK}, s{sSK}, {0 if 'KVfix' in X else SEGS}", f"s_add_u32 s{sSV}, s{sSV}, {0 if 'KVfix' in X else SEGS}"]
        kvn = [f"v_cmp_le_u32 vcc, 32, v{JUNK}", f"s_and_b32 s{sT}, vcc_lo, 0xffff", f"s_ff0_i32_b32 s{sT}, s{sT}", f"s_max_u32 s{sKv}, s{sKv}, s{sT}",
               f"s_add_u32 s{sT}, s{sStep}, {OPT.get('la', 4)}", f"s_lshr_b32 s{sT}, s{sT}, 2", f"s_min_u32 s{sT}, s{sT}, 15", f"s_cmp_lt_u32 s{sT}, s{sKv}",
               f"s_cselect_b32 s{sFl}, s{sOOB}, s{sFlC}", f"s_add_u32 s{sT}, s{sStep}, 2", f"s_lshr_b32 s{sT}, s{sT}, 2", f"s_min_u32 s{sT}, s{sT}, 15", f"s_cmp_lt_u32 s{sT}, s{sKv}", f"s_cbranch_scc0 {Lw('kvwait')}\n{Lw('kvok')}:"]
        dA = OPT.get('dA', [0, 0, 12, 34])[wv]; dB = OPT.get('dB', [30, 36, 36, 36])[wv]; dC = OPT.get('dC', 16)
        gaps = [0 if POST[wv] == 1 else dB] + [dC] * (len(PR0) - 1)
        late = zero_acc[:4] + kvn + [f"v_add_u32 v{vRL}, s{sDl}, v{vRL}", f"s_bfe_i32 s{sTag}, s{sStep}, 0x10001"]
        nA = min(dA, len(free)); partA = free[:nA]; rest = free[nA:]
        want = max(0, sum(gaps) - len(late)); keep = rest[max(0, len(rest) - want):] if want else []
        mid = rest[:len(rest) - len(keep)]
        after = late[:4] + keep + late[4:]
        if RK == 8:
            for x in hrs: e(x)
        if FO and wv >= 2:
            e("s_barrier"); e(pst(2)); e(pst(3))
        for x in partA + pad(dA - nA - (4 if RK == 8 else 0)): e(x)
        DS('p2top')
        if not early:
            for x in p2l: e(x)
        if FO and wv < 2:
            e("s_barrier"); e(pst(2)); e(pst(3))
        if RK == 8 and not FO:
            for x in hst: e(x)
        for x in rot + sel + [f"v_mov_b32 v{M+2}, s{sStep}"] + mid: e(x)
        yo = (2 if wv < 2 else 0) if FO else (2 if early else 0) + (len(hst) if RK == 8 else 0)
        e(f"s_waitcnt vmcnt({4+yo})")
        e(f"{Lw('p2w')}:"); DS('p2w')
        if RK == 0:
            bo = lambda d, x, y, z, t: f"v_bitop3_b32 v{d}, {x}, {y}, {z} bitop3:{t:#x}"
            e(f"{mm} {vr(R,4)}, {vr(SELQ,4)}, {vr(LAND,4)}, 0\n{bo(M, f'v{LAND}', f'v{LAND+1}', f's{sTag}', 0x7e)}\n{bo(M+1, f'v{LAND+2}', f'v{LAND+3}', f's{sTag}', 0x7e)}\ns_waitcnt vmcnt({yo})")
            e(f"{mm} {vr(R,4)}, {vr(SELQ,4)}, {vr(LAND+4,4)}, {vr(R,4)}\n{bo(M+3, f'v{LAND+4}', f'v{LAND+5}', f's{sTag}', 0x7e)}\n{bo(M+4, f'v{LAND+6}', f'v{LAND+7}', f's{sTag}', 0x7e)}")
            e(f"v_or3_b32 v{M}, v{M}, v{M+1}, v{M+3}\n{bo(M, f'v{M}', f'v{M+4}', '1', 0xa8)}\nv_cmp_ne_u32 vcc, 0, v{M}")
            if not nc: e(f"s_cbranch_vccnz {Lw('p2retry')}")
        else:
            e(f"{mm} {vr(R,4)}, {vr(SELQ,4)}, {vr(LAND,4)}, 0\nv_max3_i32 v{M}, v{LAND}, v{LAND+1}, v{LAND+2}\ns_waitcnt vmcnt({yo})")
            e(f"{mm} {vr(R,4)}, {vr(SELQ,4)}, {vr(LAND+4,4)}, {vr(R,4)}\nv_max3_i32 v{M+1}, v{LAND+3}, v{LAND+4}, v{LAND+5}\nv_max3_i32 v{M}, v{M}, v{LAND+6}, v{LAND+7}\nv_max_i32 v{M}, v{M}, v{M+1}")
            e(f"v_cmp_le_i32 vcc, s{sInf}, v{M}")
            if not nc: e(f"s_cbranch_vccnz {Lw('p2slow')}")
        e(f"{Lw('p2ok')}:"); DS('p2ok')
        e(cvt(R, R, R + 1))
        e(f"buffer_store_dword v{R}, v{vMS}, {WS}, s{sMc} offen {ST}")
        DS('mstore')
        e(f"s_cmp_eq_u32 s{sStep}, 63\ns_cbranch_scc1 {Ln('fin')}")
        if FP_:
            fd = OPT.get('fd', 0)
            if OPT.get('fdc') is not None:
                for x in pad(OPT['fdc']) + [f"buffer_store_dword v{M+2}, off, {WS}, s{sRdW} {ST}"]: e(x)
                gaps[0] = max(0, gaps[0] - OPT['fdc'] - 1)
            else: after.insert(fd, f"buffer_store_dword v{M+2}, off, {WS}, s{sRdW} {ST}")
        for k, r in enumerate(PR0):
            part = after[:gaps[k]] if k < len(PR0) - 1 else after
            after = after[len(part):]
            for x in part + ([] if POST[wv] == 1 else pad(gaps[k] - len(part))): e(x)
            if k == 0: DS('shot1')
            if POST[wv] != 1:
                for x in shot(PRB + 1 if PRE else r): e(x)
        NR = len(hst) if (FO and RK == 8) else 0
        for x in (hst if NR else []): e(x)
        if OPT.get('est') == wv and mode == 0:
            ls = e.l[loop0:]
            for tt, x in zip(estimate(ls), ls): print(tt, x)
        DS('end') if OPT.get('one') else None
        if OPT.get('prof') and wv == 3:
            e(f"{'s_memtime' if OPT['prof'] == 2 else 's_memrealtime'} s[98:99]\ns_lshl_b32 s97, s{h}, 8\ns_lshl_b32 s96, s{sStep}, 2\ns_add_u32 s97, s97, s96\ns_add_u32 s97, s97, {WS_STAMP + 0x10000:#x}\ns_waitcnt lgkmcnt(0)\nv_mov_b32 v{M}, s98\nbuffer_store_dword v{M}, off, {WS}, s97")
        if OPT.get('dst'):
            DS('end')
            e(f"s_cmp_eq_u32 s{sStep}, 40\ns_cbranch_scc0 {Lw('step')}\ns_waitcnt lgkmcnt(0)")
            e(f"s_lshl_b32 s{sT}, s{h}, 2\ns_add_u32 s{sT}, s{sT}, s{w}\ns_lshl_b32 s{sT}, s{sT}, 7\ns_add_u32 s{sT}, s{sT}, {WS_STAMP:#x}")
            e("s_waitcnt vmcnt(0)")
            for k in range(len(dn)): e(f"v_mov_b32 v{M}, s{dregs[k]}\nbuffer_store_dword v{M}, off, {WS}, s{sT} offset:{4*k}")
            e("s_waitcnt vmcnt(0)")
            if mode == 0: open('dst_names.txt', 'w').write(' '.join(dn))
        e(f"s_branch {Lw('step')}")
        cnt = lambda inc: e(f"s_add_u32 s94, s94, {inc:#x}") if OPT.get('tl') and not OPT.get('one') and not OPT.get('lat') else None
        if PRE:
            e(f"{Lw('second')}:"); cnt(1)
            e(f"{late2['p']}\n{pcmp(PRB)}\ns_cbranch_vccnz {Lw('spin1')}\n{late2['d']}\ns_branch {Lw('hit')}")
        if attop:
            e(f"{Lw('spinA')}:")
            for k in range(NS):
                cnt(1)
                for x in shot(PR0[k]): e(x)
                if k < NS - 1: e(f"s_waitcnt vmcnt({3*NS-1+NR0})\n{pcmp(PR0[k+1])}\ns_cbranch_vccz {Lw('spunA')}")
            e(f"s_branch {Lw('spin0')}\n{Lw('spunA')}:\ns_waitcnt vmcnt({3*NS-3+NR0})\ns_branch {Lw('hit')}")
        e(f"{Lw('spin0')}:")
        e(f"s_waitcnt vmcnt({3*NS-1})\n{pcmp(PR0[0])}\ns_cbranch_vccz {Lw('spun')}")
        e(f"{Lw('spin1')}:")
        for k in range(NS):
            cnt(1)
            for x in shot(PR0[k]): e(x)
            if k < NS - 1: e(f"s_waitcnt vmcnt({3*NS-1})\n{pcmp(PR0[k+1])}\ns_cbranch_vccz {Lw('spun')}")
        fail_if_zero(12)
        e(f"s_branch {Lw('spin0')}")
        e(f"{Lw('spun')}:\ns_waitcnt vmcnt({3*NS-3})\ns_branch {Lw('hit')}")
        e(f"{Lw('redo')}:")
        cnt(0x400)
        e(f"s_mov_b32 s{sRedo}, 1\ns_mov_b32 s{sMHp}, {OOB:#x}\ns_sub_u32 s{sSK}, s{sSK}, {SEGS:#x}")
        for x in kv_loads()[:4]: e(x)
        e(f"s_add_u32 s{sSK}, s{sSK}, {SEGS:#x}")
        e(f"{Lw('redo1')}:\ns_waitcnt vmcnt(0) lgkmcnt(0)\ns_barrier")
        fail_if_zero(13)
        for x in shot(PRB)[1:]: e(x)
        e("s_waitcnt vmcnt(0)\ns_barrier")
        for k in range(8): e(f"ds_read_b128 {vr(M+4*k,4)}, v{vL16} offset:{L_M+k*1024}")
        e("s_waitcnt lgkmcnt(0)")
        for i in range(32): e(f"v_cmp_eq_u32 vcc, s{sSENT}, v{M+i}\ns_cbranch_vccnz {Lw('redo1')}")
        for x in stage + zero_acc + [f"v_mov_b32 v{r}, s{sStep}" for r in PR0 + [PRB + 1]]: e(x)
        e(f"s_branch {Lw('step')}")
        e(f"{Lw('p2slow')}:")
        for i in range(8): e(f"v_cmp_eq_u32 vcc, s{sSENT}, v{LAND+i}\ns_cbranch_vccnz {Lw('p2retry')}")
        e(f"s_branch {Lw('p2ok')}")
        e(f"{Lw('p2retry')}:")
        cnt(0x100000)
        fail_if_zero(14)
        for x in p2l: e(x)
        e(f"s_waitcnt vmcnt(0)\ns_branch {Lw('p2w')}")
        kv_refresh(Lw('kvwait'), 15)
        e(f"s_branch {Lw('kvok')}")
        e(f"{Lw('fb')}:")
        F = M
        e(f"s_cmp_eq_u32 s{sRedo}, 0\ns_cbranch_scc0 {Lw('fb1')}\nv_cmp_u_f32 vcc, v{LA}, v{LA}\ns_cbranch_vccnz {Lw('redo')}")
        e(f"{Lw('fb1')}:\ns_waitcnt vmcnt(0)\ns_barrier")
        e(f"ds_write_b64 v{vL16}, {vr(STK,2)} offset:{L_M+(wv>>1)*1024+(wv&1)*8}")
        e("s_waitcnt lgkmcnt(0)\ns_barrier")
        e(f"ds_read_b128 {vr(F,4)}, v{vL16} offset:{L_M}\nds_read_b128 {vr(F+4,4)}, v{vL16} offset:{L_M+1024}\nv_mov_b32 v{F+8}, v{SMM}\nv_mov_b32 v{F+9}, v{SMM+1}\ns_waitcnt lgkmcnt(0)")
        e(f"v_max3_f32 v{F+10}, v{F}, v{F+1}, v{F+2}\nv_max3_f32 v{F+11}, v{F+3}, v{F+4}, v{F+5}\nv_max3_f32 v{F+10}, v{F+10}, v{F+6}, v{F+7}\nv_max3_f32 v{F+11}, v{F+11}, v{F+8}, v{F+9}\nv_max_f32 v{F+10}, v{F+10}, v{F+11}")
        e(f"v_mov_b32 v{F+11}, v{F+10}\nv_permlane32_swap_b32 v{F+10}, v{F+11}\nv_max_f32 v{F+10}, v{F+10}, v{F+11}")
        e(f"v_mov_b32 v{F+11}, v{F+10}\nv_permlane16_swap_b32 v{F+10}, v{F+11}\nv_max_f32 v{F+10}, v{F+10}, v{F+11}")
        for r in range(10): e(f"v_sub_f32 v{F+r}, v{F+r}, v{F+10}")
        for r in range(10): e(f"v_exp_f32 v{F+r}, v{F+r}")
        for dd in range(4): e(cvt(PAL + dd, F + 2 * dd, F + 2 * dd + 1))
        e(cvt(F + 8, F + 8, F + 9))
        for dd in range(4): e(f"v_cndmask_b32 v{PLO+dd}, 0, v{PAL+dd}, {mlo}\nv_cndmask_b32 v{PHI+dd}, v{PAL+dd}, 0, {mlo}")
        e(f"v_cndmask_b32 v{PM}, 0, v{F+8}, {mlo}\nv_cndmask_b32 v{PM+1}, v{F+8}, 0, {mlo}")
        for x in pv_tok + pv_mem: e(x)
        for x in zw: e(x)
        e(f"v_rcp_f32 v{RC}, v{LA}")
        for x in norm: e(x)
        e(ow)
        e(f"s_branch {Lw('fbret')}")
    e(f"{Ln('fin')}:")
    e(f"buffer_store_dword v{R}, v{vMS}, {WS}, s{sMH} offen sc1")
    if OPT.get('wb', 1): e(f"s_or_b32 s{sT}, s{h}, s{w}\ns_cmp_eq_u32 s{sT}, 0\ns_cbranch_scc0 {Ln('nwb')}\ns_waitcnt vmcnt(0)\nbuffer_wbl2 sc1\n{Ln('nwb')}:")
    TL(5, 0); DTL(6, 14)
    if OPT.get('enc'):
        a_, b_, k_ = {1: (92, 93, 4), 2: (98, 92, 1), 3: (86, 93, 4), 5: (92, 93, 8), 6: (98, 92, 2)}[OPT['enc']]
        e(f"s_memrealtime s[98:99]\ns_waitcnt lgkmcnt(0)\ns_sub_u32 s96, s{a_}, s{b_}\ns_mul_i32 s96, s96, {k_}\ns_mov_b32 s97, s98\n{Ln('enc')}:\ns_memrealtime s[98:99]\ns_waitcnt lgkmcnt(0)\ns_sub_u32 s98, s98, s97\ns_cmp_lt_u32 s98, s96\ns_cbranch_scc1 {Ln('enc')}")
    if OPT.get('dtl'): e(f's_memtime s[98:99]\ns_waitcnt lgkmcnt(0)\ns_sub_u32 s98, s98, s92\ns_mov_b64 exec, 1\nv_mov_b32 v14, s98\nv_mov_b32 v15, 0\nglobal_store_dword v15, v14, s[{P_DBG}:{P_DBG+1}] offset:28\ns_mov_b64 exec, -1')
    if OPT.get('tl'): e(f"s_memtime s[98:99]\ns_waitcnt lgkmcnt(0)\ns_sub_u32 s98, s98, s92\nv_mov_b32 v15, s98\nbuffer_store_dword v15, off, {WS}, s97 offset:4\ns_lshl_b32 s96, s{w}, 2\ns_add_u32 s97, s97, s96\nv_mov_b32 v15, s94\nbuffer_store_dword v15, off, {WS}, s97 offset:{28 if OPT.get('tlw') else 12}")
    e("s_waitcnt vmcnt(0)\ns_branch L_end")
```

```python
def emit(G):
    globals().update(G)
    X, W, AUX = "s[40:43]", "s[44:47]", "s[48:51]"
    sRound, sTile, sPass, sType, sRS, sNB, sCnt, sBlk, sBlkN = 52, 53, 54, 55, 56, 57, 58, 59, 60
    s2RS = {1: 61, 2: 62, 3: 63}; sRow = list(range(64, 72)); sB, sT0, sT1, s128, sLo, sHi = 72, 73, 74, 75, 76, 77
    vL16, vA0, vA1, vW, vXo, vG, vC = 1, 2, 3, 4, 5, 6, 7
    RING = [160, 192, 224, 128]
    XN, WF = 16, 80
    acc = lambda t, T: (t * 8 + T) * 4

    e("L_worker:")
    TL(1, 32)
    if OPT.get('tl'): e(f"v_mov_b32 v15, s94\ns_sub_u32 s97, s97, 4\nbuffer_store_dword v15, off, {WS}, s97")
    srd(40, P_X, 2048 * 1024)
    e(f"v_lshlrev_b32 v{vL16}, 4, v0\nv_lshrrev_b32 v{vG}, 4, v0\nv_and_b32 v{vC}, 15, v0")
    e(f"v_lshlrev_b32 v{vXo}, 10, v{vC}\nv_lshl_add_u32 v{vXo}, v{vG}, 6, v{vXo}")
    e(f"v_lshrrev_b32 v8, 2, v{vC}\nv_and_b32 v9, 1, v{vC}\nv_lshl_add_u32 v8, v8, 1, v9\nv_lshlrev_b32 v8, 4, v8\nv_lshl_add_u32 v8, v{vG}, 7, v8\nv_bfe_u32 v9, v{vC}, 1, 1\nv_lshl_add_u32 v0, v9, 9, v8\nv_and_b32 v9, 1, v{vG}\nv_lshlrev_b32 v9, 6, v9\nv_xor_b32 v0, v0, v9")
    e(f"s_mov_b32 s{sLo}, 0x05040100\ns_mov_b32 s{sHi}, 0x07060302")
    e(f"s_mov_b32 s{sRound}, 0")
    if OPT.get('rounds') == 0: e("s_waitcnt vmcnt(0)\ns_branch L_end")
    sPg, sU, sPi, sHalf, sSkip = 87, 88, 89, 90, 91
    e(f"s_mul_i32 s{sPg}, s{S_IDX}, 1171\ns_lshr_b32 s{sPg}, s{sPg}, 16\ns_mul_i32 s79, s{sPg}, 56\ns_sub_u32 s79, s{S_IDX}, s79\ns_lshr_b32 s{sU}, s79, 2\ns_and_b32 s{sPi}, s79, 3")
    e(f"s_lshl_b32 s{sPass}, s{sPg}, 2\ns_add_u32 s{sPass}, s{sPass}, s{sPi}\ns_mov_b32 s{sSkip}, 0")
    e(f"s_sub_u32 s{sTile}, s{sU}, 2\ns_mov_b32 s{sHalf}, 0\ns_cmp_lt_u32 s{sU}, 4\ns_cbranch_scc0 L_dec2")
    e(f"s_lshr_b32 s{sTile}, s{sU}, 1\ns_and_b32 s{sHalf}, s{sU}, 1\ns_add_u32 s{sHalf}, s{sHalf}, 1\ns_branch L_dec2")
    e("L_task:")
    if OPT.get('rb'): e("s_waitcnt vmcnt(0)")
    e(f"s_mov_b32 s{sHalf}, 0\ns_cmp_eq_u32 s{sRound}, 1\ns_cbranch_scc0 L_dec1")
    e(f"s_cmp_lt_u32 s{sU}, 4\ns_cbranch_scc0 L_dec1\ns_add_u32 s{sTile}, s{sU}, 12\ns_branch L_dec2")
    e("L_dec1:")
    e(f"s_mov_b32 s{sRound}, 2\ns_mov_b32 s{sSkip}, 1\ns_mov_b32 s79, s{sPi}\ns_cmp_lt_u32 s{sPi}, 3\ns_cbranch_scc0 L_dec1a")
    e(f"s_lshr_b32 s80, s{sU}, 2\ns_or_b32 s80, s80, s{sPi}\ns_cmp_eq_u32 s80, 0\ns_cbranch_scc1 L_g1_end\ns_branch L_dec1b")
    e(f"L_dec1a:\ns_mov_b32 s{sSkip}, 0\ns_sub_u32 s79, s{sU}, 4\ns_cmp_lt_u32 s79, 10\ns_cbranch_scc0 L_g1_end")
    e(f"s_cmp_lt_u32 s79, 6\ns_cbranch_scc1 L_dec1c\ns_add_u32 s{sTile}, s79, 6\ns_mov_b32 s79, 0\ns_branch L_dec1b")
    e(f"L_dec1c:\ns_cmp_ge_u32 s79, 3\ns_cselect_b32 s{sTile}, 1, 0\ns_cselect_b32 s80, 3, 0\ns_sub_u32 s79, s79, s80")
    e("L_dec1b:")
    e(f"s_lshl_b32 s80, s{sPg}, 1\ns_add_u32 s80, s80, s79\ns_add_u32 s{sPass}, s80, 15\ns_add_u32 s80, s{sPg}, 24\ns_cmp_eq_u32 s79, 0\ns_cselect_b32 s{sPass}, s80, s{sPass}")
    e("L_dec2:")
    e(f"s_and_b32 s78, s{sPass}, 7\ns_lshl_b32 s78, s78, 2\ns_add_u32 s78, s78, s{S_WAVE}\ns_lshl_b32 s79, s78, 8")
    e(f"s_mov_b32 s{sRS}, 8192\ns_mov_b32 s46, 0x400000\ns_mov_b32 s47, 0x20000\ns_mov_b32 s{sNB}, 4")
    e(f"s_mov_b32 s{sType}, 0\ns_mov_b32 s44, s{P_WK}\ns_mov_b32 s45, s{P_WK+1}\ns_cmp_lt_u32 s{sPass}, 8\ns_cbranch_scc1 L_dec3")
    e(f"s_mov_b32 s{sType}, 1\ns_mov_b32 s44, s{P_WV}\ns_mov_b32 s45, s{P_WV+1}\ns_cmp_lt_u32 s{sPass}, 16\ns_cbranch_scc1 L_dec3")
    e(f"s_mov_b32 s{sType}, 4\ns_mov_b32 s44, s{P_WQ}\ns_mov_b32 s45, s{P_WQ+1}\ns_cmp_lt_u32 s{sPass}, 24\ns_cbranch_scc1 L_dec3")
    e(f"s_mov_b32 s{sType}, 2\ns_mov_b32 s44, s{P_W1}\ns_mov_b32 s45, s{P_W1+1}\ns_mov_b32 s{sRS}, 3584\ns_mov_b32 s46, {512*3584}")
    e("L_dec3:")
    def wcalc(pi=False):
        if pi: e(f"v_and_b32 v8, 3, v{vC}\nv_lshrrev_b32 v9, 2, v{vC}\nv_lshl_add_u32 v8, v8, 2, v9\nv_lshlrev_b32 v8, 4, v8")
        else: e(f"v_lshlrev_b32 v8, 4, v{vC}")
        e(f"s_lshl_b32 s80, s{sRS}, 5\nv_mul_lo_u32 v9, s80, v{vG}\nv_add3_u32 v{vW}, v8, v9, s79")
        for i in range(8): e(f"s_mul_i32 s{sRow[i]}, s{sRS}, {8*(i>>1)+(i&1)}")
        for k in (1, 2, 3): e(f"s_mul_i32 s{s2RS[k]}, s{sRS}, {2*k}")
        e(f"s_lshl_b32 s{s128}, s{sRS}, 7")
    def wissue():
        for n in range(3):
            for i in range(8):
                if n: e(f"s_add_u32 s{sT0}, s{s2RS[n]}, s{sRow[i]}")
                so = f"s{sT0}" if n else f"s{sRow[i]}"
                e(f"buffer_load_dwordx4 {vr(RING[n]+4*i,4)}, v{vW}, {W}, {so} offen")
    def wsetup(pi=False): wcalc(pi); wissue()
    e(f"s_cmp_eq_u32 s{sSkip}, 1\ns_cbranch_scc0 L_ln")
    wsetup()
    e("s_branch L_gemm")
    e("L_ln:")
    e(f"s_cmp_eq_u32 s{sHalf}, 0\ns_cselect_b32 s82, 15, 14\ns_lshl_b32 s82, s{S_WAVE}, s82\ns_lshr_b32 s81, s{sHalf}, 1\ns_lshl_b32 s81, s81, 16")
    e(f"s_lshl_b32 s80, s{sTile}, 17\ns_add_u32 s80, s80, s81\ns_add_u32 s80, s80, s82\nv_add_u32 v{vA0}, s82, v{vL16}")
    for r in range(16): e(f"v_xor_b32 v{16+r}, {r*16}, v{vL16}")
    e("s_barrier")
    for u in range(2):
        if u: e(f"s_cmp_eq_u32 s{sHalf}, 0\ns_cbranch_scc0 L_ln_x")
        for r in range(16):
            if (r & 3) == 0: e(f"s_add_u32 m0, s82, {u*16384+r*1024}\ns_add_u32 s81, s80, {u*16384+r*1024}")
            e(f"buffer_load_dwordx4 v{16+r}, {X}, s81 offen offset:{(r&3)*1024} lds")
    PT = OPT.get('pt', '')
    if PT:
        nk = 4096 // 160 + 1
        e(f"s_cmp_eq_u32 s{sRound}, 0\ns_cbranch_scc0 L_ln_x\ns_mul_i32 s81, s{sPg}, 10\ns_add_u32 s81, s81, s{sU}\ns_sub_u32 s81, s81, 4\ns_lshl_b32 s81, s81, 2\ns_add_u32 s81, s81, s{sPi}")
        e(f"s_mul_i32 s81, s81, {28*1024}\ns_mul_i32 s83, s{S_WAVE}, {7*1024}\ns_add_u32 s81, s81, s83")
        for mt in PT:
            srd(48, {'q': P_WQ, 'k': P_WK, 'v': P_WV, 'o': P_WO}[mt], 0x400000)
            e("s_add_u32 s83, s81, 4096")
            for k in range(7): e(f"buffer_load_dwordx4 v[252:255], v{vL16}, {AUX}, s{81 if k < 4 else 83} offen offset:{(k&3)*1024}")
    e('L_ln_x:')
    wcalc()
    e("v_mov_b32 v8, 0x3f803f80")
    for i in range(4): e(f"v_accvgpr_write_b32 a{i}, v8")
    e(f"v_lshlrev_b32 v12, 10, v{vC}\nv_add_u32 v12, s82, v12\nv_lshlrev_b32 v13, 2, v{vG}\nv_xor_b32 v13, v13, v{vC}")
    AX = 156
    for r in range(4): e(f"v_xor_b32 v14, {r}, v13\nv_lshl_add_u32 v{AX+r}, v14, 4, v12")
    for u in range(2):
        RB = 16 + 64 * u
        if u: e(f"s_cmp_eq_u32 s{sHalf}, 0\ns_cbranch_scc0 L_ln_end")
        if u == 0: e(f"s_waitcnt vmcnt({16+7*len(PT)})\ns_cmp_eq_u32 s{sHalf}, 0\ns_cbranch_scc0 L_ln_w0\ns_cmp_eq_u32 s{sRound}, 0\ns_cbranch_scc1 L_ln_w\ns_waitcnt vmcnt(16)\ns_branch L_ln_w\nL_ln_w0:\ns_waitcnt vmcnt(0)\nL_ln_w:")
        else: e("s_waitcnt vmcnt(24)")
        for q in range(16): e(f"ds_read_b128 {vr(RB+4*q,4)}, v{AX+(q&3)} offset:{u*16384+(q>>2)*256}")
        if u == 0:
            e("s_barrier"); report(42, 8)
        if OPT.get('tl2') and u == 0:
            e(f"s_cmp_eq_u32 s{sRound}, 0\ns_cbranch_scc0 L_tla"); TLV[0] = 15; TL(8, 32); e("s_waitcnt vmcnt(0)\nL_tla:")
        for q in range(16):
            e(f"s_waitcnt lgkmcnt({15-q})\nv_mfma_f32_16x16x32_bf16 v[8:11], a[0:3], {vr(RB+4*q,4)}, {'0' if q == 0 else 'v[8:11]'}")
            for d in range(4):
                r = RB + 4 * q + d
                e(f"v_dot2_f32_bf16 v{12+d}, v{r}, v{r}, {'0' if q == 0 else 'v%d' % (12+d)}")
        if u == 0: wissue()
        e("v_add_f32 v12, v12, v13\nv_add_f32 v14, v14, v15\nv_add_f32 v12, v12, v14")
        e("v_mov_b32 v13, v12\nv_permlane32_swap_b32 v12, v13\nv_add_f32 v12, v12, v13")
        e("v_mov_b32 v13, v12\nv_permlane16_swap_b32 v12, v13\nv_add_f32 v12, v12, v13")
        e(f"v_mul_f32 v8, {fbits(1/512):#x}, v8\nv_mul_f32 v12, {fbits(1/512):#x}, v12")
        e(f"v_fma_f32 v12, -v8, v8, v12\nv_max_f32 v12, 0, v12\nv_add_f32 v12, {fbits(1e-5):#x}, v12\nv_rsq_f32 v144, v12")
        e("v_mul_f32 v146, -v8, v144".replace("v_mul_f32 v146, -v8, v144", "v_mul_f32_e64 v146, -v8, v144"))
        if OPT.get('tl2') and u == 0:
            e(f"s_cmp_eq_u32 s{sRound}, 0\ns_cbranch_scc0 L_tlb"); TL(9, 32); e("L_tlb:")
        k = 0
        for wp in range(4):
            for tp in range(4):
                oq = 152 if (wp * 4 + tp) & 1 else 12
                for r in range(4):
                    src = RB + (wp * 4 + r) * 4 + tp
                    t = 148 + 2 * (k & 1); k += 1
                    e(f"v_lshlrev_b32 v{t}, 16, v{src}\nv_and_b32 v{t+1}, 0xffff0000, v{src}")
                    e(f"v_pk_fma_f32 v[{t}:{t+1}], v[{t}:{t+1}], v[144:145], v[146:147] op_sel_hi:[1,0,0]")
                    e(f"v_cvt_pk_bf16_f32 v{oq+r}, v{t}, v{t+1}")
                e(f"ds_write_b128 v{vA0}, {vr(oq,4)} offset:{u*16384+(wp*4+tp)*1024}")
    e("L_ln_end:")
    e("L_gemm:")
    if OPT.get('tl'):
        e(f"s_cmp_eq_u32 s{sRound}, 0\ns_cbranch_scc0 L_tl1"); TL(2, 32); e("L_tl1:")
    for i in range(256): e(f"v_accvgpr_write_b32 a{i}, 0")
    e(f"v_mov_b32 v{vA0}, v{vL16}\nv_add_u32 v{vA1}, 0x10000, v{vL16}\nv_lshrrev_b32 v15, 2, v{vL16}\nv_mov_b32 v14, 0\ns_or_b32 s92, s{S_WAVE}, s{S_OK}\ns_cmp_eq_u32 s92, 0\ns_cselect_b32 s92, s{sNB}, 0")
    e(f"s_mov_b32 s{sBlk}, 0\ns_mov_b32 s{sCnt}, 1")
    e("s_waitcnt lgkmcnt(0)\ns_barrier")
    e(f"s_cmp_eq_u32 s{sPass}, 27\ns_cselect_b32 s80, s{S_WAVE}, 0\ns_cmp_eq_u32 s{sType}, 2\ns_cselect_b32 s80, s80, 0\ns_cmp_ge_u32 s80, 2\ns_cbranch_scc1 L_epi")
    def xnread(T, jloc, base=16):
        return f"ds_read_b128 {vr(base+4*T,4)}, v{vA0 if T < 4 else vA1} offset:{(T&3)*16384+jloc*1024}"
    def perm(ring, t, rp, msk=1):
        return f"v_perm_b32 v{WF+4*(t&msk)+rp}, v{ring+4*(2*rp+1)+(t>>1)}, v{ring+4*(2*rp)+(t>>1)}, s{sHi if t&1 else sLo}"
    if OPT.get('tl2'):
        e(f"s_cmp_eq_u32 s{sRound}, 0\ns_cbranch_scc0 L_tlc"); TL(10, 32); e("s_waitcnt vmcnt(0)\nL_tlc:")
    if OPT.get('clk'): e("s_memtime s[84:85]\ns_memrealtime s[94:95]\ns_waitcnt lgkmcnt(0)")
    for T in range(8): e(xnread(T, 0))
    e("s_waitcnt vmcnt(16)")
    for rp in range(4): e(perm(RING[0], 0, rp)); e(perm(RING[0], 1, rp))
    e("s_waitcnt lgkmcnt(0)")
    e(f"s_cmp_eq_u32 s{sHalf}, 0\ns_cbranch_scc0 L_halfsel\ns_cmp_eq_u32 s{sType}, 1\ns_cbranch_scc1 L_loopB8\ns_branch L_loopA8")
    e(f"L_halfsel:\ns_cmp_eq_u32 s{sType}, 1\ns_cbranch_scc1 L_loopB4")
    for ori, NT in (("A", 4), ("B", 4), ("A", 8), ("B", 8)):
        e(f"L_loop{ori}{NT}:")
        if OPT.get('tl3') is not None:
            e(f"s_cmp_eq_u32 s{sRound}, {OPT['tl3']}\ns_cbranch_scc0 L_tle{ori}{NT}\ns_memrealtime s[98:99]\ns_lshl_b32 s97, s{S_IDX}, 6\ns_lshl_b32 s96, s{sCnt}, 2\ns_add_u32 s97, s97, s96\ns_add_u32 s97, s97, {WS_STAMP + 0x8000 + 32*64 + 28:#x}\ns_waitcnt lgkmcnt(0)\nv_mov_b32 v15, s98\nbuffer_store_dword v15, off, {WS}, s97\nL_tle{ori}{NT}:")
        e(f"s_add_u32 s{sBlkN}, s{sBlk}, s{s128}\ns_cmp_lt_u32 s{sCnt}, s{sNB}\ns_cselect_b32 s{sBlkN}, s{sBlkN}, {OOB:#x}")
        for tp in range(4):
            ring = RING[tp]; nring = RING[(tp + 1) & 3]; lring = RING[(tp + 3) & 3]
            tpp = (tp + 3) & 3
            base = sBlk if tp == 0 else sBlkN
            xc, xn_ = XN + (32 if tp & 1 else 0), XN + (0 if tp & 1 else 32)
            if tpp: e(f"s_add_u32 s{sB}, s{base}, s{s2RS[tpp]}")
            else: e(f"s_mov_b32 s{sB}, s{base}")
            for t in range(8):
                for T in range(NT):
                    a = ar(acc(t, T), 4); w = vr(WF + 4 * (t & (1 if NT == 8 else 3)), 4); x = vr(xc + 4 * T, 4)
                    e(f"v_mfma_f32_16x16x32_bf16 {a}, {w if ori == 'A' else x}, {x if ori == 'A' else w}, {a}")
                    li = None
                    if NT == 8 and 1 <= t <= 4 and T in (0, 6): li = (t - 1) * 2 + (T == 6)
                    if NT == 4 and t < 4 and T in (0, 2): li = 2 * t + (T == 2)
                    if li is not None:
                        e(f"s_add_u32 s{sT0}, s{sB}, s{sRow[li]}")
                        e(f"buffer_load_dwordx4 {vr(lring+4*li,4)}, v{vW}, {W}, s{sT0} offen")
                    if tp == 1 and t == 5 and T == 0:
                        e(f"s_cmp_eq_u32 s{sCnt}, s92\ns_cbranch_scc0 L_nc{ori}{NT}\nglobal_load_dword v14, v15, s[{P_DBG}:{P_DBG+1}] sc1\nL_nc{ori}{NT}:")
                    if t == (7 if NT == 8 else 6) and T == 0: e("s_waitcnt vmcnt(16)")
                    if NT == 8 and T == 7 and t < 7: e(xnread(t, tp + 1, xn_))
                    if NT == 8 and T == 1 and t == 6: e(xnread(7, tp + 1, xn_))
                    if NT == 4 and T == 1 and t < 4: e(xnread(t, tp + 1, xn_))
                    if t == 7 and T == NT - 1: e("s_waitcnt lgkmcnt(0)")
                    if NT == 8 and 2 <= T < 6: e(perm(ring, t + 1, T - 2) if t < 7 else perm(nring, 0, T - 2))
                    if NT == 4: e(perm(ring, t + 2, T, 3) if t < 6 else perm(nring, t - 6, T, 3))
        e(f"v_add_u32 v{vA0}, 0x1000, v{vA0}\nv_add_u32 v{vA1}, 0x1000, v{vA1}")
        e(f"s_mov_b32 s{sBlk}, s{sBlkN}\ns_add_u32 s{sCnt}, s{sCnt}, 1\ns_cmp_le_u32 s{sCnt}, s{sNB}\ns_cbranch_scc1 L_loop{ori}{NT}")
        if (ori, NT) != ("B", 8): e("s_branch L_epi")
    e("L_epi:")
    if OPT.get('tl'):
        e(f"s_cmp_eq_u32 s{sRound}, 0\ns_cbranch_scc0 L_tl2"); TL(3, 32); e("L_tl2:")
    e("s_waitcnt vmcnt(0) lgkmcnt(0)\ns_nop 7")
    e(f"s_cmp_eq_u32 s{S_OK}, 1\ns_cbranch_scc1 L_cf42_ok\nv_add_u32 v15, 0x20000, v15\ns_cmp_eq_u32 s{S_WAVE}, 0\ns_cbranch_scc0 L_cfb\nds_write_b32 v15, v14\ns_waitcnt lgkmcnt(0)\nL_cfb:\ns_barrier\nds_read_b32 v14, v15\ns_waitcnt lgkmcnt(0)")
    confirm_check(42, 14, 10)
    if OPT.get('clk'):
        e(f"s_cmp_eq_u32 s{sRound}, 0\ns_cbranch_scc0 L_clk\ns_memtime s[96:97]\ns_memrealtime s[98:99]\ns_waitcnt lgkmcnt(0)\ns_sub_u32 s96, s96, s84\ns_sub_u32 s98, s98, s94")
        e(f"s_lshl_b32 s97, s{S_IDX}, 6\ns_add_u32 s97, s97, {WS_STAMP + 0x8000 + 32*64 + 32:#x}\nv_mov_b32 v15, s96\nbuffer_store_dword v15, off, {WS}, s97\nv_mov_b32 v15, s98\nbuffer_store_dword v15, off, {WS}, s97 offset:4\nv_mov_b32 v15, s{sHalf}\nbuffer_store_dword v15, off, {WS}, s97 offset:8\nL_clk:")
    cnt = [0]
    def thr(first_half=False):
        if OPT.get('thr') is not None and not (first_half and OPT.get('thrh')): e(f"s_waitcnt vmcnt({OPT['thr']})")
    def pack(pairs, scale=None):
        k = cnt[0]; cnt[0] += 1
        tb = 64 + 8 * (k & 1); q = 80 + 4 * (k & 3)
        for r, (a, b) in enumerate(pairs):
            e(f"v_accvgpr_read_b32 v{tb+2*r}, a{a}\nv_accvgpr_read_b32 v{tb+2*r+1}, a{b}")
        for r in range(4):
            if scale: e(f"v_pk_mul_f32 v[{tb+2*r}:{tb+2*r+1}], v[{tb+2*r}:{tb+2*r+1}], {scale}")
        for r in range(4): e(f"v_cvt_pk_bf16_f32 v{q+r}, v{tb+2*r}, v{tb+2*r+1}")
        return q
    e(f"s_lshl_b32 s82, s{sTile}, {RS_+2}\ns_mul_i32 s83, s78, {RHS:#x}\ns_add_u32 s82, s82, s83\ns_lshr_b32 s83, s{sHalf}, 1\ns_lshl_b32 s83, s83, {RS_+1}\ns_add_u32 s82, s82, s83")
    e(f"s_cmp_eq_u32 s{sType}, 1\ns_cbranch_scc1 L_epiV\ns_cmp_eq_u32 s{sType}, 2\ns_cbranch_scc1 L_epiF1")
    e(f"s_cmp_eq_u32 s{sType}, 3\ns_cbranch_scc1 L_epiF2\ns_cmp_eq_u32 s{sType}, 4\ns_cbranch_scc1 L_epiQ")
    for nm, base, fl in (("K", WS_K, F_KV), ("Q", WS_Q, F_REST)):
        e(f"L_epi{nm}:")
        if nm == "Q": e(f"s_mov_b32 s84, {CSCALE:#x}\ns_mov_b32 s85, {CSCALE:#x}\ns_lshr_b32 s82, s82, 1")
        for T in range(8):
            if T == 4 and nm == "K": e(f"s_cmp_eq_u32 s{sHalf}, 0\ns_cbranch_scc0 L_kvdone")
            e(f"s_add_u32 s83, s82, {base + (T>>1)*(SEGS if nm == 'K' else SEGS//2) + (T&1)*4096:#x}")
            for j in range(4):
                q = pack([(acc(2*j, T)+r, acc(2*j+1, T)+r) for r in range(4)], "s[84:85]" if nm == "Q" else None)
                e(f"buffer_store_dwordx4 {vr(q,4)}, v{vL16 if nm == 'Q' else 0}, {WS}, s83 offen offset:{j*1024} sc1"); thr(T < 4 and nm == "K")
        e(f"s_mov_b32 s83, {WS_FLAG+fl:#x}\ns_branch L_done")
    e("L_epiV:")
    for sg in range(4):
        if sg == 2: e(f"s_cmp_eq_u32 s{sHalf}, 0\ns_cbranch_scc0 L_kvdone")
        for t in range(8):
            if (t & 3) == 0: e(f"s_add_u32 s83, s82, {WS_V + sg*SEGS + (t>>2)*4096:#x}")
            a0, a1 = acc(t, 2*sg), acc(t, 2*sg+1)
            q = pack([(a0, a0+1), (a0+2, a0+3), (a1, a1+1), (a1+2, a1+3)])
            e(f"buffer_store_dwordx4 {vr(q,4)}, v{vL16}, {WS}, s83 offen offset:{(t&3)*1024} sc1"); thr(sg < 2)
    e(f"L_kvdone:\ns_mov_b32 s83, {WS_FLAG+F_KV:#x}\ns_branch L_done")
    e("L_epiF2:")
    e(f"s_sub_u32 s83, s{sPass}, 24\ns_lshl_b32 s83, s83, 21\ns_lshl_b32 s84, s{sTile}, 17\ns_add_u32 s83, s83, s84\ns_lshl_b32 s84, s{S_WAVE}, 12\ns_add_u32 s82, s83, s84")
    for T in range(8):
        e(f"s_add_u32 s83, s82, {WS_FP + T*16384:#x}")
        for r in range(4):
            q = pack([(acc(2*tp, T)+r, acc(2*tp+1, T)+r) for tp in range(4)])
            e(f"buffer_store_dwordx4 {vr(q,4)}, v{vL16}, {WS}, s83 offen offset:{r*1024} sc1"); thr()
    e(f"s_mov_b32 s83, {WS_FLAG+F_REST:#x}\ns_branch L_done")
    e("L_epiF1:")
    srd(48, P_B1, 3584)
    e(f"v_lshlrev_b32 v8, 6, v{vG}")
    for r in range(4): e(f"buffer_load_dwordx4 {vr(16+4*r,4)}, v8, {AUX}, s79 offen offset:{r*16}")
    e(f"s_sub_u32 s83, s{sPass}, 24\ns_lshl_b32 s83, s83, 19\ns_lshl_b32 s79, s{S_WAVE}, 8\ns_add_u32 s79, s79, s83")
    e(f"s_mov_b32 s{sType}, 3\ns_mov_b32 s44, s{P_W2}\ns_mov_b32 s45, s{P_W2+1}\ns_mov_b32 s46, {1792*1024}\ns_mov_b32 s47, 0x20000\ns_mov_b32 s{sRS}, 1024")
    e(f"s_cmp_eq_u32 s{sPass}, 27\ns_cselect_b32 s{sNB}, 2, 4")
    wsetup()
    e("s_waitcnt vmcnt(24)")
    for r in range(4):
        for d in range(4):
            e(f"v_lshlrev_b32 v{32+r*8+2*d}, 16, v{16+4*r+d}\nv_and_b32 v{33+r*8+2*d}, 0xffff0000, v{16+4*r+d}")
    e(f"s_lshl_b32 s80, s{S_WAVE}, 12\nv_add_u32 v{vA0}, s80, v{vL16}\nv_add_u32 v{vA1}, 0x10000, v{vA0}")
    e("s_barrier")
    k = 0
    for T in range(8):
        for tp in range(4):
            tb = 64 + 16 * (k & 1); q = 96 + 4 * (k & 1); k += 1
            for r in range(4):
                e(f"v_accvgpr_read_b32 v{tb+2*r}, a{acc(2*tp,T)+r}\nv_accvgpr_read_b32 v{tb+2*r+1}, a{acc(2*tp+1,T)+r}")
            for r in range(4):
                b = 32 + r * 8 + 2 * tp
                e(f"v_pk_add_f32 v[{tb+2*r}:{tb+2*r+1}], v[{tb+2*r}:{tb+2*r+1}], v[{b}:{b+1}]")
            for r in range(8): e(f"v_max_f32 v{tb+r}, 0, v{tb+r}")
            for r in range(4): e(f"v_pk_mul_f32 v[{tb+2*r}:{tb+2*r+1}], v[{tb+2*r}:{tb+2*r+1}], v[{tb+2*r}:{tb+2*r+1}]")
            for r in range(4): e(f"v_cvt_pk_bf16_f32 v{q+r}, v{tb+2*r}, v{tb+2*r+1}")
            e(f"ds_write_b128 v{vA0 if T < 4 else vA1}, {vr(q,4)} offset:{(T&3)*16384+tp*1024}")
    e("s_branch L_gemm")
    e("L_done:")
    e(f"s_lshl_b32 s84, s{sTile}, 6\ns_add_u32 s83, s83, s84")
    if OPT.get('tl2'):
        e(f"s_cmp_eq_u32 s{sRound}, 0\ns_cbranch_scc0 L_tld"); TL(11, 32); e("L_tld:")
    e("s_waitcnt vmcnt(0)\ns_barrier")
    if OPT.get('rb'):
        e(f"s_cmp_gt_u32 s{sType}, 1\ns_cbranch_scc1 L_rb_end\ns_lshl_b32 s85, s{sType}, 13\ns_add_u32 s85, s85, s82\ns_add_u32 s85, s85, {WS_K:#x}")
        for sg in range(4):
            for k in range(8):
                if k == 4: e("s_add_u32 s85, s85, 4096")
                e(f"buffer_load_dwordx4 {vr(64+4*k,4)}, v{vL16}, {WS}, s85 offen offset:{(k&3)*1024} sc1")
            e(f"s_add_u32 s85, s85, {SEGS-4096}")
        e("L_rb_end:")
    e(f"s_cmp_eq_u32 s{S_WAVE}, 0\ns_cbranch_scc0 L_done2")
    e(f"s_cmp_eq_u32 s{sHalf}, 0\ns_cselect_b32 s84, 2, 1\ns_mov_b64 exec, 1\nv_mov_b32 v8, s84\nbuffer_atomic_add v8, off, {WS}, s83\ns_mov_b64 exec, -1")
    e("L_done2:")
    if OPT.get('tl'):
        e(f"s_cmp_eq_u32 s{sRound}, 0\ns_cbranch_scc0 L_tl3"); TL(4, 32); e("L_tl3:")
    e(f"s_add_u32 s{sRound}, s{sRound}, 1\ns_cmp_lt_u32 s{sRound}, {OPT.get('rounds', 3)}\ns_cbranch_scc1 L_task\nL_g1_end:")
    if OPT['skip_g3']:
        e("s_waitcnt vmcnt(0)\ns_branch L_end")
        return
    sH, sSeg, sSH, sTq, sEh = 52, 53, 54, 55, 56
    TL(5, 32); DTL(10, 14)
    OUT, B2 = "s[44:47]", "s[48:51]"
    WO = 128
    e(f"s_and_b32 s{sH}, s{S_IDX}, 31\ns_lshr_b32 s{sSeg}, s{S_IDX}, 5\ns_and_b32 s{sTq}, s{S_WAVE}, 1\ns_lshr_b32 s{sEh}, s{S_WAVE}, 1")
    e(f"v_lshlrev_b32 v8, 4, v{vC}\nv_lshrrev_b32 v9, 1, v{vG}\nv_lshl_add_u32 v8, v9, 19, v8\nv_and_b32 v9, 1, v{vG}\nv_lshl_add_u32 v8, v9, 17, v8")
    e(f"s_lshl_b32 s78, s{S_WAVE}, 14\ns_lshl_b32 s79, s{sH}, 8\ns_add_u32 s78, s78, s79\nv_add_u32 v8, s78, v8")
    e(f"s_lshl_b32 s78, s{S_WAVE}, 12\nv_add_u32 v9, s78, v{vL16}\nv_add_u32 v10, 0x10000, v9\ns_lshl_b32 s78, s{S_WAVE}, 15\nv_add_u32 v11, s78, v{vL16}")
    for mi, ptr in enumerate((P_WK, P_WV)):
        srd(44, ptr, 0x400000)
        for par in range(2):
            for j2 in range(8):
                for hb in range(2):
                    row = 256 * par + 128 * (j2 >> 2) + 32 * (j2 & 1) + 8 * ((j2 & 3) >> 1) + hb
                    e(f"s_mov_b32 s78, {row*8192:#x}\nbuffer_load_dwordx4 {vr(24+64*par+(j2*2+hb)*4,4)}, v8, s[44:47], s78 offen")
        e("s_waitcnt lgkmcnt(0)\ns_barrier")
        k = 0
        for par in range(2):
            e(f"s_waitcnt vmcnt({16*(1-par)})")
            raw = 24 + 64 * par
            for t in range(8):
                for hf in range(2):
                    q = 160 + 4 * (k % 3); k += 1
                    for jl in range(4):
                        j2 = hf * 4 + jl
                        e(f"v_perm_b32 v{q+jl}, v{raw+(j2*2+1)*4+(t>>1)}, v{raw+(j2*2)*4+(t>>1)}, s{sHi if t&1 else sLo}")
                    e(f"ds_write_b128 v{9 if t < 4 else 10}, {vr(q,4)} offset:{(t&3)*16384+par*2048+hf*1024}")
        e("s_waitcnt lgkmcnt(0)\ns_barrier")
        for f in range(32): e(f"ds_read_b128 {ar(128*mi+4*f,4)}, v11 offset:{f*1024}")
    srd(44, P_WO, 0x400000)
    e(f"v_lshlrev_b32 v8, 4, v{vC}\nv_lshl_add_u32 v8, v{vG}, 15, v8")
    e(f"s_lshl_b32 s78, s{sH}, 17\ns_lshl_b32 s79, s{S_WAVE}, 8\ns_add_u32 s78, s78, s79")
    for half in range(2):
        for jj in range(2):
            for i in range(8):
                row = 8 * (i >> 1) + (i & 1) + 2 * (2 * half + jj)
                e(f"s_add_u32 s79, s78, {row*1024}\nbuffer_load_dwordx4 {vr(24+32*jj+4*i,4)}, v8, s[44:47], s79 offen")
        for jj in range(2):
            e(f"s_waitcnt vmcnt({8*(1-jj)})")
            for t in range(8):
                for rp in range(4):
                    rb = 24 + 32 * jj
                    e(f"v_perm_b32 v{WO+((2*half+jj)*8+t)*4+rp}, v{rb+4*(2*rp+1)+(t>>1)}, v{rb+4*(2*rp)+(t>>1)}, s{sHi if t&1 else sLo}")
    srd(44, P_OUT, 2048 * 1024)
    srd(48, P_B2, 1024)
    sRo, sCo = 57, 58
    e(f"s_lshr_b32 s78, s{sH}, 2\ns_lshl_b32 s78, s78, 2\ns_add_u32 s78, s78, s{S_WAVE}\ns_lshl_b32 s78, s78, 10\ns_and_b32 s79, s{sH}, 3\ns_lshl_b32 s{sRo}, s79, 8\ns_add_u32 s{sRo}, s{sRo}, s78")
    e(f"s_lshr_b32 s78, s{sH}, 3\ns_lshl_b32 s{sCo}, s78, 8\ns_lshl_b32 s79, s79, 6\ns_add_u32 s{sCo}, s{sCo}, s79\ns_lshl_b32 s79, s{S_WAVE}, 4\ns_add_u32 s{sCo}, s{sCo}, s79")
    e(f"v_lshlrev_b32 v11, 4, v{vC}\nv_lshl_add_u32 v9, v{vG}, 15, v11\nv_lshl_add_u32 v10, v{vG}, 21, v11\nv_lshlrev_b32 v11, 10, v{vC}\nv_lshl_add_u32 v12, v{vG}, 3, v11")
    e(f"v_mov_b32 v13, {OOB:#x}\nv_cmp_eq_u32 vcc, 0, v{vG}\nv_cndmask_b32 v11, v13, v11, vcc\nv_cndmask_b32 v8, v13, 0, vcc\nv_cmp_gt_u32 vcc, 2, v{vG}\nv_cndmask_b32 v12, v13, v12, vcc")
    e(f"s_lshl_b32 s78, s{sTq}, 4\nv_lshlrev_b32 v13, 2, v{vG}\nv_sub_u32 v13, v{vC}, v13\nv_add_u32 v13, s78, v13")
    for d in range(4):
        e(f"v_mov_b32 v{16+d}, 0\nv_mov_b32 v14, 0x3f80\nv_cmp_eq_u32 vcc, {2*d}, v{vC}\nv_cndmask_b32 v{16+d}, v{16+d}, v14, vcc")
        e(f"v_mov_b32 v14, 0x3f800000\nv_cmp_eq_u32 vcc, {2*d+1}, v{vC}\nv_cndmask_b32 v{16+d}, v{16+d}, v14, vcc\nv_mov_b32 v{20+d}, 0x3f803f80")
    e(f"v_lshrrev_b32 v14, 2, v{vC}\nv_lshlrev_b32 v14, 7, v14\nv_lshl_add_u32 v14, v{vG}, 5, v14\nv_and_b32 v15, 3, v{vC}\nv_lshl_add_u32 v14, v15, 2, v14\nv_bfe_u32 v15, v{vC}, 2, 1\nv_lshlrev_b32 v15, 6, v15\nv_xor_b32 v14, v14, v15")
    e(f"v_and_b32 v15, 2, v{vC}\nv_mov_b32 v{vG}, 0x4444\nv_mov_b32 v{vC}, 0xeeee\nv_cmp_eq_u32 vcc, 0, v15\nv_cndmask_b32 v{vG}, v{vC}, v{vG}, vcc")
    e(f"s_lshl_b32 s78, s{S_WAVE}, 9\ns_add_u32 s78, s78, 16384\nv_add_u32 v{vC}, s78, v14\ns_lshl_b32 s78, s{S_WAVE}, 11\ns_add_u32 m0, s78, 8192")
    vIDX, vXW = vG, vC
    e(f"s_mov_b32 s59, {SENT:#x}\ns_mov_b32 s60, {INF:#x}\ns_mov_b32 s61, 0\ns_mov_b32 s62, {OOB:#x}\ns_lshl_b32 s65, s{sSeg}, {20 if OPT.get('apfull') else 21}\ns_add_u32 s65, s65, {WS_AP:#x}\ns_waitcnt lgkmcnt(0)\ns_barrier")
    SEL, ONES = "v[16:19]", "v[20:23]"
    mm = "v_mfma_f32_16x16x32_bf16"; m16 = "v_mfma_f32_16x16x16_bf16"
    e("L_g3:")
    e(f"s_lshl_b32 s{sSH}, s{sSeg}, 5\ns_add_u32 s{sSH}, s{sSH}, s{sH}")
    e(f"s_lshr_b32 s78, s{sSeg}, 2\nL_g3_rdy:\ns_bitcmp1_b32 s61, s78\ns_cbranch_scc1 L_g3_rdyok")
    e(f"s_mov_b32 s79, {WS_FLAG+F_KV:#x}\nv_lshlrev_b32 v14, 2, v{vL16}\nbuffer_load_dword v14, v14, {WS}, s79 offen sc1\ns_waitcnt vmcnt(0)")
    e("v_cmp_le_u32 vcc, 24, v14\ns_lshr_b32 s61, vcc_lo, 16\nv_cmp_le_u32 vcc, 32, v14\ns_and_b32 s61, s61, vcc_lo")
    fail_if_zero(4)
    e("s_sleep 16\ns_branch L_g3_rdy\nL_g3_rdyok:")
    e(f"s_mul_i32 s86, s{sH}, {RHS:#x}\ns_lshl_b32 s80, s{sSeg}, {RS_}\ns_add_u32 s86, s86, s80")
    e(f"s_mov_b32 s80, s86\ns_lshl_b32 s81, s{sTq}, 12\ns_lshr_b32 s82, s80, 1\ns_add_u32 s81, s81, s82\ns_add_u32 s81, s81, {WS_Q:#x}")
    for j in range(4): e(f"buffer_load_dwordx4 {vr(24+4*j,4)}, v{vL16}, {WS}, s81 offen offset:{j*1024} sc1")
    e(f"s_add_u32 s81, s80, {WS_K:#x}\ns_add_u32 s82, s80, {WS_K+4096:#x}")
    for kt in range(2):
        for j in range(4): e(f"buffer_load_dwordx4 {vr(40+16*kt+4*j,4)}, v0, {WS}, s{81+kt} offen offset:{j*1024} sc1")
    e(f"s_lshl_b32 s81, s{sEh}, 12\ns_add_u32 s81, s81, s80\ns_add_u32 s81, s81, {WS_V:#x}")
    for t in range(4): e(f"buffer_load_dwordx4 {vr(72+4*t,4)}, v{vL16}, {WS}, s81 offen offset:{t*1024} sc1")
    e(f"s_bfe_u32 s84, s{sH}, 0x10002\ns_lshl_b32 s83, s{sSeg}, 1\ns_add_u32 s83, s83, s84\ns_lshl_b32 s83, s83, 14")
    e(f"s_lshr_b32 s84, s{sH}, 3\ns_lshl_b32 s84, s84, 2\ns_add_u32 s84, s84, s{S_WAVE}\ns_lshl_b32 s84, s84, 10\ns_and_b32 s85, s{sH}, 3\ns_lshl_b32 s85, s85, 8\ns_add_u32 s85, s85, s84")
    e(f"s_add_u32 s85, s85, s83\ns_add_u32 s85, s85, {WS_FP:#x}\ns_add_u32 s83, s83, s{sCo}")
    e(f"buffer_load_dwordx4 v[88:91], v11, {X}, s83 offen\nbuffer_load_dwordx4 v[92:95], v8, {B2}, s{sCo} offen\nbuffer_load_dwordx4 v[96:99], v10, {WS}, s85 offen sc1")
    def reduce(code):
        e(f"L_rp{code}:\nv_lshrrev_b32 v14, 2, v{vL16}\nbuffer_load_dword v14, v14, {WS}, s62 offen sc1\ns_waitcnt vmcnt(0)\nv_cmp_eq_u32 vcc, 1, v14\ns_cmp_eq_u32 vcc_lo, -1\ns_cbranch_scc1 L_rp{code}_ok")
        fail_if_zero(code)
        e(f"s_branch L_rp{code}\nL_rp{code}_ok:")
        if OPT.get('tlg') and code == 17: TLV[0] = 15; TL(11, 32)
        for hf in range(2):
            for i in range(4): e(f"buffer_load_dwordx4 {vr(100+4*i,4)}, v9, {WS}, s64 offen sc1\ns_add_u32 s64, s64, 0x20000")
            for i in range(4): e(f"s_waitcnt vmcnt({3-i})\n{mm} v[2:5], {SEL}, {vr(100+4*i,4)}, v[2:5]")
        e("v_cvt_pk_bf16_f32 v14, v2, v3\nv_cvt_pk_bf16_f32 v15, v4, v5")
        e(f"buffer_store_dwordx2 v[14:15], v12, {OUT}, s63 offen")
    e(f"s_cmp_eq_u32 s62, {OOB:#x}\ns_cbranch_scc1 L_g3_first")
    reduce(7)
    if OPT.get('wb', 1):
        e(f"s_cmp_lt_u32 s{sSeg}, 57\ns_cbranch_scc1 L_g3_first\ns_or_b32 s78, s{sH}, s{S_WAVE}\ns_cmp_eq_u32 s78, 0\ns_cbranch_scc0 L_g3_first\nbuffer_wbl2 sc1")
    e("L_g3_first:")
    e("s_waitcnt vmcnt(7)")
    for kt in range(2):
        for j in range(4):
            s = vr(108 + 4 * kt, 4)
            e(f"{mm} {s}, {vr(40+16*kt+4*j,4)}, {vr(24+4*j,4)}, {'0' if j == 0 else s}")
    e("s_waitcnt vmcnt(0)")
    e(f"{mm} v[2:5], {SEL}, v[88:91], 0\n{mm} v[2:5], {SEL}, v[92:95], v[2:5]\n{mm} v[2:5], {SEL}, v[96:99], v[2:5]")
    e(f"v_mov_b32 v15, {fbits(-3.0e38):#x}")
    for kt in range(2):
        for r in range(4):
            e(f"v_cmp_le_i32 vcc, {16*kt+r}, v13\nv_cndmask_b32 v{108+4*kt+r}, v15, v{108+4*kt+r}, vcc")
    e("v_max3_f32 v124, v108, v109, v110\nv_max3_f32 v125, v111, v112, v113\nv_max3_f32 v124, v124, v114, v115\nv_max_f32 v124, v124, v125")
    for i in range(8): e(f"v_mov_b64 v[{88+2*i}:{89+2*i}], 0")
    e(f"s_lshl_b32 s80, s{sSeg}, 13\ns_add_u32 s80, s80, {WS_MH:#x}\ns_sub_u32 s79, s80, 8192\ns_cmp_eq_u32 s{sSeg}, 0\ns_cbranch_scc1 L_g3_m")
    e(f"s_cmp_eq_u32 s{S_WAVE}, 0\ns_cbranch_scc0 L_g3_prb")
    e(f"L_g3_pre:\nbuffer_load_dword v14, off, {WS}, s79 sc1\ns_waitcnt vmcnt(0)\nv_cmp_eq_u32 vcc, s59, v14\ns_cbranch_vccz L_g3_prb")
    fail_if_zero(6)
    e(f"s_sleep {OPT.get('nap', 12)}\ns_branch L_g3_pre\nL_g3_prb:\ns_barrier")
    e(f"L_g3_m:\ns_lshl_b32 s79, s{S_WAVE}, 11\ns_add_u32 s79, s79, s80")
    e(f"L_g3_mp:\nbuffer_load_dwordx4 v{vL16}, {WS}, s79 offen sc1 lds\nbuffer_load_dwordx4 v{vL16}, {WS}, s79 offen offset:1024 sc1 lds\ns_waitcnt vmcnt(0)\ns_barrier")
    for k in range(8): e(f"ds_read_b128 {vr(40+4*k,4)}, v{vL16} offset:{8192+k*1024}")
    e("s_waitcnt lgkmcnt(0)\nv_max3_i32 v14, v40, v41, v42")
    for k in range(43, 71, 2): e(f"v_max3_i32 v14, v14, v{k}, v{k+1}")
    e("v_max_i32 v14, v14, v71\nv_cmp_le_i32 vcc, s60, v14\ns_cbranch_vccnz L_g3_mslow\nL_g3_mok:")
    if OPT.get('tlg'): TLV[0] = 15; TL(8, 32)
    for mi in range(2):
        for tt in range(2):
            for sg in range(8):
                e(f"v_smfmac_f32_16x16x64_bf16 {vr(88+8*mi+4*tt,4)}, {vr(40+4*sg,4)}, {ar(128*mi+(tt*8+sg)*8,8)}, v{vIDX}")
                if (mi, tt, sg) == (1, 0, 3):
                    e("v_add_f32 v88, v88, v90\nv_add_f32 v89, v89, v91\nv_add_f32 v92, v92, v94\nv_add_f32 v93, v93, v95\nv_cvt_pk_bf16_f32 v88, v88, v92\nv_cvt_pk_bf16_f32 v89, v89, v93")
                    e(f"ds_write2_b32 v{vXW}, v88, v89 offset0:0 offset1:4")
    e(f"s_lshl_b32 s78, s{S_WAVE}, 9\nv_lshrrev_b32 v15, 1, v{vL16}\nv_add_u32 v14, s78, v15")
    e("v_add_f32 v96, v96, v98\nv_add_f32 v97, v97, v99\nv_add_f32 v100, v100, v102\nv_add_f32 v101, v101, v103\nv_cvt_pk_bf16_f32 v96, v96, v97\nv_cvt_pk_bf16_f32 v97, v100, v101")
    e(f"ds_write_b64 v14, v[96:97] offset:18432\ns_lshl_b32 s78, s{sEh}, 10\nv_add_u32 v15, s78, v15\nv_and_b32 v14, 0x1ff, v0\ns_waitcnt lgkmcnt(0)\ns_barrier")
    for j in range(4): e(f"ds_read_b128 {vr(88+4*j,4)}, v14 offset:{16384+j*512}")
    for jj in range(2): e(f"ds_read_b64 {vr(104+2*jj,2)}, v15 offset:{18432+jj*512}")
    for j in range(4):
        e(f"s_waitcnt lgkmcnt({5-j})\n{mm} v[116:119], {vr(88+4*j,4)}, {vr(24+4*j,4)}, {'0' if j == 0 else 'v[116:119]'}")
    e("v_mov_b32 v45, 0\nv_mov_b32 v46, 0")
    e("v_max3_f32 v124, v124, v116, v117")
    e("v_mov_b32 v125, v124\nv_permlane32_swap_b32 v124, v125\nv_max_f32 v124, v124, v125")
    e("v_mov_b32 v125, v124\nv_permlane16_swap_b32 v124, v125\nv_max_f32 v124, v124, v125")
    for r in range(10): e(f"v_sub_f32 v{108+r}, v{108+r}, v124")
    for r in range(10): e(f"v_exp_f32 v{108+r}, v{108+r}")
    for d in range(4): e(f"v_cvt_pk_bf16_f32 v{40+d}, v{108+2*d}, v{109+2*d}")
    e("v_cvt_pk_bf16_f32 v44, v116, v117\nv_cvt_pk_bf16_f32 v47, v116, v117")
    e("s_waitcnt lgkmcnt(0)")
    e(f"{mm} v[120:123], {ONES}, v[40:43], 0")
    for t in range(4): e(f"{mm} {vr(48+4*t,4)}, {vr(72+4*t,4)}, v[40:43], 0")
    e(f"{m16} v[120:123], v[20:21], v[44:45], v[120:123]")
    for t in range(4):
        o = vr(48 + 4 * t, 4)
        e(f"{m16} {o}, {vr(104+2*(t>>1),2)}, {'v[46:47]' if t&1 else 'v[44:45]'}, {o}")
    e("v_rcp_f32 v124, v120")
    for r in range(16): e(f"v_mul_f32 v{48+r}, v{48+r}, v124")
    e(f"s_lshl_b32 s78, s{sTq}, 12\ns_lshl_b32 s79, s{sEh}, 11\ns_add_u32 s78, s78, s79\nv_add_u32 v14, s78, v{vL16}")
    for jj in range(2):
        for r in range(4): e(f"v_cvt_pk_bf16_f32 v{64+4*jj+r}, v{48+8*jj+r}, v{52+8*jj+r}")
        e(f"ds_write_b128 v14, {vr(64+4*jj,4)} offset:{jj*1024}")
    e("s_waitcnt lgkmcnt(0)\ns_barrier")
    if OPT.get('tlg'): TLV[0] = 15; TL(9, 32)
    for q in range(8): e(f"ds_read_b128 {vr(24+4*q,4)}, v{vL16} offset:{q*1024}")
    e(f"s_lshl_b32 s80, s{sH}, 15\ns_lshl_b32 s81, s{S_WAVE}, 13\ns_add_u32 s80, s80, s81\ns_add_u32 s80, s80, s65\ns_add_u32 s81, s80, 4096")
    for tq in range(2):
        for j in range(4):
            e(f"s_waitcnt lgkmcnt({7-(tq*4+j)})")
            for t in range(8):
                a = vr(56 + (tq * 8 + t) * 4, 4)
                e(f"{mm} {a}, {vr(WO+(j*8+t)*4,4)}, {vr(24+(tq*4+j)*4,4)}, {'0' if j == 0 else a}")
    e(f"s_lshl_b32 s62, s{sSeg}, 7\ns_add_u32 s62, s62, {WS_FLAG+F_G3:#x}\ns_lshl_b32 s78, s{sH}, 2\ns_add_u32 s78, s78, s62\ns_cmp_eq_u32 s{S_WAVE}, 0\ns_cselect_b32 s78, s78, {OOB:#x}")
    e(f"s_mov_b32 s63, s83\ns_add_u32 s64, s65, s{sRo}\n{'s_add_u32 s65, s65, 0x700000' if OPT.get('apfull') else 's_xor_b32 s65, s65, 0x100000'}\ns_cmp_eq_u32 s{S_MIX}, 0\ns_cbranch_scc0 L_g3_stx")
    for fl in ("", "sc1"):
        if fl: e("L_g3_stx:")
        for tq in range(2):
            for r in range(4):
                q = 120 + 4 * (r & 1)
                for tp in range(4):
                    e(f"v_cvt_pk_bf16_f32 v{q+tp}, v{56+(tq*8+2*tp)*4+r}, v{56+(tq*8+2*tp+1)*4+r}")
                e(f"buffer_store_dwordx4 {vr(q,4)}, v{vL16}, {WS}, s{80+tq} offen offset:{r*1024} {fl}")
        e("v_mov_b32 v14, 1\ns_waitcnt vmcnt(0)\ns_barrier")
        if OPT.get('tlg'): TLV[0] = 15; TL(10, 32)
        e(f"buffer_store_dword v14, off, {WS}, s78 {fl}")
        if not fl: e("s_branch L_g3_ste")
    e("L_g3_ste:")
    if OPT.get('tl'):
        e(f"s_cmp_lt_u32 s{sSeg}, 7\ns_cbranch_scc0 L_tl4"); TLV[0] = 124; TL(6, 32); e("L_tl4:")
    e(f"s_add_u32 s{sSeg}, s{sSeg}, 7\ns_cmp_lt_u32 s{sSeg}, 64\ns_cbranch_scc1 L_g3")
    reduce(17)
    TL(7, 32); DTL(9, 14)
    if OPT.get('probe_num'):
        e(f"v_mov_b32 v14, 0\nglobal_load_dword v14, v14, s[{P_DBG}:{P_DBG+1}] offset:24 sc1\ns_waitcnt vmcnt(0)\nv_readfirstlane_b32 s78, v14\ns_bcnt1_i32_b32 s78, s78\ns_cmp_eq_u32 s78, 1\ns_cbranch_scc1 L_pn\ns_mov_b32 s78, 40\nL_pn1:\ns_sleep 64\ns_sub_u32 s78, s78, 1\ns_cmp_lg_u32 s78, 0\ns_cbranch_scc1 L_pn1\nL_pn:")
    if OPT.get('wb', 1): e(f"s_or_b32 s78, s{sH}, s{S_WAVE}\ns_cmp_eq_u32 s78, 0\ns_cbranch_scc0 L_g3_nwb\nbuffer_wbl2 sc1\nL_g3_nwb:")
    e("s_waitcnt vmcnt(0)\ns_branch L_end")
    e("L_g3_mslow:")
    for k in range(40, 72): e(f"v_cmp_eq_u32 vcc, s59, v{k}\ns_cbranch_vccnz L_g3_mre")
    e("s_branch L_g3_mok\nL_g3_mre:")
    fail_if_zero(9)
    e(f"s_sleep {OPT.get('nap2', 0)}\ns_barrier\ns_branch L_g3_mp")
```
